```python
import torch

def _softmax(x, axis=-1):
    return torch.softmax(x, dim=axis)
def _gelu(x):
    return torch.nn.functional.gelu(x, approximate="tanh")
def _silu(x):
    return torch.nn.functional.silu(x)
def _sigmoid(x):
    return torch.sigmoid(x)
def _layernorm(x, axis=-1, eps=1e-5):
    m = x.mean(dim=axis, keepdim=True)
    v = x.var(dim=axis, keepdim=True, unbiased=False)
    return (x - m) / torch.sqrt(v + eps)
def _scatter_add(tgt, idx, src, axis=0):
    return tgt.clone().index_add_(axis, idx, src)
def _segment_sum(src, seg, n):
    out = torch.zeros((n,) + src.shape[1:], dtype=src.dtype)
    return out.index_add_(0, seg, src)
def _pad(x, pw):
    flat = tuple(v for pair in reversed(pw) for v in pair)
    return torch.nn.functional.pad(x, flat)

kernel_name = 'standalone__detection_seg_dino__vision'

def setup_inputs():

    _w = (lambda a: (lambda t: t.to(torch.bfloat16) if t.is_floating_point() else t)(torch.as_tensor(a)))
    H = W = (384 // 2) * 2
    C = 384
    Nq = 16
    sc = C ** -0.5
    return {
        "q": _w((lambda *s: torch.randn(*s, dtype=torch.bfloat16) * 0.05)(1, Nq, C)),
        "f0": _w((lambda *s: torch.randn(*s, dtype=torch.bfloat16) * 0.8)(1, H, W, C)),
        "f1": _w((lambda *s: torch.randn(*s, dtype=torch.bfloat16) * 0.8)(1, H // 2, W // 2, C)),
        "wq": _w((lambda *s: torch.randn(*s, dtype=torch.bfloat16) * 1.6)(C, C) * sc),
        "wk": _w((lambda *s: torch.randn(*s, dtype=torch.bfloat16) * 1.6)(C, C) * sc),
        "wv": _w((lambda *s: torch.randn(*s, dtype=torch.bfloat16) * 0.8)(C, C) * sc),
        "wo": _w((lambda *s: torch.randn(*s, dtype=torch.bfloat16) * 0.8)(C, C) * sc),
    }

def reference(q, f0, f1, wq, wk, wv, wo):
    B, H, W, C = f0.shape
    f1u = (lambda x, n, axis: torch.repeat_interleave(x, n, dim=axis))((lambda x, n, axis: torch.repeat_interleave(x, n, dim=axis))(f1, 2, axis=1), 2, axis=2)
    fused = f0 + f1u
    feats = _layernorm(fused.reshape(B, H * W, C), axis=-1)
    qn = _layernorm(q, axis=-1)
    Q = torch.einsum("bnc,cd->bnd", qn, wq)
    K = torch.einsum("bmc,cd->bmd", feats, wk)
    V = torch.einsum("bmc,cd->bmd", feats, wv)
    scale = C ** -0.5
    logits = torch.einsum("bnd,bmd->bnm", Q, K) * scale
    attn = _softmax(logits, axis=-1)
    ctx = torch.einsum("bnm,bmd->bnd", attn, V)
    return q + torch.einsum("bnd,dc->bnc", ctx, wo)
```

```python
import re

REG_RE = re.compile(r'^(-|abs\()?([vas])(\d+|\[(\d+):(\d+)\])\)?$')

def parse_reg(op):
    op = op.strip()
    if op.startswith('-'): op = op[1:]
    if op.startswith('abs(') and op.endswith(')'): op = op[4:-1]
    if op.startswith('|') and op.endswith('|'): op = op[1:-1]
    if op in ('vcc', 'vcc_lo', 'vcc_hi'): return [('x', 'vcc')]
    if op in ('exec', 'exec_lo', 'exec_hi'): return [('x', 'exec')]
    if op == 'm0': return [('x', 'm0')]
    m = re.match(r'^([vas])(\d+)$', op)
    if m: return [(m.group(1), int(m.group(2)))]
    m = re.match(r'^([vas])\[(\d+):(\d+)\]$', op)
    if m: return [(m.group(1), i) for i in range(int(m.group(2)), int(m.group(3)) + 1)]
    return []

TRANS = ('v_exp_f32', 'v_log_f32', 'v_rcp_f32', 'v_rsq_f32', 'v_sqrt_f32', 'v_sin_f32', 'v_cos_f32', 'v_rcp_iflag_f32')

class Ins:
    def __init__(self, text):
        self.text = text
        t = text.split(';')[0].strip()
        self.label = t.endswith(':')
        self.kind = 'other'
        self.reads = set(); self.writes = set()
        self.nop = 0
        if self.label or not t or t.startswith('.'):
            self.kind = 'label' if self.label else 'dir'
            return
        parts = t.split(None, 1)
        mn = parts[0]; self.mn = mn
        rest = parts[1] if len(parts) > 1 else ''
        ops = []; depth = 0; cur = ''
        for ch in rest:
            if ch == '[': depth += 1
            if ch == ']': depth -= 1
            if ch == ',' and depth == 0:
                ops.append(cur.strip()); cur = ''
            else: cur += ch
        if cur.strip(): ops.append(cur.strip())
        mods = ''
        if ops:
            sp = ops[-1].split(None, 1)
            ops[-1] = sp[0]
            if len(sp) > 1: mods = sp[1]
        self.ops = ops; self.mods = mods
        R = lambda i: set(parse_reg(ops[i])) if i < len(ops) else set()
        self.dpp = ('quad_perm' in mods or 'row_' in mods or mn.endswith('_dpp'))
        if mn.startswith('v_mfma'):
            self.kind = 'mfma'
            self.writes = R(0); self.srcA = R(1); self.srcB = R(2); self.srcC = R(3)
            self.reads = self.srcA | self.srcB | self.srcC
            self.passes = 8 if '32x32' in mn else 4
            if '_f32_16x16x4_f32' in mn or '32x32x2_f32' in mn: raise Exception('sgemm not modelled')
        elif mn.startswith('v_'):
            self.kind = 'valu'
            self.trans = any(mn.startswith(x) for x in TRANS)
            base = mn.replace('_e32', '').replace('_e64', '').replace('_dpp', '')
            if base.startswith('v_cmp'):
                self.writes = R(0); self.reads = R(1) | R(2)
                if base.startswith('v_cmpx'): raise Exception('avoid v_cmpx')
            elif base.startswith('v_permlane') and 'swap' in base:
                self.writes = R(0) | R(1); self.reads = R(0) | R(1); self.permlane = True
            elif base in ('v_add_co_u32', 'v_sub_co_u32'):
                self.writes = R(0) | R(1); self.reads = R(2) | R(3)
            elif base in ('v_addc_co_u32',):
                self.writes = R(0) | R(1); self.reads = R(2) | R(3) | R(4)
            elif base in ('v_readfirstlane_b32', 'v_readlane_b32'):
                self.writes = R(0); self.reads = R(1) | R(2); self.readlane = True
            elif base in ('v_nop',):
                pass
            else:
                self.writes = R(0)
                for i in range(1, len(ops)): self.reads |= R(i)
                if base in ('v_fmac_f32', 'v_dot2c_f32_bf16', 'v_pk_fmac_f16', 'v_writelane_b32') or self.dpp:
                    self.reads |= R(0)
                if base == 'v_cndmask_b32' and len(ops) == 3: self.reads |= {('x', 'vcc')}
        elif mn.startswith('ds_'):
            self.kind = 'ds'
            if mn.startswith('ds_read') or mn.startswith('ds_bpermute') or mn.startswith('ds_permute') or mn.startswith('ds_swizzle') or '_rtn_' in mn:
                self.writes = R(0)
                for i in range(1, len(ops)): self.reads |= R(i)
                self.isload = True
            else:
                for i in range(len(ops)): self.reads |= R(i)
                self.isload = False
        elif mn.startswith('buffer_') or mn.startswith('global_'):
            self.kind = 'vmem'
            self.wide = ('x4' in mn or 'x3' in mn)
            if mn.startswith('buffer_inv') or mn.startswith('buffer_wbl2'):
                self.kind = 'vmemctl'
            elif mn.startswith('buffer_load'):
                if ' lds' in (' ' + mods):
                    for i in range(len(ops)): self.reads |= R(i)
                    self.reads |= {('x', 'm0')}
                    self.ldsdma = True
                else:
                    self.writes = R(0)
                    for i in range(1, len(ops)): self.reads |= R(i)
                self.isload = True
            elif mn.startswith('global_load_lds'):
                for i in range(len(ops)): self.reads |= R(i)
                self.reads |= {('x', 'm0')}
                self.ldsdma = True; self.isload = True
            elif mn.startswith('global_load'):
                self.writes = R(0)
                for i in range(1, len(ops)): self.reads |= R(i)
                self.isload = True
            elif mn.startswith('buffer_store'):
                for i in range(len(ops)): self.reads |= R(i)
                self.sdata = R(0); self.isload = False
            elif mn.startswith('global_store'):
                for i in range(len(ops)): self.reads |= R(i)
                self.sdata = R(1); self.isload = False
            elif 'atomic' in mn:
                ret = 'sc0' in mods.split()
                if ret:
                    self.writes = R(0)
                    for i in range(1, len(ops)): self.reads |= R(i)
                    if mn.startswith('buffer_'): self.reads |= R(0)
                else:
                    for i in range(len(ops)): self.reads |= R(i)
                self.isload = ret; self.sdata = set()
            else: raise Exception('vmem? ' + text)
        elif mn.startswith('s_'):
            self.kind = 'salu'
            if mn == 's_nop': self.nop = int(ops[0], 0) + 1
            elif mn == 's_waitcnt': self.kind = 'wait'
            elif mn == 's_barrier': self.kind = 'barrier'
            elif mn in ('s_endpgm', 's_sleep', 's_setprio', 's_branch') or mn.startswith('s_cbranch'):
                self.kind = 'ctl'
                if 'vcc' in mn: self.reads = {('x', 'vcc')}
                if 'exec' in mn: self.reads = {('x', 'exec')}
            elif mn.startswith('s_load') or mn.startswith('s_memtime') or mn.startswith('s_memrealtime'):
                self.kind = 'smem'
                self.writes = R(0)
                for i in range(1, len(ops)): self.reads |= R(i)
            elif mn.startswith('s_cmp') or mn.startswith('s_bitcmp'):
                for i in range(len(ops)): self.reads |= R(i)
            else:
                self.writes = R(0)
                for i in range(1, len(ops)): self.reads |= R(i)
                if 'saveexec' in mn: self.writes |= {('x', 'exec')}; self.reads |= {('x', 'exec')}
                if mn in ('s_addk_i32', 's_mulk_i32'): self.reads |= R(0)
        else:
            raise Exception('unknown instr: ' + text)

def vregs(s): return {r for r in s if r[0] in 'va'}
def sregs(s): return {r for r in s if r[0] == 's' or r == ('x', 'vcc')}

class Prog:
    def __init__(self):
        self.items = []
    def __call__(self, text):
        for line in text.split('\n'):
            if line.strip(): self.items.append(line.rstrip())
    def raw(self, text):
        self.items.append(text)

    def finalize(self, verbose=False):
        out = []
        vq = []
        lq = []
        sq = set()
        hist = []
        nnop = 0
        def emit(ins):
            out.append('  ' + ins.text.strip() if ins.kind not in ('label',) else ins.text.strip())
            if ins.kind in ('label', 'dir'): return
            hist.append(ins)
            if len(hist) > 40: del hist[0]
        def dist_needed(ins):
            need = 0
            d = 0
            for p in reversed(hist):
                req = 0
                if p.kind == 'valu':
                    w = p.writes
                    wv = vregs(w); ws = sregs(w)
                    if ins.kind == 'mfma' and wv & ins.reads: req = max(req, 2)
                    if ins.kind == 'valu':
                        if getattr(p, 'trans', False) and not getattr(ins, 'trans', False) and (wv & (ins.reads)): req = max(req, 1)
                        if getattr(p, 'trans', False) and getattr(ins, 'trans', False) and (wv & ins.reads): req = max(req, 1)
                        if ins.dpp and (wv & ins.reads): req = max(req, 2)
                        if getattr(ins, 'permlane', False) and (wv & ins.reads): req = max(req, 2)
                        if getattr(ins, 'readlane', False) and (wv & ins.reads): req = max(req, 1)
                        if ws & ins.reads: req = max(req, 4 if getattr(ins, 'readlane', False) else 2)
                    if ins.kind == 'vmem' and (ws & ins.reads): req = max(req, 5)
                    if ins.kind in ('salu', 'smem', 'ctl') and (ws & ins.reads): req = max(req, 4)
                    if ('x', 'exec') in w: raise Exception('valu exec write')
                if p.kind == 'mfma':
                    P = p.passes
                    big = 8 if P == 4 else 12
                    D = p.writes
                    if ins.kind == 'mfma':
                        if D & (ins.srcA | ins.srcB): req = max(req, big)
                        if D & ins.srcC:
                            if not (ins.srcC == D and ins.passes == P): req = max(req, 6 if P == 4 else 10)
                        if (D & ins.writes) and not (ins.srcC == D and ins.writes == D) and not (D & ins.srcC):
                            req = max(req, big)
                    elif ins.kind in ('valu', 'ds', 'vmem'):
                        if D & (ins.reads | ins.writes): req = max(req, big)
                        if ins.kind == 'valu' and (p.srcC & ins.writes): req = max(req, 3 if P == 4 else 7)
                if p.kind == 'vmem' and not getattr(p, 'isload', True) and getattr(p, 'wide', False):
                    if p.sdata & ins.writes: req = max(req, 2)
                if p.kind == 'salu' and ('x', 'm0') in p.writes:
                    if getattr(ins, 'ldsdma', False): req = max(req, 1)
                if p.kind == 'salu' and ('x', 'exec') in p.writes and ins.kind == 'valu' and ins.dpp:
                    req = max(req, 1)
                need = max(need, req - d)
                d += p.nop if p.nop else 1
                if d >= 20: break
            return need
        for text in self.items:
            ins = Ins(text)
            if ins.kind in ('label', 'dir'):
                emit(ins); continue
            touch = ins.reads | ins.writes
            needv = None; needl = None
            if ins.kind != 'wait':
                for idx, (w, isd) in enumerate(vq):
                    if w & touch: needv = len(vq) - 1 - idx
                for idx, w in enumerate(lq):
                    if w & touch: needl = len(lq) - 1 - idx
                if sq & touch: needl = 0
                if ins.kind == 'barrier':
                    if lq: needl = 0
                if ins.kind == 'ctl' and ins.mn != 's_setprio' and ins.mn != 's_sleep' and ins.mn != 's_endpgm' and '@nodrain' not in text:
                    if any(w for (w, isd) in vq): needv = 0
                    if lq or sq: needl = 0
            if needv is not None or needl is not None:
                parts = []
                if needv is not None:
                    needv = min(needv, 63); parts.append('vmcnt(%d)' % needv); vq = vq[len(vq) - needv:] if needv else []
                if needl is not None:
                    if sq: needl = 0
                    needl = min(needl, 15); parts.append('lgkmcnt(%d)' % needl); lq = lq[len(lq) - needl:] if needl else []
                    if needl == 0: sq = set()
                emit(Ins('s_waitcnt ' + ' '.join(parts)))
            if ins.kind == 'wait':
                m = re.search(r'vmcnt\((\d+)\)', text)
                if m:
                    n = int(m.group(1)); vq = vq[len(vq) - n:] if n and n < len(vq) else ([] if n == 0 else vq)
                m = re.search(r'lgkmcnt\((\d+)\)', text)
                if m:
                    n = int(m.group(1)); lq = lq[len(lq) - n:] if n and n < len(lq) else ([] if n == 0 else lq)
                    if n == 0: sq = set()
            if ins.kind == 'vmem' and len(vq) >= 63:
                emit(Ins('s_waitcnt vmcnt(62)')); vq = vq[len(vq) - 62:]
            if ins.kind == 'ds' and len(lq) >= 15:
                emit(Ins('s_waitcnt lgkmcnt(14)')) if not sq else None
                if not sq: lq = lq[len(lq) - 14:]
            n = dist_needed(ins)
            if n > 0:
                nnop += 1
                while n > 0:
                    k = min(n, 16); emit(Ins('s_nop %d' % (k - 1))); n -= k
            emit(ins)
            if ins.kind == 'vmem':
                vq.append((set(ins.writes), getattr(ins, 'ldsdma', False)))
            if ins.kind == 'ds':
                lq.append(set(ins.writes))
                if len(lq) > 15:
                    pass
            if ins.kind == 'smem': sq |= ins.writes
        if verbose: print('nops inserted:', nnop, 'instrs:', len(out))
        return out
```

```python
import sys, math, struct
from dsl import Prog

C = 384
F0_BYTES = 113246208
F1_BYTES = 28311552
W_BYTES = 294912
Q_BYTES = 12288
WS_BYTES = 452984832
QB_OFF = 0
WVO_OFF = 16384
POOL_OFF = WVO_OFF + 294912
ML_OFF = POOL_OFF + 12288
PART_OFF = 393216
WS_USED = PART_OFF + 256 * 24576

def f2u(x): return struct.unpack('<I', struct.pack('<f', x))[0]
LOG2E = 1.4426950408889634
SCALE = C ** -0.5

def srd(p, base_s, ptr_lo, nbytes):
    p(f"s_mov_b32 s{base_s}, s{ptr_lo}")
    p(f"s_and_b32 s{base_s+1}, s{ptr_lo+1}, 0xffff")
    p(f"s_mov_b32 s{base_s+2}, {nbytes}")
    p(f"s_mov_b32 s{base_s+3}, 0x20000")

def mov64(p, s, val):
    p(f"s_mov_b32 s{s}, 0x{val & 0xffffffff:08x}")
    p(f"s_mov_b32 s{s+1}, 0x{(val >> 32) & 0xffffffff:08x}")

def xg_reduce(p, op, a, tmp):
    p(f"v_mov_b32 v{tmp}, v{a}")
    p(f"v_permlane32_swap_b32 v{a}, v{tmp}")
    p(f"{op} v{a}, v{a}, v{tmp}")
    p(f"v_mov_b32 v{tmp}, v{a}")
    p(f"v_permlane16_swap_b32 v{a}, v{tmp}")
    p(f"{op} v{a}, v{a}, v{tmp}")

def gen_main(name, opt):
    NT = " nt" if opt.get("nt", True) else ""
    NWG = 256
    NS = 9
    p = Prog()
    ST = lambda k: 76 + 60 * k
    F1R = lambda k, t: ST(k) + 4 * t
    F0R = lambda k, t, d: ST(k) + 12 + 16 * t + 4 * d
    VO = [1, 2, 3]; VF1 = 4
    WB = [5, 6, 7]; WT = [8, 9, 10]
    RA = [11, 12, 13, 14]
    TR = [15, 16, 17, 18, 19, 20]
    MXW, MXR, WXW, WXR = 21, 22, 23, 24
    M, L, Z, SN = 25, 26, 27, 28
    ACC = 32
    D1, D2, D3 = 56, 60, 64
    U = 56
    TA, TB = 64, 65
    Uu, SS, RS, TM, TM2, AL, WF = 68, 69, 70, 71, 72, 73, 74
    aQB, aXA, aXT, aONE = 0, 48, 96, 144
    XB = 0; XBUF = 49152; XT = 12288
    MX_OFF = 98304; WX_OFF = 98560
    LZ_OFF = WX_OFF + 2048
    LDS = LZ_OFF + 256

    p(f"s_cmp_ge_u32 s2, {NWG}")
    p(f"s_cbranch_scc1 {name}_done ;@nodrain")
    p("s_load_dwordx4 s[4:7], s[0:1], 8")
    p("s_load_dwordx2 s[22:23], s[0:1], 72")
    p("v_readfirstlane_b32 s20, v0")
    p("v_and_b32 v0, 63, v0")
    p("s_lshr_b32 s20, s20, 6")
    T0, T1, T2 = 56, 57, 58
    for t in range(3):
        p(f"v_add_u32 v{T0}, {64*t}, v0")
        p(f"v_mul_u32_u24 v{T1}, 1366, v{T0}")
        p(f"v_lshrrev_b32 v{T1}, 16, v{T1}")
        p(f"v_mul_u32_u24 v{T2}, 48, v{T1}")
        p(f"v_sub_u32 v{T2}, v{T0}, v{T2}")
        p(f"v_mul_u32_u24 v{VO[t]}, 1536, v{T1}")
        p(f"v_lshl_add_u32 v{VO[t]}, v{T2}, 4, v{VO[t]}")
        p(f"v_and_b32 v{T0}, 1, v{T1}")
        p(f"v_lshlrev_b32 v{T0}, 3, v{T0}")
        p(f"v_lshrrev_b32 v59, 1, v{T1}")
        p(f"v_add_u32 v{T0}, v{T0}, v59")
        p(f"v_xor_b32 v{T0}, v{T0}, v{T2}")
        p(f"v_lshlrev_b32 v{T0}, 4, v{T0}")
        p(f"v_mul_u32_u24 v{WB[t]}, 3072, v{T1}")
        p(f"v_add_u32 v{WB[t]}, v{WB[t]}, v{T0}")
    p(f"v_lshlrev_b32 v{VF1}, 4, v0")
    p("s_mul_i32 s21, s2, 36")
    p("s_add_u32 s21, s21, s20")
    p("s_waitcnt lgkmcnt(0)")
    srd(p, 8, 4, F0_BYTES)
    srd(p, 12, 6, F1_BYTES)
    srd(p, 16, 22, WS_USED)

    def tile_offsets(s):
        p(f"s_add_u32 s27, s21, {4*s}")
        p("s_mul_i32 s24, s27, 3072")
        p(f"s_mul_hi_u32 s28, s27, {(2**32 + 47)//48}")
        p("s_mul_i32 s29, s28, 48")
        p("s_sub_u32 s29, s27, s29")
        p("s_mul_i32 s25, s28, 589824")
        p("s_mul_i32 s29, s29, 6144")
        p("s_add_u32 s25, s25, s29")
        p("s_add_u32 s26, s25, 294912")
    def load_f1(k, t):
        r = F1R(k, t)
        p(f"buffer_load_dwordx4 v[{r}:{r+3}], v{VF1}, s[12:15], s24 offen offset:{1024*t}{NT}")
    def load_f0(k, t, d):
        r = F0R(k, t, d)
        so = "s25" if d < 2 else "s26"
        p(f"buffer_load_dwordx4 v[{r}:{r+3}], v{VO[t]}, s[8:11], {so} offen offset:{768*(d&1)}{NT}")
    def load_tile(s):
        tile_offsets(s)
        k = s % 3
        for t in range(3):
            load_f1(k, t)
            for d in range(4): load_f0(k, t, d)

    load_tile(0)
    for ks in range(12):
        so = (ks >> 2) * 4096
        p(f"s_mov_b32 s29, {QB_OFF + so}")
        p(f"buffer_load_dwordx4 a[{aQB+4*ks}:{aQB+4*ks+3}], v{VF1}, s[16:19], s29 offen offset:{(ks & 3) * 1024}")
    load_tile(1)
    load_tile(2)

    p(f"s_mul_i32 s47, s20, {XT}")
    for t in range(3):
        p(f"v_add_u32 v{WB[t]}, s47, v{WB[t]}")
    I, G, SI = 56, 57, 58
    p(f"v_and_b32 v{I}, 15, v0")
    p(f"v_lshrrev_b32 v{G}, 4, v0")
    p(f"v_and_b32 v{SI}, 7, v{I}")
    p(f"v_lshlrev_b32 v{SI}, 1, v{SI}")
    p(f"v_lshrrev_b32 v59, 3, v{I}")
    p(f"v_or_b32 v{SI}, v{SI}, v59")
    p(f"v_lshlrev_b32 v59, 1, v{G}")
    p(f"v_xor_b32 v59, v59, v{SI}")
    p(f"v_mul_u32_u24 v60, 768, v{I}")
    p(f"v_add_u32 v60, s47, v60")
    for b3 in range(2):
        for b0 in range(2):
            r = RA[2 * b3 + b0]
            p(f"v_xor_b32 v{r}, {8*b3+b0}, v59")
            p(f"v_lshl_add_u32 v{r}, v{r}, 4, v60")
    p(f"v_lshlrev_b32 v{MXR}, 4, v{I}")
    p(f"v_add_u32 v{MXR}, {MX_OFF}, v{MXR}")
    p("s_lshl_b32 s48, s20, 2")
    p(f"v_add_u32 v{MXW}, s48, v{MXR}")
    p(f"v_lshlrev_b32 v{WXR}, 4, v0")
    p(f"v_add_u32 v{WXR}, {WX_OFF}, v{WXR}")
    p("s_lshr_b32 s48, s20, 1")
    p("s_lshl_b32 s48, s48, 10")
    p("s_and_b32 s49, s20, 1")
    p("s_lshl_b32 s49, s49, 3")
    p("s_add_u32 s48, s48, s49")
    p(f"v_add_u32 v{WXW}, s48, v{WXR}")
    p(f"v_lshrrev_b32 v{I}, 2, v0")
    p(f"v_and_b32 v{SI}, 7, v{I}")
    p(f"v_lshlrev_b32 v{SI}, 1, v{SI}")
    p(f"v_lshrrev_b32 v59, 3, v{I}")
    p(f"v_or_b32 v{SI}, v{SI}, v59")
    p(f"v_and_b32 v59, 3, v0")
    p(f"v_lshrrev_b32 v60, 1, v59")
    p(f"v_xor_b32 v{SI}, v{SI}, v60")
    p(f"v_and_b32 v59, 1, v59")
    p(f"v_lshlrev_b32 v59, 3, v59")
    p(f"v_mul_u32_u24 v60, 768, v{I}")
    p(f"v_add_u32 v60, v60, v59")
    p("s_mul_i32 s48, s20, 6")
    for q in range(6):
        p(f"s_add_u32 s49, s48, {q}")
        p("s_and_b32 s50, s49, 7")
        p("s_lshl_b32 s50, s50, 1")
        p("s_lshr_b32 s49, s49, 3")
        p("s_lshl_b32 s49, s49, 8")
        p(f"v_xor_b32 v{TR[q]}, s50, v{SI}")
        p(f"v_lshl_add_u32 v{TR[q]}, v{TR[q]}, 4, v60")
        p(f"v_add_u32 v{TR[q]}, s49, v{TR[q]}")
    for r in range(4):
        mov64(p, 30 + 2 * r, sum(1 << (20 * g + r) for g in range(4)))
    for r in range(1, 4):
        mov64(p, 38 + 2 * (r - 1), 0x1111111111111111 << r)
    p("s_mov_b32 s44, 0xffff0000")
    p(f"s_mov_b32 s45, 0x{f2u(1.0 / C):08x}")
    p(f"s_mov_b32 s46, 0x{f2u(1e-5):08x}")
    for r in range(24): p(f"v_mov_b32 v{ACC+r}, 0")
    p(f"v_mov_b32 v{M}, 0xf149f2ca")
    p(f"v_mov_b32 v{L}, 0")
    p(f"v_mov_b32 v{Z}, 0")
    p("v_mov_b32 v56, 0x3f803f80")
    for r in range(4): p(f"v_accvgpr_write_b32 a{aONE+r}, v56")

    def stage_A(s):
        k = s % 3; buf = s & 1
        reload = s + 3 < NS
        if reload: tile_offsets(s + 3)
        for t in range(3):
            f1 = F1R(k, t)
            for j in range(4):
                p(f"v_lshlrev_b32 v{U+2*j}, 16, v{f1+j}")
                p(f"v_and_b32 v{U+2*j+1}, s44, v{f1+j}")
            if reload: load_f1(k, t)
            p(f"v_xor_b32 v{WT[0]}, 32, v{WB[t]}")
            p(f"v_xor_b32 v{WT[1]}, 64, v{WB[t]}")
            p(f"v_xor_b32 v{WT[2]}, 96, v{WB[t]}")
            for d in range(4):
                f0 = F0R(k, t, d)
                for j in range(4):
                    p(f"v_lshlrev_b32 v{TA}, 16, v{f0+j}")
                    p(f"v_and_b32 v{TB}, s44, v{f0+j}")
                    p(f"v_add_f32 v{TA}, v{TA}, v{U+2*j}")
                    p(f"v_add_f32 v{TB}, v{TB}, v{U+2*j+1}")
                    p(f"v_cvt_pk_bf16_f32 v{f0+j}, v{TA}, v{TB}")
                a = WB[t] if d == 0 else WT[d - 1]
                p(f"ds_write_b128 v{a}, v[{f0}:{f0+3}] offset:{buf*XBUF + 768*d}")
                if reload: load_f0(k, t, d)

    def sn_compute():
        for ks in range(12):
            c = "0" if ks == 0 else f"v[{D1}:{D1+3}]"
            p(f"v_mfma_f32_16x16x32_bf16 v[{D1}:{D1+3}], a[{aONE}:{aONE+3}], a[{aQB+4*ks}:{aQB+4*ks+3}], {c}")
        p(f"v_mul_f32 v{SN}, s45, v{D1}")

    def stage_B(s):
        buf = s & 1
        for ks in range(12):
            ra = RA[2 * ((ks >> 1) & 1) + (ks & 1)]
            p(f"ds_read_b128 a[{aXA+4*ks}:{aXA+4*ks+3}], v{ra} offset:{buf*XBUF + 256*(ks>>2)}")
        for ks in range(12):
            x = f"a[{aXA+4*ks}:{aXA+4*ks+3}]"
            c1 = "0" if ks == 0 else f"v[{D1}:{D1+3}]"
            c2 = "0" if ks == 0 else f"v[{D2}:{D2+3}]"
            c3 = "0" if ks == 0 else f"v[{D3}:{D3+3}]"
            p(f"v_mfma_f32_16x16x32_bf16 v[{D2}:{D2+3}], {x}, {x}, {c2}")
            p(f"v_mfma_f32_16x16x32_bf16 v[{D3}:{D3+3}], {x}, a[{aONE}:{aONE+3}], {c3}")
            p(f"v_mfma_f32_16x16x32_bf16 v[{D1}:{D1+3}], {x}, a[{aQB+4*ks}:{aQB+4*ks+3}], {c1}")
        p(f"v_cndmask_b32 v{Uu}, 0, v{D2}, s[30:31]")
        for r in range(1, 4):
            p(f"v_cndmask_b32 v{Uu}, v{Uu}, v{D2+r}, s[{30+2*r}:{31+2*r}]")
        p(f"v_cndmask_b32 v{SS}, v{D3}, v{D3+1}, s[38:39]")
        p(f"v_add_f32_dpp v{Uu}, v{Uu}, v{Uu} row_ror:4 row_mask:0xf bank_mask:0xf")
        p(f"v_cndmask_b32 v{SS}, v{SS}, v{D3+2}, s[40:41]")
        p(f"v_cndmask_b32 v{SS}, v{SS}, v{D3+3}, s[42:43]")
        p(f"v_add_f32_dpp v{Uu}, v{Uu}, v{Uu} row_ror:8 row_mask:0xf bank_mask:0xf")
        p(f"v_mul_f32 v{SS}, s45, v{SS}")
        p(f"v_mov_b32 v{TM}, s46")
        p(f"v_fma_f32 v{Uu}, v{Uu}, s45, v{TM}")
        p(f"v_fma_f32 v{Uu}, -v{SS}, v{SS}, v{Uu}")
        p(f"v_max_f32 v{Uu}, s46, v{Uu}")
        p(f"v_rsq_f32 v{RS}, v{Uu}")
        for r in range(4):
            p(f"v_fma_f32 v{D1+r}, -v{D3+r}, v{SN}, v{D1+r}")
        for r in range(4):
            p(f"v_mul_f32_dpp v{D1+r}, v{RS}, v{D1+r} quad_perm:[{r},{r},{r},{r}] row_mask:0xf bank_mask:0xf")
        p(f"v_max3_f32 v{TM}, v{D1}, v{D1+1}, v{D1+2}")
        p(f"v_max_f32 v{TM}, v{TM}, v{D1+3}")
        xg_reduce(p, "v_max_f32", TM, TM2)
        p(f"ds_write_b32 v{MXW}, v{TM}")
        p("s_barrier")
        p(f"ds_read_b128 v[{D2}:{D2+3}], v{MXR}")
        for q in range(6):
            for kst in range(2):
                for h in range(2):
                    j = 2 * kst + h
                    a = aXT + 8 * q + 4 * kst + 2 * h
                    p(f"ds_read_b64_tr_b16 a[{a}:{a+1}], v{TR[q]} offset:{j*XT}")
        p(f"v_max3_f32 v{TM}, v{D2}, v{D2+1}, v{D2+2}")
        p(f"v_max3_f32 v{TM}, v{TM}, v{D2+3}, v{M}")
        p(f"v_sub_f32 v{AL}, v{M}, v{TM}")
        p(f"v_mov_b32 v{M}, v{TM}")
        p(f"v_exp_f32 v{AL}, v{AL}")
        for r in range(4): p(f"v_sub_f32 v{D1+r}, v{D1+r}, v{M}")
        for r in range(4): p(f"v_exp_f32 v{D1+r}, v{D1+r}")
        p(f"v_add_f32 v{TM}, v{D1}, v{D1+1}")
        p(f"v_add_f32 v{TM2}, v{D1+2}, v{D1+3}")
        p(f"v_add_f32 v{TM}, v{TM}, v{TM2}")
        p(f"v_fma_f32 v{L}, v{L}, v{AL}, v{TM}")
        for r in range(4):
            p(f"v_mul_f32_dpp v{D1+r}, v{RS}, v{D1+r} quad_perm:[{r},{r},{r},{r}] row_mask:0xf bank_mask:0xf")
        p(f"v_cvt_pk_bf16_f32 v{WF}, v{D1}, v{D1+1}")
        p(f"v_cvt_pk_bf16_f32 v{WF+1}, v{D1+2}, v{D1+3}")
        p(f"ds_write_b64 v{WXW}, v[{WF}:{WF+1}]")
        p(f"v_mul_f32 v{Z}, v{Z}, v{AL}")
        for r in range(4): p(f"v_fma_f32 v{Z}, v{D1+r}, v{D3+r}, v{Z}")
        if s > 0:
            for r in range(24): p(f"v_mul_f32 v{ACC+r}, v{ACC+r}, v{AL}")
        p("s_barrier")

    def stage_C(s):
        p(f"ds_read_b128 v[{D1}:{D1+3}], v{WXR}")
        p(f"ds_read_b128 v[{D2}:{D2+3}], v{WXR} offset:1024")
        for kst in range(2):
            b = D1 if kst == 0 else D2
            for q in range(6):
                a = aXT + 8 * q + 4 * kst
                p(f"v_mfma_f32_16x16x32_bf16 v[{ACC+4*q}:{ACC+4*q+3}], a[{a}:{a+3}], v[{b}:{b+3}], v[{ACC+4*q}:{ACC+4*q+3}]")
        if s + 1 < NS:
            for q in range(6):
                if s & 1 == 0: p(f"v_add_u32 v{TR[q]}, {XBUF}, v{TR[q]}")
                else: p(f"v_subrev_u32 v{TR[q]}, {XBUF}, v{TR[q]}")

    for s in range(NS):
        stage_A(s)
        if s == 0: sn_compute()
        stage_B(s)
        stage_C(s)

    p("s_mul_i32 s24, s2, 24576")
    p("s_mul_i32 s25, s20, 6144")
    p("s_add_u32 s24, s24, s25")
    p(f"s_add_u32 s24, s24, {PART_OFF}")
    xg_reduce(p, "v_add_f32", L, TM2)
    xg_reduce(p, "v_add_f32", Z, TM2)
    p(f"ds_write_b32 v{MXW}, v{L}")
    p(f"ds_write_b32 v{MXW}, v{Z} offset:{LZ_OFF - MX_OFF}")
    for q in range(6):
        if q < 4:
            p(f"buffer_store_dwordx4 v[{ACC+4*q}:{ACC+4*q+3}], v{VF1}, s[16:19], s24 offen offset:{1024*q}")
        else:
            if q == 4: p("s_add_u32 s25, s24, 4096")
            p(f"buffer_store_dwordx4 v[{ACC+4*q}:{ACC+4*q+3}], v{VF1}, s[16:19], s25 offen offset:{1024*(q-4)}")
    p("s_barrier")
    p("s_cmp_lg_u32 s20, 0")
    p(f"s_cbranch_scc1 {name}_done ;@nodrain")
    p(f"ds_read_b128 v[56:59], v{MXR}")
    p(f"ds_read_b128 v[60:63], v{MXR} offset:{LZ_OFF - MX_OFF}")
    p("v_add_f32 v56, v56, v57")
    p("v_add_f32 v58, v58, v59")
    p("v_add_f32 v65, v56, v58")
    p("v_add_f32 v60, v60, v61")
    p("v_add_f32 v62, v62, v63")
    p("v_add_f32 v66, v60, v62")
    p(f"v_mov_b32 v64, v{M}")
    p("v_mov_b32 v67, 0")
    p("s_lshl_b32 s24, s2, 8")
    p(f"s_add_u32 s24, s24, {ML_OFF}")
    p("s_mov_b64 exec, 0xffff")
    p(f"buffer_store_dwordx4 v[64:67], v{VF1}, s[16:19], s24 offen")
    p(f"{name}_done:")
    p("s_endpgm")
    return p, dict(vgpr=256 + 148, accum=256, lds=LDS, grid=NWG, block=256)

def gen_reduce(name, opt):
    p = Prog()
    p("s_cmp_ge_u32 s2, 96")
    p(f"s_cbranch_scc1 {name}_done ;@nodrain")
    p("s_load_dwordx2 s[22:23], s[0:1], 72")
    p("v_readfirstlane_b32 s20, v0")
    p("v_and_b32 v0, 63, v0")
    p("s_lshr_b32 s20, s20, 6")
    p("v_and_b32 v1, 15, v0")
    p("v_lshrrev_b32 v2, 4, v0")
    p("v_mul_u32_u24 v3, 24576, v2")
    p("v_lshl_add_u32 v3, v1, 4, v3")
    p("v_lshlrev_b32 v4, 4, v0")
    p("s_lshr_b32 s21, s2, 2")
    p("s_and_b32 s24, s2, 3")
    p(f"s_mul_i32 s25, s20, {64*24576}")
    p("s_lshl_b32 s26, s21, 10")
    p("s_add_u32 s25, s25, s26")
    p("s_lshl_b32 s26, s24, 8")
    p("s_add_u32 s25, s25, s26")
    p(f"s_add_u32 s25, s25, {PART_OFF}")
    p("s_lshl_b32 s26, s20, 14")
    p(f"s_add_u32 s26, s26, {ML_OFF}")
    p("s_waitcnt lgkmcnt(0)")
    srd(p, 16, 22, WS_USED)
    PM = 16; PP = 80
    for i in range(16):
        if i % 4 == 0 and i: p("s_add_u32 s26, s26, 4096")
        p(f"buffer_load_dwordx4 v[{PM+4*i}:{PM+4*i+3}], v4, s[16:19], s26 offen offset:{1024*(i%4)}")
    for i in range(16):
        p(f"buffer_load_dwordx4 v[{PP+4*i}:{PP+4*i+3}], v3, s[16:19], s25 offen")
        p("s_add_u32 s25, s25, 98304")
    MV, T = 5, 6
    p(f"v_max3_f32 v{MV}, v{PM}, v{PM+4}, v{PM+8}")
    for i in range(3, 15, 2):
        p(f"v_max3_f32 v{MV}, v{MV}, v{PM+4*i}, v{PM+4*i+4}")
    p(f"v_max_f32 v{MV}, v{MV}, v{PM+60}")
    xg_reduce(p, "v_max_f32", MV, T)
    for i in range(16): p(f"v_sub_f32 v{PM+4*i}, v{PM+4*i}, v{MV}")
    for i in range(16): p(f"v_exp_f32 v{PM+4*i}, v{PM+4*i}")
    p(f"v_mul_f32 v9, v{PM}, v{PM+1}")
    p(f"v_mul_f32 v10, v{PM}, v{PM+2}")
    for i in range(1, 16):
        p(f"v_fma_f32 v9, v{PM+4*i}, v{PM+4*i+1}, v9")
        p(f"v_fma_f32 v10, v{PM+4*i}, v{PM+4*i+2}, v10")
    for r in range(4): p(f"v_mul_f32 v{12+r}, v{PM}, v{PP+r}")
    for i in range(1, 16):
        for r in range(4): p(f"v_fma_f32 v{12+r}, v{PM+4*i}, v{PP+4*i+r}, v{12+r}")
    for a in (9, 10, 12, 13, 14, 15): xg_reduce(p, "v_add_f32", a, T)
    p(f"v_mov_b32 v8, v{MV}")
    p("v_mov_b32 v11, 0")
    p("v_lshlrev_b32 v7, 7, v1")
    p("s_lshl_b32 s27, s20, 5")
    p("v_add_u32 v6, s27, v7")
    p("ds_write_b128 v6, v[8:11]")
    p("ds_write_b128 v6, v[12:15] offset:16")
    p("s_barrier")
    p("s_cmp_lg_u32 s20, 0")
    p(f"s_cbranch_scc1 {name}_done ;@nodrain")
    for v in range(4):
        p(f"ds_read_b128 v[{16+8*v}:{19+8*v}], v7 offset:{32*v}")
        p(f"ds_read_b128 v[{20+8*v}:{23+8*v}], v7 offset:{32*v+16}")
    p("v_max3_f32 v5, v16, v24, v32")
    p("v_max_f32 v5, v5, v40")
    for v in range(4): p(f"v_sub_f32 v{16+8*v}, v{16+8*v}, v5")
    for v in range(4): p(f"v_exp_f32 v{16+8*v}, v{16+8*v}")
    p("v_mul_f32 v9, v16, v17")
    p("v_mul_f32 v10, v16, v18")
    for r in range(4): p(f"v_mul_f32 v{12+r}, v16, v{20+r}")
    for v in range(1, 4):
        p(f"v_fma_f32 v9, v{16+8*v}, v{17+8*v}, v9")
        p(f"v_fma_f32 v10, v{16+8*v}, v{18+8*v}, v10")
        for r in range(4): p(f"v_fma_f32 v{12+r}, v{16+8*v}, v{20+8*v+r}, v{12+r}")
    p(f"s_mov_b32 s27, 0x{f2u(1.0 / C):08x}")
    p("v_mul_f32 v10, s27, v10")
    p("v_rcp_f32 v9, v9")
    for r in range(4): p(f"v_sub_f32 v{12+r}, v{12+r}, v10")
    for r in range(4): p(f"v_mul_f32 v{12+r}, v{12+r}, v9")
    p("v_cvt_pk_bf16_f32 v12, v12, v13")
    p("v_cvt_pk_bf16_f32 v13, v14, v15")
    p("s_lshr_b32 s25, s21, 1")
    p("s_lshl_b32 s25, s25, 10")
    p("s_lshl_b32 s26, s24, 8")
    p("s_add_u32 s25, s25, s26")
    p("s_and_b32 s26, s21, 1")
    p("s_lshl_b32 s26, s26, 3")
    p("s_add_u32 s25, s25, s26")
    p(f"s_add_u32 s25, s25, {POOL_OFF}")
    p("s_mov_b64 exec, 0xffff")
    p("buffer_store_dwordx2 v[12:13], v4, s[16:19], s25 offen")
    p(f"{name}_done:")
    p("s_endpgm")
    return p, dict(vgpr=144, accum=144, lds=2048, grid=96, block=256)

def gen_final(name, opt):
    p = Prog()
    p("s_cmp_ge_u32 s2, 24")
    p(f"s_cbranch_scc1 {name}_done ;@nodrain")
    p("s_load_dwordx2 s[22:23], s[0:1], 72")
    p("s_load_dwordx2 s[4:5], s[0:1], 0")
    p("s_load_dwordx2 s[6:7], s[0:1], 56")
    p("v_lshlrev_b32 v4, 4, v0")
    p("v_and_b32 v1, 15, v0")
    p("v_lshrrev_b32 v2, 4, v0")
    p("v_mul_u32_u24 v3, 768, v1")
    p("v_lshl_add_u32 v3, v2, 3, v3")
    p("s_lshl_b32 s24, s2, 5")
    p("s_mul_i32 s25, s2, 12288")
    p(f"s_add_u32 s25, s25, {WVO_OFF}")
    p(f"s_mov_b32 s26, {POOL_OFF}")
    p("s_waitcnt lgkmcnt(0)")
    srd(p, 16, 22, WS_USED)
    srd(p, 8, 4, Q_BYTES)
    srd(p, 12, 6, Q_BYTES)
    for ks in range(12):
        if ks % 4 == 0 and ks:
            p("s_add_u32 s25, s25, 4096"); p("s_add_u32 s26, s26, 4096")
        p(f"buffer_load_dwordx4 v[{16+4*ks}:{19+4*ks}], v4, s[16:19], s26 offen offset:{1024*(ks%4)}")
        p(f"buffer_load_dwordx4 v[{64+4*ks}:{67+4*ks}], v4, s[16:19], s25 offen offset:{1024*(ks%4)}")
    p("buffer_load_dwordx2 v[6:7], v3, s[8:11], s24 offen")
    for ks in range(12):
        c = "0" if ks == 0 else "v[8:11]"
        p(f"v_mfma_f32_16x16x32_bf16 v[8:11], v[{64+4*ks}:{67+4*ks}], v[{16+4*ks}:{19+4*ks}], {c}")
    p("v_lshlrev_b32 v12, 16, v6")
    p("v_and_b32 v13, 0xffff0000, v6")
    p("v_lshlrev_b32 v14, 16, v7")
    p("v_and_b32 v15, 0xffff0000, v7")
    for r in range(4): p(f"v_add_f32 v{12+r}, v{12+r}, v{8+r}")
    p("v_cvt_pk_bf16_f32 v12, v12, v13")
    p("v_cvt_pk_bf16_f32 v13, v14, v15")
    p("buffer_store_dwordx2 v[12:13], v3, s[12:15], s24 offen")
    p(f"{name}_done:")
    p("s_endpgm")
    return p, dict(vgpr=112, accum=112, lds=0, grid=24, block=64)

def gen_pre(name, opt):
    p = Prog()
    p("s_cmp_ge_u32 s2, 48")
    p(f"s_cbranch_scc1 {name}_done ;@nodrain")
    p("s_load_dwordx2 s[4:5], s[0:1], 0")
    p("s_load_dwordx4 s[8:11], s[0:1], 24")
    p("s_load_dwordx4 s[12:15], s[0:1], 40")
    p("s_load_dwordx2 s[22:23], s[0:1], 72")
    p("v_readfirstlane_b32 s20, v0")
    p("v_and_b32 v0, 63, v0")
    p("s_lshr_b32 s20, s20, 6")
    p("v_and_b32 v1, 15, v0")
    p("v_lshrrev_b32 v2, 4, v0")
    p("s_waitcnt lgkmcnt(0)")
    srd(p, 16, 22, WS_USED)
    p("s_cmp_ge_u32 s2, 24")
    p(f"s_cbranch_scc1 {name}_wvo ;@nodrain")
    srd(p, 24, 8, W_BYTES)
    srd(p, 28, 10, W_BYTES)
    srd(p, 32, 4, Q_BYTES)
    p("v_mul_u32_u24 v3, 768, v1")
    p("v_lshl_add_u32 v3, v2, 4, v3")
    for pp in range(12):
        p(f"buffer_load_dwordx4 v[{16+4*pp}:{19+4*pp}], v3, s[32:35], 0 offen offset:{64*pp}")
    p("s_mul_i32 s36, s2, 12288")
    for ks in range(12):
        p(f"buffer_load_dwordx4 a[{4*ks}:{4*ks+3}], v3, s[28:31], s36 offen offset:{64*ks}")
    p("v_lshrrev_b32 v4, 2, v1")
    p("v_lshlrev_b32 v4, 3, v4")
    p("v_and_b32 v5, 3, v1")
    p("v_add_u32 v4, v4, v5")
    p("v_mul_u32_u24 v4, 768, v4")
    p("v_lshl_add_u32 v4, v2, 4, v4")
    p(f"s_mul_i32 s36, s20, {3*32*768}")
    AT = 64
    def areg(tile, ks):
        idx = tile * 48 + ks * 4
        if idx < 192: return f"v[{64+idx}:{64+idx+3}]"
        idx -= 192
        return f"a[{48+idx}:{48+idx+3}]"
    for a in range(3):
        for h in range(2):
            tile = 2 * a + h
            p(f"s_add_u32 s37, s36, {a*32*768 + h*4*768}")
            for ks in range(12):
                p(f"buffer_load_dwordx4 {areg(tile, ks)}, v4, s[24:27], s37 offen offset:{64*ks}")
    S, T, T2, MEAN, RSTD = 6, 7, 8, 9, 10
    p(f"v_mov_b32 v{S}, 0")
    p("s_mov_b32 s44, 0xffff0000")
    for r in range(48):
        p(f"v_lshlrev_b32 v{T}, 16, v{16+r}")
        p(f"v_and_b32 v{T2}, s44, v{16+r}")
        p(f"v_add_f32 v{S}, v{S}, v{T}")
        p(f"v_add_f32 v{S}, v{S}, v{T2}")
    xg_reduce(p, "v_add_f32", S, T)
    p(f"v_mul_f32 v{MEAN}, 0x{f2u(1.0/C):08x}, v{S}")
    p(f"v_mov_b32 v{S}, 0")
    for r in range(48):
        p(f"v_lshlrev_b32 v{T}, 16, v{16+r}")
        p(f"v_and_b32 v{T2}, s44, v{16+r}")
        p(f"v_sub_f32 v{T}, v{T}, v{MEAN}")
        p(f"v_sub_f32 v{T2}, v{T2}, v{MEAN}")
        p(f"v_fma_f32 v{S}, v{T}, v{T}, v{S}")
        p(f"v_fma_f32 v{S}, v{T2}, v{T2}, v{S}")
    xg_reduce(p, "v_add_f32", S, T)
    p(f"v_mov_b32 v{T}, 0x{f2u(1e-5):08x}")
    p(f"s_mov_b32 s45, 0x{f2u(1.0/C):08x}")
    p(f"v_fma_f32 v{S}, v{S}, s45, v{T}")
    p(f"v_rsq_f32 v{RSTD}, v{S}")
    for r in range(48):
        p(f"v_lshlrev_b32 v{T}, 16, v{16+r}")
        p(f"v_and_b32 v{T2}, s44, v{16+r}")
        p(f"v_sub_f32 v{T}, v{T}, v{MEAN}")
        p(f"v_sub_f32 v{T2}, v{T2}, v{MEAN}")
        p(f"v_mul_f32 v{T}, v{T}, v{RSTD}")
        p(f"v_mul_f32 v{T2}, v{T2}, v{RSTD}")
        p(f"v_cvt_pk_bf16_f32 v{16+r}, v{T}, v{T2}")
    p("v_lshlrev_b32 v11, 4, v0")
    p("s_mul_i32 s38, s20, 12288")
    p("v_add_u32 v12, s38, v11")
    for pp in range(12):
        p(f"ds_write_b128 v12, v[{16+4*pp}:{19+4*pp}] offset:{1024*pp}")
    p("s_mul_i32 s39, s20, 3072")
    p("v_add_u32 v12, s39, v12")
    for a in range(3):
        p(f"ds_read_b128 v[{16+4*a}:{19+4*a}], v12 offset:{1024*a}")
    QK = 28
    for a in range(3):
        for h in range(2):
            tile = 2 * a + h
            d = 32 + 4 * h
            for ks in range(12):
                c = "0" if ks == 0 else f"v[{d}:{d+3}]"
                p(f"v_mfma_f32_16x16x32_bf16 v[{d}:{d+3}], {areg(tile, ks)}, a[{4*ks}:{4*ks+3}], {c}")
        p("v_cvt_pk_bf16_f32 v40, v32, v33")
        p("v_cvt_pk_bf16_f32 v41, v34, v35")
        p("v_cvt_pk_bf16_f32 v42, v36, v37")
        p("v_cvt_pk_bf16_f32 v43, v38, v39")
        c = "0" if a == 0 else f"v[{QK}:{QK+3}]"
        p(f"v_mfma_f32_16x16x32_bf16 v[{QK}:{QK+3}], v[40:43], v[{16+4*a}:{19+4*a}], {c}")
    p("s_lshl_b32 s38, s20, 10")
    p("v_add_u32 v12, s38, v11")
    p(f"ds_write_b128 v12, v[{QK}:{QK+3}] offset:49152")
    p("s_barrier")
    p("s_cmp_lg_u32 s20, 0")
    p(f"s_cbranch_scc1 {name}_done ;@nodrain")
    for v in range(4):
        p(f"ds_read_b128 v[{32+4*v}:{35+4*v}], v11 offset:{49152+1024*v}")
    for r in range(4):
        p(f"v_add_f32 v{32+r}, v{32+r}, v{36+r}")
        p(f"v_add_f32 v{40+r}, v{40+r}, v{44+r}")
        p(f"v_add_f32 v{32+r}, v{32+r}, v{40+r}")
        p(f"v_mul_f32 v{32+r}, 0x{f2u(SCALE*LOG2E):08x}, v{32+r}")
    p("v_cvt_pk_bf16_f32 v32, v32, v33")
    p("v_cvt_pk_bf16_f32 v33, v34, v35")
    p("v_lshrrev_b32 v4, 1, v2")
    p("v_lshlrev_b32 v4, 10, v4")
    p("v_lshl_add_u32 v4, v1, 4, v4")
    p("v_and_b32 v5, 1, v2")
    p("v_lshl_add_u32 v4, v5, 3, v4")
    p("s_lshr_b32 s36, s2, 2")
    p("s_lshl_b32 s36, s36, 11")
    p("s_and_b32 s37, s2, 3")
    p("s_lshl_b32 s37, s37, 8")
    p("s_add_u32 s36, s36, s37")
    p(f"s_add_u32 s36, s36, {QB_OFF}")
    p("buffer_store_dwordx2 v[32:33], v4, s[16:19], s36 offen")
    p("s_endpgm")
    p(f"{name}_wvo:")
    p("s_sub_u32 s21, s2, 24")
    srd(p, 24, 12, W_BYTES)
    srd(p, 28, 14, W_BYTES)
    p("v_lshrrev_b32 v4, 1, v0")
    p("v_mul_u32_u24 v4, 768, v4")
    p("v_and_b32 v5, 1, v0")
    p("v_lshl_add_u32 v4, v5, 4, v4")
    p("s_lshl_b32 s36, s21, 5")
    p(f"s_mul_i32 s37, s20, {96*768}")
    p("s_add_u32 s36, s36, s37")
    for a in range(3):
        p(f"buffer_load_dwordx4 v[{16+4*a}:{19+4*a}], v4, s[28:31], s36 offen")
        p(f"s_add_u32 s36, s36, {32*768}")
    p("v_mul_u32_u24 v3, 768, v1")
    p("v_lshl_add_u32 v3, v2, 4, v3")
    p(f"s_mul_i32 s36, s20, {6*16*768}")
    for tile in range(6):
        for ks in range(12):
            p(f"buffer_load_dwordx4 {areg(tile, ks)}, v3, s[24:27], s36 offen offset:{64*ks}")
        p(f"s_add_u32 s36, s36, {16*768}")
    p("v_lshlrev_b32 v11, 4, v0")
    p("s_mul_i32 s38, s20, 3072")
    p("v_add_u32 v12, s38, v11")
    for a in range(3):
        p(f"ds_write_b128 v12, v[{16+4*a}:{19+4*a}] offset:{1024*a}")
    p("s_barrier")
    p("v_lshrrev_b32 v5, 2, v0")
    p("v_and_b32 v5, 3, v5")
    p("v_lshl_add_u32 v5, v2, 3, v5")
    p("v_lshlrev_b32 v5, 5, v5")
    p("v_and_b32 v6, 3, v0")
    p("v_lshl_add_u32 v5, v6, 3, v5")
    for ks in range(12):
        for h in range(2):
            p(f"ds_read_b64_tr_b16 a[{4*ks+2*h}:{4*ks+2*h+1}], v5 offset:{1024*ks + 128*h}")
    p("s_mul_i32 s36, s21, 12288")
    p("s_mul_i32 s37, s20, 3072")
    p("s_add_u32 s36, s36, s37")
    p(f"s_add_u32 s36, s36, {WVO_OFF}")
    for tile in range(6):
        d = 32 + 4 * (tile & 1)
        for ks in range(12):
            c = "0" if ks == 0 else f"v[{d}:{d+3}]"
            p(f"v_mfma_f32_16x16x32_bf16 v[{d}:{d+3}], {areg(tile, ks)}, a[{4*ks}:{4*ks+3}], {c}")
        if tile & 1:
            p("v_cvt_pk_bf16_f32 v40, v32, v33")
            p("v_cvt_pk_bf16_f32 v41, v34, v35")
            p("v_cvt_pk_bf16_f32 v42, v36, v37")
            p("v_cvt_pk_bf16_f32 v43, v38, v39")
            p(f"buffer_store_dwordx4 v[40:43], v11, s[16:19], s36 offen offset:{1024*(tile>>1)}")
    p(f"{name}_done:")
    p("s_endpgm")
    return p, dict(vgpr=256 + 144, accum=256, lds=53248, grid=48, block=256)

def kernel_text(name, p):
    body = p.finalize(True)
    return [f".globl {name}", ".p2align 8", f".type {name},@function", f"{name}:"] + body

def kd_text(name, info):
    return [".p2align 6", f".amdhsa_kernel {name}", f"  .amdhsa_next_free_vgpr {info['vgpr']}", "  .amdhsa_next_free_sgpr 96",
            f"  .amdhsa_accum_offset {info['accum']}", "  .amdhsa_group_segment_fixed_size 0", "  .amdhsa_kernarg_size 80",
            "  .amdhsa_user_sgpr_count 2", "  .amdhsa_user_sgpr_kernarg_segment_ptr 1", "  .amdhsa_system_sgpr_workgroup_id_x 1",
            "  .amdhsa_float_denorm_mode_32 3", ".end_amdhsa_kernel"]

HEADER = open("standalone__detection_seg_dino__vision.s.ref").read().split("; Override launch")[0]

def build(path, opt):
    ks = [("dino_pre_kernel", gen_pre), ("dino_main_kernel", gen_main), ("dino_reduce_kernel", gen_reduce), ("dino_final_kernel", gen_final)]
    texts = []; kds = []; hdr = []
    for name, g in ks:
        p, info = g(name, opt)
        texts += kernel_text(name, p)
        kds += kd_text(name, info)
        hdr.append(f"; @launch kernel={name} grid=({info['grid']},1,1) block=({info['block']},1,1) lds={info['lds']}")
    out = HEADER.rstrip() + "\n" + "\n".join(hdr) + "\n" + '.amdgcn_target "amdgcn-amd-amdhsa--gfx950"\n.text\n' + "\n".join(texts) + '\n.section .rodata,"a"\n' + "\n".join(kds) + "\n"
    open(path, "w").write(out)

if __name__ == "__main__":
    opt = {}
    path = sys.argv[1] if len(sys.argv) > 1 else "k.s"
    for a in sys.argv[2:]:
        k, v = a.split("=")
        opt[k] = int(v)
    build(path, opt)
```

```python
import sys, math, struct
from dsl import Prog

C = 384
F0_BYTES = 113246208
F1_BYTES = 28311552
W_BYTES = 294912
Q_BYTES = 12288
WS_BYTES = 452984832
QB_OFF = 0
WVO_OFF = 16384
POOL_OFF = WVO_OFF + 294912
ML_OFF = POOL_OFF + 12288
PART_OFF = 393216
WS_USED = PART_OFF + 256 * 24576

def f2u(x): return struct.unpack('<I', struct.pack('<f', x))[0]
LOG2E = 1.4426950408889634
SCALE = C ** -0.5

def srd(p, base_s, ptr_lo, nbytes):
    p(f"s_mov_b32 s{base_s}, s{ptr_lo}")
    p(f"s_and_b32 s{base_s+1}, s{ptr_lo+1}, 0xffff")
    p(f"s_mov_b32 s{base_s+2}, {nbytes}")
    p(f"s_mov_b32 s{base_s+3}, 0x20000")

def mov64(p, s, val):
    p(f"s_mov_b32 s{s}, 0x{val & 0xffffffff:08x}")
    p(f"s_mov_b32 s{s+1}, 0x{(val >> 32) & 0xffffffff:08x}")

def xg_reduce(p, op, a, tmp):
    p(f"v_mov_b32 v{tmp}, v{a}")
    p(f"v_permlane32_swap_b32 v{a}, v{tmp}")
    p(f"{op} v{a}, v{a}, v{tmp}")
    p(f"v_mov_b32 v{tmp}, v{a}")
    p(f"v_permlane16_swap_b32 v{a}, v{tmp}")
    p(f"{op} v{a}, v{a}, v{tmp}")

def gen_main(name, opt):
    NT = " nt" if opt.get("nt", True) else ""
    NWG = 256
    NS = 9
    p = Prog()
    ST = 76
    F1R = lambda t: ST + 4 * t
    F0R = lambda t, d: ST + 12 + 16 * t + 4 * d
    VF0, VF1, VL16 = 1, 2, 3
    WA = [4, 5, 6, 7]
    RA = [11, 12, 13, 14]
    TR = [15, 16, 17, 18, 19, 20]
    MXW, MXR, WXW, WXR = 21, 22, 23, 24
    M, L, Z, SN = 25, 26, 27, 28
    ACC = 32
    D1, D2, D3 = 56, 60, 64
    U = 136
    TT = 144
    Uu, SS, RS, TM, TM2, AL, WF = 68, 69, 70, 71, 72, 73, 74
    aQB, aXA, aXT, aONE = 0, 48, 96, 144
    XBUF = 49152; XT = 12288
    MX_OFF = 98304; WX_OFF = 98560
    LZ_OFF = WX_OFF + 2048
    LDS = LZ_OFF + 256
    prof = opt.get("prof", 0)
    addmode = opt.get("add", "dot2")

    p(f"s_cmp_ge_u32 s2, {NWG}")
    p(f"s_cbranch_scc1 {name}_done ;@nodrain")
    if prof: p("s_memtime s[98:99]")
    p("s_load_dwordx4 s[4:7], s[0:1], 8")
    p("s_load_dwordx2 s[22:23], s[0:1], 72")
    p("v_readfirstlane_b32 s20, v0")
    p("v_and_b32 v0, 63, v0")
    p("s_lshr_b32 s20, s20, 6")
    FP, J = 56, 57
    p(f"v_lshrrev_b32 v{FP}, 4, v0")
    p(f"v_and_b32 v{J}, 15, v0")
    p(f"v_mul_u32_u24 v{VF0}, 1536, v{FP}")
    p(f"v_lshl_add_u32 v{VF0}, v{J}, 4, v{VF0}")
    p(f"v_mul_u32_u24 v{VF1}, 768, v{FP}")
    p(f"v_lshl_add_u32 v{VF1}, v{J}, 4, v{VF1}")
    p(f"v_lshlrev_b32 v{VL16}, 4, v0")
    p("s_mul_i32 s21, s2, 36")
    p("s_add_u32 s21, s21, s20")
    p("s_waitcnt lgkmcnt(0)")
    srd(p, 8, 4, F0_BYTES)
    srd(p, 12, 6, F1_BYTES)
    srd(p, 16, 22, WS_USED)

    def tile_offsets(s):
        p(f"s_add_u32 s27, s21, {4*s}")
        p("s_mul_i32 s24, s27, 3072")
        p(f"s_mul_hi_u32 s28, s27, {(2**32 + 47)//48}")
        p("s_mul_i32 s29, s28, 48")
        p("s_sub_u32 s29, s27, s29")
        p("s_mul_i32 s25, s28, 589824")
        p("s_mul_i32 s29, s29, 6144")
        p("s_add_u32 s25, s25, s29")
        p("s_add_u32 s26, s25, 294912")
    def load_f1(t):
        r = F1R(t)
        p(f"buffer_load_dwordx4 v[{r}:{r+3}], v{VF1}, s[12:15], s24 offen offset:{256*t}{NT}")
    def load_f0(t, d):
        r = F0R(t, d)
        so = "s25" if d < 2 else "s26"
        p(f"buffer_load_dwordx4 v[{r}:{r+3}], v{VF0}, s[8:11], {so} offen offset:{256*t + 768*(d&1)}{NT}")

    p("s_mul_i32 s29, s20, 3072")
    p(f"s_add_u32 m0, s29, {XBUF}")
    p(f"s_add_u32 s29, s29, {QB_OFF}")
    for j in range(3):
        p(f"buffer_load_dwordx4 v{VL16}, s[16:19], s29 offen offset:{1024*j} lds")
    tile_offsets(0)
    for t in range(3):
        load_f1(t)
        for d in range(4): load_f0(t, d)

    p(f"s_mul_i32 s47, s20, {XT}")
    p(f"v_and_b32 v58, 1, v{FP}")
    p(f"v_lshlrev_b32 v58, 3, v58")
    p(f"v_lshrrev_b32 v59, 1, v{FP}")
    p(f"v_add_u32 v58, v58, v59")
    p(f"v_xor_b32 v58, v58, v{J}")
    p(f"v_lshlrev_b32 v58, 4, v58")
    p(f"v_mul_u32_u24 v59, 3072, v{FP}")
    p(f"v_add_u32 v58, v58, v59")
    p(f"v_add_u32 v{WA[0]}, s47, v58")
    for d in range(1, 4): p(f"v_xor_b32 v{WA[d]}, {32*d}, v{WA[0]}")
    I, G, SI = 57, 56, 58
    p(f"v_and_b32 v{SI}, 7, v{I}")
    p(f"v_lshlrev_b32 v{SI}, 1, v{SI}")
    p(f"v_lshrrev_b32 v59, 3, v{I}")
    p(f"v_or_b32 v{SI}, v{SI}, v59")
    p(f"v_lshlrev_b32 v59, 1, v{G}")
    p(f"v_xor_b32 v59, v59, v{SI}")
    p(f"v_mul_u32_u24 v60, 768, v{I}")
    p(f"v_add_u32 v60, s47, v60")
    for b3 in range(2):
        for b0 in range(2):
            r = RA[2 * b3 + b0]
            p(f"v_xor_b32 v{r}, {8*b3+b0}, v59")
            p(f"v_lshl_add_u32 v{r}, v{r}, 4, v60")
    p(f"v_lshlrev_b32 v{MXR}, 4, v{I}")
    p(f"v_add_u32 v{MXR}, {MX_OFF}, v{MXR}")
    p("s_lshl_b32 s48, s20, 2")
    p(f"v_add_u32 v{MXW}, s48, v{MXR}")
    p(f"v_add_u32 v{WXR}, {WX_OFF}, v{VL16}")
    p("s_lshr_b32 s48, s20, 1")
    p("s_lshl_b32 s48, s48, 10")
    p("s_and_b32 s49, s20, 1")
    p("s_lshl_b32 s49, s49, 3")
    p("s_add_u32 s48, s48, s49")
    p(f"v_add_u32 v{WXW}, s48, v{WXR}")
    I = 56
    p(f"v_lshrrev_b32 v{I}, 2, v0")
    p(f"v_and_b32 v{SI}, 7, v{I}")
    p(f"v_lshlrev_b32 v{SI}, 1, v{SI}")
    p(f"v_lshrrev_b32 v59, 3, v{I}")
    p(f"v_or_b32 v{SI}, v{SI}, v59")
    p(f"v_and_b32 v59, 3, v0")
    p(f"v_lshrrev_b32 v60, 1, v59")
    p(f"v_xor_b32 v{SI}, v{SI}, v60")
    p(f"v_and_b32 v59, 1, v59")
    p(f"v_lshlrev_b32 v59, 3, v59")
    p(f"v_mul_u32_u24 v60, 768, v{I}")
    p(f"v_add_u32 v60, v60, v59")
    p("s_mul_i32 s48, s20, 6")
    for q in range(6):
        p(f"s_add_u32 s49, s48, {q}")
        p("s_and_b32 s50, s49, 7")
        p("s_lshl_b32 s50, s50, 1")
        p("s_lshr_b32 s49, s49, 3")
        p("s_lshl_b32 s49, s49, 8")
        p(f"v_xor_b32 v{TR[q]}, s50, v{SI}")
        p(f"v_lshl_add_u32 v{TR[q]}, v{TR[q]}, 4, v60")
        p(f"v_add_u32 v{TR[q]}, s49, v{TR[q]}")
    for r in range(4):
        mov64(p, 30 + 2 * r, sum(1 << (20 * g + r) for g in range(4)))
    for r in range(1, 4):
        mov64(p, 38 + 2 * (r - 1), 0x1111111111111111 << r)
    p("s_mov_b32 s44, 0xffff0000")
    p(f"s_mov_b32 s45, 0x{f2u(1.0 / C):08x}")
    p(f"s_mov_b32 s46, 0x{f2u(1e-5):08x}")
    p("s_mov_b32 s51, 0x00003f80")
    p("s_mov_b32 s3, 0x3f800000")
    for r in range(24): p(f"v_mov_b32 v{ACC+r}, 0")
    p(f"v_mov_b32 v{M}, 0xf149f2ca")
    p(f"v_mov_b32 v{L}, 0")
    p(f"v_mov_b32 v{Z}, 0")
    p("v_mov_b32 v56, 0x3f803f80")
    for r in range(4): p(f"v_accvgpr_write_b32 a{aONE+r}, v56")

    def qb_setup():
        p("s_barrier")
        for ks in range(12):
            p(f"ds_read_b128 a[{aQB+4*ks}:{aQB+4*ks+3}], v{VL16} offset:{XBUF + 1024*ks}")
        for ks in range(12):
            c = "0" if ks == 0 else f"v[{D1}:{D1+3}]"
            p(f"v_mfma_f32_16x16x32_bf16 v[{D1}:{D1+3}], a[{aONE}:{aONE+3}], a[{aQB+4*ks}:{aQB+4*ks+3}], {c}")
        p(f"v_mul_f32 v{SN}, s45, v{D1}")

    def stage_AM(s):
        buf = s & 1
        reload = s + 1 < NS
        if reload: tile_offsets(s + 1)
        for t in range(3):
            f1 = F1R(t)
            for j in range(4):
                p(f"v_lshlrev_b32 v{U+2*j}, 16, v{f1+j}")
                p(f"v_and_b32 v{U+2*j+1}, s44, v{f1+j}")
            if reload: load_f1(t)
            for d in range(4):
                f0 = F0R(t, d)
                if addmode == "dot2":
                    for j in range(4):
                        p(f"v_dot2_f32_bf16 v{TT+2*j}, v{f0+j}, s51, v{U+2*j}")
                        p(f"v_dot2_f32_bf16 v{TT+2*j+1}, v{f0+j}, s3, v{U+2*j+1}")
                else:
                    for j in range(4):
                        p(f"v_lshlrev_b32 v{TT+2*j}, 16, v{f0+j}")
                        p(f"v_and_b32 v{TT+2*j+1}, s44, v{f0+j}")
                    for j in range(4):
                        p(f"v_pk_add_f32 v[{TT+2*j}:{TT+2*j+1}], v[{TT+2*j}:{TT+2*j+1}], v[{U+2*j}:{U+2*j+1}]")
                for j in range(4):
                    p(f"v_cvt_pk_bf16_f32 v{f0+j}, v{TT+2*j}, v{TT+2*j+1}")
                p(f"ds_write_b128 v{WA[d]}, v[{f0}:{f0+3}] offset:{buf*XBUF + 768*d + 256*t}")
                if reload: load_f0(t, d)
            for ks in range(4 * t, 4 * t + 4):
                ra = RA[2 * ((ks >> 1) & 1) + (ks & 1)]
                p(f"ds_read_b128 a[{aXA+4*ks}:{aXA+4*ks+3}], v{ra} offset:{buf*XBUF + 256*(ks>>2)}")
            if s == 0 and t == 0: qb_setup()
            order = []
            for ks in range(4 * t, 4 * t + 4):
                x = f"a[{aXA+4*ks}:{aXA+4*ks+3}]"
                c1 = "0" if ks == 0 else f"v[{D1}:{D1+3}]"
                c2 = "0" if ks == 0 else f"v[{D2}:{D2+3}]"
                c3 = "0" if ks == 0 else f"v[{D3}:{D3+3}]"
                g_ = f"v_mfma_f32_16x16x32_bf16 v[{D2}:{D2+3}], {x}, {x}, {c2}"
                o_ = f"v_mfma_f32_16x16x32_bf16 v[{D3}:{D3+3}], {x}, a[{aONE}:{aONE+3}], {c3}"
                l_ = f"v_mfma_f32_16x16x32_bf16 v[{D1}:{D1+3}], {x}, a[{aQB+4*ks}:{aQB+4*ks+3}], {c1}"
                order.append((g_, o_, l_))
            if t < 2:
                for g_, o_, l_ in order: p(g_); p(o_); p(l_)
            else:
                for g_, o_, l_ in order: p(g_); p(o_)
                for g_, o_, l_ in order: p(l_)

    def stage_B(s):
        p(f"v_cndmask_b32 v{Uu}, 0, v{D2}, s[30:31]")
        for r in range(1, 4):
            p(f"v_cndmask_b32 v{Uu}, v{Uu}, v{D2+r}, s[{30+2*r}:{31+2*r}]")
        p(f"v_cndmask_b32 v{SS}, v{D3}, v{D3+1}, s[38:39]")
        p(f"v_cndmask_b32 v{SS}, v{SS}, v{D3+2}, s[40:41]")
        p(f"v_add_f32_dpp v{Uu}, v{Uu}, v{Uu} row_ror:4 row_mask:0xf bank_mask:0xf")
        p(f"v_cndmask_b32 v{SS}, v{SS}, v{D3+3}, s[42:43]")
        p(f"v_mov_b32 v{TM}, s46")
        p(f"v_add_f32_dpp v{Uu}, v{Uu}, v{Uu} row_ror:8 row_mask:0xf bank_mask:0xf")
        p(f"v_mul_f32 v{SS}, s45, v{SS}")
        p(f"v_fma_f32 v{Uu}, v{Uu}, s45, v{TM}")
        p(f"v_fma_f32 v{Uu}, -v{SS}, v{SS}, v{Uu}")
        p(f"v_max_f32 v{Uu}, s46, v{Uu}")
        p(f"v_rsq_f32 v{RS}, v{Uu}")
        for r in range(4):
            p(f"v_fma_f32 v{D1+r}, -v{D3+r}, v{SN}, v{D1+r}")
        for r in range(4):
            p(f"v_mul_f32_dpp v{D1+r}, v{RS}, v{D1+r} quad_perm:[{r},{r},{r},{r}] row_mask:0xf bank_mask:0xf")
        p(f"v_max3_f32 v{TM}, v{D1}, v{D1+1}, v{D1+2}")
        p(f"v_max_f32 v{TM}, v{TM}, v{D1+3}")
        xg_reduce(p, "v_max_f32", TM, TM2)
        p(f"ds_write_b32 v{MXW}, v{TM}")
        p("s_barrier")
        p(f"ds_read_b128 v[{D2}:{D2+3}], v{MXR}")
        trs = []
        for q in range(6):
            for kst in range(2):
                for h in range(2):
                    j = 2 * kst + h
                    a = aXT + 8 * q + 4 * kst + 2 * h
                    trs.append(f"ds_read_b64_tr_b16 a[{a}:{a+1}], v{TR[q]} offset:{j*XT}")
        for x in trs[:12]: p(x)
        p(f"v_max3_f32 v{TM}, v{D2}, v{D2+1}, v{D2+2}")
        p(f"v_max3_f32 v{TM}, v{TM}, v{D2+3}, v{M}")
        p(f"v_sub_f32 v{AL}, v{M}, v{TM}")
        p(f"v_mov_b32 v{M}, v{TM}")
        p(f"v_exp_f32 v{AL}, v{AL}")
        for r in range(4): p(f"v_sub_f32 v{D1+r}, v{D1+r}, v{M}")
        for r in range(4): p(f"v_exp_f32 v{D1+r}, v{D1+r}")
        for x in trs[12:]: p(x)
        p(f"v_add_f32 v{TM}, v{D1}, v{D1+1}")
        p(f"v_add_f32 v{TM2}, v{D1+2}, v{D1+3}")
        p(f"v_add_f32 v{TM}, v{TM}, v{TM2}")
        p(f"v_fma_f32 v{L}, v{L}, v{AL}, v{TM}")
        for r in range(4):
            p(f"v_mul_f32_dpp v{D1+r}, v{RS}, v{D1+r} quad_perm:[{r},{r},{r},{r}] row_mask:0xf bank_mask:0xf")
        p(f"v_cvt_pk_bf16_f32 v{WF}, v{D1}, v{D1+1}")
        p(f"v_cvt_pk_bf16_f32 v{WF+1}, v{D1+2}, v{D1+3}")
        p(f"ds_write_b64 v{WXW}, v[{WF}:{WF+1}]")
        p(f"v_mul_f32 v{Z}, v{Z}, v{AL}")
        for r in range(4): p(f"v_fma_f32 v{Z}, v{D1+r}, v{D3+r}, v{Z}")
        if s > 0:
            for r in range(24): p(f"v_mul_f32 v{ACC+r}, v{ACC+r}, v{AL}")
        p("s_barrier")

    def stage_C(s):
        p(f"ds_read_b128 v[{D1}:{D1+3}], v{WXR}")
        p(f"ds_read_b128 v[{D2}:{D2+3}], v{WXR} offset:1024")
        for kst in range(2):
            b = D1 if kst == 0 else D2
            for q in range(6):
                a = aXT + 8 * q + 4 * kst
                p(f"v_mfma_f32_16x16x32_bf16 v[{ACC+4*q}:{ACC+4*q+3}], a[{a}:{a+3}], v[{b}:{b+3}], v[{ACC+4*q}:{ACC+4*q+3}]")
        if s + 1 < NS:
            for q in range(6):
                if s & 1 == 0: p(f"v_add_u32 v{TR[q]}, {XBUF}, v{TR[q]}")
                else: p(f"v_subrev_u32 v{TR[q]}, {XBUF}, v{TR[q]}")

    stamps = []
    def stamp(lbl):
        if prof and len(stamps) < 22:
            i = len(stamps); stamps.append(lbl)
            p(f"s_memtime s[{52+2*i}:{53+2*i}]")
    stamp("init")
    for s in range(NS):
        stage_AM(s)
        if prof == 1: stamp(f"A{s}")
        stage_B(s)
        if prof == 2: stamp(f"B{s}")
        stage_C(s)
        stamp(f"C{s}")

    p("s_mul_i32 s24, s2, 24576")
    p("s_mul_i32 s25, s20, 6144")
    p("s_add_u32 s24, s24, s25")
    p(f"s_add_u32 s24, s24, {PART_OFF}")
    xg_reduce(p, "v_add_f32", L, TM2)
    xg_reduce(p, "v_add_f32", Z, TM2)
    p(f"ds_write_b32 v{MXW}, v{L}")
    p(f"ds_write_b32 v{MXW}, v{Z} offset:{LZ_OFF - MX_OFF}")
    for q in range(6):
        if q < 4:
            p(f"buffer_store_dwordx4 v[{ACC+4*q}:{ACC+4*q+3}], v{VL16}, s[16:19], s24 offen offset:{1024*q}")
        else:
            if q == 4: p("s_add_u32 s25, s24, 4096")
            p(f"buffer_store_dwordx4 v[{ACC+4*q}:{ACC+4*q+3}], v{VL16}, s[16:19], s25 offen offset:{1024*(q-4)}")
    p("s_barrier")
    p("s_cmp_lg_u32 s20, 0")
    p(f"s_cbranch_scc1 {name}_done ;@nodrain")
    p(f"ds_read_b128 v[56:59], v{MXR}")
    p(f"ds_read_b128 v[60:63], v{MXR} offset:{LZ_OFF - MX_OFF}")
    p("v_add_f32 v56, v56, v57")
    p("v_add_f32 v58, v58, v59")
    p("v_add_f32 v65, v56, v58")
    p("v_add_f32 v60, v60, v61")
    p("v_add_f32 v62, v62, v63")
    p("v_add_f32 v66, v60, v62")
    p(f"v_mov_b32 v64, v{M}")
    p("v_mov_b32 v67, 0")
    p("s_lshl_b32 s24, s2, 8")
    p(f"s_add_u32 s24, s24, {ML_OFF}")
    p("s_mov_b64 exec, 0xffff")
    p(f"buffer_store_dwordx4 v[64:67], v{VL16}, s[16:19], s24 offen")
    if prof:
        stamp("end")
        p("s_waitcnt vmcnt(0) lgkmcnt(0)")
        p(f"s_cmp_lg_u32 s2, {opt.get('profwg', 0)}")
        p(f"s_cbranch_scc1 {name}_done ;@nodrain")
        p("s_load_dwordx2 s[4:5], s[0:1], 64")
        p("s_waitcnt lgkmcnt(0)")
        p("s_mov_b64 exec, 1")
        p("v_mov_b32 v1, 0")
        for i in range(len(stamps)):
            p(f"s_sub_u32 s3, s{52+2*i}, s98")
            p("v_mov_b32 v2, s3")
            p(f"global_store_dword v1, v2, s[4:5] offset:{4*i}")
        print("stamps:", stamps)
    p(f"{name}_done:")
    p("s_endpgm")
    return p, dict(vgpr=152 + 148, accum=152, lds=LDS, grid=NWG, block=256)

def gen_reduce(name, opt):
    p = Prog()
    p("s_cmp_ge_u32 s2, 96")
    p(f"s_cbranch_scc1 {name}_done ;@nodrain")
    p("s_load_dwordx2 s[22:23], s[0:1], 72")
    p("v_readfirstlane_b32 s20, v0")
    p("v_and_b32 v0, 63, v0")
    p("s_lshr_b32 s20, s20, 6")
    p("v_and_b32 v1, 15, v0")
    p("v_lshrrev_b32 v2, 4, v0")
    p("v_mul_u32_u24 v3, 24576, v2")
    p("v_lshl_add_u32 v3, v1, 4, v3")
    p("v_lshlrev_b32 v4, 4, v0")
    p("s_lshr_b32 s21, s2, 2")
    p("s_and_b32 s24, s2, 3")
    p(f"s_mul_i32 s25, s20, {64*24576}")
    p("s_lshl_b32 s26, s21, 10")
    p("s_add_u32 s25, s25, s26")
    p("s_lshl_b32 s26, s24, 8")
    p("s_add_u32 s25, s25, s26")
    p(f"s_add_u32 s25, s25, {PART_OFF}")
    p("s_lshl_b32 s26, s20, 14")
    p(f"s_add_u32 s26, s26, {ML_OFF}")
    p("s_waitcnt lgkmcnt(0)")
    srd(p, 16, 22, WS_USED)
    PM = 16; PP = 80
    for i in range(16):
        if i % 4 == 0 and i: p("s_add_u32 s26, s26, 4096")
        p(f"buffer_load_dwordx4 v[{PM+4*i}:{PM+4*i+3}], v4, s[16:19], s26 offen offset:{1024*(i%4)}")
    for i in range(16):
        p(f"buffer_load_dwordx4 v[{PP+4*i}:{PP+4*i+3}], v3, s[16:19], s25 offen")
        p("s_add_u32 s25, s25, 98304")
    MV, T = 5, 6
    p(f"v_max3_f32 v{MV}, v{PM}, v{PM+4}, v{PM+8}")
    for i in range(3, 15, 2):
        p(f"v_max3_f32 v{MV}, v{MV}, v{PM+4*i}, v{PM+4*i+4}")
    p(f"v_max_f32 v{MV}, v{MV}, v{PM+60}")
    xg_reduce(p, "v_max_f32", MV, T)
    for i in range(16): p(f"v_sub_f32 v{PM+4*i}, v{PM+4*i}, v{MV}")
    for i in range(16): p(f"v_exp_f32 v{PM+4*i}, v{PM+4*i}")
    p(f"v_mul_f32 v9, v{PM}, v{PM+1}")
    p(f"v_mul_f32 v10, v{PM}, v{PM+2}")
    for i in range(1, 16):
        p(f"v_fma_f32 v9, v{PM+4*i}, v{PM+4*i+1}, v9")
        p(f"v_fma_f32 v10, v{PM+4*i}, v{PM+4*i+2}, v10")
    for r in range(4): p(f"v_mul_f32 v{12+r}, v{PM}, v{PP+r}")
    for i in range(1, 16):
        for r in range(4): p(f"v_fma_f32 v{12+r}, v{PM+4*i}, v{PP+4*i+r}, v{12+r}")
    for a in (9, 10, 12, 13, 14, 15): xg_reduce(p, "v_add_f32", a, T)
    p(f"v_mov_b32 v8, v{MV}")
    p("v_mov_b32 v11, 0")
    p("v_lshlrev_b32 v7, 7, v1")
    p("s_lshl_b32 s27, s20, 5")
    p("v_add_u32 v6, s27, v7")
    p("ds_write_b128 v6, v[8:11]")
    p("ds_write_b128 v6, v[12:15] offset:16")
    p("s_barrier")
    p("s_cmp_lg_u32 s20, 0")
    p(f"s_cbranch_scc1 {name}_done ;@nodrain")
    for v in range(4):
        p(f"ds_read_b128 v[{16+8*v}:{19+8*v}], v7 offset:{32*v}")
        p(f"ds_read_b128 v[{20+8*v}:{23+8*v}], v7 offset:{32*v+16}")
    p("v_max3_f32 v5, v16, v24, v32")
    p("v_max_f32 v5, v5, v40")
    for v in range(4): p(f"v_sub_f32 v{16+8*v}, v{16+8*v}, v5")
    for v in range(4): p(f"v_exp_f32 v{16+8*v}, v{16+8*v}")
    p("v_mul_f32 v9, v16, v17")
    p("v_mul_f32 v10, v16, v18")
    for r in range(4): p(f"v_mul_f32 v{12+r}, v16, v{20+r}")
    for v in range(1, 4):
        p(f"v_fma_f32 v9, v{16+8*v}, v{17+8*v}, v9")
        p(f"v_fma_f32 v10, v{16+8*v}, v{18+8*v}, v10")
        for r in range(4): p(f"v_fma_f32 v{12+r}, v{16+8*v}, v{20+8*v+r}, v{12+r}")
    p(f"s_mov_b32 s27, 0x{f2u(1.0 / C):08x}")
    p("v_mul_f32 v10, s27, v10")
    p("v_rcp_f32 v9, v9")
    for r in range(4): p(f"v_sub_f32 v{12+r}, v{12+r}, v10")
    for r in range(4): p(f"v_mul_f32 v{12+r}, v{12+r}, v9")
    p("v_cvt_pk_bf16_f32 v12, v12, v13")
    p("v_cvt_pk_bf16_f32 v13, v14, v15")
    p("s_lshr_b32 s25, s21, 1")
    p("s_lshl_b32 s25, s25, 10")
    p("s_lshl_b32 s26, s24, 8")
    p("s_add_u32 s25, s25, s26")
    p("s_and_b32 s26, s21, 1")
    p("s_lshl_b32 s26, s26, 3")
    p("s_add_u32 s25, s25, s26")
    p(f"s_add_u32 s25, s25, {POOL_OFF}")
    p("s_mov_b64 exec, 0xffff")
    p("buffer_store_dwordx2 v[12:13], v4, s[16:19], s25 offen")
    p(f"{name}_done:")
    p("s_endpgm")
    return p, dict(vgpr=144, accum=144, lds=2048, grid=96, block=256)

def gen_final(name, opt):
    p = Prog()
    p("s_cmp_ge_u32 s2, 24")
    p(f"s_cbranch_scc1 {name}_done ;@nodrain")
    p("s_load_dwordx2 s[22:23], s[0:1], 72")
    p("s_load_dwordx2 s[4:5], s[0:1], 0")
    p("s_load_dwordx2 s[6:7], s[0:1], 56")
    p("v_lshlrev_b32 v4, 4, v0")
    p("v_and_b32 v1, 15, v0")
    p("v_lshrrev_b32 v2, 4, v0")
    p("v_mul_u32_u24 v3, 768, v1")
    p("v_lshl_add_u32 v3, v2, 3, v3")
    p("s_lshl_b32 s24, s2, 5")
    p("s_mul_i32 s25, s2, 12288")
    p(f"s_add_u32 s25, s25, {WVO_OFF}")
    p(f"s_mov_b32 s26, {POOL_OFF}")
    p("s_waitcnt lgkmcnt(0)")
    srd(p, 16, 22, WS_USED)
    srd(p, 8, 4, Q_BYTES)
    srd(p, 12, 6, Q_BYTES)
    for ks in range(12):
        if ks % 4 == 0 and ks:
            p("s_add_u32 s25, s25, 4096"); p("s_add_u32 s26, s26, 4096")
        p(f"buffer_load_dwordx4 v[{16+4*ks}:{19+4*ks}], v4, s[16:19], s26 offen offset:{1024*(ks%4)}")
        p(f"buffer_load_dwordx4 v[{64+4*ks}:{67+4*ks}], v4, s[16:19], s25 offen offset:{1024*(ks%4)}")
    p("buffer_load_dwordx2 v[6:7], v3, s[8:11], s24 offen")
    for ks in range(12):
        c = "0" if ks == 0 else "v[8:11]"
        p(f"v_mfma_f32_16x16x32_bf16 v[8:11], v[{64+4*ks}:{67+4*ks}], v[{16+4*ks}:{19+4*ks}], {c}")
    p("v_lshlrev_b32 v12, 16, v6")
    p("v_and_b32 v13, 0xffff0000, v6")
    p("v_lshlrev_b32 v14, 16, v7")
    p("v_and_b32 v15, 0xffff0000, v7")
    for r in range(4): p(f"v_add_f32 v{12+r}, v{12+r}, v{8+r}")
    p("v_cvt_pk_bf16_f32 v12, v12, v13")
    p("v_cvt_pk_bf16_f32 v13, v14, v15")
    p("buffer_store_dwordx2 v[12:13], v3, s[12:15], s24 offen")
    p(f"{name}_done:")
    p("s_endpgm")
    return p, dict(vgpr=112, accum=112, lds=0, grid=24, block=64)

def gen_pre(name, opt):
    p = Prog()
    p("s_cmp_ge_u32 s2, 48")
    p(f"s_cbranch_scc1 {name}_done ;@nodrain")
    p("s_load_dwordx2 s[4:5], s[0:1], 0")
    p("s_load_dwordx4 s[8:11], s[0:1], 24")
    p("s_load_dwordx4 s[12:15], s[0:1], 40")
    p("s_load_dwordx2 s[22:23], s[0:1], 72")
    p("v_readfirstlane_b32 s20, v0")
    p("v_and_b32 v0, 63, v0")
    p("s_lshr_b32 s20, s20, 6")
    p("v_and_b32 v1, 15, v0")
    p("v_lshrrev_b32 v2, 4, v0")
    p("s_waitcnt lgkmcnt(0)")
    srd(p, 16, 22, WS_USED)
    p("s_cmp_ge_u32 s2, 24")
    p(f"s_cbranch_scc1 {name}_wvo ;@nodrain")
    srd(p, 24, 8, W_BYTES)
    srd(p, 28, 10, W_BYTES)
    srd(p, 32, 4, Q_BYTES)
    p("v_mul_u32_u24 v3, 768, v1")
    p("v_lshl_add_u32 v3, v2, 4, v3")
    for pp in range(12):
        p(f"buffer_load_dwordx4 v[{16+4*pp}:{19+4*pp}], v3, s[32:35], 0 offen offset:{64*pp}")
    p("s_mul_i32 s36, s2, 12288")
    for ks in range(12):
        p(f"buffer_load_dwordx4 a[{4*ks}:{4*ks+3}], v3, s[28:31], s36 offen offset:{64*ks}")
    p("v_lshrrev_b32 v4, 2, v1")
    p("v_lshlrev_b32 v4, 3, v4")
    p("v_and_b32 v5, 3, v1")
    p("v_add_u32 v4, v4, v5")
    p("v_mul_u32_u24 v4, 768, v4")
    p("v_lshl_add_u32 v4, v2, 4, v4")
    p(f"s_mul_i32 s36, s20, {3*32*768}")
    AT = 64
    def areg(tile, ks):
        idx = tile * 48 + ks * 4
        if idx < 192: return f"v[{64+idx}:{64+idx+3}]"
        idx -= 192
        return f"a[{48+idx}:{48+idx+3}]"
    for a in range(3):
        for h in range(2):
            tile = 2 * a + h
            p(f"s_add_u32 s37, s36, {a*32*768 + h*4*768}")
            for ks in range(12):
                p(f"buffer_load_dwordx4 {areg(tile, ks)}, v4, s[24:27], s37 offen offset:{64*ks}")
    S, T, T2, MEAN, RSTD = 6, 7, 8, 9, 10
    p(f"v_mov_b32 v{S}, 0")
    p("s_mov_b32 s44, 0xffff0000")
    for r in range(48):
        p(f"v_lshlrev_b32 v{T}, 16, v{16+r}")
        p(f"v_and_b32 v{T2}, s44, v{16+r}")
        p(f"v_add_f32 v{S}, v{S}, v{T}")
        p(f"v_add_f32 v{S}, v{S}, v{T2}")
    xg_reduce(p, "v_add_f32", S, T)
    p(f"v_mul_f32 v{MEAN}, 0x{f2u(1.0/C):08x}, v{S}")
    p(f"v_mov_b32 v{S}, 0")
    for r in range(48):
        p(f"v_lshlrev_b32 v{T}, 16, v{16+r}")
        p(f"v_and_b32 v{T2}, s44, v{16+r}")
        p(f"v_sub_f32 v{T}, v{T}, v{MEAN}")
        p(f"v_sub_f32 v{T2}, v{T2}, v{MEAN}")
        p(f"v_fma_f32 v{S}, v{T}, v{T}, v{S}")
        p(f"v_fma_f32 v{S}, v{T2}, v{T2}, v{S}")
    xg_reduce(p, "v_add_f32", S, T)
    p(f"v_mov_b32 v{T}, 0x{f2u(1e-5):08x}")
    p(f"s_mov_b32 s45, 0x{f2u(1.0/C):08x}")
    p(f"v_fma_f32 v{S}, v{S}, s45, v{T}")
    p(f"v_rsq_f32 v{RSTD}, v{S}")
    for r in range(48):
        p(f"v_lshlrev_b32 v{T}, 16, v{16+r}")
        p(f"v_and_b32 v{T2}, s44, v{16+r}")
        p(f"v_sub_f32 v{T}, v{T}, v{MEAN}")
        p(f"v_sub_f32 v{T2}, v{T2}, v{MEAN}")
        p(f"v_mul_f32 v{T}, v{T}, v{RSTD}")
        p(f"v_mul_f32 v{T2}, v{T2}, v{RSTD}")
        p(f"v_cvt_pk_bf16_f32 v{16+r}, v{T}, v{T2}")
    p("v_lshlrev_b32 v11, 4, v0")
    p("s_mul_i32 s38, s20, 12288")
    p("v_add_u32 v12, s38, v11")
    for pp in range(12):
        p(f"ds_write_b128 v12, v[{16+4*pp}:{19+4*pp}] offset:{1024*pp}")
    p("s_mul_i32 s39, s20, 3072")
    p("v_add_u32 v12, s39, v12")
    for a in range(3):
        p(f"ds_read_b128 v[{16+4*a}:{19+4*a}], v12 offset:{1024*a}")
    QK = 28
    for a in range(3):
        for h in range(2):
            tile = 2 * a + h
            d = 32 + 4 * h
            for ks in range(12):
                c = "0" if ks == 0 else f"v[{d}:{d+3}]"
                p(f"v_mfma_f32_16x16x32_bf16 v[{d}:{d+3}], {areg(tile, ks)}, a[{4*ks}:{4*ks+3}], {c}")
        p("v_cvt_pk_bf16_f32 v40, v32, v33")
        p("v_cvt_pk_bf16_f32 v41, v34, v35")
        p("v_cvt_pk_bf16_f32 v42, v36, v37")
        p("v_cvt_pk_bf16_f32 v43, v38, v39")
        c = "0" if a == 0 else f"v[{QK}:{QK+3}]"
        p(f"v_mfma_f32_16x16x32_bf16 v[{QK}:{QK+3}], v[40:43], v[{16+4*a}:{19+4*a}], {c}")
    p("s_lshl_b32 s38, s20, 10")
    p("v_add_u32 v12, s38, v11")
    p(f"ds_write_b128 v12, v[{QK}:{QK+3}] offset:49152")
    p("s_barrier")
    p("s_cmp_lg_u32 s20, 0")
    p(f"s_cbranch_scc1 {name}_done ;@nodrain")
    for v in range(4):
        p(f"ds_read_b128 v[{32+4*v}:{35+4*v}], v11 offset:{49152+1024*v}")
    for r in range(4):
        p(f"v_add_f32 v{32+r}, v{32+r}, v{36+r}")
        p(f"v_add_f32 v{40+r}, v{40+r}, v{44+r}")
        p(f"v_add_f32 v{32+r}, v{32+r}, v{40+r}")
        p(f"v_mul_f32 v{32+r}, 0x{f2u(SCALE*LOG2E):08x}, v{32+r}")
    p("v_cvt_pk_bf16_f32 v32, v32, v33")
    p("v_cvt_pk_bf16_f32 v33, v34, v35")
    p("v_lshrrev_b32 v4, 1, v2")
    p("v_lshlrev_b32 v4, 10, v4")
    p("v_lshl_add_u32 v4, v1, 4, v4")
    p("v_and_b32 v5, 1, v2")
    p("v_lshl_add_u32 v4, v5, 3, v4")
    p("s_lshr_b32 s36, s2, 2")
    p("s_lshl_b32 s36, s36, 11")
    p("s_and_b32 s37, s2, 3")
    p("s_lshl_b32 s37, s37, 8")
    p("s_add_u32 s36, s36, s37")
    p(f"s_add_u32 s36, s36, {QB_OFF}")
    p("buffer_store_dwordx2 v[32:33], v4, s[16:19], s36 offen")
    p("s_endpgm")
    p(f"{name}_wvo:")
    p("s_sub_u32 s21, s2, 24")
    srd(p, 24, 12, W_BYTES)
    srd(p, 28, 14, W_BYTES)
    p("v_lshrrev_b32 v4, 1, v0")
    p("v_mul_u32_u24 v4, 768, v4")
    p("v_and_b32 v5, 1, v0")
    p("v_lshl_add_u32 v4, v5, 4, v4")
    p("s_lshl_b32 s36, s21, 5")
    p(f"s_mul_i32 s37, s20, {96*768}")
    p("s_add_u32 s36, s36, s37")
    for a in range(3):
        p(f"buffer_load_dwordx4 v[{16+4*a}:{19+4*a}], v4, s[28:31], s36 offen")
        p(f"s_add_u32 s36, s36, {32*768}")
    p("v_mul_u32_u24 v3, 768, v1")
    p("v_lshl_add_u32 v3, v2, 4, v3")
    p(f"s_mul_i32 s36, s20, {6*16*768}")
    for tile in range(6):
        for ks in range(12):
            p(f"buffer_load_dwordx4 {areg(tile, ks)}, v3, s[24:27], s36 offen offset:{64*ks}")
        p(f"s_add_u32 s36, s36, {16*768}")
    p("v_lshlrev_b32 v11, 4, v0")
    p("s_mul_i32 s38, s20, 3072")
    p("v_add_u32 v12, s38, v11")
    for a in range(3):
        p(f"ds_write_b128 v12, v[{16+4*a}:{19+4*a}] offset:{1024*a}")
    p("s_barrier")
    p("v_lshrrev_b32 v5, 2, v0")
    p("v_and_b32 v5, 3, v5")
    p("v_lshl_add_u32 v5, v2, 3, v5")
    p("v_lshlrev_b32 v5, 5, v5")
    p("v_and_b32 v6, 3, v0")
    p("v_lshl_add_u32 v5, v6, 3, v5")
    for ks in range(12):
        for h in range(2):
            p(f"ds_read_b64_tr_b16 a[{4*ks+2*h}:{4*ks+2*h+1}], v5 offset:{1024*ks + 128*h}")
    p("s_mul_i32 s36, s21, 12288")
    p("s_mul_i32 s37, s20, 3072")
    p("s_add_u32 s36, s36, s37")
    p(f"s_add_u32 s36, s36, {WVO_OFF}")
    for tile in range(6):
        d = 32 + 4 * (tile & 1)
        for ks in range(12):
            c = "0" if ks == 0 else f"v[{d}:{d+3}]"
            p(f"v_mfma_f32_16x16x32_bf16 v[{d}:{d+3}], {areg(tile, ks)}, a[{4*ks}:{4*ks+3}], {c}")
        if tile & 1:
            p("v_cvt_pk_bf16_f32 v40, v32, v33")
            p("v_cvt_pk_bf16_f32 v41, v34, v35")
            p("v_cvt_pk_bf16_f32 v42, v36, v37")
            p("v_cvt_pk_bf16_f32 v43, v38, v39")
            p(f"buffer_store_dwordx4 v[40:43], v11, s[16:19], s36 offen offset:{1024*(tile>>1)}")
    p(f"{name}_done:")
    p("s_endpgm")
    return p, dict(vgpr=256 + 144, accum=256, lds=53248, grid=48, block=256)

def kernel_text(name, p):
    body = p.finalize(True)
    return [f".globl {name}", ".p2align 8", f".type {name},@function", f"{name}:"] + body

def kd_text(name, info):
    return [".p2align 6", f".amdhsa_kernel {name}", f"  .amdhsa_next_free_vgpr {info['vgpr']}", "  .amdhsa_next_free_sgpr 102",
            f"  .amdhsa_accum_offset {info['accum']}", "  .amdhsa_group_segment_fixed_size 0", "  .amdhsa_kernarg_size 80",
            "  .amdhsa_user_sgpr_count 2", "  .amdhsa_user_sgpr_kernarg_segment_ptr 1", "  .amdhsa_system_sgpr_workgroup_id_x 1",
            "  .amdhsa_float_denorm_mode_32 3", ".end_amdhsa_kernel"]

HEADER = open("standalone__detection_seg_dino__vision.s.ref").read().split("; Override launch")[0]

def gen_empty(name, opt):
    p = Prog()
    p("s_endpgm")
    return p, dict(vgpr=32, accum=32, lds=0, grid=256, block=64)

def build(path, opt):
    ks = [("dino_pre_kernel", gen_pre), ("dino_main_kernel", gen_main), ("dino_reduce_kernel", gen_reduce), ("dino_final_kernel", gen_final), ("dino_empty_kernel", gen_empty)]
    seq = opt.get("seq", "PMRF")
    idx = dict(P=0, M=1, R=2, F=3, E=4)
    texts = []; kds = []; lines = {}
    for name, g in ks:
        if not any(ks[idx[c]][0] == name for c in seq): continue
        p, info = g(name, opt)
        texts += kernel_text(name, p)
        kds += kd_text(name, info)
        lines[name] = f"; @launch kernel={name} grid=({info['grid']},1,1) block=({info['block']},1,1) lds={info['lds']}"
    hdr = [lines[ks[idx[c]][0]] for c in seq]
    out = HEADER.rstrip() + "\n" + "\n".join(hdr) + "\n" + '.amdgcn_target "amdgcn-amd-amdhsa--gfx950"\n.text\n' + "\n".join(texts) + '\n.section .rodata,"a"\n' + "\n".join(kds) + "\n"
    open(path, "w").write(out)

if __name__ == "__main__":
    opt = {}
    path = sys.argv[1] if len(sys.argv) > 1 else "k.s"
    for a in sys.argv[2:]:
        k, v = a.split("=")
        opt[k] = int(v) if v.lstrip('-').isdigit() else v
    build(path, opt)
```

```python
import re

REG_RE = re.compile(r'^(-|abs\()?([vas])(\d+|\[(\d+):(\d+)\])\)?$')

def parse_reg(op):
    op = op.strip()
    if op.startswith('-'): op = op[1:]
    if op.startswith('abs(') and op.endswith(')'): op = op[4:-1]
    if op.startswith('|') and op.endswith('|'): op = op[1:-1]
    if op in ('vcc', 'vcc_lo', 'vcc_hi'): return [('x', 'vcc')]
    if op in ('exec', 'exec_lo', 'exec_hi'): return [('x', 'exec')]
    if op == 'm0': return [('x', 'm0')]
    m = re.match(r'^([vas])(\d+)$', op)
    if m: return [(m.group(1), int(m.group(2)))]
    m = re.match(r'^([vas])\[(\d+):(\d+)\]$', op)
    if m: return [(m.group(1), i) for i in range(int(m.group(2)), int(m.group(3)) + 1)]
    return []

TRANS = ('v_exp_f32', 'v_log_f32', 'v_rcp_f32', 'v_rsq_f32', 'v_sqrt_f32', 'v_sin_f32', 'v_cos_f32', 'v_rcp_iflag_f32')

class Ins:
    def __init__(self, text):
        self.text = text
        t = text.split(';')[0].strip()
        self.label = t.endswith(':')
        self.kind = 'other'
        self.reads = set(); self.writes = set()
        self.nop = 0
        if self.label or not t or t.startswith('.'):
            self.kind = 'label' if self.label else 'dir'
            return
        parts = t.split(None, 1)
        mn = parts[0]; self.mn = mn
        rest = parts[1] if len(parts) > 1 else ''
        ops = []; depth = 0; cur = ''
        for ch in rest:
            if ch == '[': depth += 1
            if ch == ']': depth -= 1
            if ch == ',' and depth == 0:
                ops.append(cur.strip()); cur = ''
            else: cur += ch
        if cur.strip(): ops.append(cur.strip())
        mods = ''
        if ops:
            sp = ops[-1].split(None, 1)
            ops[-1] = sp[0]
            if len(sp) > 1: mods = sp[1]
        self.ops = ops; self.mods = mods
        R = lambda i: set(parse_reg(ops[i])) if i < len(ops) else set()
        self.dpp = ('quad_perm' in mods or 'row_' in mods or mn.endswith('_dpp'))
        if mn.startswith('v_mfma'):
            self.kind = 'mfma'
            self.writes = R(0); self.srcA = R(1); self.srcB = R(2); self.srcC = R(3)
            self.reads = self.srcA | self.srcB | self.srcC
            self.passes = 8 if '32x32' in mn else 4
            if '_f32_16x16x4_f32' in mn or '32x32x2_f32' in mn: raise Exception('sgemm not modelled')
        elif mn.startswith('v_'):
            self.kind = 'valu'
            self.trans = any(mn.startswith(x) for x in TRANS)
            base = mn.replace('_e32', '').replace('_e64', '').replace('_dpp', '')
            if base.startswith('v_cmp'):
                self.writes = R(0); self.reads = R(1) | R(2)
                if base.startswith('v_cmpx'): raise Exception('avoid v_cmpx')
            elif base.startswith('v_permlane') and 'swap' in base:
                self.writes = R(0) | R(1); self.reads = R(0) | R(1); self.permlane = True
            elif base in ('v_add_co_u32', 'v_sub_co_u32'):
                self.writes = R(0) | R(1); self.reads = R(2) | R(3)
            elif base in ('v_addc_co_u32',):
                self.writes = R(0) | R(1); self.reads = R(2) | R(3) | R(4)
            elif base in ('v_readfirstlane_b32', 'v_readlane_b32'):
                self.writes = R(0); self.reads = R(1) | R(2); self.readlane = True
            elif base in ('v_nop',):
                pass
            else:
                self.writes = R(0)
                for i in range(1, len(ops)): self.reads |= R(i)
                if base in ('v_fmac_f32', 'v_dot2c_f32_bf16', 'v_pk_fmac_f16', 'v_writelane_b32') or self.dpp:
                    self.reads |= R(0)
                if base == 'v_cndmask_b32' and len(ops) == 3: self.reads |= {('x', 'vcc')}
        elif mn.startswith('ds_'):
            self.kind = 'ds'
            if mn.startswith('ds_read') or mn.startswith('ds_bpermute') or mn.startswith('ds_permute') or mn.startswith('ds_swizzle') or '_rtn_' in mn:
                self.writes = R(0)
                for i in range(1, len(ops)): self.reads |= R(i)
                self.isload = True
            else:
                for i in range(len(ops)): self.reads |= R(i)
                self.isload = False
        elif mn.startswith('buffer_') or mn.startswith('global_'):
            self.kind = 'vmem'
            self.wide = ('x4' in mn or 'x3' in mn)
            if mn.startswith('buffer_inv') or mn.startswith('buffer_wbl2'):
                self.kind = 'vmemctl'
            elif mn.startswith('buffer_load'):
                if ' lds' in (' ' + mods):
                    for i in range(len(ops)): self.reads |= R(i)
                    self.reads |= {('x', 'm0')}
                    self.ldsdma = True
                else:
                    self.writes = R(0)
                    for i in range(1, len(ops)): self.reads |= R(i)
                self.isload = True
            elif mn.startswith('global_load_lds'):
                for i in range(len(ops)): self.reads |= R(i)
                self.reads |= {('x', 'm0')}
                self.ldsdma = True; self.isload = True
            elif mn.startswith('global_load'):
                self.writes = R(0)
                for i in range(1, len(ops)): self.reads |= R(i)
                self.isload = True
            elif mn.startswith('buffer_store'):
                for i in range(len(ops)): self.reads |= R(i)
                self.sdata = R(0); self.isload = False
            elif mn.startswith('global_store'):
                for i in range(len(ops)): self.reads |= R(i)
                self.sdata = R(1); self.isload = False
            elif 'atomic' in mn:
                ret = 'sc0' in mods.split()
                if ret:
                    self.writes = R(0)
                    for i in range(1, len(ops)): self.reads |= R(i)
                    if mn.startswith('buffer_'): self.reads |= R(0)
                else:
                    for i in range(len(ops)): self.reads |= R(i)
                self.isload = ret; self.sdata = set()
            else: raise Exception('vmem? ' + text)
        elif mn.startswith('s_'):
            self.kind = 'salu'
            if mn == 's_nop': self.nop = int(ops[0], 0) + 1
            elif mn == 's_waitcnt': self.kind = 'wait'
            elif mn == 's_barrier': self.kind = 'barrier'
            elif mn in ('s_endpgm', 's_sleep', 's_setprio', 's_branch') or mn.startswith('s_cbranch'):
                self.kind = 'ctl'
                if 'vcc' in mn: self.reads = {('x', 'vcc')}
                if 'exec' in mn: self.reads = {('x', 'exec')}
            elif mn.startswith('s_load') or mn.startswith('s_memtime') or mn.startswith('s_memrealtime'):
                self.kind = 'smem'
                self.writes = R(0)
                for i in range(1, len(ops)): self.reads |= R(i)
            elif mn.startswith('s_bitset'):
                self.writes = R(0); self.reads = R(0)
            elif mn.startswith('s_cmp') or mn.startswith('s_bitcmp'):
                for i in range(len(ops)): self.reads |= R(i)
            else:
                self.writes = R(0)
                for i in range(1, len(ops)): self.reads |= R(i)
                if 'saveexec' in mn: self.writes |= {('x', 'exec')}; self.reads |= {('x', 'exec')}
                if mn in ('s_addk_i32', 's_mulk_i32'): self.reads |= R(0)
        else:
            raise Exception('unknown instr: ' + text)

def vregs(s): return {r for r in s if r[0] in 'va'}
def sregs(s): return {r for r in s if r[0] == 's' or r == ('x', 'vcc')}

class Prog:
    def __init__(self):
        self.items = []
    def __call__(self, text):
        for line in text.split('\n'):
            if line.strip(): self.items.append(line.rstrip())
    def raw(self, text):
        self.items.append(text)

    def finalize(self, verbose=False):
        out = []
        vq = []
        lq = []
        sq = set()
        hist = []
        nnop = 0
        def emit(ins):
            out.append(('  ' + ins.text.split(';')[0].strip()) if ins.kind not in ('label',) else ins.text.split(';')[0].strip())
            if ins.kind in ('label', 'dir'): return
            hist.append(ins)
            if len(hist) > 40: del hist[0]
        def dist_needed(ins):
            need = 0
            d = 0
            for p in reversed(hist):
                req = 0
                if p.kind == 'valu':
                    w = p.writes
                    wv = vregs(w); ws = sregs(w)
                    if ins.kind == 'mfma' and wv & ins.reads: req = max(req, 2)
                    if p.mn.startswith('v_dot') and ins.kind in ('valu', 'mfma', 'ds', 'vmem') and (wv & (ins.reads | ins.writes)):
                        same_c = ins.kind == 'valu' and ins.mn == p.mn and not (wv & (set(parse_reg(ins.ops[1])) | set(parse_reg(ins.ops[2]))))
                        if not same_c: req = max(req, 3)
                    if ins.kind == 'valu':
                        if getattr(p, 'trans', False) and not getattr(ins, 'trans', False) and (wv & (ins.reads)): req = max(req, 1)
                        if getattr(p, 'trans', False) and getattr(ins, 'trans', False) and (wv & ins.reads): req = max(req, 1)
                        if ins.dpp and (wv & ins.reads): req = max(req, 2)
                        if getattr(ins, 'permlane', False) and (wv & ins.reads): req = max(req, 2)
                        if getattr(ins, 'readlane', False) and (wv & ins.reads): req = max(req, 1)
                        if ws & ins.reads: req = max(req, 4 if getattr(ins, 'readlane', False) else 2)
                    if ins.kind == 'vmem' and (ws & ins.reads): req = max(req, 5)
                    if ins.kind in ('salu', 'smem', 'ctl') and (ws & ins.reads): req = max(req, 4)
                    if ('x', 'exec') in w: raise Exception('valu exec write')
                if p.kind == 'mfma':
                    P = p.passes
                    big = 8 if P == 4 else 12
                    D = p.writes
                    if ins.kind == 'mfma':
                        if D & (ins.srcA | ins.srcB): req = max(req, big)
                        if D & ins.srcC:
                            if not (ins.srcC == D and ins.passes == P): req = max(req, 6 if P == 4 else 10)
                        if (D & ins.writes) and not (ins.srcC == D and ins.writes == D) and not (D & ins.srcC):
                            req = max(req, big)
                    elif ins.kind in ('valu', 'ds', 'vmem'):
                        if D & (ins.reads | ins.writes): req = max(req, big)
                        if ins.kind == 'valu' and (p.srcC & ins.writes): req = max(req, 3 if P == 4 else 7)
                if p.kind == 'vmem' and not getattr(p, 'isload', True) and getattr(p, 'wide', False):
                    if p.sdata & ins.writes: req = max(req, 2)
                if p.kind == 'salu' and ('x', 'm0') in p.writes:
                    if getattr(ins, 'ldsdma', False): req = max(req, 1)
                if p.kind == 'salu' and ('x', 'exec') in p.writes and ins.kind == 'valu' and ins.dpp:
                    req = max(req, 1)
                need = max(need, req - d)
                d += p.nop if p.nop else 1
                if d >= 20: break
            return need
        saved = {}
        for text in self.items:
            ins = Ins(text)
            mr = re.search(r'@restore (\w+)', text)
            if mr:
                vq, lq, sq, h = saved[mr.group(1)]
                vq = list(vq); lq = list(lq); sq = set(sq); hist[:] = list(h)
            if ins.kind in ('label', 'dir'):
                emit(ins); continue
            touch = ins.reads | ins.writes
            needv = None; needl = None
            if ins.kind != 'wait':
                for idx, (w, isd) in enumerate(vq):
                    if w & touch: needv = len(vq) - 1 - idx
                for idx, w in enumerate(lq):
                    if w & touch: needl = len(lq) - 1 - idx
                if sq & touch: needl = 0
                if ins.kind == 'barrier':
                    if lq: needl = 0
                if ins.kind == 'ctl' and ins.mn != 's_setprio' and ins.mn != 's_sleep' and ins.mn != 's_endpgm' and '@nodrain' not in text:
                    if any(w for (w, isd) in vq): needv = 0
                    if lq or sq: needl = 0
            if needv is not None or needl is not None:
                parts = []
                if needv is not None:
                    needv = min(needv, 63); parts.append('vmcnt(%d)' % needv); vq = vq[len(vq) - needv:] if needv else []
                if needl is not None:
                    if sq: needl = 0
                    needl = min(needl, 15); parts.append('lgkmcnt(%d)' % needl); lq = lq[len(lq) - needl:] if needl else []
                    if needl == 0: sq = set()
                emit(Ins('s_waitcnt ' + ' '.join(parts)))
            if ins.kind == 'wait':
                m = re.search(r'vmcnt\((\d+)\)', text)
                if m:
                    n = int(m.group(1)); vq = vq[len(vq) - n:] if n and n < len(vq) else ([] if n == 0 else vq)
                m = re.search(r'lgkmcnt\((\d+)\)', text)
                if m:
                    n = int(m.group(1)); lq = lq[len(lq) - n:] if n and n < len(lq) else ([] if n == 0 else lq)
                    if n == 0: sq = set()
            if ins.kind == 'vmem' and len(vq) >= 63:
                emit(Ins('s_waitcnt vmcnt(62)')); vq = vq[len(vq) - 62:]
            if ins.kind == 'ds' and len(lq) >= 15:
                emit(Ins('s_waitcnt lgkmcnt(14)')) if not sq else None
                if not sq: lq = lq[len(lq) - 14:]
            n = dist_needed(ins)
            if n > 0:
                nnop += 1
                while n > 0:
                    k = min(n, 16); emit(Ins('s_nop %d' % (k - 1))); n -= k
            emit(ins)
            ms = re.search(r'@save (\w+)', text)
            if ms: saved[ms.group(1)] = (list(vq), list(lq), set(sq), list(hist))
            if ins.kind == 'vmem':
                vq.append((set(ins.writes), getattr(ins, 'ldsdma', False)))
            if ins.kind == 'ds':
                lq.append(set(ins.writes))
                if len(lq) > 15:
                    pass
            if ins.kind == 'smem': sq |= ins.writes
        if verbose: print('nops inserted:', nnop, 'instrs:', len(out))
        return out
```

```python
import sys, math, struct
from dsl import Prog

C = 384
F0_BYTES = 113246208
F1_BYTES = 28311552
W_BYTES = 294912
Q_BYTES = 12288
N_OFF = 0
QF_OFF = 4096
QKF_OFF = QF_OFF + 24576
UF_OFF = QKF_OFF + 24576
ML_OFF = UF_OFF + 24576
PART_OFF = 262144
WS_USED = PART_OFF + 256 * 24576
NSPEC = 8
SPIN_MAX = 30000

def f2u(x): return struct.unpack('<I', struct.pack('<f', x))[0]
LOG2E = 1.4426950408889634
SCALE = C ** -0.5

def srd(p, base_s, ptr_lo, nbytes):
    p(f"s_mov_b32 s{base_s}, s{ptr_lo}")
    p(f"s_and_b32 s{base_s+1}, s{ptr_lo+1}, 0xffff")
    p(f"s_mov_b32 s{base_s+2}, {nbytes}")
    p(f"s_mov_b32 s{base_s+3}, 0x20000")

def mov64(p, s, val):
    p(f"s_mov_b32 s{s}, 0x{val & 0xffffffff:08x}")
    p(f"s_mov_b32 s{s+1}, 0x{(val >> 32) & 0xffffffff:08x}")

def xg_reduce(p, op, a, tmp):
    p(f"v_mov_b32 v{tmp}, v{a}")
    p(f"v_permlane32_swap_b32 v{a}, v{tmp}")
    p(f"{op} v{a}, v{a}, v{tmp}")
    p(f"v_mov_b32 v{tmp}, v{a}")
    p(f"v_permlane16_swap_b32 v{a}, v{tmp}")
    p(f"{op} v{a}, v{a}, v{tmp}")

S_MASK = 93
S_TAG = 95
S_SPIN = 92

def tag_regs(p, regs, vtag):
    for r in regs: p(f"v_bfi_b32 v{r}, s{S_MASK}, v{vtag}, v{r}")

def check_tags(p, regs, vtag, vacc):
    regs = list(regs)
    for r in regs: p(f"v_xor_b32 v{r}, v{r}, v{vtag}")
    p(f"v_or_b32 v{vacc}, v{regs[0]}, v{regs[1]}")
    rest = regs[2:]
    while len(rest) >= 2:
        p(f"v_or3_b32 v{vacc}, v{vacc}, v{rest[0]}, v{rest[1]}"); rest = rest[2:]
    if rest: p(f"v_or_b32 v{vacc}, v{vacc}, v{rest[0]}")
    p(f"v_and_b32 v{vacc}, s{S_MASK}, v{vacc}")
    p(f"v_cmp_ne_u32 vcc, 0, v{vacc}")

uid = [0]
def poll_block(p, name, loads, regs, vtag, vacc, preissued=False):
    uid[0] += 1
    L = f"{name}_pl{uid[0]}"
    if not preissued:
        for x in loads: p(x)
    check_tags(p, regs, vtag, vacc)
    p(f"s_cbranch_vccz {L}_ok")
    p(f"s_mov_b32 s{S_SPIN}, 0")
    p(f"{L}_retry:")
    p("s_sleep 1")
    for x in loads: p(x)
    p("s_waitcnt vmcnt(0)")
    check_tags(p, regs, vtag, vacc)
    p(f"s_cbranch_vccz {L}_fin")
    p(f"s_add_u32 s{S_SPIN}, s{S_SPIN}, 1")
    p(f"s_cmp_lt_u32 s{S_SPIN}, {SPIN_MAX}")
    p(f"s_cbranch_scc1 {L}_retry")
    p(f"{L}_fin:")
    p("s_nop 7")
    p("s_nop 7")
    p(f"{L}_ok: ;@restore {L}")

def prof_setup(opt): return opt.get("prof", 0)

def gen_kernel(name, opt):
    p = Prog()
    prof = opt.get("prof", 0)
    p("s_cmp_ge_u32 s2, 256")
    p(f"s_cbranch_scc1 {name}_done ;@nodrain")
    if prof: p("s_memrealtime s[98:99]")
    p("s_load_dwordx2 s[22:23], s[0:1], 72")
    p("s_load_dwordx4 s[4:7], s[0:1], 8")
    p("v_readfirstlane_b32 s20, v0")
    p("v_and_b32 v0, 63, v0")
    p("s_lshr_b32 s20, s20, 6")
    p(f"s_mov_b32 s{S_MASK}, 0xff")
    p(f"s_cmp_lt_u32 s2, {NSPEC}")
    p(f"s_cbranch_scc1 {name}_special")
    gen_streamer(p, name, opt)
    p(f"{name}_special: ;@restore entry")
    gen_special(p, name, opt)
    p(f"{name}_done:")
    p("s_endpgm")
    return p, dict(vgpr=240 + 160, accum=240, lds=162304, grid=256, block=256)

def gen_streamer(p, name, opt):
    NT = " nt" if opt.get("nt", True) else ""
    prof = opt.get("prof", 0)
    NS = 10
    SP = opt.get("sp", 5)
    ST = lambda k: 76 + 60 * k
    F1R = lambda k, t: ST(k) + 4 * t
    F0R = lambda k, t, d: ST(k) + 12 + 16 * t + 4 * d
    VF0, VF1, VL16 = 1, 2, 3
    WA = [[4, 5, 6, 7], [216, 217, 218, 219]]
    RA = [[11, 12, 13, 14], [220, 221, 222, 223]]
    VTAG = 8
    QBA = 9
    TR = [15, 16, 17, 18, 19, 20]
    MXW, MXR, WXW, WXR = 21, 22, 23, 24
    M, L, Z, SN = 25, 26, 27, 28
    ACC = 32
    D1, D2, D3 = 56, 60, 64
    Uu, SS, RS, TM, TM2, AL, WF = 68, 69, 70, 71, 72, 73, 74
    U = 196; TT = 204
    QK = 212 + 12
    QKR = 212
    aQB, aXA, aXT, aONE = 0, 48, 96, 144
    XBUF = 49152; XT = 12288
    MX_OFF = 147456; WX_OFF = MX_OFF + 256; LZ_OFF = WX_OFF + 2048; QBL_OFF = LZ_OFF + 256
    WA[1] = [228, 229, 230, 231]; RA[1] = [232, 233, 234, 235]
    QKR = 204 - 0
    QKR = 212
    WA[1] = [236, 237, 238, 239]; RA[1] = [29, 30, 31, 10]
    QKR = 212

    p("s_sub_u32 s21, s2, 8")
    p("s_mul_i32 s96, s21, 37")
    p("s_min_u32 s97, s21, 40")
    p("s_add_u32 s96, s96, s97")
    p("s_cmp_lt_u32 s21, 40")
    p("s_cselect_b32 s97, 2, 1")
    p("s_add_u32 s90, s96, s20")
    p("s_add_u32 s91, s90, s97")
    p("s_sub_u32 s91, s91, 4")
    FP, J = 56, 57
    p(f"v_lshrrev_b32 v{FP}, 4, v0")
    p(f"v_and_b32 v{J}, 15, v0")
    p(f"v_mul_u32_u24 v{VF0}, 1536, v{FP}")
    p(f"v_lshl_add_u32 v{VF0}, v{J}, 4, v{VF0}")
    p(f"v_mul_u32_u24 v{VF1}, 768, v{FP}")
    p(f"v_lshl_add_u32 v{VF1}, v{J}, 4, v{VF1}")
    p(f"v_lshlrev_b32 v{VL16}, 4, v0")
    p("s_waitcnt lgkmcnt(0)")
    srd(p, 8, 4, F0_BYTES)
    srd(p, 12, 6, F1_BYTES)
    srd(p, 16, 22, WS_USED)
    p(f"s_load_dword s94, s[22:23], {N_OFF}")

    def tile_offsets(s):
        base = "s90" if s <= SP else "s91"
        p(f"s_add_u32 s27, {base}, {4*s}")
        p("s_mul_i32 s24, s27, 3072")
        p(f"s_mul_hi_u32 s28, s27, {(2**32 + 47)//48}")
        p("s_mul_i32 s29, s28, 48")
        p("s_sub_u32 s29, s27, s29")
        p("s_mul_i32 s25, s28, 589824")
        p("s_mul_i32 s29, s29, 6144")
        p("s_add_u32 s25, s25, s29")
        p("s_add_u32 s26, s25, 294912")
        if s == SP:
            p("s_cmp_lt_u32 s20, s97")
            p(f"s_cselect_b32 s10, {F0_BYTES}, 0")
            p(f"s_cselect_b32 s14, {F1_BYTES}, 0")
        if s == SP + 1:
            p(f"s_mov_b32 s10, {F0_BYTES}")
            p(f"s_mov_b32 s14, {F1_BYTES}")
    def load_f1(s, t):
        r = F1R(s & 1, t)
        p(f"buffer_load_dwordx4 v[{r}:{r+3}], v{VF1}, s[12:15], s24 offen offset:{256*t}{NT}")
    def load_f0(s, t, d):
        r = F0R(s & 1, t, d)
        so = "s25" if d < 2 else "s26"
        p(f"buffer_load_dwordx4 v[{r}:{r+3}], v{VF0}, s[8:11], {so} offen offset:{256*t + 768*(d&1)}{NT}")
    def load_tile(s):
        tile_offsets(s)
        for t in range(3):
            load_f1(s, t)
            for d in range(4): load_f0(s, t, d)

    load_tile(0)
    p("s_waitcnt lgkmcnt(0)")
    p("s_add_u32 s94, s94, 1")
    p(f"s_and_b32 s{S_TAG}, s94, 0xff")
    p(f"v_mov_b32 v{VTAG}, s{S_TAG}")

    p(f"s_mul_i32 s47, s20, {XT}")
    p(f"v_and_b32 v58, 1, v{FP}")
    p(f"v_lshlrev_b32 v58, 3, v58")
    p(f"v_lshrrev_b32 v59, 1, v{FP}")
    p(f"v_add_u32 v58, v58, v59")
    p(f"v_xor_b32 v58, v58, v{J}")
    p(f"v_lshlrev_b32 v58, 4, v58")
    p(f"v_mul_u32_u24 v59, 3072, v{FP}")
    p(f"v_add_u32 v58, v58, v59")
    p(f"v_add_u32 v{WA[0][0]}, s47, v58")
    for d in range(1, 4): p(f"v_xor_b32 v{WA[0][d]}, {32*d}, v{WA[0][0]}")
    for d in range(4): p(f"v_add_u32 v{WA[1][d]}, {2*XBUF}, v{WA[0][d]}")
    I, G, SI = 57, 56, 58
    p(f"v_and_b32 v{SI}, 7, v{I}")
    p(f"v_lshlrev_b32 v{SI}, 1, v{SI}")
    p(f"v_lshrrev_b32 v59, 3, v{I}")
    p(f"v_or_b32 v{SI}, v{SI}, v59")
    p(f"v_lshlrev_b32 v59, 1, v{G}")
    p(f"v_xor_b32 v59, v59, v{SI}")
    p(f"v_mul_u32_u24 v60, 768, v{I}")
    p(f"v_add_u32 v60, s47, v60")
    for b3 in range(2):
        for b0 in range(2):
            r = RA[0][2 * b3 + b0]
            p(f"v_xor_b32 v{r}, {8*b3+b0}, v59")
            p(f"v_lshl_add_u32 v{r}, v{r}, 4, v60")
            p(f"v_add_u32 v{RA[1][2*b3+b0]}, {2*XBUF}, v{r}")
    p(f"v_lshlrev_b32 v{MXR}, 4, v{I}")
    p(f"v_lshrrev_b32 v59, 1, v{G}")
    p(f"v_lshlrev_b32 v59, 10, v59")
    p(f"v_and_b32 v60, 1, v{G}")
    p(f"v_lshl_add_u32 v59, v60, 3, v59")
    p(f"v_add_u32 v59, v59, v{MXR}")
    p(f"v_add_u32 v{QBA}, {QBL_OFF}, v59")
    p(f"v_add_u32 v{MXR}, {MX_OFF}, v{MXR}")
    p("s_lshl_b32 s48, s20, 2")
    p(f"v_add_u32 v{MXW}, s48, v{MXR}")
    p(f"v_add_u32 v{WXR}, {WX_OFF}, v{VL16}")
    p("s_lshr_b32 s48, s20, 1")
    p("s_lshl_b32 s48, s48, 10")
    p("s_and_b32 s49, s20, 1")
    p("s_lshl_b32 s49, s49, 3")
    p("s_add_u32 s48, s48, s49")
    p(f"v_add_u32 v{WXW}, s48, v{WXR}")
    I = 56
    p(f"v_lshrrev_b32 v{I}, 2, v0")
    p(f"v_and_b32 v{SI}, 7, v{I}")
    p(f"v_lshlrev_b32 v{SI}, 1, v{SI}")
    p(f"v_lshrrev_b32 v59, 3, v{I}")
    p(f"v_or_b32 v{SI}, v{SI}, v59")
    p(f"v_and_b32 v59, 3, v0")
    p(f"v_lshrrev_b32 v60, 1, v59")
    p(f"v_xor_b32 v{SI}, v{SI}, v60")
    p(f"v_and_b32 v59, 1, v59")
    p(f"v_lshlrev_b32 v59, 3, v59")
    p(f"v_mul_u32_u24 v60, 768, v{I}")
    p(f"v_add_u32 v60, v60, v59")
    p("s_mul_i32 s48, s20, 6")
    for q in range(6):
        p(f"s_add_u32 s49, s48, {q}")
        p("s_and_b32 s50, s49, 7")
        p("s_lshl_b32 s50, s50, 1")
        p("s_lshr_b32 s49, s49, 3")
        p("s_lshl_b32 s49, s49, 8")
        p(f"v_xor_b32 v{TR[q]}, s50, v{SI}")
        p(f"v_lshl_add_u32 v{TR[q]}, v{TR[q]}, 4, v60")
        p(f"v_add_u32 v{TR[q]}, s49, v{TR[q]}")
    for r in range(4):
        mov64(p, 30 + 2 * r, sum(1 << (20 * g + r) for g in range(4)))
    for r in range(1, 4):
        mov64(p, 38 + 2 * (r - 1), 0x1111111111111111 << r)
    p("s_mov_b32 s44, 0xffff0000")
    p(f"s_mov_b32 s45, 0x{f2u(1.0 / C):08x}")
    p(f"s_mov_b32 s46, 0x{f2u(1e-5):08x}")
    p("s_mov_b32 s51, 0x00003f80")
    p("s_mov_b32 s3, 0x3f800000")
    p("s_cmp_lt_u32 s20, s97")
    p("s_cselect_b32 s89, 0, 0xf149f2ca")
    for r in range(24): p(f"v_mov_b32 v{ACC+r}, 0")
    p(f"v_mov_b32 v{M}, 0xf149f2ca")
    p(f"v_mov_b32 v{L}, 0")
    p(f"v_mov_b32 v{Z}, 0")
    p("v_mov_b32 v56, 0x3f803f80")
    for r in range(4): p(f"v_accvgpr_write_b32 a{aONE+r}, v56")

    tr_slot = [0]
    def wa(slot, d, t): return (WA[0][d], slot * XBUF + 768 * d + 256 * t) if slot < 2 else (WA[1][d], 768 * d + 256 * t)
    def ra(slot, ks):
        i = 2 * ((ks >> 1) & 1) + (ks & 1)
        return (RA[0][i], slot * XBUF + 256 * (ks >> 2)) if slot < 2 else (RA[1][i], 256 * (ks >> 2))

    def m_reads(s, t):
        for ks in range(4 * t, 4 * t + 4):
            r, off = ra(s % 3, ks)
            p(f"ds_read_b128 a[{aXA+4*ks}:{aXA+4*ks+3}], v{r} offset:{off}")
    def m_mfma(s, t):
        order = []
        for ks in range(4 * t, 4 * t + 4):
            x = f"a[{aXA+4*ks}:{aXA+4*ks+3}]"
            c1 = "0" if ks == 0 else f"v[{D1}:{D1+3}]"
            c2 = "0" if ks == 0 else f"v[{D2}:{D2+3}]"
            c3 = "0" if ks == 0 else f"v[{D3}:{D3+3}]"
            order.append((f"v_mfma_f32_16x16x32_bf16 v[{D2}:{D2+3}], {x}, {x}, {c2}",
                          f"v_mfma_f32_16x16x32_bf16 v[{D3}:{D3+3}], {x}, a[{aONE}:{aONE+3}], {c3}",
                          f"v_mfma_f32_16x16x32_bf16 v[{D1}:{D1+3}], {x}, a[{aQB+4*ks}:{aQB+4*ks+3}], {c1}"))
        if t < 2:
            for g_, o_, l_ in order: p(g_); p(o_); p(l_)
        else:
            for g_, o_, l_ in order: p(g_); p(o_)
            for g_, o_, l_ in order: p(l_)

    def stage_A(s, ld, fuse):
        slot = s % 3; k = s & 1
        if ld is not None: tile_offsets(ld)
        for t in range(3):
            f1 = F1R(k, t)
            for j in range(4):
                p(f"v_lshlrev_b32 v{U+2*j}, 16, v{f1+j}")
                p(f"v_and_b32 v{U+2*j+1}, s44, v{f1+j}")
            if ld is not None: load_f1(ld, t)
            for d in range(4):
                f0 = F0R(k, t, d)
                for j in range(4):
                    p(f"v_dot2_f32_bf16 v{TT+2*j}, v{f0+j}, s51, v{U+2*j}")
                    p(f"v_dot2_f32_bf16 v{TT+2*j+1}, v{f0+j}, s3, v{U+2*j+1}")
                for j in range(4):
                    p(f"v_cvt_pk_bf16_f32 v{f0+j}, v{TT+2*j}, v{TT+2*j+1}")
                r, off = wa(slot, d, t)
                p(f"ds_write_b128 v{r}, v[{f0}:{f0+3}] offset:{off}")
                if ld is not None: load_f0(ld, t, d)
            if fuse:
                m_reads(s, t)
                m_mfma(s, t)

    def stage_M(s):
        for t in range(3): m_reads(s, t)
        for t in range(3): m_mfma(s, t)

    qk_loads = []
    qk_loads.append("s_mul_i32 s48, s20, 6144")
    qk_loads.append(f"s_add_u32 s48, s48, {QKF_OFF}")
    qk_loads.append("s_add_u32 s49, s48, 4096")
    for q in range(6):
        so, off = ("s48", 1024 * q) if q < 4 else ("s49", 1024 * (q - 4))
        qk_loads.append(f"buffer_load_dwordx4 v[{QKR+4*q}:{QKR+4*q+3}], v{VL16}, s[16:19], {so} offen offset:{off} sc1")
    def qk_issue():
        for x in qk_loads: p(x)
    def qb_setup():
        poll_block(p, name, qk_loads, list(range(QKR, QKR + 24)), VTAG, TM, preissued=True)
        for q in range(6):
            p(f"v_cvt_pk_bf16_f32 v{QKR+4*q}, v{QKR+4*q}, v{QKR+4*q+1}")
            p(f"v_cvt_pk_bf16_f32 v{QKR+4*q+1}, v{QKR+4*q+2}, v{QKR+4*q+3}")
            p("s_mul_i32 s48, s20, 6")
            p(f"s_add_u32 s48, s48, {q}")
            p("s_lshr_b32 s49, s48, 2")
            p("s_lshl_b32 s49, s49, 11")
            p("s_and_b32 s48, s48, 3")
            p("s_lshl_b32 s48, s48, 8")
            p("s_add_u32 s48, s48, s49")
            p(f"v_add_u32 v{TM}, s48, v{QBA}")
            p(f"ds_write_b64 v{TM}, v[{QKR+4*q}:{QKR+4*q+1}]")
        p("s_barrier")
        p(f"v_add_u32 v{TM}, {QBL_OFF}, v{VL16}")
        for ks in range(12):
            p(f"ds_read_b128 a[{aQB+4*ks}:{aQB+4*ks+3}], v{TM} offset:{1024*ks}")
        for ks in range(12):
            c = "0" if ks == 0 else f"v[{D1}:{D1+3}]"
            p(f"v_mfma_f32_16x16x32_bf16 v[{D1}:{D1+3}], a[{aONE}:{aONE+3}], a[{aQB+4*ks}:{aQB+4*ks+3}], {c}")
        p(f"v_mul_f32 v{SN}, s45, v{D1}")

    first_bc = [True]
    def stage_B(s):
        slot = s % 3
        if slot != tr_slot[0]:
            dlt = (slot - tr_slot[0]) * XBUF
            for q in range(6):
                if dlt > 0: p(f"v_add_u32 v{TR[q]}, {dlt}, v{TR[q]}")
                else: p(f"v_subrev_u32 v{TR[q]}, {-dlt}, v{TR[q]}")
            tr_slot[0] = slot
        p(f"v_cndmask_b32 v{Uu}, 0, v{D2}, s[30:31]")
        for r in range(1, 4):
            p(f"v_cndmask_b32 v{Uu}, v{Uu}, v{D2+r}, s[{30+2*r}:{31+2*r}]")
        p(f"v_cndmask_b32 v{SS}, v{D3}, v{D3+1}, s[38:39]")
        p(f"v_cndmask_b32 v{SS}, v{SS}, v{D3+2}, s[40:41]")
        p(f"v_add_f32_dpp v{Uu}, v{Uu}, v{Uu} row_ror:4 row_mask:0xf bank_mask:0xf")
        p(f"v_cndmask_b32 v{SS}, v{SS}, v{D3+3}, s[42:43]")
        p(f"v_mov_b32 v{TM}, s46")
        p(f"v_add_f32_dpp v{Uu}, v{Uu}, v{Uu} row_ror:8 row_mask:0xf bank_mask:0xf")
        p(f"v_mul_f32 v{SS}, s45, v{SS}")
        p(f"v_fma_f32 v{Uu}, v{Uu}, s45, v{TM}")
        p(f"v_fma_f32 v{Uu}, -v{SS}, v{SS}, v{Uu}")
        p(f"v_max_f32 v{Uu}, s46, v{Uu}")
        p(f"v_rsq_f32 v{RS}, v{Uu}")
        for r in range(4):
            p(f"v_fma_f32 v{D1+r}, -v{D3+r}, v{SN}, v{D1+r}")
        for r in range(4):
            p(f"v_mul_f32_dpp v{D1+r}, v{RS}, v{D1+r} quad_perm:[{r},{r},{r},{r}] row_mask:0xf bank_mask:0xf")
        if s == SP:
            for r in range(4): p(f"v_add_f32 v{D1+r}, s89, v{D1+r}")
        p(f"v_max3_f32 v{TM}, v{D1}, v{D1+1}, v{D1+2}")
        p(f"v_max_f32 v{TM}, v{TM}, v{D1+3}")
        xg_reduce(p, "v_max_f32", TM, TM2)
        p(f"ds_write_b32 v{MXW}, v{TM}")
        p("s_barrier")
        p(f"ds_read_b128 v[{D2}:{D2+3}], v{MXR}")
        trs = []
        for q in range(6):
            for kst in range(2):
                for h in range(2):
                    j = 2 * kst + h
                    a = aXT + 8 * q + 4 * kst + 2 * h
                    trs.append(f"ds_read_b64_tr_b16 a[{a}:{a+1}], v{TR[q]} offset:{j*XT}")
        for x in trs[:12]: p(x)
        p(f"v_max3_f32 v{TM}, v{D2}, v{D2+1}, v{D2+2}")
        p(f"v_max3_f32 v{TM}, v{TM}, v{D2+3}, v{M}")
        p(f"v_sub_f32 v{AL}, v{M}, v{TM}")
        p(f"v_mov_b32 v{M}, v{TM}")
        p(f"v_exp_f32 v{AL}, v{AL}")
        for r in range(4): p(f"v_sub_f32 v{D1+r}, v{D1+r}, v{M}")
        for r in range(4): p(f"v_exp_f32 v{D1+r}, v{D1+r}")
        for x in trs[12:]: p(x)
        p(f"v_add_f32 v{TM}, v{D1}, v{D1+1}")
        p(f"v_add_f32 v{TM2}, v{D1+2}, v{D1+3}")
        p(f"v_add_f32 v{TM}, v{TM}, v{TM2}")
        p(f"v_fma_f32 v{L}, v{L}, v{AL}, v{TM}")
        for r in range(4):
            p(f"v_mul_f32_dpp v{D1+r}, v{RS}, v{D1+r} quad_perm:[{r},{r},{r},{r}] row_mask:0xf bank_mask:0xf")
        p(f"v_cvt_pk_bf16_f32 v{WF}, v{D1}, v{D1+1}")
        p(f"v_cvt_pk_bf16_f32 v{WF+1}, v{D1+2}, v{D1+3}")
        p(f"ds_write_b64 v{WXW}, v[{WF}:{WF+1}]")
        p(f"v_mul_f32 v{Z}, v{Z}, v{AL}")
        for r in range(4): p(f"v_fma_f32 v{Z}, v{D1+r}, v{D3+r}, v{Z}")
        if not first_bc[0]:
            for r in range(24): p(f"v_mul_f32 v{ACC+r}, v{ACC+r}, v{AL}")
        first_bc[0] = False
        p("s_barrier")

    def stage_C(s):
        p(f"ds_read_b128 v[{D1}:{D1+3}], v{WXR}")
        p(f"ds_read_b128 v[{D2}:{D2+3}], v{WXR} offset:1024")
        for kst in range(2):
            b = D1 if kst == 0 else D2
            for q in range(6):
                a = aXT + 8 * q + 4 * kst
                p(f"v_mfma_f32_16x16x32_bf16 v[{ACC+4*q}:{ACC+4*q+3}], a[{a}:{a+3}], v[{b}:{b+3}], v[{ACC+4*q}:{ACC+4*q+3}]")

    stamps = []
    skip = opt.get("skip", "").split(",")
    def stamp(lbl):
        if prof == 1 and len(stamps) < 18 and lbl not in skip:
            i = len(stamps); stamps.append(lbl)
            p(f"s_memrealtime s[{52+2*i}:{53+2*i}]")
    sched = opt.get("sched", "A0L1 A1L2 Q A2L3 S L4 M0 A3L5 M1 M2 A4L6 M3 A5L7 M4 M5 F6 F7L8 F8L9 F9")
    stamp("init")
    for tok in sched.split():
        if tok == "Q": qk_issue()
        elif tok == "S": qb_setup(); stamp("S")
        elif tok[0] == "L": load_tile(int(tok[1:]))
        elif tok[0] in "AF":
            s = int(tok[1]); ld = int(tok[3:]) if len(tok) > 2 else None
            stage_A(s, ld, tok[0] == "F")
            if tok[0] == "F":
                stage_B(s); stage_C(s)
            if tok[0] == "F" or s < 3: stamp(tok)
        elif tok[0] == "M":
            s = int(tok[1]); stage_M(s); stage_B(s); stage_C(s); stamp(tok)

    p("s_mul_i32 s24, s2, 24576")
    p("s_mul_i32 s25, s20, 6144")
    p("s_add_u32 s24, s24, s25")
    p(f"s_add_u32 s24, s24, {PART_OFF}")
    p("s_add_u32 s25, s24, 4096")
    xg_reduce(p, "v_add_f32", L, TM2)
    xg_reduce(p, "v_add_f32", Z, TM2)
    p(f"ds_write_b32 v{MXW}, v{L}")
    p(f"ds_write_b32 v{MXW}, v{Z} offset:{LZ_OFF - MX_OFF}")
    for q in range(6):
        tag_regs(p, range(ACC + 4 * q, ACC + 4 * q + 4), VTAG)
        so, off = ("s24", 1024 * q) if q < 4 else ("s25", 1024 * (q - 4))
        p(f"buffer_store_dwordx4 v[{ACC+4*q}:{ACC+4*q+3}], v{VL16}, s[16:19], {so} offen offset:{off} sc1")
    p("s_barrier")
    p("s_cmp_lg_u32 s20, 0")
    p(f"s_cbranch_scc1 {name}_red")
    p(f"ds_read_b128 v[56:59], v{MXR}")
    p(f"ds_read_b128 v[60:63], v{MXR} offset:{LZ_OFF - MX_OFF}")
    p("v_add_f32 v56, v56, v57")
    p("v_add_f32 v58, v58, v59")
    p("v_add_f32 v65, v56, v58")
    p("v_add_f32 v60, v60, v61")
    p("v_add_f32 v62, v62, v63")
    p("v_add_f32 v66, v60, v62")
    p(f"v_mov_b32 v64, v{M}")
    p(f"v_mov_b32 v67, v{VTAG}")
    p("s_lshl_b32 s24, s2, 8")
    p(f"s_add_u32 s24, s24, {ML_OFF}")
    p("s_mov_b64 exec, 0xffff")
    p(f"buffer_store_dwordx4 v[64:67], v{VL16}, s[16:19], s24 offen sc1")
    p("s_mov_b64 exec, -1")
    p(f"{name}_red: ;@restore red")
    stamp("pub")
    p("s_cmp_ge_u32 s21, 192")
    p(f"s_cbranch_scc1 {name}_sdone ;@nodrain")
    p("s_lshr_b32 s24, s21, 3")
    p("s_lshr_b32 s25, s21, 1")
    p("s_and_b32 s25, s25, 3")
    p("s_and_b32 s26, s21, 1")
    p("v_and_b32 v56, 7, v0")
    p("v_lshrrev_b32 v57, 3, v0")
    p("v_mul_u32_u24 v58, 24576, v57")
    p("v_lshl_add_u32 v58, v56, 4, v58")
    p("v_lshlrev_b32 v59, 8, v57")
    p("v_lshl_add_u32 v59, v56, 4, v59")
    p(f"s_mul_i32 s27, s20, {64*24576}")
    p("s_lshl_b32 s28, s24, 10")
    p("s_add_u32 s27, s27, s28")
    p("s_lshl_b32 s28, s25, 8")
    p("s_add_u32 s27, s27, s28")
    p("s_lshl_b32 s28, s26, 7")
    p("s_add_u32 s27, s27, s28")
    p(f"s_add_u32 s27, s27, {PART_OFF}")
    p("s_lshl_b32 s29, s20, 14")
    p("s_add_u32 s29, s29, s28")
    p(f"s_add_u32 s29, s29, {ML_OFF}")
    PM = 76; PP = 108
    loads = []
    for i in range(8):
        loads.append(f"s_add_u32 s48, s29, {2048*i}")
        loads.append(f"buffer_load_dwordx4 v[{PM+4*i}:{PM+4*i+3}], v59, s[16:19], s48 offen sc1")
        loads.append(f"s_add_u32 s49, s27, {8*24576*i}")
        loads.append(f"buffer_load_dwordx4 v[{PP+4*i}:{PP+4*i+3}], v58, s[16:19], s49 offen sc1")
    regs = [PM + 4 * i + 3 for i in range(8)] + list(range(PP, PP + 32))
    poll_block(p, name, loads, regs, VTAG, 60)
    stamp("redin")
    MV, T = 61, 62
    p(f"v_max3_f32 v{MV}, v{PM}, v{PM+4}, v{PM+8}")
    p(f"v_max3_f32 v{MV}, v{MV}, v{PM+12}, v{PM+16}")
    p(f"v_max3_f32 v{MV}, v{MV}, v{PM+20}, v{PM+24}")
    p(f"v_max_f32 v{MV}, v{MV}, v{PM+28}")
    p(f"v_max_f32_dpp v{MV}, v{MV}, v{MV} row_ror:8 row_mask:0xf bank_mask:0xf")
    xg_reduce(p, "v_max_f32", MV, T)
    for i in range(8): p(f"v_sub_f32 v{PM+4*i}, v{PM+4*i}, v{MV}")
    for i in range(8): p(f"v_exp_f32 v{PM+4*i}, v{PM+4*i}")
    for r in range(4): p(f"v_mul_f32 v{64+r}, v{PM}, v{PP+r}")
    for i in range(1, 8):
        for r in range(4): p(f"v_fma_f32 v{64+r}, v{PM+4*i}, v{PP+4*i+r}, v{64+r}")
    for r in range(4): p(f"v_add_f32_dpp v{64+r}, v{64+r}, v{64+r} row_ror:8 row_mask:0xf bank_mask:0xf")
    for r in range(4): xg_reduce(p, "v_add_f32", 64 + r, T)
    p("v_lshlrev_b32 v63, 7, v56")
    p("s_lshl_b32 s28, s20, 5")
    p("v_add_u32 v68, s28, v63")
    p(f"ds_write_b128 v68, v[64:67]")
    p(f"ds_write_b32 v68, v{MV} offset:16")
    p("s_barrier")
    p("s_cmp_lg_u32 s20, 0")
    p(f"s_cbranch_scc1 {name}_sdone ;@nodrain")
    for v in range(4):
        p(f"ds_read_b128 v[{76+8*v}:{79+8*v}], v63 offset:{32*v}")
        p(f"ds_read_b32 v{80+8*v}, v63 offset:{32*v+16}")
    p("v_max3_f32 v61, v80, v88, v96")
    p("v_max_f32 v61, v61, v104")
    for v in range(4): p(f"v_sub_f32 v{80+8*v}, v{80+8*v}, v61")
    for v in range(4): p(f"v_exp_f32 v{80+8*v}, v{80+8*v}")
    for r in range(4): p(f"v_mul_f32 v{64+r}, v80, v{76+r}")
    for v in range(1, 4):
        for r in range(4): p(f"v_fma_f32 v{64+r}, v{80+8*v}, v{76+8*v+r}, v{64+r}")
    tag_regs(p, range(64, 68), VTAG)
    p("s_lshl_b32 s24, s24, 10")
    p("s_lshl_b32 s25, s25, 8")
    p("s_add_u32 s24, s24, s25")
    p("s_lshl_b32 s26, s26, 7")
    p("s_add_u32 s24, s24, s26")
    p(f"s_add_u32 s24, s24, {UF_OFF}")
    p("s_mov_b64 exec, 0xff")
    p(f"buffer_store_dwordx4 v[64:67], v{VL16}, s[16:19], s24 offen sc1")
    stamp("redout")
    p(f"{name}_sdone:")
    if prof == 1:
        p(f"s_cmp_lg_u32 s2, {opt.get('profwg', 8)}")
        p(f"s_cbranch_scc1 {name}_done ;@nodrain")
        p("s_cmp_lg_u32 s20, 0")
        p(f"s_cbranch_scc1 {name}_done ;@nodrain")
        p("s_waitcnt vmcnt(0) lgkmcnt(0)")
        p("s_load_dwordx2 s[4:5], s[0:1], 64")
        p("s_waitcnt lgkmcnt(0)")
        p("s_mov_b64 exec, 1")
        p("v_mov_b32 v1, 0")
        for i in range(len(stamps)):
            p(f"s_sub_u32 s3, s{52+2*i}, s98")
            p("v_mov_b32 v2, s3")
            p(f"global_store_dword v1, v2, s[4:5] offset:{4*i}")
        print("stamps:", stamps)
    p("s_endpgm")

def gen_special(p, name, opt):
    prof = opt.get("prof", 0)
    sst = []
    def stamp(lbl):
        if prof == 2:
            i = len(sst); sst.append(lbl)
            p(f"s_memrealtime s[{64+2*i}:{65+2*i}]")
    VL16, VI, VG, VTAG, VAB = 1, 2, 3, 4, 5
    p("s_load_dwordx2 s[4:5], s[0:1], 0")
    p("s_load_dwordx4 s[8:11], s[0:1], 24")
    p("s_load_dwordx4 s[12:15], s[0:1], 40")
    p("s_load_dwordx2 s[6:7], s[0:1], 56")
    p(f"v_lshlrev_b32 v{VL16}, 4, v0")
    p(f"v_and_b32 v{VI}, 15, v0")
    p(f"v_lshrrev_b32 v{VG}, 4, v0")
    p(f"v_mul_u32_u24 v{VAB}, 768, v{VI}")
    p(f"v_lshl_add_u32 v{VAB}, v{VG}, 4, v{VAB}")
    p("s_waitcnt lgkmcnt(0)")
    p(f"s_load_dword s94, s[22:23], {N_OFF}")
    srd(p, 16, 22, WS_USED)
    srd(p, 24, 8, W_BYTES)
    srd(p, 28, 10, W_BYTES)
    srd(p, 32, 4, Q_BYTES)
    srd(p, 36, 12, W_BYTES)
    srd(p, 40, 14, W_BYTES)
    srd(p, 44, 6, Q_BYTES)
    for r in range(4): mov64(p, 52 + 2 * r, sum(1 << (20 * g + r) for g in range(4)))
    p(f"s_mov_b32 s60, 0x{f2u(1.0 / C):08x}")
    p(f"s_mov_b32 s61, 0x{f2u(1e-5):08x}")
    p("s_lshl_b32 s21, s20, 3")
    p("s_add_u32 s21, s21, s2")
    aONE = 144
    p("v_mov_b32 v6, 0x3f803f80")
    for r in range(4): p(f"v_accvgpr_write_b32 a{aONE+r}, v6")
    ONES = f"a[{aONE}:{aONE+3}]"
    p("s_cmp_ge_u32 s20, 3")
    p(f"s_cbranch_scc1 {name}_sp_w")
    QFR = 16
    WQ = 64
    aWT = 0
    aWK = 48
    for ks in range(12):
        p(f"buffer_load_dwordx4 v[{QFR+4*ks}:{QFR+4*ks+3}], v{VAB}, s[32:35], 0 offen offset:{64*ks}")
    p("v_lshrrev_b32 v7, 1, v0")
    p("v_mul_u32_u24 v7, 768, v7")
    p("v_and_b32 v8, 1, v0")
    p("v_lshl_add_u32 v7, v8, 4, v7")
    p("s_lshl_b32 s48, s21, 5")
    for a in range(12):
        p(f"buffer_load_dwordx4 v[{WQ+4*a}:{WQ+4*a+3}], v7, s[24:27], s48 offen")
        if a < 11: p(f"s_add_u32 s48, s48, {32*768}")
    p("s_mul_i32 s48, s21, 12288")
    for ks in range(12):
        p(f"buffer_load_dwordx4 a[{aWK+4*ks}:{aWK+4*ks+3}], v{VAB}, s[28:31], s48 offen offset:{64*ks}")
    p("s_waitcnt lgkmcnt(0)")
    p("s_add_u32 s94, s94, 1")
    p(f"s_and_b32 s{S_TAG}, s94, 0xff")
    p(f"v_mov_b32 v{VTAG}, s{S_TAG}")
    stamp("issued")
    for ks in range(12):
        q = f"v[{QFR+4*ks}:{QFR+4*ks+3}]"
        p(f"v_mfma_f32_16x16x32_bf16 v[112:115], {ONES}, {q}, {'0' if ks == 0 else 'v[112:115]'}")
        p(f"v_mfma_f32_16x16x32_bf16 v[116:119], {q}, {q}, {'0' if ks == 0 else 'v[116:119]'}")
    p("s_mul_i32 s49, s20, 12288")
    p(f"v_add_u32 v9, s49, v{VL16}")
    for a in range(12):
        p(f"ds_write_b128 v9, v[{WQ+4*a}:{WQ+4*a+3}] offset:{1024*a}")
    p("v_lshrrev_b32 v10, 2, v0")
    p("v_and_b32 v10, 3, v10")
    p(f"v_lshl_add_u32 v10, v{VG}, 3, v10")
    p("v_lshlrev_b32 v10, 5, v10")
    p("v_and_b32 v11, 3, v0")
    p("v_lshl_add_u32 v10, v11, 3, v10")
    p("v_add_u32 v11, s49, v10")
    for ks in range(12):
        for h in range(2):
            p(f"ds_read_b64_tr_b16 a[{aWT+4*ks+2*h}:{aWT+4*ks+2*h+1}], v11 offset:{1024*ks + 128*h}")
    p("v_cndmask_b32 v12, 0, v116, s[52:53]")
    for r in range(1, 4): p(f"v_cndmask_b32 v12, v12, v{116+r}, s[{52+2*r}:{53+2*r}]")
    xg_reduce(p, "v_add_f32", 12, 13)
    p("v_mul_f32 v14, s60, v112")
    p("v_mov_b32 v13, s61")
    p("v_fma_f32 v12, v12, s60, v13")
    p("v_fma_f32 v12, -v14, v14, v12")
    p("v_max_f32 v12, s61, v12")
    p("v_rsq_f32 v15, v12")
    for ks in range(12):
        a = f"a[{aWT+4*ks}:{aWT+4*ks+3}]"
        q = f"v[{QFR+4*ks}:{QFR+4*ks+3}]"
        p(f"v_mfma_f32_16x16x32_bf16 v[112:115], {a}, {q}, {'0' if ks == 0 else 'v[112:115]'}")
        p(f"v_mfma_f32_16x16x32_bf16 v[116:119], {a}, {ONES}, {'0' if ks == 0 else 'v[116:119]'}")
    for r in range(4): p(f"v_fma_f32 v{112+r}, -v14, v{116+r}, v{112+r}")
    for r in range(4): p(f"v_mul_f32 v{112+r}, v{112+r}, v15")
    tag_regs(p, range(112, 116), VTAG)
    p("s_lshl_b32 s48, s21, 10")
    p(f"s_add_u32 s48, s48, {QF_OFF}")
    p(f"buffer_store_dwordx4 v[112:115], v{VL16}, s[16:19], s48 offen sc1")
    stamp("st1")
    p(f"v_lshrrev_b32 v7, 1, v{VG}")
    p("v_lshlrev_b32 v7, 10, v7")
    p(f"v_and_b32 v8, 1, v{VG}")
    p("v_lshl_add_u32 v7, v8, 9, v7")
    p(f"v_lshl_add_u32 v7, v{VI}, 4, v7")
    loads = []
    QR = 120
    for pp in range(12):
        loads.append(f"s_mov_b32 s48, {QF_OFF + 2048*pp}")
        for h in range(2):
            loads.append(f"buffer_load_dwordx4 v[{QR+8*pp+4*h}:{QR+8*pp+4*h+3}], v7, s[16:19], s48 offen offset:{256*h} sc1")
    poll_block(p, name, loads, list(range(QR, QR + 96)), VTAG, 12)
    stamp("qf_in")
    for pp in range(12):
        for k in range(4):
            p(f"v_cvt_pk_bf16_f32 v{16+4*pp+k}, v{QR+8*pp+2*k}, v{QR+8*pp+2*k+1}")
    for pp in range(12):
        p(f"v_mfma_f32_16x16x32_bf16 v[112:115], a[{aWK+4*pp}:{aWK+4*pp+3}], v[{16+4*pp}:{19+4*pp}], {'0' if pp == 0 else 'v[112:115]'}")
    for r in range(4): p(f"v_mul_f32 v{112+r}, 0x{f2u(SCALE*LOG2E):08x}, v{112+r}")
    tag_regs(p, range(112, 116), VTAG)
    p("s_lshl_b32 s48, s21, 10")
    p(f"s_add_u32 s48, s48, {QKF_OFF}")
    p(f"buffer_store_dwordx4 v[112:115], v{VL16}, s[16:19], s48 offen sc1")
    stamp("st2")
    p(f"s_branch {name}_sp_w2")
    p(f"{name}_sp_w: ;@restore spw")
    p("s_waitcnt lgkmcnt(0)")
    p("s_add_u32 s94, s94, 1")
    p(f"s_and_b32 s{S_TAG}, s94, 0xff")
    p(f"v_mov_b32 v{VTAG}, s{S_TAG}")
    p("v_lshrrev_b32 v10, 2, v0")
    p("v_and_b32 v10, 3, v10")
    p(f"v_lshl_add_u32 v10, v{VG}, 3, v10")
    p("v_lshlrev_b32 v10, 5, v10")
    p("v_and_b32 v11, 3, v0")
    p("v_lshl_add_u32 v10, v11, 3, v10")
    p(f"{name}_sp_w2:")
    p("s_waitcnt vmcnt(0) lgkmcnt(0)")
    p("s_nop 7")
    p("s_nop 7")
    p("v_mov_b32 v12, 0")
    p("v_mov_b32 v13, 0")
    p("v_mov_b32 v14, 0")
    p("v_mov_b32 v15, 0")
    tag_regs(p, range(12, 16), VTAG)
    p("s_mul_i32 s48, s2, 24576")
    p("s_mul_i32 s49, s20, 6144")
    p("s_add_u32 s48, s48, s49")
    p(f"s_add_u32 s48, s48, {PART_OFF}")
    p("s_add_u32 s49, s48, 4096")
    for q in range(6):
        so, off = ("s48", 1024 * q) if q < 4 else ("s49", 1024 * (q - 4))
        p(f"buffer_store_dwordx4 v[12:15], v{VL16}, s[16:19], {so} offen offset:{off} sc1")
    p("v_mov_b32 v16, 0xf149f2ca")
    p("v_mov_b32 v17, 0")
    p("v_mov_b32 v18, 0")
    p(f"v_mov_b32 v19, v{VTAG}")
    p("s_lshl_b32 s48, s2, 8")
    p("s_lshl_b32 s49, s20, 6")
    p("s_add_u32 s48, s48, s49")
    p(f"s_add_u32 s48, s48, {ML_OFF}")
    p("s_mov_b64 exec, 0xf")
    p(f"buffer_store_dwordx4 v[16:19], v{VL16}, s[16:19], s48 offen sc1")
    p("s_mov_b64 exec, -1")
    LW = 65536
    p("v_lshrrev_b32 v7, 1, v0")
    p("v_mul_u32_u24 v7, 768, v7")
    p("v_and_b32 v8, 1, v0")
    p("v_lshl_add_u32 v7, v8, 4, v7")
    p("s_mul_i32 s48, s2, 96")
    p(f"s_mul_i32 s49, s20, {96*768}")
    p("s_add_u32 s48, s48, s49")
    for e in range(3):
        for a in range(3):
            p(f"s_add_u32 s50, s48, {32*e + a*32*768}")
            p(f"buffer_load_dwordx4 v[{20+12*e+4*a}:{23+12*e+4*a}], v7, s[40:43], s50 offen")
    WV = 64
    def wv_load(tile):
        b = WV + 48 * (tile & 1)
        p(f"s_mul_i32 s50, s20, {6*16*768}")
        p(f"s_add_u32 s50, s50, {tile*16*768}")
        for ks in range(12):
            p(f"buffer_load_dwordx4 v[{b+4*ks}:{b+4*ks+3}], v{VAB}, s[36:39], s50 offen offset:{64*ks}")
    wv_load(0); wv_load(1)
    p("s_mul_i32 s49, s20, 3072")
    p(f"v_add_u32 v9, s49, v{VL16}")
    p(f"v_add_u32 v9, {LW}, v9")
    for e in range(3):
        for a in range(3):
            p(f"ds_write_b128 v9, v[{20+12*e+4*a}:{23+12*e+4*a}] offset:{12288*e + 1024*a}")
    p("s_barrier")
    p(f"v_add_u32 v11, {LW}, v10")
    for e in range(3):
        for ks in range(12):
            for h in range(2):
                p(f"ds_read_b64_tr_b16 a[{48*e+4*ks+2*h}:{48*e+4*ks+2*h+1}], v11 offset:{12288*e + 1024*ks + 128*h}")
    WF = 160
    DW = 20
    for tile in range(6):
        b = WV + 48 * (tile & 1)
        for e in range(3):
            d = DW + 8 * e + 4 * (tile & 1)
            for ks in range(12):
                p(f"v_mfma_f32_16x16x32_bf16 v[{d}:{d+3}], v[{b+4*ks}:{b+4*ks+3}], a[{48*e+4*ks}:{48*e+4*ks+3}], {'0' if ks == 0 else f'v[{d}:{d+3}]'}")
        if tile + 2 < 6: wv_load(tile + 2)
        if tile & 1:
            for e in range(3):
                w = WF + 12 * e + 4 * (tile >> 1)
                for k in range(4):
                    p(f"v_cvt_pk_bf16_f32 v{w+k}, v{DW+8*e+2*k}, v{DW+8*e+2*k+1}")
    for e in range(3):
        for pr in range(3):
            w = WF + 12 * e + 4 * pr
            p(f"v_mfma_f32_16x16x32_bf16 v[{44+4*e}:{47+4*e}], v[{w}:{w+3}], {ONES}, {'0' if pr == 0 else f'v[{44+4*e}:{47+4*e}]'}")
    stamp("wvo")
    p(f"v_mul_u32_u24 v7, 768, v{VI}")
    p(f"v_lshl_add_u32 v7, v{VG}, 3, v7")
    p("s_mul_i32 s62, s2, 3")
    p("s_add_u32 s62, s62, s20")
    p("s_min_u32 s62, s62, 23")
    p("s_lshl_b32 s62, s62, 5")
    p("buffer_load_dwordx2 v[56:57], v7, s[32:35], s62 offen")
    PM = 64
    loads = []
    for i in range(16):
        loads.append("s_lshl_b32 s48, s20, 14")
        loads.append(f"s_add_u32 s48, s48, {ML_OFF + 1024*i}")
        loads.append(f"buffer_load_dwordx4 v[{PM+4*i}:{PM+4*i+3}], v{VL16}, s[16:19], s48 offen sc1")
    poll_block(p, name, loads, [PM + 4 * i + 3 for i in range(16)], VTAG, 12)
    stamp("ml_in")
    MV, T = 8, 9
    p(f"v_max3_f32 v{MV}, v{PM}, v{PM+4}, v{PM+8}")
    for i in range(3, 15, 2): p(f"v_max3_f32 v{MV}, v{MV}, v{PM+4*i}, v{PM+4*i+4}")
    p(f"v_max_f32 v{MV}, v{MV}, v{PM+60}")
    xg_reduce(p, "v_max_f32", MV, T)
    for i in range(16): p(f"v_sub_f32 v{PM+4*i}, v{PM+4*i}, v{MV}")
    for i in range(16): p(f"v_exp_f32 v{PM+4*i}, v{PM+4*i}")
    p(f"v_mul_f32 v13, v{PM}, v{PM+1}")
    p(f"v_mul_f32 v14, v{PM}, v{PM+2}")
    for i in range(1, 16):
        p(f"v_fma_f32 v13, v{PM+4*i}, v{PM+4*i+1}, v13")
        p(f"v_fma_f32 v14, v{PM+4*i}, v{PM+4*i+2}, v14")
    xg_reduce(p, "v_add_f32", 13, T)
    xg_reduce(p, "v_add_f32", 14, T)
    p(f"v_mov_b32 v12, v{MV}")
    p("v_mov_b32 v15, 0")
    LX = 102400
    p(f"v_lshlrev_b32 v9, 6, v{VI}")
    p(f"v_add_u32 v9, {LX}, v9")
    p("s_lshl_b32 s48, s20, 4")
    p("v_add_u32 v8, s48, v9")
    p("ds_write_b128 v8, v[12:15]")
    p("s_barrier")
    for v in range(4): p(f"ds_read_b128 v[{64+4*v}:{67+4*v}], v9 offset:{16*v}")
    p("v_max3_f32 v8, v64, v68, v72")
    p("v_max_f32 v8, v8, v76")
    for v in range(4): p(f"v_sub_f32 v{64+4*v}, v{64+4*v}, v8")
    for v in range(4): p(f"v_exp_f32 v{64+4*v}, v{64+4*v}")
    p("v_mul_f32 v13, v64, v65")
    p("v_mul_f32 v14, v64, v66")
    for v in range(1, 4):
        p(f"v_fma_f32 v13, v{64+4*v}, v{65+4*v}, v13")
        p(f"v_fma_f32 v14, v{64+4*v}, v{66+4*v}, v14")
    p("v_rcp_f32 v13, v13")
    p("v_mul_f32 v14, s60, v14")
    UR = 64
    loads = ["s_mul_i32 s48, s20, 6144", f"s_add_u32 s48, s48, {UF_OFF}", "s_add_u32 s49, s48, 4096"]
    for q in range(6):
        so, off = ("s48", 1024 * q) if q < 4 else ("s49", 1024 * (q - 4))
        loads.append(f"buffer_load_dwordx4 v[{UR+4*q}:{UR+4*q+3}], v{VL16}, s[16:19], {so} offen offset:{off} sc1")
    poll_block(p, name, loads, list(range(UR, UR + 24)), VTAG, 12)
    stamp("u_in")
    for pr in range(3):
        for k in range(4):
            p(f"v_cvt_pk_bf16_f32 v{96+4*pr+k}, v{UR+8*pr+2*k}, v{UR+8*pr+2*k+1}")
    for e in range(3):
        for pr in range(3):
            w = WF + 12 * e + 4 * pr
            d = 20 + 4 * e
            p(f"v_mfma_f32_16x16x32_bf16 v[{d}:{d+3}], v[{w}:{w+3}], v[{96+4*pr}:{99+4*pr}], {'0' if pr == 0 else f'v[{d}:{d+3}]'}")
    for e in range(3):
        for r in range(4): p(f"v_fma_f32 v{20+4*e+r}, -v14, v{44+4*e+r}, v{20+4*e+r}")
    LF = 106496
    p("s_lshl_b32 s48, s20, 10")
    p(f"v_add_u32 v8, s48, v{VL16}")
    p(f"v_add_u32 v8, {LF}, v8")
    for e in range(3): p(f"ds_write_b128 v8, v[{20+4*e}:{23+4*e}] offset:{4096*e}")
    p("s_barrier")
    p("s_cmp_ge_u32 s20, 3")
    p(f"s_cbranch_scc1 {name}_done ;@nodrain")
    p("s_lshl_b32 s48, s20, 12")
    p(f"v_add_u32 v8, s48, v{VL16}")
    p(f"v_add_u32 v8, {LF}, v8")
    for v in range(4): p(f"ds_read_b128 v[{64+4*v}:{67+4*v}], v8 offset:{1024*v}")
    p("v_lshlrev_b32 v80, 16, v56")
    p("v_and_b32 v81, 0xffff0000, v56")
    p("v_lshlrev_b32 v82, 16, v57")
    p("v_and_b32 v83, 0xffff0000, v57")
    for r in range(4):
        p(f"v_add_f32 v{64+r}, v{64+r}, v{68+r}")
        p(f"v_add_f32 v{72+r}, v{72+r}, v{76+r}")
        p(f"v_add_f32 v{64+r}, v{64+r}, v{72+r}")
        p(f"v_fma_f32 v{64+r}, v{64+r}, v13, v{80+r}")
    p("v_cvt_pk_bf16_f32 v64, v64, v65")
    p("v_cvt_pk_bf16_f32 v65, v66, v67")
    p("buffer_store_dwordx2 v[64:65], v7, s[44:47], s62 offen")
    p("s_add_u32 s48, s2, s20")
    p("s_cmp_lg_u32 s48, 0")
    p(f"s_cbranch_scc1 {name}_spe ;@nodrain")
    p("v_mov_b32 v8, s94")
    p(f"v_mov_b32 v9, {N_OFF}")
    p("s_mov_b64 exec, 1")
    p("buffer_store_dword v8, v9, s[16:19], 0 offen")
    p(f"{name}_spe:")
    if prof == 2:
        p(f"s_cmp_lg_u32 s2, 0")
        p(f"s_cbranch_scc1 {name}_done ;@nodrain")
        p("s_cmp_lg_u32 s20, 0")
        p(f"s_cbranch_scc1 {name}_done ;@nodrain")
        p("s_waitcnt vmcnt(0)")
        stamp("end")
        p("s_load_dwordx2 s[4:5], s[0:1], 64")
        p("s_waitcnt vmcnt(0) lgkmcnt(0)")
        p("s_mov_b64 exec, 1")
        p("v_mov_b32 v1, 0")
        for i in range(len(sst)):
            p(f"s_sub_u32 s3, s{64+2*i}, s98")
            p("v_mov_b32 v2, s3")
            p(f"global_store_dword v1, v2, s[4:5] offset:{4*i}")
        print("special stamps:", sst)

def kernel_text(name, p):
    body = p.finalize(True)
    return [f".globl {name}", ".p2align 8", f".type {name},@function", f"{name}:"] + body

def kd_text(name, info):
    return [".p2align 6", f".amdhsa_kernel {name}", f"  .amdhsa_next_free_vgpr {info['vgpr']}", "  .amdhsa_next_free_sgpr 102",
            f"  .amdhsa_accum_offset {info['accum']}", "  .amdhsa_group_segment_fixed_size 0", "  .amdhsa_kernarg_size 80",
            "  .amdhsa_user_sgpr_count 2", "  .amdhsa_user_sgpr_kernarg_segment_ptr 1", "  .amdhsa_system_sgpr_workgroup_id_x 1",
            "  .amdhsa_float_denorm_mode_32 3", ".end_amdhsa_kernel"]

HEADER = open("standalone__detection_seg_dino__vision.s.ref").read().split("; Override launch")[0]

def build(path, opt):
    name = "standalone__detection_seg_dino__vision_kernel"
    p, info = gen_kernel(name, opt)
    text = kernel_text(name, p)
    out = (HEADER.rstrip() + "\n" + f"; @launch grid=({info['grid']},1,1) block=({info['block']},1,1) lds={info['lds']}\n"
           + '.amdgcn_target "amdgcn-amd-amdhsa--gfx950"\n.text\n' + "\n".join(text) + '\n.section .rodata,"a"\n' + "\n".join(kd_text(name, info)) + "\n")
    open(path, "w").write(out)

if __name__ == "__main__":
    opt = {}
    path = sys.argv[1] if len(sys.argv) > 1 else "k2.s"
    for a in sys.argv[2:]:
        k, v = a.split("=", 1)
        opt[k] = int(v) if v.lstrip('-').isdigit() else v
    build(path, opt)
```

```python
import sys, math, struct
from dsl import Prog

C = 384
F0_BYTES = 113246208
F1_BYTES = 28311552
W_BYTES = 294912
Q_BYTES = 12288
N_OFF = 0
QF_OFF = 4096
QKF_OFF = QF_OFF + 24576
UF_OFF = QKF_OFF + 24576
ML_OFF = UF_OFF + 24576
PART_OFF = 262144
WS_USED = PART_OFF + 256 * 24576
NSPEC = 12
PROF_OFF = 131072
SPIN_MAX = 30000

def f2u(x): return struct.unpack('<I', struct.pack('<f', x))[0]
LOG2E = 1.4426950408889634
SCALE = C ** -0.5

def srd(p, base_s, ptr_lo, nbytes):
    p(f"s_mov_b32 s{base_s}, s{ptr_lo}")
    p(f"s_and_b32 s{base_s+1}, s{ptr_lo+1}, 0xffff")
    p(f"s_mov_b32 s{base_s+2}, {nbytes}")
    p(f"s_mov_b32 s{base_s+3}, 0x20000")

def mov64(p, s, val):
    p(f"s_mov_b32 s{s}, 0x{val & 0xffffffff:08x}")
    p(f"s_mov_b32 s{s+1}, 0x{(val >> 32) & 0xffffffff:08x}")

def xg_reduce(p, op, a, tmp):
    p(f"v_mov_b32 v{tmp}, v{a}")
    p(f"v_permlane32_swap_b32 v{a}, v{tmp}")
    p(f"{op} v{a}, v{a}, v{tmp}")
    p(f"v_mov_b32 v{tmp}, v{a}")
    p(f"v_permlane16_swap_b32 v{a}, v{tmp}")
    p(f"{op} v{a}, v{a}, v{tmp}")

S_MASK = 93
S_TAG = 95
S_SPIN = 92

def tag_regs(p, regs, vtag):
    for r in regs: p(f"v_bfi_b32 v{r}, s{S_MASK}, v{vtag}, v{r}")

def check_tags(p, regs, vtag, vacc):
    regs = list(regs)
    for r in regs: p(f"v_xor_b32 v{r}, v{r}, v{vtag}")
    p(f"v_or_b32 v{vacc}, v{regs[0]}, v{regs[1]}")
    rest = regs[2:]
    while len(rest) >= 2:
        p(f"v_or3_b32 v{vacc}, v{vacc}, v{rest[0]}, v{rest[1]}"); rest = rest[2:]
    if rest: p(f"v_or_b32 v{vacc}, v{vacc}, v{rest[0]}")
    p(f"v_and_b32 v{vacc}, s{S_MASK}, v{vacc}")
    p(f"v_cmp_ne_u32 vcc, 0, v{vacc}")

from dsl import Ins
def est_cycles(text):
    t = text.split(';')[0].strip()
    if not t or t.endswith(':'): return 0
    mn = t.split()[0]
    if mn.startswith('v_mfma'): return 16
    if mn.startswith('v_exp') or mn.startswith('v_rsq') or mn.startswith('v_rcp'): return 8
    if mn.startswith('v_'): return 4
    if mn.startswith('ds_write_b128'): return 16
    if mn.startswith('ds_write'): return 8
    if mn.startswith('ds_read'): return 8
    if mn == 's_barrier': return 80
    if mn.startswith('buffer_'): return 8
    return 4

def schedule_loads(items, loads, pace, lat, dmax, t0=0, verbose=False):
    out = []; now = t0
    land = []
    issue_t = []
    free = set(); k = 0
    extras = []
    def landed():
        return sum(1 for x in land if x <= now)
    locked = [False]
    def try_issue():
        nonlocal k, now
        if locked[0]: return
        while k < len(loads):
            L = loads[k]
            if L['key'] is not None and L['key'] not in free: break
            if len(land) - landed() >= dmax: break
            for x in L['pre']: out.append(x); now += 4
            out.append(L['ins']); now += 8
            if L['key'] is not None: free.discard(L['key'])
            prev = land[-1] if land else 0
            land.append(max(now + lat, prev + pace)); issue_t.append(now)
            k += 1
    for it in items:
        if isinstance(it, tuple):
            if it[0] == 'use':
                j = it[1]
                while k <= j:
                    L = loads[k]
                    assert L['key'] is None or L['key'] in free, ('slot not free', k, L)
                    for x in L['pre']: out.append(x); now += 4
                    out.append(L['ins']); now += 8
                    if L['key'] is not None: free.discard(L['key'])
                    prev = land[-1] if land else 0
                    land.append(max(now + lat, prev + pace)); issue_t.append(now); k += 1
                now = max(now, land[j])
                try_issue()
            elif it[0] == 'free': free.add(it[1]); try_issue()
            elif it[0] == 't': now += it[1]; try_issue()
            elif it[0] == 'until': now = max(now, it[1]); try_issue()
            elif it[0] == 'force':
                while k < it[1]:
                    L = loads[k]
                    assert L['key'] is None or L['key'] in free, ('slot not free', k, L)
                    for x in L['pre']: out.append(x); now += 4
                    out.append(L['ins']); now += 8
                    if L['key'] is not None: free.discard(L['key'])
                    prev = land[-1] if land else 0
                    land.append(max(now + lat, prev + pace)); issue_t.append(now); k += 1
                    if len(land) > 12: now = max(now, land[-13])
            elif it[0] == 'log':
                if verbose: print(f"   model {it[1]:8s} t={now/2100:.2f}us issued={k}")
            elif it[0] == 'lock': locked[0] = True
            elif it[0] == 'unlock': locked[0] = False
            continue
        out.append(it); now += est_cycles(it)
        if '@noload' not in it: try_issue()
    assert k == len(loads), (k, len(loads))
    return out

uid = [0]
def poll_block(p, name, loads, regs, vtag, vacc, preissued=False, lock=False):
    if lock: p.items.append(('lock',))
    uid[0] += 1
    L = f"{name}_pl{uid[0]}"
    if not preissued:
        for x in loads: p(x)
    check_tags(p, regs, vtag, vacc)
    p(f"s_cbranch_vccz {L}_ok")
    p(f"s_mov_b32 s{S_SPIN}, 0")
    p(f"{L}_retry:")
    p("s_sleep 1")
    for x in loads: p(x)
    p("s_waitcnt vmcnt(0)")
    check_tags(p, regs, vtag, vacc)
    p(f"s_cbranch_vccz {L}_fin")
    p(f"s_add_u32 s{S_SPIN}, s{S_SPIN}, 1")
    p(f"s_cmp_lt_u32 s{S_SPIN}, {SPIN_MAX}")
    p(f"s_cbranch_scc1 {L}_retry")
    p(f"{L}_fin:")
    p("s_nop 7")
    p("s_nop 7")
    p(f"{L}_ok: ;@restore {L}")
    if lock: p.items.append(('unlock',))

class Prof:
    def __init__(self, p, opt, base, lim=88):
        self.lim = lim; self.p = p; self.on = opt.get("prof", 0); self.lbl = []; self.base = base; self.skip = opt.get("skip", "").split(",")
    def __call__(self, lbl, fine=False):
        if self.on == 5:
            if lbl in ("init", "S", "F9"):
                for ins in ("s_memtime", "s_memrealtime"):
                    i = len(self.lbl); self.lbl.append(lbl + ins[2:])
                    self.p(f"{ins} s[{self.base+2*i}:{self.base+2*i+1}]")
            return
        if self.on == 4:
            if not fine: return
        elif fine: return
        if self.on and lbl not in self.skip and self.base + 2 * len(self.lbl) < self.lim:
            i = len(self.lbl); self.lbl.append(lbl)
            self.p(f"{'s_memtime' if self.on == 4 else 's_memrealtime'} s[{self.base+2*i}:{self.base+2*i+1}]")
    def dump(self, tagname, srdbase=16):
        if not self.on: return
        p = self.p
        p("s_waitcnt vmcnt(0) lgkmcnt(0)")
        p("s_mov_b64 exec, 1")
        p("s_lshl_b32 s3, s2, 7")
        p(f"s_add_u32 s3, s3, {PROF_OFF}")
        p("v_mov_b32 v1, 0")
        p("v_mov_b32 v2, s98")
        p(f"buffer_store_dword v2, v1, s[{srdbase}:{srdbase+3}], s3 offen")
        for i in range(len(self.lbl)):
            p(f"v_mov_b32 v2, s{self.base+2*i}")
            p(f"buffer_store_dword v2, v1, s[{srdbase}:{srdbase+3}], s3 offen offset:{4*(i+1)}")
        print(tagname, "stamps:", self.lbl)
        LABELS[tagname] = list(self.lbl)
LABELS = {}

def gen_kernel(name, opt):
    p = Prog()
    prof = opt.get("prof", 0)
    p("s_cmp_ge_u32 s2, 256")
    p(f"s_cbranch_scc1 {name}_done ;@nodrain")
    if prof: p("s_memrealtime s[98:99]")
    p("s_load_dwordx2 s[22:23], s[0:1], 72")
    p("s_load_dwordx4 s[4:7], s[0:1], 8")
    p("v_readfirstlane_b32 s20, v0")
    p("v_and_b32 v0, 63, v0")
    p("s_lshr_b32 s20, s20, 6")
    p(f"s_mov_b32 s{S_MASK}, 0xff")
    p("s_lshr_b32 s100, s2, 3")
    p("s_lshl_b32 s100, s100, 2")
    p("s_and_b32 s21, s2, 7")
    p("s_add_u32 s100, s100, s21")
    p("s_sub_u32 s101, s100, 4")
    p(f"s_sub_u32 s3, s2, {NSPEC}")
    p("s_cmp_lt_u32 s2, 24")
    p("s_cselect_b32 s101, s101, s3")
    p("s_cselect_b32 s3, s21, 7")
    p("s_mov_b32 s21, s101")
    p("s_cmp_lt_u32 s3, 4")
    p(f"s_cbranch_scc1 {name}_special")
    gen_streamer(p, name, opt)
    p(f"{name}_special: ;@restore entry")
    gen_special(p, name, opt)
    p(f"{name}_done:")
    p("s_endpgm")
    return p, dict(vgpr=252 + 196, accum=252, lds=160256, grid=256, block=256)

def gen_streamer(p, name, opt):
    NT = " nt" if opt.get("nt", True) else ""
    prof = opt.get("prof", 0)
    NS = 10
    SP = opt.get("sp", 5)
    ST = lambda k: 76 + 60 * k
    F1R = lambda k, t: ST(k) + 4 * t
    F0R = lambda k, t, d: ST(k) + 12 + 16 * t + 4 * d
    VF0, VF1, VL16 = 1, 2, 3
    WA = [[4, 5, 6, 7], [216, 217, 218, 219]]
    RA = [[11, 12, 13, 14], [220, 221, 222, 223]]
    VTAG = 8
    QBA = 9
    TR = [15, 16, 17, 18, 19, 20]
    MXW, MXR, WXW, WXR = 21, 22, 23, 24
    M, L, Z, SN = 25, 26, 27, 28
    ACC = 32
    D1, D2, D3 = 56, 60, 64
    Uu, SS, RS, TM, TM2, AL, WF = 68, 69, 70, 71, 72, 73, 74
    U = 196; TT = 204
    QK = 212 + 12
    QKR = 212
    aQB, aXA, aXT, aONE = 0, 48, 96, 192
    XBUF = 49152; XT = 12288
    MX_OFF = 147456; LZ_OFF = MX_OFF + 256; QBL_OFF = LZ_OFF + 256; WX_OFF = QBL_OFF
    D1B = [56, 212, 216]; D3B = [64, 240, 244]; RSB = [70, 248, 249]; WFB = [74, 220, 222]
    XAB = [48, 96, 144]
    XTB = [96, 144]
    WA[1] = [228, 229, 230, 231]; RA[1] = [232, 233, 234, 235]
    QKR = 204 - 0
    QKR = 212
    WA[1] = [236, 237, 238, 239]; RA[1] = [29, 30, 31, 10]
    QKR = 212

    NSTR = 256 - NSPEC
    base_cnt = 9216 // NSTR; nbig = 9216 - base_cnt * NSTR
    assert base_cnt == 37
    p(f"s_mul_i32 s96, s21, {base_cnt}")
    p(f"s_min_u32 s97, s21, {nbig}")
    p("s_add_u32 s96, s96, s97")
    p(f"s_cmp_lt_u32 s21, {nbig}")
    p("s_cselect_b32 s97, 2, 1")
    p("s_add_u32 s90, s96, s20")
    p("s_add_u32 s91, s90, s97")
    p("s_sub_u32 s91, s91, 4")
    FP, J = 56, 57
    p(f"v_lshrrev_b32 v{FP}, 4, v0")
    p(f"v_and_b32 v{J}, 15, v0")
    p(f"v_mul_u32_u24 v{VF0}, 1536, v{FP}")
    p(f"v_lshl_add_u32 v{VF0}, v{J}, 4, v{VF0}")
    p(f"v_mul_u32_u24 v{VF1}, 768, v{FP}")
    p(f"v_lshl_add_u32 v{VF1}, v{J}, 4, v{VF1}")
    p(f"v_lshlrev_b32 v{VL16}, 4, v0")
    p("s_waitcnt lgkmcnt(0)")
    srd(p, 8, 4, F0_BYTES)
    srd(p, 12, 6, F1_BYTES)
    srd(p, 16, 22, WS_USED)
    p(f"s_load_dword s94, s[22:23], {N_OFF}")

    def tile_offsets(s):
        base = "s90" if s <= SP else "s91"
        p(f"s_add_u32 s27, {base}, {4*s}")
        p("s_mul_i32 s24, s27, 3072")
        p(f"s_mul_hi_u32 s28, s27, {(2**32 + 47)//48}")
        p("s_mul_i32 s29, s28, 48")
        p("s_sub_u32 s29, s27, s29")
        p("s_mul_i32 s25, s28, 589824")
        p("s_mul_i32 s29, s29, 6144")
        p("s_add_u32 s25, s25, s29")
        p("s_add_u32 s26, s25, 294912")
        if s == SP:
            p("s_cmp_lt_u32 s20, s97")
            p(f"s_cselect_b32 s10, {F0_BYTES}, 0")
            p(f"s_cselect_b32 s14, {F1_BYTES}, 0")
        if s == SP + 1:
            p(f"s_mov_b32 s10, {F0_BYTES}")
            p(f"s_mov_b32 s14, {F1_BYTES}")
    loads = []
    lidx = {}
    class Cap:
        def __init__(self): self.l = []
        def __call__(self, x): self.l.append(x)
    def build_loads():
        nonlocal p
        for s in range(NS):
            keep = p; p = Cap(); tile_offsets(s); pre = p.l; p = keep
            for t in range(3):
                r = F1R(s & 1, t)
                lidx[(s, 'f1', t)] = len(loads)
                loads.append(dict(pre=pre, key=(s & 1, 'f1', t) if s >= 2 else None,
                                  ins=f"buffer_load_dwordx4 v[{r}:{r+3}], v{VF1}, s[12:15], s24 offen offset:{256*t}{NT}"))
                pre = []
                for d in range(4):
                    r = F0R(s & 1, t, d)
                    so = "s25" if d < 2 else "s26"
                    lidx[(s, t, d)] = len(loads)
                    loads.append(dict(pre=[], key=(s & 1, t, d) if s >= 2 else None,
                                      ins=f"buffer_load_dwordx4 v[{r}:{r+3}], v{VF0}, s[8:11], {so} offen offset:{256*t + 768*(d&1)}{NT}"))
    build_loads()
    def mark(*a): p.items.append(a)
    stream_start = len(p.items)
    mark('t', 0)

    p("s_waitcnt lgkmcnt(0)")
    p("s_add_u32 s94, s94, 1")
    p(f"s_and_b32 s{S_TAG}, s94, 0xff")
    p(f"v_mov_b32 v{VTAG}, s{S_TAG}")

    p(f"s_mul_i32 s47, s20, {XT}")
    p(f"v_and_b32 v58, 1, v{FP}")
    p(f"v_lshlrev_b32 v58, 3, v58")
    p(f"v_lshrrev_b32 v59, 1, v{FP}")
    p(f"v_add_u32 v58, v58, v59")
    p(f"v_xor_b32 v58, v58, v{J}")
    p(f"v_lshlrev_b32 v58, 4, v58")
    p(f"v_mul_u32_u24 v59, 3072, v{FP}")
    p(f"v_add_u32 v58, v58, v59")
    p(f"v_add_u32 v{WA[0][0]}, s47, v58")
    for d in range(1, 4): p(f"v_xor_b32 v{WA[0][d]}, {32*d}, v{WA[0][0]}")
    for d in range(4): p(f"v_add_u32 v{WA[1][d]}, {2*XBUF}, v{WA[0][d]}")
    I, G, SI = 57, 56, 58
    p(f"v_and_b32 v{SI}, 7, v{I}")
    p(f"v_lshlrev_b32 v{SI}, 1, v{SI}")
    p(f"v_lshrrev_b32 v59, 3, v{I}")
    p(f"v_or_b32 v{SI}, v{SI}, v59")
    p(f"v_lshlrev_b32 v59, 1, v{G}")
    p(f"v_xor_b32 v59, v59, v{SI}")
    p(f"v_mul_u32_u24 v60, 768, v{I}")
    p(f"v_add_u32 v60, s47, v60")
    for b3 in range(2):
        for b0 in range(2):
            r = RA[0][2 * b3 + b0]
            p(f"v_xor_b32 v{r}, {8*b3+b0}, v59")
            p(f"v_lshl_add_u32 v{r}, v{r}, 4, v60")
            p(f"v_add_u32 v{RA[1][2*b3+b0]}, {2*XBUF}, v{r}")
    p(f"v_lshlrev_b32 v{MXR}, 4, v{I}")
    p(f"v_lshrrev_b32 v59, 1, v{G}")
    p(f"v_lshlrev_b32 v59, 10, v59")
    p(f"v_and_b32 v60, 1, v{G}")
    p(f"v_lshl_add_u32 v59, v60, 3, v59")
    p(f"v_add_u32 v59, v59, v{MXR}")
    p(f"v_add_u32 v{QBA}, {QBL_OFF}, v59")
    p(f"v_add_u32 v{MXR}, {MX_OFF}, v{MXR}")
    p("s_lshl_b32 s48, s20, 2")
    p(f"v_add_u32 v{MXW}, s48, v{MXR}")
    p(f"v_add_u32 v{WXR}, {WX_OFF}, v{VL16}")
    p("s_lshr_b32 s48, s20, 1")
    p("s_lshl_b32 s48, s48, 10")
    p("s_and_b32 s49, s20, 1")
    p("s_lshl_b32 s49, s49, 3")
    p("s_add_u32 s48, s48, s49")
    p(f"v_add_u32 v{WXW}, s48, v{WXR}")
    I = 56
    p(f"v_lshrrev_b32 v{I}, 2, v0")
    p(f"v_and_b32 v{SI}, 7, v{I}")
    p(f"v_lshlrev_b32 v{SI}, 1, v{SI}")
    p(f"v_lshrrev_b32 v59, 3, v{I}")
    p(f"v_or_b32 v{SI}, v{SI}, v59")
    p(f"v_and_b32 v59, 3, v0")
    p(f"v_lshrrev_b32 v60, 1, v59")
    p(f"v_xor_b32 v{SI}, v{SI}, v60")
    p(f"v_and_b32 v59, 1, v59")
    p(f"v_lshlrev_b32 v59, 3, v59")
    p(f"v_mul_u32_u24 v60, 768, v{I}")
    p(f"v_add_u32 v60, v60, v59")
    p("s_mul_i32 s48, s20, 6")
    for q in range(6):
        p(f"s_add_u32 s49, s48, {q}")
        p("s_and_b32 s50, s49, 7")
        p("s_lshl_b32 s50, s50, 1")
        p("s_lshr_b32 s49, s49, 3")
        p("s_lshl_b32 s49, s49, 8")
        p(f"v_xor_b32 v{TR[q]}, s50, v{SI}")
        p(f"v_lshl_add_u32 v{TR[q]}, v{TR[q]}, 4, v60")
        p(f"v_add_u32 v{TR[q]}, s49, v{TR[q]}")
    for r in range(4):
        mov64(p, 30 + 2 * r, sum(1 << (20 * g + r) for g in range(4)))
    for r in range(1, 4):
        mov64(p, 38 + 2 * (r - 1), 0x1111111111111111 << r)
    p("s_mov_b32 s44, 0xffff0000")
    p(f"s_mov_b32 s45, 0x{f2u(1.0 / C):08x}")
    p(f"s_mov_b32 s46, 0x{f2u(1e-5):08x}")
    p("s_mov_b32 s51, 0x00003f80")
    p("s_mov_b32 s3, 0x3f800000")
    p("s_cmp_lt_u32 s20, s97 ;@noload")
    p("s_cselect_b32 s89, 0, 0xf149f2ca")
    for r in range(24): p(f"v_mov_b32 v{ACC+r}, 0")
    p(f"v_mov_b32 v{M}, 0xf149f2ca")
    p(f"v_mov_b32 v{L}, 0")
    p(f"v_mov_b32 v{Z}, 0")
    p("v_mov_b32 v56, 0x3f803f80")
    for r in range(4): p(f"v_accvgpr_write_b32 a{aONE+r}, v56")

    tr_slot = [0]
    def wa(slot, d, t): return (WA[0][d], slot * XBUF + 768 * d + 256 * t) if slot < 2 else (WA[1][d], 768 * d + 256 * t)
    def ra(slot, ks):
        i = 2 * ((ks >> 1) & 1) + (ks & 1)
        return (RA[0][i], slot * XBUF + 256 * (ks >> 2)) if slot < 2 else (RA[1][i], 256 * (ks >> 2))

    def m_reads(s, t, xa=aXA):
        for ks in range(4 * t, 4 * t + 4):
            r, off = ra(s % 3, ks)
            p(f"ds_read_b128 a[{xa+4*ks}:{xa+4*ks+3}], v{r} offset:{off}")
    def m_mfma(s, t, b=0, what="gol", xa=aXA):
        d1, d3 = D1B[b], D3B[b]
        G_, O_, L_ = [], [], []
        for ks in range(4 * t, 4 * t + 4):
            x = f"a[{xa+4*ks}:{xa+4*ks+3}]"
            c1 = "0" if ks == 0 else f"v[{d1}:{d1+3}]"
            c2 = "0" if ks == 0 else f"v[{D2}:{D2+3}]"
            c3 = "0" if ks == 0 else f"v[{d3}:{d3+3}]"
            G_.append(f"v_mfma_f32_16x16x32_bf16 v[{D2}:{D2+3}], {x}, {x}, {c2}")
            O_.append(f"v_mfma_f32_16x16x32_bf16 v[{d3}:{d3+3}], {x}, a[{aONE}:{aONE+3}], {c3}")
            L_.append(f"v_mfma_f32_16x16x32_bf16 v[{d1}:{d1+3}], {x}, a[{aQB+4*ks}:{aQB+4*ks+3}], {c1}")
        if what == "l":
            for x in L_: p(x)
        elif what == "go":
            for g_, o_ in zip(G_, O_): p(g_); p(o_)
        elif t < 2:
            for g_, o_, l_ in zip(G_, O_, L_): p(g_); p(o_); p(l_)
        else:
            for g_, o_ in zip(G_, O_): p(g_); p(o_)
            for l_ in L_: p(l_)
    def stats(b):
        d3, rs = D3B[b], RSB[b]
        p(f"v_cndmask_b32 v{Uu}, 0, v{D2}, s[30:31]")
        for r in range(1, 4):
            p(f"v_cndmask_b32 v{Uu}, v{Uu}, v{D2+r}, s[{30+2*r}:{31+2*r}]")
        p(f"v_cndmask_b32 v{SS}, v{d3}, v{d3+1}, s[38:39]")
        p(f"v_cndmask_b32 v{SS}, v{SS}, v{d3+2}, s[40:41]")
        p(f"v_add_f32_dpp v{Uu}, v{Uu}, v{Uu} row_ror:4 row_mask:0xf bank_mask:0xf")
        p(f"v_cndmask_b32 v{SS}, v{SS}, v{d3+3}, s[42:43]")
        p(f"v_mov_b32 v{TM}, s46")
        p(f"v_add_f32_dpp v{Uu}, v{Uu}, v{Uu} row_ror:8 row_mask:0xf bank_mask:0xf")
        p(f"v_mul_f32 v{SS}, s45, v{SS}")
        p(f"v_fma_f32 v{Uu}, v{Uu}, s45, v{TM}")
        p(f"v_fma_f32 v{Uu}, -v{SS}, v{SS}, v{Uu}")
        p(f"v_max_f32 v{Uu}, s46, v{Uu}")
        p(f"v_rsq_f32 v{rs}, v{Uu}")
    def stage_G(s, b):
        for t in range(3): m_reads(s, t)
        mark('t', 120)
        for t in range(3): m_mfma(s, t, b, "go")
        stats(b)

    def stage_A(s, ld, fuse, thirds=(0, 1, 2)):
        slot = s % 3; k = s & 1
        for t in thirds:
            if (s, t) == qpos: qk_issue()
            f1 = F1R(k, t)
            mark('use', lidx[(s, 'f1', t)])
            for j in range(4):
                p(f"v_lshlrev_b32 v{U+2*j}, 16, v{f1+j}")
                p(f"v_and_b32 v{U+2*j+1}, s44, v{f1+j}")
            mark('free', (k, 'f1', t))
            for d in range(4):
                f0 = F0R(k, t, d)
                mark('use', lidx[(s, t, d)])
                for j in range(4):
                    p(f"v_dot2_f32_bf16 v{TT+2*j}, v{f0+j}, s51, v{U+2*j}")
                    p(f"v_dot2_f32_bf16 v{TT+2*j+1}, v{f0+j}, s3, v{U+2*j+1}")
                for j in range(4):
                    p(f"v_cvt_pk_bf16_f32 v{f0+j}, v{TT+2*j}, v{TT+2*j+1}")
                r, off = wa(slot, d, t)
                p(f"ds_write_b128 v{r}, v[{f0}:{f0+3}] offset:{off}")
                mark('free', (k, t, d))
            if fuse:
                m_reads(s, t)
                mark('t', 120)
                m_mfma(s, t)
        if fuse: stats(0)

    def stage_M(tiles, pre):
        if pre:
            for b, s in enumerate(tiles):
                for t in range(3): m_reads(s, t, XAB[b])
            mark('t', 100)
            for b, s in enumerate(tiles):
                for t in range(3): m_mfma(s, t, b, "l", XAB[b])
        else:
            for b, s in enumerate(tiles):
                if b == 0:
                    for t in range(3): m_reads(s, t, XAB[0])
                    mark('t', 120)
                if b + 1 < len(tiles):
                    for t in range(3): m_reads(tiles[b + 1], t, XAB[b + 1])
                for t in range(3): m_mfma(s, t, b, "gol", XAB[b])
                stats(b)

    qpos = None
    qk_loads = []
    qk_loads.append("s_mul_i32 s48, s20, 6144")
    qk_loads.append(f"s_add_u32 s48, s48, {QKF_OFF}")
    qk_loads.append("s_add_u32 s49, s48, 4096")
    for q in range(6):
        so, off = ("s48", 1024 * q) if q < 4 else ("s49", 1024 * (q - 4))
        qk_loads.append(f"buffer_load_dwordx4 v[{QKR+4*q}:{QKR+4*q+3}], v{VL16}, s[16:19], {so} offen offset:{off} sc1")
    def qk_issue():
        for x in qk_loads: p(x)
    def qb_setup():
        mark('t', 300)
        poll_block(p, name, qk_loads, list(range(QKR, QKR + 24)), VTAG, TM, preissued=True, lock=True)
        for q in range(6):
            p(f"v_cvt_pk_bf16_f32 v{QKR+4*q}, v{QKR+4*q}, v{QKR+4*q+1}")
            p(f"v_cvt_pk_bf16_f32 v{QKR+4*q+1}, v{QKR+4*q+2}, v{QKR+4*q+3}")
            p("s_mul_i32 s48, s20, 6")
            p(f"s_add_u32 s48, s48, {q}")
            p("s_lshr_b32 s49, s48, 2")
            p("s_lshl_b32 s49, s49, 11")
            p("s_and_b32 s48, s48, 3")
            p("s_lshl_b32 s48, s48, 8")
            p("s_add_u32 s48, s48, s49")
            p(f"v_add_u32 v{TM}, s48, v{QBA}")
            p(f"ds_write_b64 v{TM}, v[{QKR+4*q}:{QKR+4*q+1}]")
        p("s_barrier")
        p(f"v_add_u32 v{TM}, {QBL_OFF}, v{VL16}")
        for ks in range(12):
            p(f"ds_read_b128 a[{aQB+4*ks}:{aQB+4*ks+3}], v{TM} offset:{1024*ks}")
        for ks in range(12):
            c = "0" if ks == 0 else f"v[{D1}:{D1+3}]"
            p(f"v_mfma_f32_16x16x32_bf16 v[{D1}:{D1+3}], a[{aONE}:{aONE+3}], a[{aQB+4*ks}:{aQB+4*ks+3}], {c}")
        p(f"v_mul_f32 v{SN}, s45, v{D1}")

    first_bc = [True]
    def set_tr(slot):
        if slot != tr_slot[0]:
            dlt = (slot - tr_slot[0]) * XBUF
            for q in range(6):
                if dlt > 0: p(f"v_add_u32 v{TR[q]}, {dlt}, v{TR[q]}")
                else: p(f"v_subrev_u32 v{TR[q]}, {-dlt}, v{TR[q]}")
            tr_slot[0] = slot
    def tr_list(xt):
        trs = []
        for kst in range(2):
            for q in range(6):
                for h in range(2):
                    j = 2 * kst + h
                    a = xt + 8 * q + 4 * kst + 2 * h
                    trs.append(f"ds_read_b64_tr_b16 a[{a}:{a+1}], v{TR[q]} offset:{j*XT}")
        return trs
    def stage_B(tiles):
        nb = len(tiles)
        set_tr(tiles[0] % 3)
        for b, s in enumerate(tiles):
            d1, d3, rs = D1B[b], D3B[b], RSB[b]
            for r in range(4):
                p(f"v_fma_f32 v{d1+r}, -v{d3+r}, v{SN}, v{d1+r}")
            for r in range(4):
                p(f"v_mul_f32_dpp v{d1+r}, v{rs}, v{d1+r} quad_perm:[{r},{r},{r},{r}] row_mask:0xf bank_mask:0xf")
            if s == SP:
                for r in range(4): p(f"v_add_f32 v{d1+r}, s89, v{d1+r}")
        vals = [D1B[b] + r for b in range(nb) for r in range(4)]
        p(f"v_max3_f32 v{TM}, v{vals[0]}, v{vals[1]}, v{vals[2]}")
        rest = vals[3:]
        while len(rest) >= 2:
            p(f"v_max3_f32 v{TM}, v{TM}, v{rest[0]}, v{rest[1]}"); rest = rest[2:]
        if rest: p(f"v_max_f32 v{TM}, v{TM}, v{rest[0]}")
        xg_reduce(p, "v_max_f32", TM, TM2)
        p(f"ds_write_b32 v{MXW}, v{TM}")
        mark('t', 100)
        p("s_barrier")
        p(f"ds_read_b128 v[{D2}:{D2+3}], v{MXR}")
        mark('t', 80)
        trs = tr_list(XTB[0])
        for x in trs[:12]: p(x)
        p(f"v_max3_f32 v{TM}, v{D2}, v{D2+1}, v{D2+2}")
        p(f"v_max3_f32 v{TM}, v{TM}, v{D2+3}, v{M}")
        p(f"v_sub_f32 v{AL}, v{M}, v{TM}")
        p(f"v_mov_b32 v{M}, v{TM}")
        p(f"v_exp_f32 v{AL}, v{AL}")
        for v in vals: p(f"v_sub_f32 v{v}, v{v}, v{M}")
        for v in vals: p(f"v_exp_f32 v{v}, v{v}")
        for x in trs[12:]: p(x)
        p(f"v_add_f32 v{TM}, v{vals[0]}, v{vals[1]}")
        p(f"v_add_f32 v{TM2}, v{vals[2]}, v{vals[3]}")
        for i in range(4, len(vals), 2):
            p(f"v_add_f32 v{TM}, v{TM}, v{vals[i]}")
            p(f"v_add_f32 v{TM2}, v{TM2}, v{vals[i+1]}")
        p(f"v_add_f32 v{TM}, v{TM}, v{TM2}")
        p(f"v_fma_f32 v{L}, v{L}, v{AL}, v{TM}")
        for b in range(nb):
            d1, rs, wf = D1B[b], RSB[b], WFB[b]
            for r in range(4):
                p(f"v_mul_f32_dpp v{d1+r}, v{rs}, v{d1+r} quad_perm:[{r},{r},{r},{r}] row_mask:0xf bank_mask:0xf")
            p(f"v_cvt_pk_bf16_f32 v{wf}, v{d1}, v{d1+1}")
            p(f"v_cvt_pk_bf16_f32 v{wf+1}, v{d1+2}, v{d1+3}")
            p(f"ds_write_b64 v{WXW}, v[{wf}:{wf+1}] offset:{2048*b}")
        if nb > 1:
            set_tr(tiles[1] % 3)
            for x in tr_list(XTB[1]): p(x)
        p(f"v_mul_f32 v{Z}, v{Z}, v{AL}")
        for b in range(nb):
            for r in range(4): p(f"v_fma_f32 v{Z}, v{D1B[b]+r}, v{D3B[b]+r}, v{Z}")
        if not first_bc[0]:
            for r in range(24): p(f"v_mul_f32 v{ACC+r}, v{ACC+r}, v{AL}")
        first_bc[0] = False
        p("s_barrier")

    def stage_C(tiles):
        nb = len(tiles)
        WR = [(D1, D2), (212, 216), (D1, D2)]
        for b in range(min(nb, 2)):
            p(f"ds_read_b128 v[{WR[b][0]}:{WR[b][0]+3}], v{WXR} offset:{2048*b}")
            p(f"ds_read_b128 v[{WR[b][1]}:{WR[b][1]+3}], v{WXR} offset:{2048*b + 1024}")
        mark('t', 120)
        for b in range(nb):
            xt = XTB[b & 1]
            for kst in range(2):
                bb = WR[b][kst]
                for q in range(6):
                    a = xt + 8 * q + 4 * kst
                    p(f"v_mfma_f32_16x16x32_bf16 v[{ACC+4*q}:{ACC+4*q+3}], a[{a}:{a+3}], v[{bb}:{bb+3}], v[{ACC+4*q}:{ACC+4*q+3}]")
            if b == 0 and nb == 3:
                set_tr(tiles[2] % 3)
                for x in tr_list(XTB[0]): p(x)
                p(f"ds_read_b128 v[{WR[2][0]}:{WR[2][0]+3}], v{WXR} offset:{2048*2}")
                p(f"ds_read_b128 v[{WR[2][1]}:{WR[2][1]+3}], v{WXR} offset:{2048*2 + 1024}")
        if nb == 3 or True:
            pass

    stamp = Prof(p, opt, 52)
    sched = opt.get("sched", "A0 G00 A1 G11 A2 G22 I40 Q I47 S X012 A3 A4 M34 F5 F6 F7 F8 F9")
    stamp("init")
    for tok in sched.replace("_", " ").split():
        if tok == "S":
            mark('log', 'S0'); qb_setup(); stamp("S")
        elif tok == "Q": qk_issue()
        elif tok[0] == "I":
            mark('force', 15 * int(tok[1]) + int(tok[2:]))
        elif tok[0] == "W":
            mark('until', int(tok[1:]) * 210)
        elif tok[0] in "AF":
            s = int(tok[1])
            if len(tok) == 3:
                stage_A(s, None, False, (int(tok[2]),))
                if tok[2] == "2" and s < 3: stamp(tok[:2])
            else:
                stage_A(s, None, tok[0] == "F")
                if tok[0] == "F":
                    stage_B([s]); stage_C([s])
                if tok[0] == "F" or s < 3: stamp(tok)
        elif tok[0] == "G":
            stage_G(int(tok[1]), int(tok[2]))
        elif tok[0] in "MX":
            tiles = [int(c) for c in tok[1:]]
            stage_M(tiles, tok[0] == "X"); stage_B(tiles); stage_C(tiles); stamp(tok)
        mark('log', tok)
    body = p.items[stream_start:]
    sched_out = schedule_loads(body, loads, pace=opt.get("pace", 300), lat=opt.get("lat", 1500), dmax=opt.get("dmax", 7), verbose=True)
    p.items[stream_start:] = sched_out

    if opt.get("streamonly"):
        p("s_endpgm")
        return
    p("s_mul_i32 s24, s2, 24576")
    p("s_mul_i32 s25, s20, 6144")
    p("s_add_u32 s24, s24, s25")
    p(f"s_add_u32 s24, s24, {PART_OFF}")
    p("s_add_u32 s25, s24, 4096")
    xg_reduce(p, "v_add_f32", L, TM2)
    xg_reduce(p, "v_add_f32", Z, TM2)
    p(f"ds_write_b32 v{MXW}, v{L}")
    p(f"ds_write_b32 v{MXW}, v{Z} offset:{LZ_OFF - MX_OFF}")
    for q in range(6):
        tag_regs(p, range(ACC + 4 * q, ACC + 4 * q + 4), VTAG)
        so, off = ("s24", 1024 * q) if q < 4 else ("s25", 1024 * (q - 4))
        p(f"buffer_store_dwordx4 v[{ACC+4*q}:{ACC+4*q+3}], v{VL16}, s[16:19], {so} offen offset:{off} sc1")
    p("s_barrier")
    p("s_cmp_lg_u32 s20, 0")
    p(f"s_cbranch_scc1 {name}_red")
    p(f"ds_read_b128 v[56:59], v{MXR}")
    p(f"ds_read_b128 v[60:63], v{MXR} offset:{LZ_OFF - MX_OFF}")
    p("v_add_f32 v56, v56, v57")
    p("v_add_f32 v58, v58, v59")
    p("v_add_f32 v65, v56, v58")
    p("v_add_f32 v60, v60, v61")
    p("v_add_f32 v62, v62, v63")
    p("v_add_f32 v66, v60, v62")
    p(f"v_mov_b32 v64, v{M}")
    p(f"v_mov_b32 v67, v{VTAG}")
    p("s_lshl_b32 s24, s2, 8")
    p(f"s_add_u32 s24, s24, {ML_OFF}")
    p("s_mov_b64 exec, 0xffff")
    p(f"buffer_store_dwordx4 v[64:67], v{VL16}, s[16:19], s24 offen sc1")
    p("s_mov_b64 exec, -1")
    p(f"{name}_red: ;@restore red")
    stamp("pub")
    p("s_cmp_ge_u32 s21, 192")
    p(f"s_cbranch_scc1 {name}_sdone ;@nodrain")
    p("s_lshr_b32 s24, s21, 3")
    p("s_lshr_b32 s25, s21, 1")
    p("s_and_b32 s25, s25, 3")
    p("s_and_b32 s26, s21, 1")
    p("v_and_b32 v56, 7, v0")
    p("v_lshrrev_b32 v57, 3, v0")
    p("v_mul_u32_u24 v58, 24576, v57")
    p("v_lshl_add_u32 v58, v56, 4, v58")
    p("v_lshlrev_b32 v59, 8, v57")
    p("v_lshl_add_u32 v59, v56, 4, v59")
    p(f"s_mul_i32 s27, s20, {64*24576}")
    p("s_lshl_b32 s28, s24, 10")
    p("s_add_u32 s27, s27, s28")
    p("s_lshl_b32 s28, s25, 8")
    p("s_add_u32 s27, s27, s28")
    p("s_lshl_b32 s28, s26, 7")
    p("s_add_u32 s27, s27, s28")
    p(f"s_add_u32 s27, s27, {PART_OFF}")
    p("s_lshl_b32 s29, s20, 14")
    p("s_add_u32 s29, s29, s28")
    p(f"s_add_u32 s29, s29, {ML_OFF}")
    PM = 76; PP = 108
    def pair_loads(i):
        return [f"s_add_u32 s48, s29, {2048*i}",
                f"buffer_load_dwordx4 v[{PM+4*i}:{PM+4*i+3}], v59, s[16:19], s48 offen sc1",
                f"s_add_u32 s49, s27, {8*24576*i}",
                f"buffer_load_dwordx4 v[{PP+4*i}:{PP+4*i+3}], v58, s[16:19], s49 offen sc1"]
    def pair_regs(i): return [PM + 4 * i + 3] + list(range(PP + 4 * i, PP + 4 * i + 4))
    RL = f"{name}_rr"
    p("s_mov_b32 s50, 0xff")
    p(f"s_mov_b32 s{S_SPIN}, 0")
    p(f"{RL}_loop:")
    for i in range(8):
        p(f"s_bitcmp0_b32 s50, {i}")
        p(f"s_cbranch_scc1 {RL}_l{i} ;@nodrain")
        for x in pair_loads(i): p(x)
        p(f"{RL}_l{i}:")
    p("s_waitcnt vmcnt(0)")
    for i in range(8):
        p(f"s_bitcmp0_b32 s50, {i}")
        p(f"s_cbranch_scc1 {RL}_c{i} ;@nodrain")
        check_tags(p, pair_regs(i), VTAG, 60)
        p(f"s_cbranch_vccnz {RL}_c{i} ;@nodrain")
        p(f"s_bitset0_b32 s50, {i}")
        p(f"{RL}_c{i}:")
    p("s_cmp_eq_u32 s50, 0")
    p(f"s_cbranch_scc1 {RL}_done ;@nodrain")
    p(f"s_add_u32 s{S_SPIN}, s{S_SPIN}, 1")
    p(f"s_cmp_lt_u32 s{S_SPIN}, {SPIN_MAX}")
    p(f"s_cbranch_scc1 {RL}_loop ;@nodrain")
    p(f"{RL}_done:")
    p("s_nop 7")
    stamp("redin")
    MV, T = 61, 62
    p(f"v_max3_f32 v{MV}, v{PM}, v{PM+4}, v{PM+8}")
    p(f"v_max3_f32 v{MV}, v{MV}, v{PM+12}, v{PM+16}")
    p(f"v_max3_f32 v{MV}, v{MV}, v{PM+20}, v{PM+24}")
    p(f"v_max_f32 v{MV}, v{MV}, v{PM+28}")
    p(f"v_max_f32_dpp v{MV}, v{MV}, v{MV} row_ror:8 row_mask:0xf bank_mask:0xf")
    xg_reduce(p, "v_max_f32", MV, T)
    for i in range(8): p(f"v_sub_f32 v{PM+4*i}, v{PM+4*i}, v{MV}")
    for i in range(8): p(f"v_exp_f32 v{PM+4*i}, v{PM+4*i}")
    for r in range(4): p(f"v_mul_f32 v{64+r}, v{PM}, v{PP+r}")
    for i in range(1, 8):
        for r in range(4): p(f"v_fma_f32 v{64+r}, v{PM+4*i}, v{PP+4*i+r}, v{64+r}")
    for r in range(4): p(f"v_add_f32_dpp v{64+r}, v{64+r}, v{64+r} row_ror:8 row_mask:0xf bank_mask:0xf")
    for r in range(4): xg_reduce(p, "v_add_f32", 64 + r, T)
    p("v_lshlrev_b32 v63, 7, v56")
    p("s_lshl_b32 s28, s20, 5")
    p("v_add_u32 v68, s28, v63")
    p(f"ds_write_b128 v68, v[64:67]")
    p(f"ds_write_b32 v68, v{MV} offset:16")
    p("s_barrier")
    p("s_cmp_lg_u32 s20, 0")
    p(f"s_cbranch_scc1 {name}_sdone ;@nodrain")
    for v in range(4):
        p(f"ds_read_b128 v[{76+8*v}:{79+8*v}], v63 offset:{32*v}")
        p(f"ds_read_b32 v{80+8*v}, v63 offset:{32*v+16}")
    p("v_max3_f32 v61, v80, v88, v96")
    p("v_max_f32 v61, v61, v104")
    for v in range(4): p(f"v_sub_f32 v{80+8*v}, v{80+8*v}, v61")
    for v in range(4): p(f"v_exp_f32 v{80+8*v}, v{80+8*v}")
    for r in range(4): p(f"v_mul_f32 v{64+r}, v80, v{76+r}")
    for v in range(1, 4):
        for r in range(4): p(f"v_fma_f32 v{64+r}, v{80+8*v}, v{76+8*v+r}, v{64+r}")
    tag_regs(p, range(64, 68), VTAG)
    p("s_lshl_b32 s24, s24, 10")
    p("s_lshl_b32 s25, s25, 8")
    p("s_add_u32 s24, s24, s25")
    p("s_lshl_b32 s26, s26, 7")
    p("s_add_u32 s24, s24, s26")
    p(f"s_add_u32 s24, s24, {UF_OFF}")
    p("s_mov_b64 exec, 0xff")
    p(f"buffer_store_dwordx4 v[64:67], v{VL16}, s[16:19], s24 offen sc1")
    stamp("redout")
    p(f"{name}_sdone:")
    if stamp.on:
        p("s_cmp_lg_u32 s20, 0")
        p(f"s_cbranch_scc1 {name}_done ;@nodrain")
        stamp.dump("streamer")
    p("s_endpgm")

def gen_special(p, name, opt):
    if opt.get("streamonly"):
        p("s_endpgm"); return
    stamp = Prof(p, opt, 64, 92)
    VL16, VI, VG, VTAG, VAB = 1, 2, 3, 4, 5
    LA = list(range(216, 228))
    RS = 784
    TILE_LDS = 16 * RS
    p("s_load_dwordx2 s[4:5], s[0:1], 0")
    p("s_load_dwordx4 s[8:11], s[0:1], 24")
    p("s_load_dwordx4 s[12:15], s[0:1], 40")
    p("s_load_dwordx2 s[6:7], s[0:1], 56")
    p(f"v_lshlrev_b32 v{VL16}, 4, v0")
    p(f"v_and_b32 v{VI}, 15, v0")
    p(f"v_lshrrev_b32 v{VG}, 4, v0")
    p(f"v_mul_u32_u24 v{VAB}, {RS}, v{VI}")
    p(f"v_lshl_add_u32 v{VAB}, v{VG}, 4, v{VAB}")
    for a in range(12):
        p(f"v_add_u32 v6, {1024*a}, v{VL16}")
        p("v_lshrrev_b32 v7, 8, v6")
        p("v_mul_u32_u24 v7, 21846, v7")
        p("v_lshrrev_b32 v7, 16, v7")
        p(f"v_lshl_add_u32 v{LA[a]}, v7, 4, v6")
    p("s_waitcnt lgkmcnt(0)")
    p(f"s_load_dword s94, s[22:23], {N_OFF}")
    srd(p, 16, 22, WS_USED)
    srd(p, 24, 8, W_BYTES)
    srd(p, 28, 10, W_BYTES)
    srd(p, 32, 4, Q_BYTES)
    srd(p, 36, 12, W_BYTES)
    srd(p, 40, 14, W_BYTES)
    srd(p, 44, 6, Q_BYTES)
    aONE = 144
    ONES = f"a[{aONE}:{aONE+3}]"
    def consts():
        for r in range(4): mov64(p, 52 + 2 * r, sum(1 << (20 * g + r) for g in range(4)))
        p(f"s_mov_b32 s60, 0x{f2u(1.0 / C):08x}")
        p(f"s_mov_b32 s61, 0x{f2u(1e-5):08x}")
        p("v_mov_b32 v6, 0x3f803f80")
        for r in range(4): p(f"v_accvgpr_write_b32 a{aONE+r}, v6")
        p("s_waitcnt lgkmcnt(0)")
        p("s_add_u32 s94, s94, 1")
        p(f"s_and_b32 s{S_TAG}, s94, 0xff")
        p(f"v_mov_b32 v{VTAG}, s{S_TAG}")
    p("s_cmp_ge_u32 s100, 6")
    p(f"s_cbranch_scc1 {name}_st2")
    WQS = 64
    QS = 16
    LQ = 0
    LWQ = 12544
    p("v_lshrrev_b32 v7, 3, v0")
    p("v_and_b32 v8, 7, v0")
    p("v_mul_u32_u24 v9, 768, v7")
    p("v_lshl_add_u32 v9, v8, 4, v9")
    p("v_mul_u32_u24 v10, 144, v7")
    p("v_lshl_add_u32 v10, v8, 4, v10")
    p("s_mul_i32 s48, s20, 3072")
    for a in range(3):
        p(f"buffer_load_dwordx4 v[{QS+4*a}:{QS+4*a+3}], v{VL16}, s[32:35], s48 offen offset:{1024*a}")
    p("s_lshl_b32 s48, s100, 7")
    p(f"s_mul_i32 s49, s20, {96*768}")
    p("s_add_u32 s48, s48, s49")
    for a in range(12):
        p(f"buffer_load_dwordx4 v[{WQS+4*a}:{WQS+4*a+3}], v9, s[24:27], s48 offen")
        if a < 11: p(f"s_add_u32 s48, s48, {8*768}")
    consts()
    stamp("issued")
    p("s_mul_i32 s48, s20, 3136")
    for a in range(3):
        p(f"v_add_u32 v6, s48, v{LA[a]}")
        p(f"ds_write_b128 v6, v[{QS+4*a}:{QS+4*a+3}] offset:{LQ}")
    p(f"s_mul_i32 s48, s20, {96*144}")
    p("v_add_u32 v10, s48, v10")
    for a in range(12):
        p(f"ds_write_b128 v10, v[{WQS+4*a}:{WQS+4*a+3}] offset:{LWQ + 8*144*a}")
    stamp("s1ld")
    p("s_barrier")
    stamp("s1bar")
    QFR = 16
    for ks in range(12):
        p(f"ds_read_b128 v[{QFR+4*ks}:{QFR+4*ks+3}], v{VAB} offset:{LQ + 64*ks}")
    p("v_lshrrev_b32 v10, 2, v0")
    p("v_and_b32 v10, 3, v10")
    p(f"v_lshl_add_u32 v10, v{VG}, 3, v10")
    p("v_mul_u32_u24 v10, 144, v10")
    p("v_and_b32 v11, 3, v0")
    p("v_lshl_add_u32 v10, v11, 3, v10")
    p("s_lshl_b32 s48, s20, 5")
    p("v_add_u32 v10, s48, v10")
    aWT = 0
    for ks in range(12):
        for h in range(2):
            p(f"ds_read_b64_tr_b16 a[{aWT+4*ks+2*h}:{aWT+4*ks+2*h+1}], v10 offset:{LWQ + 32*144*ks + 4*144*h}")
    for ks in range(12):
        q = f"v[{QFR+4*ks}:{QFR+4*ks+3}]"
        p(f"v_mfma_f32_16x16x32_bf16 v[116:119], {q}, {q}, {'0' if ks == 0 else 'v[116:119]'}")
        p(f"v_mfma_f32_16x16x32_bf16 v[112:115], {ONES}, {q}, {'0' if ks == 0 else 'v[112:115]'}")
    for ks in range(12):
        a = f"a[{aWT+4*ks}:{aWT+4*ks+3}]"
        q = f"v[{QFR+4*ks}:{QFR+4*ks+3}]"
        p(f"v_mfma_f32_16x16x32_bf16 v[120:123], {a}, {q}, {'0' if ks == 0 else 'v[120:123]'}")
        p(f"v_mfma_f32_16x16x32_bf16 v[124:127], {a}, {ONES}, {'0' if ks == 0 else 'v[124:127]'}")
        if ks == 1:
            p("v_cndmask_b32 v12, 0, v116, s[52:53]")
            for r in range(1, 4): p(f"v_cndmask_b32 v12, v12, v{116+r}, s[{52+2*r}:{53+2*r}]")
            p("v_mul_f32 v14, s60, v112")
        if ks == 3: xg_reduce(p, "v_add_f32", 12, 13)
        if ks == 6:
            p("v_mov_b32 v13, s61")
            p("v_fma_f32 v12, v12, s60, v13")
            p("v_fma_f32 v12, -v14, v14, v12")
            p("v_max_f32 v12, s61, v12")
            p("v_rsq_f32 v15, v12")
    stamp("s1mf")
    for r in range(4): p(f"v_fma_f32 v{120+r}, -v14, v{124+r}, v{120+r}")
    for r in range(4): p(f"v_mul_f32 v{120+r}, v{120+r}, v15")
    tag_regs(p, range(120, 124), VTAG)
    p("s_lshl_b32 s48, s100, 2")
    p("s_add_u32 s48, s48, s20")
    p("s_lshl_b32 s48, s48, 10")
    p(f"s_add_u32 s48, s48, {QF_OFF}")
    p(f"buffer_store_dwordx4 v[120:123], v{VL16}, s[16:19], s48 offen sc1")
    stamp("st1")
    p(f"s_branch {name}_sp_w")
    p(f"{name}_st2: ;@restore st2")
    WKS = 64
    p("s_sub_u32 s21, s100, 6")
    p("s_lshl_b32 s21, s21, 2")
    p("s_add_u32 s21, s21, s20")
    p("s_mul_i32 s48, s21, 12288")
    for a in range(12):
        if a % 4 == 0 and a: p("s_add_u32 s48, s48, 4096")
        p(f"buffer_load_dwordx4 v[{WKS+4*a}:{WKS+4*a+3}], v{VL16}, s[28:31], s48 offen offset:{1024*(a%4)}")
    consts()
    stamp("issued")
    LWK = 0
    LQB = 4 * TILE_LDS
    p(f"s_mul_i32 s48, s20, {TILE_LDS}")
    for a in range(12):
        p(f"v_add_u32 v6, s48, v{LA[a]}")
        p(f"ds_write_b128 v6, v[{WKS+4*a}:{WKS+4*a+3}] offset:{LWK}")
    p(f"v_add_u32 v7, s48, v{VAB}")
    aWK = 48
    for ks in range(12):
        p(f"ds_read_b128 a[{aWK+4*ks}:{aWK+4*ks+3}], v7 offset:{LWK + 64*ks}")
    QR = 120
    loads = ["s_mul_i32 s48, s20, 6144", f"s_add_u32 s48, s48, {QF_OFF}", "s_add_u32 s49, s48, 4096"]
    for q in range(6):
        so, off = ("s48", 1024 * q) if q < 4 else ("s49", 1024 * (q - 4))
        loads.append(f"buffer_load_dwordx4 v[{QR+4*q}:{QR+4*q+3}], v{VL16}, s[16:19], {so} offen offset:{off} sc1")
    poll_block(p, name, loads, list(range(QR, QR + 24)), VTAG, 12)
    stamp("qf_in")
    p(f"v_lshrrev_b32 v7, 1, v{VG}")
    p("v_lshlrev_b32 v7, 8, v7")
    p(f"v_lshl_add_u32 v7, v{VI}, 4, v7")
    p(f"v_and_b32 v8, 1, v{VG}")
    p("v_lshl_add_u32 v7, v8, 3, v7")
    p("s_mul_i32 s48, s20, 3072")
    p("v_add_u32 v7, s48, v7")
    for q in range(6):
        p(f"v_cvt_pk_bf16_f32 v{QR+4*q}, v{QR+4*q}, v{QR+4*q+1}")
        p(f"v_cvt_pk_bf16_f32 v{QR+4*q+1}, v{QR+4*q+2}, v{QR+4*q+3}")
        p(f"ds_write_b64 v7, v[{QR+4*q}:{QR+4*q+1}] offset:{LQB + 512*q}")
    p("s_barrier")
    stamp("s2bar")
    for pp in range(12):
        p(f"ds_read_b128 v[{16+4*pp}:{19+4*pp}], v{VL16} offset:{LQB + 1024*pp}")
    for pp in range(12):
        p(f"v_mfma_f32_16x16x32_bf16 v[112:115], a[{aWK+4*pp}:{aWK+4*pp+3}], v[{16+4*pp}:{19+4*pp}], {'0' if pp == 0 else 'v[112:115]'}")
    for r in range(4): p(f"v_mul_f32 v{112+r}, 0x{f2u(SCALE*LOG2E):08x}, v{112+r}")
    tag_regs(p, range(112, 116), VTAG)
    p("s_lshl_b32 s48, s21, 10")
    p(f"s_add_u32 s48, s48, {QKF_OFF}")
    p(f"buffer_store_dwordx4 v[112:115], v{VL16}, s[16:19], s48 offen sc1")
    stamp("st2")
    p(f"{name}_sp_w:")
    p("s_waitcnt lgkmcnt(0)")
    p("s_nop 7")
    p("s_nop 7")
    p("s_barrier")
    p("v_mov_b32 v12, 0")
    p("v_mov_b32 v13, 0")
    p("v_mov_b32 v14, 0")
    p("v_mov_b32 v15, 0")
    tag_regs(p, range(12, 16), VTAG)
    p("s_mul_i32 s48, s2, 24576")
    p("s_mul_i32 s49, s20, 6144")
    p("s_add_u32 s48, s48, s49")
    p(f"s_add_u32 s48, s48, {PART_OFF}")
    p("s_add_u32 s49, s48, 4096")
    for q in range(6):
        so, off = ("s48", 1024 * q) if q < 4 else ("s49", 1024 * (q - 4))
        p(f"buffer_store_dwordx4 v[12:15], v{VL16}, s[16:19], {so} offen offset:{off} sc1")
    p("v_mov_b32 v16, 0xf149f2ca")
    p("v_mov_b32 v17, 0")
    p("v_mov_b32 v18, 0")
    p(f"v_mov_b32 v19, v{VTAG}")
    p("s_lshl_b32 s48, s2, 8")
    p("s_lshl_b32 s49, s20, 6")
    p("s_add_u32 s48, s48, s49")
    p(f"s_add_u32 s48, s48, {ML_OFF}")
    p("s_mov_b64 exec, 0xf")
    p(f"buffer_store_dwordx4 v[16:19], v{VL16}, s[16:19], s48 offen sc1")
    p("s_mov_b64 exec, -1")
    NE = 2
    LWO = 4 * 2 * TILE_LDS
    WRS = 80
    p("v_lshrrev_b32 v7, 2, v0")
    p("v_and_b32 v8, 3, v0")
    p("v_mul_u32_u24 v9, 768, v7")
    p("v_lshl_add_u32 v9, v8, 4, v9")
    p(f"v_mul_u32_u24 v10, {WRS}, v7")
    p("v_lshl_add_u32 v10, v8, 4, v10")
    p("s_lshl_b32 s48, s100, 6")
    p(f"s_mul_i32 s49, s20, {96*768}")
    p("s_add_u32 s48, s48, s49")
    for a in range(6):
        p(f"buffer_load_dwordx4 v[{20+4*a}:{23+4*a}], v9, s[40:43], s48 offen")
        if a < 5: p(f"s_add_u32 s48, s48, {16*768}")
    WVS = 64
    def wv_load(tile):
        b = WVS + 48 * (tile & 1)
        p(f"s_mul_i32 s50, s20, {6*12288}")
        p(f"s_add_u32 s50, s50, {tile*12288}")
        for a in range(12):
            if a % 4 == 0 and a: p("s_add_u32 s50, s50, 4096")
            p(f"buffer_load_dwordx4 v[{b+4*a}:{b+4*a+3}], v{VL16}, s[36:39], s50 offen offset:{1024*(a%4)}")
    wv_load(0); wv_load(1)
    p(f"s_mul_i32 s49, s20, {96*WRS}")
    p("v_add_u32 v10, s49, v10")
    p(f"v_add_u32 v10, {LWO}, v10")
    for a in range(6):
        p(f"ds_write_b128 v10, v[{20+4*a}:{23+4*a}] offset:{16*WRS*a}")
    p("s_barrier")
    p("v_lshrrev_b32 v10, 2, v0")
    p("v_and_b32 v10, 3, v10")
    p(f"v_lshl_add_u32 v10, v{VG}, 3, v10")
    p(f"v_mul_u32_u24 v10, {WRS}, v10")
    p("v_and_b32 v11, 3, v0")
    p("v_lshl_add_u32 v10, v11, 3, v10")
    p(f"v_add_u32 v10, {LWO}, v10")
    for e in range(NE):
        for ks in range(12):
            for h in range(2):
                p(f"ds_read_b64_tr_b16 a[{48*e+4*ks+2*h}:{48*e+4*ks+2*h+1}], v10 offset:{32*e + 32*WRS*ks + 4*WRS*h}")
    p(f"s_mul_i32 s63, s20, {TILE_LDS}")
    for a in range(12): p(f"v_add_u32 v{LA[a]}, s63, v{LA[a]}")
    p(f"v_add_u32 v{VAB}, s63, v{VAB}")
    WF = 160
    DW = 20
    aXV = 96
    for tile in range(6):
        b = WVS + 48 * (tile & 1)
        for a in range(12): p(f"ds_write_b128 v{LA[a]}, v[{b+4*a}:{b+4*a+3}]")
        if tile + 2 < 6: wv_load(tile + 2)
        for ks in range(12): p(f"ds_read_b128 a[{aXV+4*ks}:{aXV+4*ks+3}], v{VAB} offset:{64*ks}")
        for ks in range(12):
            for e in range(NE):
                d = DW + 8 * e + 4 * (tile & 1)
                p(f"v_mfma_f32_16x16x32_bf16 v[{d}:{d+3}], a[{aXV+4*ks}:{aXV+4*ks+3}], a[{48*e+4*ks}:{48*e+4*ks+3}], {'0' if ks == 0 else f'v[{d}:{d+3}]'}")
        if tile & 1:
            for e in range(NE):
                w = WF + 12 * e + 4 * (tile >> 1)
                for k in range(4):
                    p(f"v_cvt_pk_bf16_f32 v{w+k}, v{DW+8*e+2*k}, v{DW+8*e+2*k+1}")
    for e in range(NE):
        for pr in range(3):
            w = WF + 12 * e + 4 * pr
            p(f"v_mfma_f32_16x16x32_bf16 v[{44+4*e}:{47+4*e}], v[{w}:{w+3}], {ONES}, {'0' if pr == 0 else f'v[{44+4*e}:{47+4*e}]'}")
    stamp("wvo")
    p(f"v_mul_u32_u24 v7, 768, v{VI}")
    p(f"v_lshl_add_u32 v7, v{VG}, 3, v7")
    p("s_lshl_b32 s62, s100, 1")
    p("s_and_b32 s48, s20, 1")
    p("s_add_u32 s62, s62, s48")
    p("s_lshl_b32 s62, s62, 5")
    p("buffer_load_dwordx2 v[56:57], v7, s[32:35], s62 offen")
    PM = 64
    loads = []
    for i in range(16):
        loads.append("s_lshl_b32 s48, s20, 14")
        loads.append(f"s_add_u32 s48, s48, {ML_OFF + 1024*i}")
        loads.append(f"buffer_load_dwordx4 v[{PM+4*i}:{PM+4*i+3}], v{VL16}, s[16:19], s48 offen sc1")
    poll_block(p, name, loads, [PM + 4 * i + 3 for i in range(16)], VTAG, 12)
    stamp("ml_in")
    MV, T = 8, 9
    p(f"v_max3_f32 v{MV}, v{PM}, v{PM+4}, v{PM+8}")
    for i in range(3, 15, 2): p(f"v_max3_f32 v{MV}, v{MV}, v{PM+4*i}, v{PM+4*i+4}")
    p(f"v_max_f32 v{MV}, v{MV}, v{PM+60}")
    xg_reduce(p, "v_max_f32", MV, T)
    for i in range(16): p(f"v_sub_f32 v{PM+4*i}, v{PM+4*i}, v{MV}")
    for i in range(16): p(f"v_exp_f32 v{PM+4*i}, v{PM+4*i}")
    p(f"v_mul_f32 v13, v{PM}, v{PM+1}")
    p(f"v_mul_f32 v14, v{PM}, v{PM+2}")
    for i in range(1, 16):
        p(f"v_fma_f32 v13, v{PM+4*i}, v{PM+4*i+1}, v13")
        p(f"v_fma_f32 v14, v{PM+4*i}, v{PM+4*i+2}, v14")
    xg_reduce(p, "v_add_f32", 13, T)
    xg_reduce(p, "v_add_f32", 14, T)
    p(f"v_mov_b32 v12, v{MV}")
    p("v_mov_b32 v15, 0")
    LX = 0
    p("s_barrier")
    p(f"v_lshlrev_b32 v9, 6, v{VI}")
    p("s_lshl_b32 s48, s20, 4")
    p("v_add_u32 v8, s48, v9")
    p(f"ds_write_b128 v8, v[12:15] offset:{LX}")
    p("s_barrier")
    for v in range(4): p(f"ds_read_b128 v[{64+4*v}:{67+4*v}], v9 offset:{LX + 16*v}")
    p("v_max3_f32 v8, v64, v68, v72")
    p("v_max_f32 v8, v8, v76")
    for v in range(4): p(f"v_sub_f32 v{64+4*v}, v{64+4*v}, v8")
    for v in range(4): p(f"v_exp_f32 v{64+4*v}, v{64+4*v}")
    p("v_mul_f32 v13, v64, v65")
    p("v_mul_f32 v14, v64, v66")
    for v in range(1, 4):
        p(f"v_fma_f32 v13, v{64+4*v}, v{65+4*v}, v13")
        p(f"v_fma_f32 v14, v{64+4*v}, v{66+4*v}, v14")
    p("v_rcp_f32 v13, v13")
    p("v_mul_f32 v14, s60, v14")
    UR = 64
    loads = ["s_mul_i32 s48, s20, 6144", f"s_add_u32 s48, s48, {UF_OFF}", "s_add_u32 s49, s48, 4096"]
    for q in range(6):
        so, off = ("s48", 1024 * q) if q < 4 else ("s49", 1024 * (q - 4))
        loads.append(f"buffer_load_dwordx4 v[{UR+4*q}:{UR+4*q+3}], v{VL16}, s[16:19], {so} offen offset:{off} sc1")
    poll_block(p, name, loads, list(range(UR, UR + 24)), VTAG, 12)
    stamp("u_in")
    for pr in range(3):
        for k in range(4):
            p(f"v_cvt_pk_bf16_f32 v{96+4*pr+k}, v{UR+8*pr+2*k}, v{UR+8*pr+2*k+1}")
    for pr in range(3):
        for e in range(NE):
            w = WF + 12 * e + 4 * pr
            d = 20 + 4 * e
            p(f"v_mfma_f32_16x16x32_bf16 v[{d}:{d+3}], v[{w}:{w+3}], v[{96+4*pr}:{99+4*pr}], {'0' if pr == 0 else f'v[{d}:{d+3}]'}")
    for e in range(NE):
        for r in range(4): p(f"v_fma_f32 v{20+4*e+r}, -v14, v{44+4*e+r}, v{20+4*e+r}")
    LF = 4096
    p("s_lshl_b32 s48, s20, 10")
    p(f"v_add_u32 v8, s48, v{VL16}")
    for e in range(NE): p(f"ds_write_b128 v8, v[{20+4*e}:{23+4*e}] offset:{LF + 4096*e}")
    p("s_barrier")
    p(f"s_cmp_ge_u32 s20, {NE}")
    p(f"s_cbranch_scc1 {name}_done ;@nodrain")
    p("s_lshl_b32 s48, s20, 12")
    p(f"v_add_u32 v8, s48, v{VL16}")
    for v in range(4): p(f"ds_read_b128 v[{64+4*v}:{67+4*v}], v8 offset:{LF + 1024*v}")
    p("v_lshlrev_b32 v80, 16, v56")
    p("v_and_b32 v81, 0xffff0000, v56")
    p("v_lshlrev_b32 v82, 16, v57")
    p("v_and_b32 v83, 0xffff0000, v57")
    for r in range(4):
        p(f"v_add_f32 v{64+r}, v{64+r}, v{68+r}")
        p(f"v_add_f32 v{72+r}, v{72+r}, v{76+r}")
        p(f"v_add_f32 v{64+r}, v{64+r}, v{72+r}")
        p(f"v_fma_f32 v{64+r}, v{64+r}, v13, v{80+r}")
    p("v_cvt_pk_bf16_f32 v64, v64, v65")
    p("v_cvt_pk_bf16_f32 v65, v66, v67")
    p("buffer_store_dwordx2 v[64:65], v7, s[44:47], s62 offen")
    p("s_add_u32 s48, s100, s20")
    p("s_cmp_lg_u32 s48, 0")
    p(f"s_cbranch_scc1 {name}_spe ;@nodrain")
    p("v_mov_b32 v8, s94")
    p(f"v_mov_b32 v9, {N_OFF}")
    p("s_mov_b64 exec, 1")
    p("buffer_store_dword v8, v9, s[16:19], 0 offen")
    p(f"{name}_spe:")
    if stamp.on:
        p("s_cmp_lg_u32 s20, 0")
        p(f"s_cbranch_scc1 {name}_done ;@nodrain")
        p("s_waitcnt vmcnt(0)")
        stamp("end")
        stamp.dump("special")

def kernel_text(name, p):
    body = p.finalize(True)
    return [f".globl {name}", ".p2align 8", f".type {name},@function", f"{name}:"] + body

def kd_text(name, info):
    return [".p2align 6", f".amdhsa_kernel {name}", f"  .amdhsa_next_free_vgpr {info['vgpr']}", "  .amdhsa_next_free_sgpr 102",
            f"  .amdhsa_accum_offset {info['accum']}", "  .amdhsa_group_segment_fixed_size 0", "  .amdhsa_kernarg_size 80",
            "  .amdhsa_user_sgpr_count 2", "  .amdhsa_user_sgpr_kernarg_segment_ptr 1", "  .amdhsa_system_sgpr_workgroup_id_x 1",
            "  .amdhsa_float_denorm_mode_32 3", ".end_amdhsa_kernel"]

HEADER = open("standalone__detection_seg_dino__vision.s.ref").read().split("; Override launch")[0]

def build(path, opt):
    name = "standalone__detection_seg_dino__vision_kernel"
    p, info = gen_kernel(name, opt)
    text = kernel_text(name, p)
    out = (HEADER.rstrip() + "\n" + f"; @launch grid=({info['grid']},1,1) block=({info['block']},1,1) lds={info['lds']}\n"
           + '.amdgcn_target "amdgcn-amd-amdhsa--gfx950"\n.text\n' + "\n".join(text) + '\n.section .rodata,"a"\n' + "\n".join(kd_text(name, info)) + "\n")
    open(path, "w").write(out)

if __name__ == "__main__":
    opt = {}
    path = sys.argv[1] if len(sys.argv) > 1 else "k2.s"
    for a in sys.argv[2:]:
        k, v = a.split("=", 1)
        opt[k] = int(v) if v.lstrip('-').isdigit() else v
    build(path, opt)
    if LABELS:
        import json
        json.dump(LABELS, open(path[:-2] + ".labels.json", "w"))
```

```python
import sys, math, struct
from dsl import Prog

C = 384
F0_BYTES = 113246208
F1_BYTES = 28311552
W_BYTES = 294912
Q_BYTES = 12288
N_OFF = 0
QF_OFF = 4096
QKF_OFF = QF_OFF + 24576
UF_OFF = QKF_OFF + 24576
ML_OFF = UF_OFF + 24576
PART_OFF = 262144
WS_USED = PART_OFF + 256 * 24576
NSPEC = 12
PROF_OFF = 131072
SPIN_MAX = 30000

def f2u(x): return struct.unpack('<I', struct.pack('<f', x))[0]
LOG2E = 1.4426950408889634
SCALE = C ** -0.5

def srd(p, base_s, ptr_lo, nbytes):
    p(f"s_mov_b32 s{base_s}, s{ptr_lo}")
    p(f"s_and_b32 s{base_s+1}, s{ptr_lo+1}, 0xffff")
    p(f"s_mov_b32 s{base_s+2}, {nbytes}")
    p(f"s_mov_b32 s{base_s+3}, 0x20000")

def mov64(p, s, val):
    p(f"s_mov_b32 s{s}, 0x{val & 0xffffffff:08x}")
    p(f"s_mov_b32 s{s+1}, 0x{(val >> 32) & 0xffffffff:08x}")

def xg_reduce(p, op, a, tmp):
    p(f"v_mov_b32 v{tmp}, v{a}")
    p(f"v_permlane32_swap_b32 v{a}, v{tmp}")
    p(f"{op} v{a}, v{a}, v{tmp}")
    p(f"v_mov_b32 v{tmp}, v{a}")
    p(f"v_permlane16_swap_b32 v{a}, v{tmp}")
    p(f"{op} v{a}, v{a}, v{tmp}")

S_MASK = 93
S_TAG = 95
S_SPIN = 92

def tag_regs(p, regs, vtag):
    for r in regs: p(f"v_bfi_b32 v{r}, s{S_MASK}, v{vtag}, v{r}")

def check_tags(p, regs, vtag, vacc):
    regs = list(regs)
    for r in regs: p(f"v_xor_b32 v{r}, v{r}, v{vtag}")
    p(f"v_or_b32 v{vacc}, v{regs[0]}, v{regs[1]}")
    rest = regs[2:]
    while len(rest) >= 2:
        p(f"v_or3_b32 v{vacc}, v{vacc}, v{rest[0]}, v{rest[1]}"); rest = rest[2:]
    if rest: p(f"v_or_b32 v{vacc}, v{vacc}, v{rest[0]}")
    p(f"v_and_b32 v{vacc}, s{S_MASK}, v{vacc}")
    p(f"v_cmp_ne_u32 vcc, 0, v{vacc}")

from dsl import Ins
def est_cycles(text):
    t = text.split(';')[0].strip()
    if not t or t.endswith(':'): return 0
    mn = t.split()[0]
    if mn.startswith('v_mfma'): return 16
    if mn.startswith('v_exp') or mn.startswith('v_rsq') or mn.startswith('v_rcp'): return 8
    if mn.startswith('v_'): return 4
    if mn.startswith('ds_write_b128'): return 16
    if mn.startswith('ds_write'): return 8
    if mn.startswith('ds_read'): return 8
    if mn == 's_barrier': return 80
    if mn.startswith('buffer_'): return 8
    return 4

def schedule_loads(items, loads, pace, lat, dmax, t0=0, verbose=False):
    out = []; now = t0
    land = []
    issue_t = []
    free = set(); k = 0
    extras = []
    def landed():
        return sum(1 for x in land if x <= now)
    locked = [False]
    def try_issue():
        nonlocal k, now
        if locked[0]: return
        while k < len(loads):
            L = loads[k]
            if L['key'] is not None and L['key'] not in free: break
            if len(land) - landed() >= dmax: break
            for x in L['pre']: out.append(x); now += 4
            out.append(L['ins']); now += 8
            if L['key'] is not None: free.discard(L['key'])
            prev = land[-1] if land else 0
            land.append(max(now + lat, prev + pace)); issue_t.append(now)
            k += 1
    for it in items:
        if isinstance(it, tuple):
            if it[0] == 'use':
                j = it[1]
                while k <= j:
                    L = loads[k]
                    assert L['key'] is None or L['key'] in free, ('slot not free', k, L)
                    for x in L['pre']: out.append(x); now += 4
                    out.append(L['ins']); now += 8
                    if L['key'] is not None: free.discard(L['key'])
                    prev = land[-1] if land else 0
                    land.append(max(now + lat, prev + pace)); issue_t.append(now); k += 1
                now = max(now, land[j])
                try_issue()
            elif it[0] == 'free': free.add(it[1]); try_issue()
            elif it[0] == 't': now += it[1]; try_issue()
            elif it[0] == 'until': now = max(now, it[1]); try_issue()
            elif it[0] == 'force':
                while k < it[1]:
                    L = loads[k]
                    assert L['key'] is None or L['key'] in free, ('slot not free', k, L)
                    for x in L['pre']: out.append(x); now += 4
                    out.append(L['ins']); now += 8
                    if L['key'] is not None: free.discard(L['key'])
                    prev = land[-1] if land else 0
                    land.append(max(now + lat, prev + pace)); issue_t.append(now); k += 1
                    if len(land) > 12: now = max(now, land[-13])
            elif it[0] == 'log':
                if verbose: print(f"   model {it[1]:8s} t={now/2100:.2f}us issued={k}")
            elif it[0] == 'lock': locked[0] = True
            elif it[0] == 'unlock': locked[0] = False
            continue
        out.append(it); now += est_cycles(it)
        if '@noload' not in it: try_issue()
    assert k == len(loads), (k, len(loads))
    return out

uid = [0]
def poll_block(p, name, loads, regs, vtag, vacc, preissued=False, lock=False):
    if lock: p.items.append(('lock',))
    uid[0] += 1
    L = f"{name}_pl{uid[0]}"
    if not preissued:
        for x in loads: p(x)
    check_tags(p, regs, vtag, vacc)
    p(f"s_cbranch_vccz {L}_ok")
    p(f"s_mov_b32 s{S_SPIN}, 0")
    p(f"{L}_retry:")
    p("s_sleep 1")
    for x in loads: p(x)
    p("s_waitcnt vmcnt(0)")
    check_tags(p, regs, vtag, vacc)
    p(f"s_cbranch_vccz {L}_fin")
    p(f"s_add_u32 s{S_SPIN}, s{S_SPIN}, 1")
    p(f"s_cmp_lt_u32 s{S_SPIN}, {SPIN_MAX}")
    p(f"s_cbranch_scc1 {L}_retry")
    p(f"{L}_fin:")
    p("s_nop 7")
    p("s_nop 7")
    p(f"{L}_ok: ;@restore {L}")
    if lock: p.items.append(('unlock',))

class Prof:
    def __init__(self, p, opt, base, lim=88):
        self.opt = opt; self.lim = lim; self.p = p; self.on = opt.get("prof", 0); self.lbl = []; self.base = base; self.skip = opt.get("skip", "").split(",")
    def __call__(self, lbl, fine=False):
        if self.on == 5:
            if lbl in ("init", "S", "F9"):
                for ins in ("s_memtime", "s_memrealtime"):
                    i = len(self.lbl); self.lbl.append(lbl + ins[2:])
                    self.p(f"{ins} s[{self.base+2*i}:{self.base+2*i+1}]")
            return
        if self.on == 4:
            if not fine: return
        elif fine: return
        if self.on and lbl not in self.skip and self.base + 2 * len(self.lbl) < self.lim:
            i = len(self.lbl); self.lbl.append(lbl)
            self.p(f"{'s_memtime' if self.on == 4 else 's_memrealtime'} s[{self.base+2*i}:{self.base+2*i+1}]")
    def dump(self, tagname, srdbase=16):
        if not self.on: return
        p = self.p
        wg = self.opt.get("dbg_" + tagname)
        if wg is not None:
            uid[0] += 1
            p("s_waitcnt vmcnt(0) lgkmcnt(0)")
            p(f"s_cmp_lg_u32 s2, {wg}")
            p(f"s_cbranch_scc1 dbgskip{uid[0]} ;@nodrain")
            p("s_load_dwordx2 s[4:5], s[0:1], 64")
            p("s_waitcnt lgkmcnt(0)")
            p("s_mov_b64 exec, 1")
            p("v_mov_b32 v1, 0")
            off = self.opt.get("dbgoff_" + tagname, 0)
            for i in range(len(self.lbl)):
                if self.on == 5: p(f"v_mov_b32 v2, s{self.base+2*i}")
                else:
                    p(f"s_sub_u32 s3, s{self.base+2*i}, s98")
                    p("v_mov_b32 v2, s3")
                p(f"global_store_dword v1, v2, s[4:5] offset:{4*(off+i)}")
            p(f"dbgskip{uid[0]}:")
        p("s_waitcnt vmcnt(0) lgkmcnt(0)")
        p("s_mov_b64 exec, 1")
        p("s_lshl_b32 s3, s2, 7")
        p(f"s_add_u32 s3, s3, {PROF_OFF}")
        p("v_mov_b32 v1, 0")
        p("v_mov_b32 v2, s98")
        p(f"buffer_store_dword v2, v1, s[{srdbase}:{srdbase+3}], s3 offen")
        for i in range(len(self.lbl)):
            p(f"v_mov_b32 v2, s{self.base+2*i}")
            p(f"buffer_store_dword v2, v1, s[{srdbase}:{srdbase+3}], s3 offen offset:{4*(i+1)}")
        print(tagname, "stamps:", self.lbl)
        LABELS[tagname] = list(self.lbl)
LABELS = {}

def gen_kernel(name, opt):
    p = Prog()
    prof = opt.get("prof", 0)
    p("s_cmp_ge_u32 s2, 256")
    p(f"s_cbranch_scc1 {name}_done ;@nodrain")
    if prof: p("s_memrealtime s[98:99]")
    p("s_load_dwordx2 s[22:23], s[0:1], 72")
    p("s_load_dwordx4 s[4:7], s[0:1], 8")
    p("v_readfirstlane_b32 s20, v0")
    p("v_and_b32 v0, 63, v0")
    p("s_lshr_b32 s20, s20, 6")
    p(f"s_mov_b32 s{S_MASK}, 0xff")
    p("s_lshr_b32 s100, s2, 3")
    p("s_lshl_b32 s100, s100, 2")
    p("s_and_b32 s21, s2, 7")
    p("s_add_u32 s100, s100, s21")
    p("s_sub_u32 s101, s100, 4")
    p(f"s_sub_u32 s3, s2, {NSPEC}")
    p("s_cmp_lt_u32 s2, 24")
    p("s_cselect_b32 s101, s101, s3")
    p("s_cselect_b32 s3, s21, 7")
    p("s_mov_b32 s21, s101")
    p("s_cmp_lt_u32 s3, 4")
    p(f"s_cbranch_scc1 {name}_special")
    gen_streamer(p, name, opt)
    p(f"{name}_special: ;@restore entry")
    gen_special(p, name, opt)
    p(f"{name}_done:")
    p("s_endpgm")
    return p, dict(vgpr=252 + 196, accum=252, lds=160256, grid=256, block=256)

def gen_streamer(p, name, opt):
    NT = " nt" if opt.get("nt", True) else ""
    prof = opt.get("prof", 0)
    NS = 10
    SP = opt.get("sp", 5)
    ST = lambda k: 76 + 60 * k
    F1R = lambda k, t: ST(k) + 4 * t
    F0R = lambda k, t, d: ST(k) + 12 + 16 * t + 4 * d
    VF0, VF1, VL16 = 1, 2, 3
    WA = [[4, 5, 6, 7], [216, 217, 218, 219]]
    RA = [[11, 12, 13, 14], [220, 221, 222, 223]]
    VTAG = 8
    QBA = 9
    TR = [15, 16, 17, 18, 19, 20]
    MXW, MXR, WXW, WXR = 21, 22, 23, 24
    M, L, Z, SN = 25, 26, 27, 28
    ACC = 32
    D1, D2, D3 = 56, 60, 64
    Uu, SS, RS, TM, TM2, AL, WF = 68, 69, 70, 71, 72, 73, 74
    U = 196; TT = 204
    QK = 212 + 12
    QKR = 212
    aQB, aXA, aXT, aONE = 0, 48, 96, 192
    XBUF = 49152; XT = 12288
    MX_OFF = 147456; LZ_OFF = MX_OFF + 256; QBL_OFF = LZ_OFF + 256; WX_OFF = QBL_OFF
    D1B = [56, 212, 216]; D3B = [64, 240, 244]; RSB = [70, 248, 249]; WFB = [74, 220, 222]
    XAB = [48, 96, 144]
    XTB = [96, 144]
    WA[1] = [228, 229, 230, 231]; RA[1] = [232, 233, 234, 235]
    QKR = 204 - 0
    QKR = 212
    WA[1] = [236, 237, 238, 239]; RA[1] = [29, 30, 31, 10]
    QKR = 212

    NSTR = 256 - NSPEC
    base_cnt = 9216 // NSTR; nbig = 9216 - base_cnt * NSTR
    assert base_cnt == 37
    p(f"s_mul_i32 s96, s21, {base_cnt}")
    p(f"s_min_u32 s97, s21, {nbig}")
    p("s_add_u32 s96, s96, s97")
    p(f"s_cmp_lt_u32 s21, {nbig}")
    p("s_cselect_b32 s97, 2, 1")
    p("s_add_u32 s90, s96, s20")
    p("s_add_u32 s91, s90, s97")
    p("s_sub_u32 s91, s91, 4")
    FP, J = 56, 57
    p(f"v_lshrrev_b32 v{FP}, 4, v0")
    p(f"v_and_b32 v{J}, 15, v0")
    p(f"v_mul_u32_u24 v{VF0}, 1536, v{FP}")
    p(f"v_lshl_add_u32 v{VF0}, v{J}, 4, v{VF0}")
    p(f"v_mul_u32_u24 v{VF1}, 768, v{FP}")
    p(f"v_lshl_add_u32 v{VF1}, v{J}, 4, v{VF1}")
    p(f"v_lshlrev_b32 v{VL16}, 4, v0")
    p("s_waitcnt lgkmcnt(0)")
    srd(p, 8, 4, F0_BYTES)
    srd(p, 12, 6, F1_BYTES)
    srd(p, 16, 22, WS_USED)
    p(f"s_load_dword s94, s[22:23], {N_OFF}")

    def tile_offsets(s):
        base = "s90" if s <= SP else "s91"
        p(f"s_add_u32 s27, {base}, {4*s}")
        p("s_mul_i32 s24, s27, 3072")
        p(f"s_mul_hi_u32 s28, s27, {(2**32 + 47)//48}")
        p("s_mul_i32 s29, s28, 48")
        p("s_sub_u32 s29, s27, s29")
        p("s_mul_i32 s25, s28, 589824")
        p("s_mul_i32 s29, s29, 6144")
        p("s_add_u32 s25, s25, s29")
        p("s_add_u32 s26, s25, 294912")
        if s == SP:
            p("s_cmp_lt_u32 s20, s97")
            p(f"s_cselect_b32 s10, {F0_BYTES}, 0")
            p(f"s_cselect_b32 s14, {F1_BYTES}, 0")
        if s == SP + 1:
            p(f"s_mov_b32 s10, {F0_BYTES}")
            p(f"s_mov_b32 s14, {F1_BYTES}")
    loads = []
    lidx = {}
    class Cap:
        def __init__(self): self.l = []
        def __call__(self, x): self.l.append(x)
    def build_loads():
        nonlocal p
        for s in range(NS):
            keep = p; p = Cap(); tile_offsets(s); pre = p.l; p = keep
            for t in range(3):
                r = F1R(s & 1, t)
                lidx[(s, 'f1', t)] = len(loads)
                loads.append(dict(pre=pre, key=(s & 1, 'f1', t) if s >= 2 else None,
                                  ins=f"buffer_load_dwordx4 v[{r}:{r+3}], v{VF1}, s[12:15], s24 offen offset:{256*t}{NT}"))
                pre = []
                for d in range(4):
                    r = F0R(s & 1, t, d)
                    so = "s25" if d < 2 else "s26"
                    lidx[(s, t, d)] = len(loads)
                    loads.append(dict(pre=[], key=(s & 1, t, d) if s >= 2 else None,
                                      ins=f"buffer_load_dwordx4 v[{r}:{r+3}], v{VF0}, s[8:11], {so} offen offset:{256*t + 768*(d&1)}{NT}"))
    build_loads()
    def mark(*a): p.items.append(a)
    stream_start = len(p.items)
    mark('t', 0)

    p("s_waitcnt lgkmcnt(0)")
    p("s_add_u32 s94, s94, 1")
    p(f"s_and_b32 s{S_TAG}, s94, 0xff")
    p(f"v_mov_b32 v{VTAG}, s{S_TAG}")

    p(f"s_mul_i32 s47, s20, {XT}")
    p(f"v_and_b32 v58, 1, v{FP}")
    p(f"v_lshlrev_b32 v58, 3, v58")
    p(f"v_lshrrev_b32 v59, 1, v{FP}")
    p(f"v_add_u32 v58, v58, v59")
    p(f"v_xor_b32 v58, v58, v{J}")
    p(f"v_lshlrev_b32 v58, 4, v58")
    p(f"v_mul_u32_u24 v59, 3072, v{FP}")
    p(f"v_add_u32 v58, v58, v59")
    p(f"v_add_u32 v{WA[0][0]}, s47, v58")
    for d in range(1, 4): p(f"v_xor_b32 v{WA[0][d]}, {32*d}, v{WA[0][0]}")
    for d in range(4): p(f"v_add_u32 v{WA[1][d]}, {2*XBUF}, v{WA[0][d]}")
    I, G, SI = 57, 56, 58
    p(f"v_and_b32 v{SI}, 7, v{I}")
    p(f"v_lshlrev_b32 v{SI}, 1, v{SI}")
    p(f"v_lshrrev_b32 v59, 3, v{I}")
    p(f"v_or_b32 v{SI}, v{SI}, v59")
    p(f"v_lshlrev_b32 v59, 1, v{G}")
    p(f"v_xor_b32 v59, v59, v{SI}")
    p(f"v_mul_u32_u24 v60, 768, v{I}")
    p(f"v_add_u32 v60, s47, v60")
    for b3 in range(2):
        for b0 in range(2):
            r = RA[0][2 * b3 + b0]
            p(f"v_xor_b32 v{r}, {8*b3+b0}, v59")
            p(f"v_lshl_add_u32 v{r}, v{r}, 4, v60")
            p(f"v_add_u32 v{RA[1][2*b3+b0]}, {2*XBUF}, v{r}")
    p(f"v_lshlrev_b32 v{MXR}, 4, v{I}")
    p(f"v_lshrrev_b32 v59, 1, v{G}")
    p(f"v_lshlrev_b32 v59, 10, v59")
    p(f"v_and_b32 v60, 1, v{G}")
    p(f"v_lshl_add_u32 v59, v60, 3, v59")
    p(f"v_add_u32 v59, v59, v{MXR}")
    p(f"v_add_u32 v{QBA}, {QBL_OFF}, v59")
    p(f"v_add_u32 v{MXR}, {MX_OFF}, v{MXR}")
    p("s_lshl_b32 s48, s20, 2")
    p(f"v_add_u32 v{MXW}, s48, v{MXR}")
    p(f"v_add_u32 v{WXR}, {WX_OFF}, v{VL16}")
    p("s_lshr_b32 s48, s20, 1")
    p("s_lshl_b32 s48, s48, 10")
    p("s_and_b32 s49, s20, 1")
    p("s_lshl_b32 s49, s49, 3")
    p("s_add_u32 s48, s48, s49")
    p(f"v_add_u32 v{WXW}, s48, v{WXR}")
    I = 56
    p(f"v_lshrrev_b32 v{I}, 2, v0")
    p(f"v_and_b32 v{SI}, 7, v{I}")
    p(f"v_lshlrev_b32 v{SI}, 1, v{SI}")
    p(f"v_lshrrev_b32 v59, 3, v{I}")
    p(f"v_or_b32 v{SI}, v{SI}, v59")
    p(f"v_and_b32 v59, 3, v0")
    p(f"v_lshrrev_b32 v60, 1, v59")
    p(f"v_xor_b32 v{SI}, v{SI}, v60")
    p(f"v_and_b32 v59, 1, v59")
    p(f"v_lshlrev_b32 v59, 3, v59")
    p(f"v_mul_u32_u24 v60, 768, v{I}")
    p(f"v_add_u32 v60, v60, v59")
    p("s_mul_i32 s48, s20, 6")
    for q in range(6):
        p(f"s_add_u32 s49, s48, {q}")
        p("s_and_b32 s50, s49, 7")
        p("s_lshl_b32 s50, s50, 1")
        p("s_lshr_b32 s49, s49, 3")
        p("s_lshl_b32 s49, s49, 8")
        p(f"v_xor_b32 v{TR[q]}, s50, v{SI}")
        p(f"v_lshl_add_u32 v{TR[q]}, v{TR[q]}, 4, v60")
        p(f"v_add_u32 v{TR[q]}, s49, v{TR[q]}")
    for r in range(4):
        mov64(p, 30 + 2 * r, sum(1 << (20 * g + r) for g in range(4)))
    for r in range(1, 4):
        mov64(p, 38 + 2 * (r - 1), 0x1111111111111111 << r)
    p("s_mov_b32 s44, 0xffff0000")
    p(f"s_mov_b32 s45, 0x{f2u(1.0 / C):08x}")
    p(f"s_mov_b32 s46, 0x{f2u(1e-5):08x}")
    p("s_mov_b32 s51, 0x00003f80")
    p("s_mov_b32 s3, 0x3f800000")
    p("s_cmp_lt_u32 s20, s97 ;@noload")
    p("s_cselect_b32 s89, 0, 0xf149f2ca")
    for r in range(24): p(f"v_mov_b32 v{ACC+r}, 0")
    p(f"v_mov_b32 v{M}, 0xf149f2ca")
    p(f"v_mov_b32 v{L}, 0")
    p(f"v_mov_b32 v{Z}, 0")
    p("v_mov_b32 v56, 0x3f803f80")
    for r in range(4): p(f"v_accvgpr_write_b32 a{aONE+r}, v56")

    tr_slot = [0]
    def wa(slot, d, t): return (WA[0][d], slot * XBUF + 768 * d + 256 * t) if slot < 2 else (WA[1][d], 768 * d + 256 * t)
    def ra(slot, ks):
        i = 2 * ((ks >> 1) & 1) + (ks & 1)
        return (RA[0][i], slot * XBUF + 256 * (ks >> 2)) if slot < 2 else (RA[1][i], 256 * (ks >> 2))

    def m_reads(s, t, xa=aXA):
        for ks in range(4 * t, 4 * t + 4):
            r, off = ra(s % 3, ks)
            p(f"ds_read_b128 a[{xa+4*ks}:{xa+4*ks+3}], v{r} offset:{off}")
    def m_mfma(s, t, b=0, what="gol", xa=aXA):
        d1, d3 = D1B[b], D3B[b]
        G_, O_, L_ = [], [], []
        for ks in range(4 * t, 4 * t + 4):
            x = f"a[{xa+4*ks}:{xa+4*ks+3}]"
            c1 = "0" if ks == 0 else f"v[{d1}:{d1+3}]"
            c2 = "0" if ks == 0 else f"v[{D2}:{D2+3}]"
            c3 = "0" if ks == 0 else f"v[{d3}:{d3+3}]"
            G_.append(f"v_mfma_f32_16x16x32_bf16 v[{D2}:{D2+3}], {x}, {x}, {c2}")
            O_.append(f"v_mfma_f32_16x16x32_bf16 v[{d3}:{d3+3}], {x}, a[{aONE}:{aONE+3}], {c3}")
            L_.append(f"v_mfma_f32_16x16x32_bf16 v[{d1}:{d1+3}], {x}, a[{aQB+4*ks}:{aQB+4*ks+3}], {c1}")
        if what == "l":
            for x in L_: p(x)
        elif what == "go":
            for g_, o_ in zip(G_, O_): p(g_); p(o_)
        elif t < 2:
            for g_, o_, l_ in zip(G_, O_, L_): p(g_); p(o_); p(l_)
        else:
            for g_, o_ in zip(G_, O_): p(g_); p(o_)
            for l_ in L_: p(l_)
    def stats(b):
        d3, rs = D3B[b], RSB[b]
        p(f"v_cndmask_b32 v{Uu}, 0, v{D2}, s[30:31]")
        for r in range(1, 4):
            p(f"v_cndmask_b32 v{Uu}, v{Uu}, v{D2+r}, s[{30+2*r}:{31+2*r}]")
        p(f"v_cndmask_b32 v{SS}, v{d3}, v{d3+1}, s[38:39]")
        p(f"v_cndmask_b32 v{SS}, v{SS}, v{d3+2}, s[40:41]")
        p(f"v_add_f32_dpp v{Uu}, v{Uu}, v{Uu} row_ror:4 row_mask:0xf bank_mask:0xf")
        p(f"v_cndmask_b32 v{SS}, v{SS}, v{d3+3}, s[42:43]")
        p(f"v_mov_b32 v{TM}, s46")
        p(f"v_add_f32_dpp v{Uu}, v{Uu}, v{Uu} row_ror:8 row_mask:0xf bank_mask:0xf")
        p(f"v_mul_f32 v{SS}, s45, v{SS}")
        p(f"v_fma_f32 v{Uu}, v{Uu}, s45, v{TM}")
        p(f"v_fma_f32 v{Uu}, -v{SS}, v{SS}, v{Uu}")
        p(f"v_max_f32 v{Uu}, s46, v{Uu}")
        p(f"v_rsq_f32 v{rs}, v{Uu}")
    def stage_G(s, b):
        for t in range(3): m_reads(s, t)
        mark('t', 120)
        for t in range(3): m_mfma(s, t, b, "go")
        stats(b)

    def stage_A(s, ld, fuse, thirds=(0, 1, 2)):
        slot = s % 3; k = s & 1
        for t in thirds:
            if (s, t) == qpos: qk_issue()
            f1 = F1R(k, t)
            mark('use', lidx[(s, 'f1', t)])
            for j in range(4):
                p(f"v_lshlrev_b32 v{U+2*j}, 16, v{f1+j}")
                p(f"v_and_b32 v{U+2*j+1}, s44, v{f1+j}")
            mark('free', (k, 'f1', t))
            for d in range(4):
                f0 = F0R(k, t, d)
                mark('use', lidx[(s, t, d)])
                for j in range(4):
                    p(f"v_dot2_f32_bf16 v{TT+2*j}, v{f0+j}, s51, v{U+2*j}")
                    p(f"v_dot2_f32_bf16 v{TT+2*j+1}, v{f0+j}, s3, v{U+2*j+1}")
                for j in range(4):
                    p(f"v_cvt_pk_bf16_f32 v{f0+j}, v{TT+2*j}, v{TT+2*j+1}")
                r, off = wa(slot, d, t)
                p(f"ds_write_b128 v{r}, v[{f0}:{f0+3}] offset:{off}")
                mark('free', (k, t, d))
            if fuse:
                m_reads(s, t)
                mark('t', 120)
                m_mfma(s, t)
        if fuse: stats(0)

    def stage_M(tiles, pre):
        if pre:
            for b, s in enumerate(tiles):
                for t in range(3): m_reads(s, t, XAB[b])
            mark('t', 100)
            for b, s in enumerate(tiles):
                for t in range(3): m_mfma(s, t, b, "l", XAB[b])
        else:
            for b, s in enumerate(tiles):
                if b == 0:
                    for t in range(3): m_reads(s, t, XAB[0])
                    mark('t', 120)
                if b + 1 < len(tiles):
                    for t in range(3): m_reads(tiles[b + 1], t, XAB[b + 1])
                for t in range(3): m_mfma(s, t, b, "gol", XAB[b])
                stats(b)

    qpos = None
    qk_loads = []
    qk_loads.append("s_mul_i32 s48, s20, 6144")
    qk_loads.append(f"s_add_u32 s48, s48, {QKF_OFF}")
    qk_loads.append("s_add_u32 s49, s48, 4096")
    for q in range(6):
        so, off = ("s48", 1024 * q) if q < 4 else ("s49", 1024 * (q - 4))
        qk_loads.append(f"buffer_load_dwordx4 v[{QKR+4*q}:{QKR+4*q+3}], v{VL16}, s[16:19], {so} offen offset:{off} sc1")
    def qk_issue():
        for x in qk_loads: p(x)
    def qb_setup():
        mark('t', 300)
        poll_block(p, name, qk_loads, list(range(QKR, QKR + 24)), VTAG, TM, preissued=True, lock=True)
        for q in range(6):
            p(f"v_cvt_pk_bf16_f32 v{QKR+4*q}, v{QKR+4*q}, v{QKR+4*q+1}")
            p(f"v_cvt_pk_bf16_f32 v{QKR+4*q+1}, v{QKR+4*q+2}, v{QKR+4*q+3}")
            p("s_mul_i32 s48, s20, 6")
            p(f"s_add_u32 s48, s48, {q}")
            p("s_lshr_b32 s49, s48, 2")
            p("s_lshl_b32 s49, s49, 11")
            p("s_and_b32 s48, s48, 3")
            p("s_lshl_b32 s48, s48, 8")
            p("s_add_u32 s48, s48, s49")
            p(f"v_add_u32 v{TM}, s48, v{QBA}")
            p(f"ds_write_b64 v{TM}, v[{QKR+4*q}:{QKR+4*q+1}]")
        p("s_barrier")
        p(f"v_add_u32 v{TM}, {QBL_OFF}, v{VL16}")
        for ks in range(12):
            p(f"ds_read_b128 a[{aQB+4*ks}:{aQB+4*ks+3}], v{TM} offset:{1024*ks}")
        for ks in range(12):
            c = "0" if ks == 0 else f"v[{D1}:{D1+3}]"
            p(f"v_mfma_f32_16x16x32_bf16 v[{D1}:{D1+3}], a[{aONE}:{aONE+3}], a[{aQB+4*ks}:{aQB+4*ks+3}], {c}")
        p(f"v_mul_f32 v{SN}, s45, v{D1}")

    first_bc = [True]
    def set_tr(slot):
        if slot != tr_slot[0]:
            dlt = (slot - tr_slot[0]) * XBUF
            for q in range(6):
                if dlt > 0: p(f"v_add_u32 v{TR[q]}, {dlt}, v{TR[q]}")
                else: p(f"v_subrev_u32 v{TR[q]}, {-dlt}, v{TR[q]}")
            tr_slot[0] = slot
    def tr_list(xt):
        trs = []
        for kst in range(2):
            for q in range(6):
                for h in range(2):
                    j = 2 * kst + h
                    a = xt + 8 * q + 4 * kst + 2 * h
                    trs.append(f"ds_read_b64_tr_b16 a[{a}:{a+1}], v{TR[q]} offset:{j*XT}")
        return trs
    def stage_B(tiles):
        nb = len(tiles)
        set_tr(tiles[0] % 3)
        for b, s in enumerate(tiles):
            d1, d3, rs = D1B[b], D3B[b], RSB[b]
            for r in range(4):
                p(f"v_fma_f32 v{d1+r}, -v{d3+r}, v{SN}, v{d1+r}")
            for r in range(4):
                p(f"v_mul_f32_dpp v{d1+r}, v{rs}, v{d1+r} quad_perm:[{r},{r},{r},{r}] row_mask:0xf bank_mask:0xf")
            if s == SP:
                for r in range(4): p(f"v_add_f32 v{d1+r}, s89, v{d1+r}")
        vals = [D1B[b] + r for b in range(nb) for r in range(4)]
        p(f"v_max3_f32 v{TM}, v{vals[0]}, v{vals[1]}, v{vals[2]}")
        rest = vals[3:]
        while len(rest) >= 2:
            p(f"v_max3_f32 v{TM}, v{TM}, v{rest[0]}, v{rest[1]}"); rest = rest[2:]
        if rest: p(f"v_max_f32 v{TM}, v{TM}, v{rest[0]}")
        xg_reduce(p, "v_max_f32", TM, TM2)
        p(f"ds_write_b32 v{MXW}, v{TM}")
        mark('t', 100)
        p("s_barrier")
        p(f"ds_read_b128 v[{D2}:{D2+3}], v{MXR}")
        mark('t', 80)
        trs = tr_list(XTB[0])
        for x in trs[:12]: p(x)
        p(f"v_max3_f32 v{TM}, v{D2}, v{D2+1}, v{D2+2}")
        p(f"v_max3_f32 v{TM}, v{TM}, v{D2+3}, v{M}")
        p(f"v_sub_f32 v{AL}, v{M}, v{TM}")
        p(f"v_mov_b32 v{M}, v{TM}")
        p(f"v_exp_f32 v{AL}, v{AL}")
        for v in vals: p(f"v_sub_f32 v{v}, v{v}, v{M}")
        for v in vals: p(f"v_exp_f32 v{v}, v{v}")
        for x in trs[12:]: p(x)
        p(f"v_add_f32 v{TM}, v{vals[0]}, v{vals[1]}")
        p(f"v_add_f32 v{TM2}, v{vals[2]}, v{vals[3]}")
        for i in range(4, len(vals), 2):
            p(f"v_add_f32 v{TM}, v{TM}, v{vals[i]}")
            p(f"v_add_f32 v{TM2}, v{TM2}, v{vals[i+1]}")
        p(f"v_add_f32 v{TM}, v{TM}, v{TM2}")
        p(f"v_fma_f32 v{L}, v{L}, v{AL}, v{TM}")
        for b in range(nb):
            d1, rs, wf = D1B[b], RSB[b], WFB[b]
            for r in range(4):
                p(f"v_mul_f32_dpp v{d1+r}, v{rs}, v{d1+r} quad_perm:[{r},{r},{r},{r}] row_mask:0xf bank_mask:0xf")
            p(f"v_cvt_pk_bf16_f32 v{wf}, v{d1}, v{d1+1}")
            p(f"v_cvt_pk_bf16_f32 v{wf+1}, v{d1+2}, v{d1+3}")
            p(f"ds_write_b64 v{WXW}, v[{wf}:{wf+1}] offset:{2048*b}")
        if nb > 1:
            set_tr(tiles[1] % 3)
            for x in tr_list(XTB[1]): p(x)
        p(f"v_mul_f32 v{Z}, v{Z}, v{AL}")
        for b in range(nb):
            for r in range(4): p(f"v_fma_f32 v{Z}, v{D1B[b]+r}, v{D3B[b]+r}, v{Z}")
        if not first_bc[0]:
            for r in range(24): p(f"v_mul_f32 v{ACC+r}, v{ACC+r}, v{AL}")
        first_bc[0] = False
        p("s_barrier")

    def stage_C(tiles):
        nb = len(tiles)
        WR = [(D1, D2), (212, 216), (D1, D2)]
        for b in range(min(nb, 2)):
            p(f"ds_read_b128 v[{WR[b][0]}:{WR[b][0]+3}], v{WXR} offset:{2048*b}")
            p(f"ds_read_b128 v[{WR[b][1]}:{WR[b][1]+3}], v{WXR} offset:{2048*b + 1024}")
        mark('t', 120)
        for b in range(nb):
            xt = XTB[b & 1]
            for kst in range(2):
                bb = WR[b][kst]
                for q in range(6):
                    a = xt + 8 * q + 4 * kst
                    p(f"v_mfma_f32_16x16x32_bf16 v[{ACC+4*q}:{ACC+4*q+3}], a[{a}:{a+3}], v[{bb}:{bb+3}], v[{ACC+4*q}:{ACC+4*q+3}]")
            if b == 0 and nb == 3:
                set_tr(tiles[2] % 3)
                for x in tr_list(XTB[0]): p(x)
                p(f"ds_read_b128 v[{WR[2][0]}:{WR[2][0]+3}], v{WXR} offset:{2048*2}")
                p(f"ds_read_b128 v[{WR[2][1]}:{WR[2][1]+3}], v{WXR} offset:{2048*2 + 1024}")
        if nb == 3 or True:
            pass

    stamp = Prof(p, opt, 52)
    sched = opt.get("sched", "A0 G00 A1 G11 A2 G22 I40 Q I47 S X012 A3 A4 M34 F5 F6 F7 F8 F9")
    stamp("init")
    for tok in sched.replace("_", " ").split():
        if tok == "S":
            mark('log', 'S0'); qb_setup(); stamp("S")
        elif tok == "Q": qk_issue()
        elif tok[0] == "I":
            mark('force', 15 * int(tok[1]) + int(tok[2:]))
        elif tok[0] == "W":
            mark('until', int(tok[1:]) * 210)
        elif tok[0] in "AF":
            s = int(tok[1])
            if len(tok) == 3:
                stage_A(s, None, False, (int(tok[2]),))
                if tok[2] == "2" and s < 3: stamp(tok[:2])
            else:
                stage_A(s, None, tok[0] == "F")
                if tok[0] == "F":
                    stage_B([s]); stage_C([s])
                if tok[0] == "F" or s < 3: stamp(tok)
        elif tok[0] == "G":
            stage_G(int(tok[1]), int(tok[2]))
        elif tok[0] in "MX":
            tiles = [int(c) for c in tok[1:]]
            stage_M(tiles, tok[0] == "X"); stage_B(tiles); stage_C(tiles); stamp(tok)
        mark('log', tok)
    body = p.items[stream_start:]
    sched_out = schedule_loads(body, loads, pace=opt.get("pace", 300), lat=opt.get("lat", 1500), dmax=opt.get("dmax", 7), verbose=True)
    p.items[stream_start:] = sched_out

    if opt.get("streamonly"):
        p("s_endpgm")
        return
    p("s_mul_i32 s24, s2, 24576")
    p("s_mul_i32 s25, s20, 6144")
    p("s_add_u32 s24, s24, s25")
    p(f"s_add_u32 s24, s24, {PART_OFF}")
    p("s_add_u32 s25, s24, 4096")
    xg_reduce(p, "v_add_f32", L, TM2)
    xg_reduce(p, "v_add_f32", Z, TM2)
    p(f"ds_write_b32 v{MXW}, v{L}")
    p(f"ds_write_b32 v{MXW}, v{Z} offset:{LZ_OFF - MX_OFF}")
    for q in range(6):
        tag_regs(p, range(ACC + 4 * q, ACC + 4 * q + 4), VTAG)
        so, off = ("s24", 1024 * q) if q < 4 else ("s25", 1024 * (q - 4))
        p(f"buffer_store_dwordx4 v[{ACC+4*q}:{ACC+4*q+3}], v{VL16}, s[16:19], {so} offen offset:{off} sc1")
    p("s_barrier")
    p("s_cmp_lg_u32 s20, 0")
    p(f"s_cbranch_scc1 {name}_red")
    p(f"ds_read_b128 v[56:59], v{MXR}")
    p(f"ds_read_b128 v[60:63], v{MXR} offset:{LZ_OFF - MX_OFF}")
    p("v_add_f32 v56, v56, v57")
    p("v_add_f32 v58, v58, v59")
    p("v_add_f32 v65, v56, v58")
    p("v_add_f32 v60, v60, v61")
    p("v_add_f32 v62, v62, v63")
    p("v_add_f32 v66, v60, v62")
    p(f"v_mov_b32 v64, v{M}")
    p(f"v_mov_b32 v67, v{VTAG}")
    p("s_lshl_b32 s24, s2, 8")
    p(f"s_add_u32 s24, s24, {ML_OFF}")
    p("s_mov_b64 exec, 0xffff")
    p(f"buffer_store_dwordx4 v[64:67], v{VL16}, s[16:19], s24 offen sc1")
    p("s_mov_b64 exec, -1")
    p(f"{name}_red: ;@restore red")
    stamp("pub")
    p("s_cmp_ge_u32 s21, 192")
    p(f"s_cbranch_scc1 {name}_sdone ;@nodrain")
    p("s_lshr_b32 s24, s21, 3")
    p("s_lshr_b32 s25, s21, 1")
    p("s_and_b32 s25, s25, 3")
    p("s_and_b32 s26, s21, 1")
    p("v_and_b32 v56, 7, v0")
    p("v_lshrrev_b32 v57, 3, v0")
    p("v_mul_u32_u24 v58, 24576, v57")
    p("v_lshl_add_u32 v58, v56, 4, v58")
    p("v_lshlrev_b32 v59, 8, v57")
    p("v_lshl_add_u32 v59, v56, 4, v59")
    p(f"s_mul_i32 s27, s20, {64*24576}")
    p("s_lshl_b32 s28, s24, 10")
    p("s_add_u32 s27, s27, s28")
    p("s_lshl_b32 s28, s25, 8")
    p("s_add_u32 s27, s27, s28")
    p("s_lshl_b32 s28, s26, 7")
    p("s_add_u32 s27, s27, s28")
    p(f"s_add_u32 s27, s27, {PART_OFF}")
    p("s_lshl_b32 s29, s20, 14")
    p("s_add_u32 s29, s29, s28")
    p(f"s_add_u32 s29, s29, {ML_OFF}")
    PM = 76; PP = 108
    def pair_loads(i):
        return [f"s_add_u32 s48, s29, {2048*i}",
                f"buffer_load_dwordx4 v[{PM+4*i}:{PM+4*i+3}], v59, s[16:19], s48 offen sc1",
                f"s_add_u32 s49, s27, {8*24576*i}",
                f"buffer_load_dwordx4 v[{PP+4*i}:{PP+4*i+3}], v58, s[16:19], s49 offen sc1"]
    def pair_regs(i): return [PM + 4 * i + 3] + list(range(PP + 4 * i, PP + 4 * i + 4))
    RL = f"{name}_rr"
    p("s_mov_b32 s50, 0xff")
    p(f"s_mov_b32 s{S_SPIN}, 0")
    p(f"{RL}_loop:")
    for i in range(8):
        p(f"s_bitcmp0_b32 s50, {i}")
        p(f"s_cbranch_scc1 {RL}_l{i} ;@nodrain")
        for x in pair_loads(i): p(x)
        p(f"{RL}_l{i}:")
    p("s_waitcnt vmcnt(0)")
    for i in range(8):
        p(f"s_bitcmp0_b32 s50, {i}")
        p(f"s_cbranch_scc1 {RL}_c{i} ;@nodrain")
        check_tags(p, pair_regs(i), VTAG, 60)
        p(f"s_cbranch_vccnz {RL}_c{i} ;@nodrain")
        p(f"s_bitset0_b32 s50, {i}")
        p(f"{RL}_c{i}:")
    p("s_cmp_eq_u32 s50, 0")
    p(f"s_cbranch_scc1 {RL}_done ;@nodrain")
    p(f"s_add_u32 s{S_SPIN}, s{S_SPIN}, 1")
    p(f"s_cmp_lt_u32 s{S_SPIN}, {SPIN_MAX}")
    p(f"s_cbranch_scc1 {RL}_loop ;@nodrain")
    p(f"{RL}_done:")
    p("s_nop 7")
    stamp("redin")
    MV, T = 61, 62
    p(f"v_max3_f32 v{MV}, v{PM}, v{PM+4}, v{PM+8}")
    p(f"v_max3_f32 v{MV}, v{MV}, v{PM+12}, v{PM+16}")
    p(f"v_max3_f32 v{MV}, v{MV}, v{PM+20}, v{PM+24}")
    p(f"v_max_f32 v{MV}, v{MV}, v{PM+28}")
    p(f"v_max_f32_dpp v{MV}, v{MV}, v{MV} row_ror:8 row_mask:0xf bank_mask:0xf")
    xg_reduce(p, "v_max_f32", MV, T)
    for i in range(8): p(f"v_sub_f32 v{PM+4*i}, v{PM+4*i}, v{MV}")
    for i in range(8): p(f"v_exp_f32 v{PM+4*i}, v{PM+4*i}")
    for r in range(4): p(f"v_mul_f32 v{64+r}, v{PM}, v{PP+r}")
    for i in range(1, 8):
        for r in range(4): p(f"v_fma_f32 v{64+r}, v{PM+4*i}, v{PP+4*i+r}, v{64+r}")
    for r in range(4): p(f"v_add_f32_dpp v{64+r}, v{64+r}, v{64+r} row_ror:8 row_mask:0xf bank_mask:0xf")
    for r in range(4): xg_reduce(p, "v_add_f32", 64 + r, T)
    p("v_lshlrev_b32 v63, 7, v56")
    p("s_lshl_b32 s28, s20, 5")
    p("v_add_u32 v68, s28, v63")
    p(f"ds_write_b128 v68, v[64:67]")
    p(f"ds_write_b32 v68, v{MV} offset:16")
    p("s_barrier")
    p("s_cmp_lg_u32 s20, 0")
    p(f"s_cbranch_scc1 {name}_sdone ;@nodrain")
    for v in range(4):
        p(f"ds_read_b128 v[{76+8*v}:{79+8*v}], v63 offset:{32*v}")
        p(f"ds_read_b32 v{80+8*v}, v63 offset:{32*v+16}")
    p("v_max3_f32 v61, v80, v88, v96")
    p("v_max_f32 v61, v61, v104")
    for v in range(4): p(f"v_sub_f32 v{80+8*v}, v{80+8*v}, v61")
    for v in range(4): p(f"v_exp_f32 v{80+8*v}, v{80+8*v}")
    for r in range(4): p(f"v_mul_f32 v{64+r}, v80, v{76+r}")
    for v in range(1, 4):
        for r in range(4): p(f"v_fma_f32 v{64+r}, v{80+8*v}, v{76+8*v+r}, v{64+r}")
    tag_regs(p, range(64, 68), VTAG)
    p("s_lshl_b32 s24, s24, 10")
    p("s_lshl_b32 s25, s25, 8")
    p("s_add_u32 s24, s24, s25")
    p("s_lshl_b32 s26, s26, 7")
    p("s_add_u32 s24, s24, s26")
    p(f"s_add_u32 s24, s24, {UF_OFF}")
    p("s_mov_b64 exec, 0xff")
    p(f"buffer_store_dwordx4 v[64:67], v{VL16}, s[16:19], s24 offen sc1")
    stamp("redout")
    p(f"{name}_sdone:")
    if stamp.on:
        p("s_cmp_lg_u32 s20, 0")
        p(f"s_cbranch_scc1 {name}_done ;@nodrain")
        stamp.dump("streamer")
    p("s_endpgm")

def gen_special(p, name, opt):
    if opt.get("streamonly"):
        p("s_endpgm"); return
    stamp = Prof(p, opt, 64, 92)
    VL16, VI, VG, VTAG, VAB = 1, 2, 3, 4, 5
    LA = list(range(216, 228))
    RS = 784
    TILE_LDS = 16 * RS
    p("s_load_dwordx2 s[4:5], s[0:1], 0")
    p("s_load_dwordx4 s[8:11], s[0:1], 24")
    p("s_load_dwordx4 s[12:15], s[0:1], 40")
    p("s_load_dwordx2 s[6:7], s[0:1], 56")
    p(f"v_lshlrev_b32 v{VL16}, 4, v0")
    p(f"v_and_b32 v{VI}, 15, v0")
    p(f"v_lshrrev_b32 v{VG}, 4, v0")
    p(f"v_mul_u32_u24 v{VAB}, {RS}, v{VI}")
    p(f"v_lshl_add_u32 v{VAB}, v{VG}, 4, v{VAB}")
    for a in range(12):
        p(f"v_add_u32 v6, {1024*a}, v{VL16}")
        p("v_lshrrev_b32 v7, 8, v6")
        p("v_mul_u32_u24 v7, 21846, v7")
        p("v_lshrrev_b32 v7, 16, v7")
        p(f"v_lshl_add_u32 v{LA[a]}, v7, 4, v6")
    p("s_waitcnt lgkmcnt(0)")
    p(f"s_load_dword s94, s[22:23], {N_OFF}")
    srd(p, 16, 22, WS_USED)
    srd(p, 24, 8, W_BYTES)
    srd(p, 28, 10, W_BYTES)
    srd(p, 32, 4, Q_BYTES)
    srd(p, 36, 12, W_BYTES)
    srd(p, 40, 14, W_BYTES)
    srd(p, 44, 6, Q_BYTES)
    aONE = 144
    ONES = f"a[{aONE}:{aONE+3}]"
    def consts():
        for r in range(4): mov64(p, 52 + 2 * r, sum(1 << (20 * g + r) for g in range(4)))
        p(f"s_mov_b32 s60, 0x{f2u(1.0 / C):08x}")
        p(f"s_mov_b32 s61, 0x{f2u(1e-5):08x}")
        p("v_mov_b32 v6, 0x3f803f80")
        for r in range(4): p(f"v_accvgpr_write_b32 a{aONE+r}, v6")
        p("s_waitcnt lgkmcnt(0)")
        p("s_add_u32 s94, s94, 1")
        p(f"s_and_b32 s{S_TAG}, s94, 0xff")
        p(f"v_mov_b32 v{VTAG}, s{S_TAG}")
    p("s_cmp_ge_u32 s100, 6")
    p(f"s_cbranch_scc1 {name}_st2")
    WQS = 64
    QS = 16
    LQ = 0
    LWQ = 12544
    p("v_lshrrev_b32 v7, 3, v0")
    p("v_and_b32 v8, 7, v0")
    p("v_mul_u32_u24 v9, 768, v7")
    p("v_lshl_add_u32 v9, v8, 4, v9")
    p("v_mul_u32_u24 v10, 144, v7")
    p("v_lshl_add_u32 v10, v8, 4, v10")
    p("s_mul_i32 s48, s20, 3072")
    for a in range(3):
        p(f"buffer_load_dwordx4 v[{QS+4*a}:{QS+4*a+3}], v{VL16}, s[32:35], s48 offen offset:{1024*a}")
    p("s_lshl_b32 s48, s100, 7")
    p(f"s_mul_i32 s49, s20, {96*768}")
    p("s_add_u32 s48, s48, s49")
    for a in range(12):
        p(f"buffer_load_dwordx4 v[{WQS+4*a}:{WQS+4*a+3}], v9, s[24:27], s48 offen")
        if a < 11: p(f"s_add_u32 s48, s48, {8*768}")
    consts()
    stamp("issued")
    p("s_mul_i32 s48, s20, 3136")
    for a in range(3):
        p(f"v_add_u32 v6, s48, v{LA[a]}")
        p(f"ds_write_b128 v6, v[{QS+4*a}:{QS+4*a+3}] offset:{LQ}")
    p(f"s_mul_i32 s48, s20, {96*144}")
    p("v_add_u32 v10, s48, v10")
    for a in range(12):
        p(f"ds_write_b128 v10, v[{WQS+4*a}:{WQS+4*a+3}] offset:{LWQ + 8*144*a}")
    stamp("s1ld")
    p("s_barrier")
    stamp("s1bar")
    QFR = 16
    for ks in range(12):
        p(f"ds_read_b128 v[{QFR+4*ks}:{QFR+4*ks+3}], v{VAB} offset:{LQ + 64*ks}")
    p("v_lshrrev_b32 v10, 2, v0")
    p("v_and_b32 v10, 3, v10")
    p(f"v_lshl_add_u32 v10, v{VG}, 3, v10")
    p("v_mul_u32_u24 v10, 144, v10")
    p("v_and_b32 v11, 3, v0")
    p("v_lshl_add_u32 v10, v11, 3, v10")
    p("s_lshl_b32 s48, s20, 5")
    p("v_add_u32 v10, s48, v10")
    aWT = 0
    for ks in range(12):
        for h in range(2):
            p(f"ds_read_b64_tr_b16 a[{aWT+4*ks+2*h}:{aWT+4*ks+2*h+1}], v10 offset:{LWQ + 32*144*ks + 4*144*h}")
    for ks in range(12):
        q = f"v[{QFR+4*ks}:{QFR+4*ks+3}]"
        p(f"v_mfma_f32_16x16x32_bf16 v[116:119], {q}, {q}, {'0' if ks == 0 else 'v[116:119]'}")
        p(f"v_mfma_f32_16x16x32_bf16 v[112:115], {ONES}, {q}, {'0' if ks == 0 else 'v[112:115]'}")
    for ks in range(12):
        a = f"a[{aWT+4*ks}:{aWT+4*ks+3}]"
        q = f"v[{QFR+4*ks}:{QFR+4*ks+3}]"
        p(f"v_mfma_f32_16x16x32_bf16 v[120:123], {a}, {q}, {'0' if ks == 0 else 'v[120:123]'}")
        p(f"v_mfma_f32_16x16x32_bf16 v[124:127], {a}, {ONES}, {'0' if ks == 0 else 'v[124:127]'}")
        if ks == 1:
            p("v_cndmask_b32 v12, 0, v116, s[52:53]")
            for r in range(1, 4): p(f"v_cndmask_b32 v12, v12, v{116+r}, s[{52+2*r}:{53+2*r}]")
            p("v_mul_f32 v14, s60, v112")
        if ks == 3: xg_reduce(p, "v_add_f32", 12, 13)
        if ks == 6:
            p("v_mov_b32 v13, s61")
            p("v_fma_f32 v12, v12, s60, v13")
            p("v_fma_f32 v12, -v14, v14, v12")
            p("v_max_f32 v12, s61, v12")
            p("v_rsq_f32 v15, v12")
    stamp("s1mf")
    for r in range(4): p(f"v_fma_f32 v{120+r}, -v14, v{124+r}, v{120+r}")
    for r in range(4): p(f"v_mul_f32 v{120+r}, v{120+r}, v15")
    tag_regs(p, range(120, 124), VTAG)
    p("s_lshl_b32 s48, s100, 2")
    p("s_add_u32 s48, s48, s20")
    p("s_lshl_b32 s48, s48, 10")
    p(f"s_add_u32 s48, s48, {QF_OFF}")
    p(f"buffer_store_dwordx4 v[120:123], v{VL16}, s[16:19], s48 offen sc1")
    stamp("st1")
    p(f"s_branch {name}_sp_w")
    p(f"{name}_st2: ;@restore st2")
    WKS = 64
    p("s_sub_u32 s21, s100, 6")
    p("s_lshl_b32 s21, s21, 2")
    p("s_add_u32 s21, s21, s20")
    p("s_mul_i32 s48, s21, 12288")
    for a in range(12):
        if a % 4 == 0 and a: p("s_add_u32 s48, s48, 4096")
        p(f"buffer_load_dwordx4 v[{WKS+4*a}:{WKS+4*a+3}], v{VL16}, s[28:31], s48 offen offset:{1024*(a%4)}")
    consts()
    stamp("issued")
    LWK = 0
    LQB = 4 * TILE_LDS
    p(f"s_mul_i32 s48, s20, {TILE_LDS}")
    for a in range(12):
        p(f"v_add_u32 v6, s48, v{LA[a]}")
        p(f"ds_write_b128 v6, v[{WKS+4*a}:{WKS+4*a+3}] offset:{LWK}")
    p(f"v_add_u32 v7, s48, v{VAB}")
    aWK = 48
    for ks in range(12):
        p(f"ds_read_b128 a[{aWK+4*ks}:{aWK+4*ks+3}], v7 offset:{LWK + 64*ks}")
    QR = 120
    loads = ["s_mul_i32 s48, s20, 6144", f"s_add_u32 s48, s48, {QF_OFF}", "s_add_u32 s49, s48, 4096"]
    for q in range(6):
        so, off = ("s48", 1024 * q) if q < 4 else ("s49", 1024 * (q - 4))
        loads.append(f"buffer_load_dwordx4 v[{QR+4*q}:{QR+4*q+3}], v{VL16}, s[16:19], {so} offen offset:{off} sc1")
    poll_block(p, name, loads, list(range(QR, QR + 24)), VTAG, 12)
    stamp("qf_in")
    p(f"v_lshrrev_b32 v7, 1, v{VG}")
    p("v_lshlrev_b32 v7, 8, v7")
    p(f"v_lshl_add_u32 v7, v{VI}, 4, v7")
    p(f"v_and_b32 v8, 1, v{VG}")
    p("v_lshl_add_u32 v7, v8, 3, v7")
    p("s_mul_i32 s48, s20, 3072")
    p("v_add_u32 v7, s48, v7")
    for q in range(6):
        p(f"v_cvt_pk_bf16_f32 v{QR+4*q}, v{QR+4*q}, v{QR+4*q+1}")
        p(f"v_cvt_pk_bf16_f32 v{QR+4*q+1}, v{QR+4*q+2}, v{QR+4*q+3}")
        p(f"ds_write_b64 v7, v[{QR+4*q}:{QR+4*q+1}] offset:{LQB + 512*q}")
    p("s_barrier")
    stamp("s2bar")
    for pp in range(12):
        p(f"ds_read_b128 v[{16+4*pp}:{19+4*pp}], v{VL16} offset:{LQB + 1024*pp}")
    for pp in range(12):
        p(f"v_mfma_f32_16x16x32_bf16 v[112:115], a[{aWK+4*pp}:{aWK+4*pp+3}], v[{16+4*pp}:{19+4*pp}], {'0' if pp == 0 else 'v[112:115]'}")
    for r in range(4): p(f"v_mul_f32 v{112+r}, 0x{f2u(SCALE*LOG2E):08x}, v{112+r}")
    tag_regs(p, range(112, 116), VTAG)
    p("s_lshl_b32 s48, s21, 10")
    p(f"s_add_u32 s48, s48, {QKF_OFF}")
    p(f"buffer_store_dwordx4 v[112:115], v{VL16}, s[16:19], s48 offen sc1")
    stamp("st2")
    p(f"{name}_sp_w:")
    p("s_waitcnt lgkmcnt(0)")
    p("s_nop 7")
    p("s_nop 7")
    p("s_barrier")
    p("v_mov_b32 v12, 0")
    p("v_mov_b32 v13, 0")
    p("v_mov_b32 v14, 0")
    p("v_mov_b32 v15, 0")
    tag_regs(p, range(12, 16), VTAG)
    p("s_mul_i32 s48, s2, 24576")
    p("s_mul_i32 s49, s20, 6144")
    p("s_add_u32 s48, s48, s49")
    p(f"s_add_u32 s48, s48, {PART_OFF}")
    p("s_add_u32 s49, s48, 4096")
    for q in range(6):
        so, off = ("s48", 1024 * q) if q < 4 else ("s49", 1024 * (q - 4))
        p(f"buffer_store_dwordx4 v[12:15], v{VL16}, s[16:19], {so} offen offset:{off} sc1")
    p("v_mov_b32 v16, 0xf149f2ca")
    p("v_mov_b32 v17, 0")
    p("v_mov_b32 v18, 0")
    p(f"v_mov_b32 v19, v{VTAG}")
    p("s_lshl_b32 s48, s2, 8")
    p("s_lshl_b32 s49, s20, 6")
    p("s_add_u32 s48, s48, s49")
    p(f"s_add_u32 s48, s48, {ML_OFF}")
    p("s_mov_b64 exec, 0xf")
    p(f"buffer_store_dwordx4 v[16:19], v{VL16}, s[16:19], s48 offen sc1")
    p("s_mov_b64 exec, -1")
    NE = 2
    LWO = 4 * 2 * TILE_LDS
    WRS = 80
    p("v_lshrrev_b32 v7, 2, v0")
    p("v_and_b32 v8, 3, v0")
    p("v_mul_u32_u24 v9, 768, v7")
    p("v_lshl_add_u32 v9, v8, 4, v9")
    p(f"v_mul_u32_u24 v10, {WRS}, v7")
    p("v_lshl_add_u32 v10, v8, 4, v10")
    p("s_lshl_b32 s48, s100, 6")
    p(f"s_mul_i32 s49, s20, {96*768}")
    p("s_add_u32 s48, s48, s49")
    for a in range(6):
        p(f"buffer_load_dwordx4 v[{20+4*a}:{23+4*a}], v9, s[40:43], s48 offen")
        if a < 5: p(f"s_add_u32 s48, s48, {16*768}")
    WVS = 64
    def wv_load(tile):
        b = WVS + 48 * (tile & 1)
        p(f"s_mul_i32 s50, s20, {6*12288}")
        p(f"s_add_u32 s50, s50, {tile*12288}")
        for a in range(12):
            if a % 4 == 0 and a: p("s_add_u32 s50, s50, 4096")
            p(f"buffer_load_dwordx4 v[{b+4*a}:{b+4*a+3}], v{VL16}, s[36:39], s50 offen offset:{1024*(a%4)}")
    wv_load(0); wv_load(1)
    p(f"s_mul_i32 s49, s20, {96*WRS}")
    p("v_add_u32 v10, s49, v10")
    p(f"v_add_u32 v10, {LWO}, v10")
    for a in range(6):
        p(f"ds_write_b128 v10, v[{20+4*a}:{23+4*a}] offset:{16*WRS*a}")
    p("s_barrier")
    p("v_lshrrev_b32 v10, 2, v0")
    p("v_and_b32 v10, 3, v10")
    p(f"v_lshl_add_u32 v10, v{VG}, 3, v10")
    p(f"v_mul_u32_u24 v10, {WRS}, v10")
    p("v_and_b32 v11, 3, v0")
    p("v_lshl_add_u32 v10, v11, 3, v10")
    p(f"v_add_u32 v10, {LWO}, v10")
    for e in range(NE):
        for ks in range(12):
            for h in range(2):
                p(f"ds_read_b64_tr_b16 a[{48*e+4*ks+2*h}:{48*e+4*ks+2*h+1}], v10 offset:{32*e + 32*WRS*ks + 4*WRS*h}")
    p(f"s_mul_i32 s63, s20, {TILE_LDS}")
    for a in range(12): p(f"v_add_u32 v{LA[a]}, s63, v{LA[a]}")
    p(f"v_add_u32 v{VAB}, s63, v{VAB}")
    WF = 160
    DW = 20
    aXV = 96
    for tile in range(6):
        b = WVS + 48 * (tile & 1)
        for a in range(12): p(f"ds_write_b128 v{LA[a]}, v[{b+4*a}:{b+4*a+3}]")
        if tile + 2 < 6: wv_load(tile + 2)
        for ks in range(12): p(f"ds_read_b128 a[{aXV+4*ks}:{aXV+4*ks+3}], v{VAB} offset:{64*ks}")
        for ks in range(12):
            for e in range(NE):
                d = DW + 8 * e + 4 * (tile & 1)
                p(f"v_mfma_f32_16x16x32_bf16 v[{d}:{d+3}], a[{aXV+4*ks}:{aXV+4*ks+3}], a[{48*e+4*ks}:{48*e+4*ks+3}], {'0' if ks == 0 else f'v[{d}:{d+3}]'}")
        if tile & 1:
            for e in range(NE):
                w = WF + 12 * e + 4 * (tile >> 1)
                for k in range(4):
                    p(f"v_cvt_pk_bf16_f32 v{w+k}, v{DW+8*e+2*k}, v{DW+8*e+2*k+1}")
    for e in range(NE):
        for pr in range(3):
            w = WF + 12 * e + 4 * pr
            p(f"v_mfma_f32_16x16x32_bf16 v[{44+4*e}:{47+4*e}], v[{w}:{w+3}], {ONES}, {'0' if pr == 0 else f'v[{44+4*e}:{47+4*e}]'}")
    stamp("wvo")
    p(f"v_mul_u32_u24 v7, 768, v{VI}")
    p(f"v_lshl_add_u32 v7, v{VG}, 3, v7")
    p("s_lshl_b32 s62, s100, 1")
    p("s_and_b32 s48, s20, 1")
    p("s_add_u32 s62, s62, s48")
    p("s_lshl_b32 s62, s62, 5")
    p("buffer_load_dwordx2 v[56:57], v7, s[32:35], s62 offen")
    PM = 64
    loads = []
    for i in range(16):
        loads.append("s_lshl_b32 s48, s20, 14")
        loads.append(f"s_add_u32 s48, s48, {ML_OFF + 1024*i}")
        loads.append(f"buffer_load_dwordx4 v[{PM+4*i}:{PM+4*i+3}], v{VL16}, s[16:19], s48 offen sc1")
    poll_block(p, name, loads, [PM + 4 * i + 3 for i in range(16)], VTAG, 12)
    stamp("ml_in")
    MV, T = 8, 9
    p(f"v_max3_f32 v{MV}, v{PM}, v{PM+4}, v{PM+8}")
    for i in range(3, 15, 2): p(f"v_max3_f32 v{MV}, v{MV}, v{PM+4*i}, v{PM+4*i+4}")
    p(f"v_max_f32 v{MV}, v{MV}, v{PM+60}")
    xg_reduce(p, "v_max_f32", MV, T)
    for i in range(16): p(f"v_sub_f32 v{PM+4*i}, v{PM+4*i}, v{MV}")
    for i in range(16): p(f"v_exp_f32 v{PM+4*i}, v{PM+4*i}")
    p(f"v_mul_f32 v13, v{PM}, v{PM+1}")
    p(f"v_mul_f32 v14, v{PM}, v{PM+2}")
    for i in range(1, 16):
        p(f"v_fma_f32 v13, v{PM+4*i}, v{PM+4*i+1}, v13")
        p(f"v_fma_f32 v14, v{PM+4*i}, v{PM+4*i+2}, v14")
    xg_reduce(p, "v_add_f32", 13, T)
    xg_reduce(p, "v_add_f32", 14, T)
    p(f"v_mov_b32 v12, v{MV}")
    p("v_mov_b32 v15, 0")
    LX = 0
    p("s_barrier")
    p(f"v_lshlrev_b32 v9, 6, v{VI}")
    p("s_lshl_b32 s48, s20, 4")
    p("v_add_u32 v8, s48, v9")
    p(f"ds_write_b128 v8, v[12:15] offset:{LX}")
    p("s_barrier")
    for v in range(4): p(f"ds_read_b128 v[{64+4*v}:{67+4*v}], v9 offset:{LX + 16*v}")
    p("v_max3_f32 v8, v64, v68, v72")
    p("v_max_f32 v8, v8, v76")
    for v in range(4): p(f"v_sub_f32 v{64+4*v}, v{64+4*v}, v8")
    for v in range(4): p(f"v_exp_f32 v{64+4*v}, v{64+4*v}")
    p("v_mul_f32 v13, v64, v65")
    p("v_mul_f32 v14, v64, v66")
    for v in range(1, 4):
        p(f"v_fma_f32 v13, v{64+4*v}, v{65+4*v}, v13")
        p(f"v_fma_f32 v14, v{64+4*v}, v{66+4*v}, v14")
    p("v_rcp_f32 v13, v13")
    p("v_mul_f32 v14, s60, v14")
    UR = 64
    loads = ["s_mul_i32 s48, s20, 6144", f"s_add_u32 s48, s48, {UF_OFF}", "s_add_u32 s49, s48, 4096"]
    for q in range(6):
        so, off = ("s48", 1024 * q) if q < 4 else ("s49", 1024 * (q - 4))
        loads.append(f"buffer_load_dwordx4 v[{UR+4*q}:{UR+4*q+3}], v{VL16}, s[16:19], {so} offen offset:{off} sc1")
    poll_block(p, name, loads, list(range(UR, UR + 24)), VTAG, 12)
    stamp("u_in")
    for pr in range(3):
        for k in range(4):
            p(f"v_cvt_pk_bf16_f32 v{96+4*pr+k}, v{UR+8*pr+2*k}, v{UR+8*pr+2*k+1}")
    for pr in range(3):
        for e in range(NE):
            w = WF + 12 * e + 4 * pr
            d = 20 + 4 * e
            p(f"v_mfma_f32_16x16x32_bf16 v[{d}:{d+3}], v[{w}:{w+3}], v[{96+4*pr}:{99+4*pr}], {'0' if pr == 0 else f'v[{d}:{d+3}]'}")
    for e in range(NE):
        for r in range(4): p(f"v_fma_f32 v{20+4*e+r}, -v14, v{44+4*e+r}, v{20+4*e+r}")
    LF = 4096
    p("s_lshl_b32 s48, s20, 10")
    p(f"v_add_u32 v8, s48, v{VL16}")
    for e in range(NE): p(f"ds_write_b128 v8, v[{20+4*e}:{23+4*e}] offset:{LF + 4096*e}")
    p("s_barrier")
    p(f"s_cmp_ge_u32 s20, {NE}")
    p(f"s_cbranch_scc1 {name}_done ;@nodrain")
    p("s_lshl_b32 s48, s20, 12")
    p(f"v_add_u32 v8, s48, v{VL16}")
    for v in range(4): p(f"ds_read_b128 v[{64+4*v}:{67+4*v}], v8 offset:{LF + 1024*v}")
    p("v_lshlrev_b32 v80, 16, v56")
    p("v_and_b32 v81, 0xffff0000, v56")
    p("v_lshlrev_b32 v82, 16, v57")
    p("v_and_b32 v83, 0xffff0000, v57")
    for r in range(4):
        p(f"v_add_f32 v{64+r}, v{64+r}, v{68+r}")
        p(f"v_add_f32 v{72+r}, v{72+r}, v{76+r}")
        p(f"v_add_f32 v{64+r}, v{64+r}, v{72+r}")
        p(f"v_fma_f32 v{64+r}, v{64+r}, v13, v{80+r}")
    p("v_cvt_pk_bf16_f32 v64, v64, v65")
    p("v_cvt_pk_bf16_f32 v65, v66, v67")
    p("buffer_store_dwordx2 v[64:65], v7, s[44:47], s62 offen")
    p("s_add_u32 s48, s100, s20")
    p("s_cmp_lg_u32 s48, 0")
    p(f"s_cbranch_scc1 {name}_spe ;@nodrain")
    p("v_mov_b32 v8, s94")
    p(f"v_mov_b32 v9, {N_OFF}")
    p("s_mov_b64 exec, 1")
    p("buffer_store_dword v8, v9, s[16:19], 0 offen")
    p(f"{name}_spe:")
    if stamp.on:
        p("s_cmp_lg_u32 s20, 0")
        p(f"s_cbranch_scc1 {name}_done ;@nodrain")
        p("s_waitcnt vmcnt(0)")
        stamp("end")
        stamp.dump("special")

def kernel_text(name, p):
    body = p.finalize(True)
    return [f".globl {name}", ".p2align 8", f".type {name},@function", f"{name}:"] + body

def kd_text(name, info):
    return [".p2align 6", f".amdhsa_kernel {name}", f"  .amdhsa_next_free_vgpr {info['vgpr']}", "  .amdhsa_next_free_sgpr 102",
            f"  .amdhsa_accum_offset {info['accum']}", "  .amdhsa_group_segment_fixed_size 0", "  .amdhsa_kernarg_size 80",
            "  .amdhsa_user_sgpr_count 2", "  .amdhsa_user_sgpr_kernarg_segment_ptr 1", "  .amdhsa_system_sgpr_workgroup_id_x 1",
            "  .amdhsa_float_denorm_mode_32 3", ".end_amdhsa_kernel"]

HEADER = open("standalone__detection_seg_dino__vision.s.ref").read().split("; Override launch")[0]

def build(path, opt):
    name = "standalone__detection_seg_dino__vision_kernel"
    p, info = gen_kernel(name, opt)
    text = kernel_text(name, p)
    out = (HEADER.rstrip() + "\n" + f"; @launch grid=({info['grid']},1,1) block=({info['block']},1,1) lds={info['lds']}\n"
           + '.amdgcn_target "amdgcn-amd-amdhsa--gfx950"\n.text\n' + "\n".join(text) + '\n.section .rodata,"a"\n' + "\n".join(kd_text(name, info)) + "\n")
    open(path, "w").write(out)

if __name__ == "__main__":
    opt = {}
    path = sys.argv[1] if len(sys.argv) > 1 else "k2.s"
    for a in sys.argv[2:]:
        k, v = a.split("=", 1)
        opt[k] = int(v) if v.lstrip('-').isdigit() else v
    build(path, opt)
    if LABELS:
        import json
        json.dump(LABELS, open(path[:-2] + ".labels.json", "w"))
```

```python
import sys, math, struct
from dsl import Prog

C = 384
F0_BYTES = 113246208
F1_BYTES = 28311552
W_BYTES = 294912
Q_BYTES = 12288
N_OFF = 0
QF_OFF = 4096
QKF_OFF = QF_OFF + 24576
UF_OFF = QKF_OFF + 24576
ML_OFF = UF_OFF + 24576
PART_OFF = 262144
WS_USED = PART_OFF + 256 * 24576
NSPEC = 12
PROF_OFF = 163840
SPIN_MAX = 1048576

def f2u(x): return struct.unpack('<I', struct.pack('<f', x))[0]
LOG2E = 1.4426950408889634
SCALE = C ** -0.5

def srd(p, base_s, ptr_lo, nbytes):
    p(f"s_mov_b32 s{base_s}, s{ptr_lo}")
    p(f"s_and_b32 s{base_s+1}, s{ptr_lo+1}, 0xffff")
    p(f"s_mov_b32 s{base_s+2}, {nbytes}")
    p(f"s_mov_b32 s{base_s+3}, 0x20000")

def mov64(p, s, val):
    p(f"s_mov_b32 s{s}, 0x{val & 0xffffffff:08x}")
    p(f"s_mov_b32 s{s+1}, 0x{(val >> 32) & 0xffffffff:08x}")

def xg_reduce(p, op, a, tmp):
    p(f"v_mov_b32 v{tmp}, v{a}")
    p(f"v_permlane32_swap_b32 v{a}, v{tmp}")
    p(f"{op} v{a}, v{a}, v{tmp}")
    p(f"v_mov_b32 v{tmp}, v{a}")
    p(f"v_permlane16_swap_b32 v{a}, v{tmp}")
    p(f"{op} v{a}, v{a}, v{tmp}")

S_MASK = 93
S_TAG = 95
S_SPIN = 92

def tag_regs(p, regs, vtag):
    for r in regs: p(f"v_bfi_b32 v{r}, s{S_MASK}, v{vtag}, v{r}")

def check_tags(p, regs, vtag, vacc):
    regs = list(regs)
    for r in regs: p(f"v_xor_b32 v{r}, v{r}, v{vtag}")
    p(f"v_or_b32 v{vacc}, v{regs[0]}, v{regs[1]}")
    rest = regs[2:]
    while len(rest) >= 2:
        p(f"v_or3_b32 v{vacc}, v{vacc}, v{rest[0]}, v{rest[1]}"); rest = rest[2:]
    if rest: p(f"v_or_b32 v{vacc}, v{vacc}, v{rest[0]}")
    p(f"v_and_b32 v{vacc}, s{S_MASK}, v{vacc}")
    p(f"v_cmp_ne_u32 vcc, 0, v{vacc}")

from dsl import Ins
def est_cycles(text):
    t = text.split(';')[0].strip()
    if not t or t.endswith(':'): return 0
    mn = t.split()[0]
    if mn.startswith('v_mfma'): return 16
    if mn.startswith('v_exp') or mn.startswith('v_rsq') or mn.startswith('v_rcp'): return 8
    if mn.startswith('v_'): return 4
    if mn.startswith('ds_write_b128'): return 16
    if mn.startswith('ds_write'): return 8
    if mn.startswith('ds_read'): return 8
    if mn == 's_barrier': return 80
    if mn.startswith('buffer_'): return 8
    return 4

def schedule_loads(items, loads, pace, lat, dmax, t0=0, verbose=False):
    out = []; now = t0
    land = []
    issue_t = []
    free = set(); k = 0
    extras = []
    def landed():
        return sum(1 for x in land if x <= now)
    locked = [False]
    def try_issue():
        nonlocal k, now
        if locked[0]: return
        while k < len(loads):
            L = loads[k]
            if L['key'] is not None and L['key'] not in free: break
            if len(land) - landed() >= dmax: break
            for x in L['pre']: out.append(x); now += 4
            out.append(L['ins']); now += 8
            if L['key'] is not None: free.discard(L['key'])
            prev = land[-1] if land else 0
            land.append(max(now + lat, prev + pace)); issue_t.append(now)
            k += 1
    for it in items:
        if isinstance(it, tuple):
            if it[0] == 'use':
                j = it[1]
                while k <= j:
                    L = loads[k]
                    assert L['key'] is None or L['key'] in free, ('slot not free', k, L)
                    for x in L['pre']: out.append(x); now += 4
                    out.append(L['ins']); now += 8
                    if L['key'] is not None: free.discard(L['key'])
                    prev = land[-1] if land else 0
                    land.append(max(now + lat, prev + pace)); issue_t.append(now); k += 1
                now = max(now, land[j])
                try_issue()
            elif it[0] == 'free': free.add(it[1]); try_issue()
            elif it[0] == 't': now += it[1]; try_issue()
            elif it[0] == 'until': now = max(now, it[1]); try_issue()
            elif it[0] == 'force':
                while k < it[1]:
                    L = loads[k]
                    assert L['key'] is None or L['key'] in free, ('slot not free', k, L)
                    for x in L['pre']: out.append(x); now += 4
                    out.append(L['ins']); now += 8
                    if L['key'] is not None: free.discard(L['key'])
                    prev = land[-1] if land else 0
                    land.append(max(now + lat, prev + pace)); issue_t.append(now); k += 1
                    if len(land) > 12: now = max(now, land[-13])
            elif it[0] == 'log':
                if verbose: print(f"   model {it[1]:8s} t={now/2100:.2f}us issued={k}")
            elif it[0] == 'lock': locked[0] = True
            elif it[0] == 'unlock': locked[0] = False
            continue
        out.append(it); now += est_cycles(it)
        if '@noload' not in it: try_issue()
    assert k == len(loads), (k, len(loads))
    return out

def timeout_diag(p, site, extra="0", vacc=None):
    p("s_load_dwordx2 s[86:87], s[0:1], 64")
    p("s_lshl_b32 s85, s2, 8")
    p("s_or_b32 s85, s85, s20")
    p("s_or_b32 s85, s85, 0x1000000")
    p("s_waitcnt lgkmcnt(0)")
    p("v_mov_b32 v254, s85") if False else None
DIAG = [False]
def diag_store(p, site, val):
    p("s_load_dwordx2 s[86:87], s[0:1], 64")
    p("s_lshl_b32 s85, s2, 8")
    p("s_or_b32 s85, s85, s20")
    p("s_or_b32 s85, s85, 0x1000000")
    p("s_waitcnt lgkmcnt(0)")
    p("s_mov_b64 s[88:89], exec") if False else None
    p("v_mov_b32 v250, s85")
    p(f"v_mov_b32 v251, {val}")
    p(f"v_mov_b32 v249, {8*site}")
    p("s_ff1_i32_b64 s84, vcc")
    p("s_nop 4")
    p("v_readlane_b32 s83, v251, s84")
    p("s_nop 4")
    p("v_mov_b32 v251, s84")
    p("v_lshlrev_b32 v251, 16, v251")
    p("v_or_b32 v251, s83, v251")
    p("global_store_dwordx2 v249, v[250:251], s[86:87]")
    p("s_waitcnt vmcnt(0)")
uid = [0]
def poll_block(p, name, loads, regs, vtag, vacc, preissued=False, lock=False):
    if lock: p.items.append(('lock',))
    uid[0] += 1
    L = f"{name}_pl{uid[0]}"
    if not preissued:
        for x in loads: p(x)
    check_tags(p, regs, vtag, vacc)
    p(f"s_cbranch_vccz {L}_ok")
    p(f"s_mov_b32 s{S_SPIN}, 0")
    p(f"{L}_retry:")
    p("s_sleep 1")
    for x in loads: p(x)
    p("s_waitcnt vmcnt(0)")
    check_tags(p, regs, vtag, vacc)
    p(f"s_cbranch_vccz {L}_fin")
    p(f"s_add_u32 s{S_SPIN}, s{S_SPIN}, 1")
    p(f"s_cmp_lt_u32 s{S_SPIN}, {SPIN_MAX}")
    p(f"s_cbranch_scc1 {L}_retry")
    if DIAG[0]: diag_store(p, uid[0], f"v{vacc}")
    p(f"{L}_fin:")
    p("s_nop 7")
    p("s_nop 7")
    p(f"{L}_ok: ;@restore {L}")
    if lock: p.items.append(('unlock',))

class Prof:
    def __init__(self, p, opt, base, lim=88):
        self.opt = opt; self.lim = lim; self.p = p; self.on = opt.get("prof", 0); self.lbl = []; self.base = base; self.skip = opt.get("skip", "").split(",")
    def __call__(self, lbl, fine=False):
        if self.on == 5:
            if lbl in ("init", "S", "F9"):
                for ins in ("s_memtime", "s_memrealtime"):
                    i = len(self.lbl); self.lbl.append(lbl + ins[2:])
                    self.p(f"{ins} s[{self.base+2*i}:{self.base+2*i+1}]")
            return
        if self.on == 4:
            if not fine: return
        elif fine: return
        if self.on and lbl not in self.skip and self.base + 2 * len(self.lbl) < self.lim:
            i = len(self.lbl); self.lbl.append(lbl)
            self.p(f"{'s_memtime' if self.on == 4 else 's_memrealtime'} s[{self.base+2*i}:{self.base+2*i+1}]")
    def dump(self, tagname, srdbase=16):
        if not self.on: return
        p = self.p
        wg = self.opt.get("dbg_" + tagname)
        if wg is not None:
            uid[0] += 1
            p("s_waitcnt vmcnt(0) lgkmcnt(0)")
            p(f"s_cmp_lg_u32 s2, {wg}")
            p(f"s_cbranch_scc1 dbgskip{uid[0]} ;@nodrain")
            p("s_load_dwordx2 s[4:5], s[0:1], 64")
            p("s_waitcnt lgkmcnt(0)")
            p("s_mov_b64 exec, 1")
            p("v_mov_b32 v1, 0")
            off = self.opt.get("dbgoff_" + tagname, 0)
            for i in range(len(self.lbl)):
                if self.on == 5: p(f"v_mov_b32 v2, s{self.base+2*i}")
                else:
                    p(f"s_sub_u32 s3, s{self.base+2*i}, s98")
                    p("v_mov_b32 v2, s3")
                p(f"global_store_dword v1, v2, s[4:5] offset:{4*(off+i)}")
            p(f"dbgskip{uid[0]}:")
        p("s_waitcnt vmcnt(0) lgkmcnt(0)")
        p("s_mov_b64 exec, 1")
        p("s_lshl_b32 s3, s2, 7")
        p(f"s_add_u32 s3, s3, {PROF_OFF}")
        p("v_mov_b32 v1, 0")
        p("v_mov_b32 v2, s98")
        p(f"buffer_store_dword v2, v1, s[{srdbase}:{srdbase+3}], s3 offen")
        for i in range(len(self.lbl)):
            p(f"v_mov_b32 v2, s{self.base+2*i}")
            p(f"buffer_store_dword v2, v1, s[{srdbase}:{srdbase+3}], s3 offen offset:{4*(i+1)}")
        print(tagname, "stamps:", self.lbl)
        LABELS[tagname] = list(self.lbl)
LABELS = {}

def gen_kernel(name, opt):
    p = Prog()
    prof = opt.get("prof", 0)
    p("s_cmp_ge_u32 s2, 256")
    p(f"s_cbranch_scc1 {name}_done ;@nodrain")
    if prof: p("s_memrealtime s[98:99]")
    p("s_load_dwordx2 s[22:23], s[0:1], 72")
    p("s_load_dwordx4 s[4:7], s[0:1], 8")
    p("v_readfirstlane_b32 s20, v0")
    p("v_and_b32 v0, 63, v0")
    p("s_lshr_b32 s20, s20, 6")
    p(f"s_mov_b32 s{S_MASK}, 0xff")
    p("s_lshr_b32 s100, s2, 3")
    p("s_lshl_b32 s100, s100, 2")
    p("s_and_b32 s21, s2, 7")
    p("s_add_u32 s100, s100, s21")
    p("s_sub_u32 s101, s100, 4")
    p(f"s_sub_u32 s3, s2, {NSPEC}")
    p("s_cmp_lt_u32 s2, 24")
    p("s_cselect_b32 s101, s101, s3")
    p("s_cselect_b32 s3, s21, 7")
    p("s_mov_b32 s21, s101")
    p("s_cmp_lt_u32 s3, 4")
    p(f"s_cbranch_scc1 {name}_special")
    gen_streamer(p, name, opt)
    p(f"{name}_special: ;@restore entry")
    gen_special(p, name, opt)
    p(f"{name}_done:")
    p("s_endpgm")
    return p, dict(vgpr=252 + 196, accum=252, lds=160256, grid=256, block=256)

def gen_streamer(p, name, opt):
    NT = " nt" if opt.get("nt", True) else ""
    prof = opt.get("prof", 0)
    NS = 10
    SP = opt.get("sp", 5)
    ST = lambda k: 76 + 60 * k
    F1R = lambda k, t: ST(k) + 4 * t
    F0R = lambda k, t, d: ST(k) + 12 + 16 * t + 4 * d
    VF0, VF1, VL16 = 1, 2, 3
    WA = [[4, 5, 6, 7], [216, 217, 218, 219]]
    RA = [[11, 12, 13, 14], [220, 221, 222, 223]]
    VTAG = 8
    QBA = 9
    TR = [15, 16, 17, 18, 19, 20]
    MXW, MXR, WXW, WXR = 21, 22, 23, 24
    M, L, Z, SN = 25, 26, 27, 28
    ACC = 32
    D1, D2, D3 = 56, 60, 64
    Uu, SS, RS, TM, TM2, AL, WF = 68, 69, 70, 71, 72, 73, 74
    U = 196; TT = 204
    QK = 212 + 12
    QKR = 212
    aQB, aXA, aXT, aONE = 0, 48, 96, 192
    XBUF = 49152; XT = 12288
    MX_OFF = 147456; LZ_OFF = MX_OFF + 256; QBL_OFF = LZ_OFF + 256; WX_OFF = QBL_OFF
    D1B = [56, 212, 216]; D3B = [64, 240, 244]; RSB = [70, 248, 249]; WFB = [74, 220, 222]
    XAB = [48, 96, 144]
    XTB = [96, 144]
    WA[1] = [228, 229, 230, 231]; RA[1] = [232, 233, 234, 235]
    QKR = 204 - 0
    QKR = 212
    WA[1] = [236, 237, 238, 239]; RA[1] = [29, 30, 31, 10]
    QKR = 212

    NSTR = 256 - NSPEC
    base_cnt = 9216 // NSTR; nbig = 9216 - base_cnt * NSTR
    assert base_cnt == 37
    glob = opt.get("glob", 0)
    if not glob:
        p(f"s_mul_i32 s96, s21, {base_cnt}")
        p(f"s_min_u32 s97, s21, {nbig}")
        p("s_add_u32 s96, s96, s97")
        p(f"s_cmp_lt_u32 s21, {nbig}")
        p("s_cselect_b32 s97, 2, 1")
        p("s_add_u32 s90, s96, s20")
        p("s_add_u32 s91, s90, s97")
        p("s_sub_u32 s91, s91, 4")
    else:
        p(f"s_min_u32 s97, s21, {nbig}")
        p("s_add_u32 s91, s21, s97")
        p("s_add_u32 s91, s91, s20")
        p(f"s_cmp_lt_u32 s21, {nbig}")
        p("s_cselect_b32 s97, 2, 1")
        p("s_lshl_b32 s90, s21, 2")
        p("s_add_u32 s90, s90, s20")
    FP, J = 56, 57
    p(f"v_lshrrev_b32 v{FP}, 4, v0")
    p(f"v_and_b32 v{J}, 15, v0")
    p(f"v_mul_u32_u24 v{VF0}, 1536, v{FP}")
    p(f"v_lshl_add_u32 v{VF0}, v{J}, 4, v{VF0}")
    p(f"v_mul_u32_u24 v{VF1}, 768, v{FP}")
    p(f"v_lshl_add_u32 v{VF1}, v{J}, 4, v{VF1}")
    p(f"v_lshlrev_b32 v{VL16}, 4, v0")
    p("s_waitcnt lgkmcnt(0)")
    srd(p, 8, 4, F0_BYTES)
    srd(p, 12, 6, F1_BYTES)
    srd(p, 16, 22, WS_USED)
    p(f"s_load_dword s94, s[22:23], {N_OFF}")

    def tile_offsets(s):
        if not glob:
            base = "s90" if s <= SP else "s91"
            p(f"s_add_u32 s27, {base}, {4*s}")
        else:
            full = 4 * NSTR; part = NSTR + nbig
            if s < SP: p(f"s_add_u32 s27, s90, {full*s}")
            elif s == SP: p(f"s_add_u32 s27, s91, {full*s}")
            else: p(f"s_add_u32 s27, s90, {full*(s-1) + part}")
        p("s_mul_i32 s24, s27, 3072")
        p(f"s_mul_hi_u32 s28, s27, {(2**32 + 47)//48}")
        p("s_mul_i32 s29, s28, 48")
        p("s_sub_u32 s29, s27, s29")
        p("s_mul_i32 s25, s28, 589824")
        p("s_mul_i32 s29, s29, 6144")
        p("s_add_u32 s25, s25, s29")
        p("s_add_u32 s26, s25, 294912")
        if s == SP:
            p("s_cmp_lt_u32 s20, s97")
            p(f"s_cselect_b32 s10, {F0_BYTES}, 0")
            p(f"s_cselect_b32 s14, {F1_BYTES}, 0")
        if s == SP + 1:
            p(f"s_mov_b32 s10, {F0_BYTES}")
            p(f"s_mov_b32 s14, {F1_BYTES}")
    loads = []
    lidx = {}
    class Cap:
        def __init__(self): self.l = []
        def __call__(self, x): self.l.append(x)
    def build_loads():
        nonlocal p
        for s in range(NS):
            keep = p; p = Cap(); tile_offsets(s); pre = p.l; p = keep
            for t in range(3):
                r = F1R(s & 1, t)
                lidx[(s, 'f1', t)] = len(loads)
                loads.append(dict(pre=pre, key=(s & 1, 'f1', t) if s >= 2 else None,
                                  ins=f"buffer_load_dwordx4 v[{r}:{r+3}], v{VF1}, s[12:15], s24 offen offset:{256*t}{NT}"))
                pre = []
                for d in range(4):
                    r = F0R(s & 1, t, d)
                    so = "s25" if d < 2 else "s26"
                    lidx[(s, t, d)] = len(loads)
                    loads.append(dict(pre=[], key=(s & 1, t, d) if s >= 2 else None,
                                      ins=f"buffer_load_dwordx4 v[{r}:{r+3}], v{VF0}, s[8:11], {so} offen offset:{256*t + 768*(d&1)}{NT}"))
    build_loads()
    def mark(*a): p.items.append(a)
    stream_start = len(p.items)
    mark('t', 0)

    p("s_waitcnt lgkmcnt(0)")
    p("s_add_u32 s94, s94, 1")
    p(f"s_and_b32 s{S_TAG}, s94, 0xff")
    p(f"v_mov_b32 v{VTAG}, s{S_TAG}")

    p(f"s_mul_i32 s47, s20, {XT}")
    p(f"v_and_b32 v58, 1, v{FP}")
    p(f"v_lshlrev_b32 v58, 3, v58")
    p(f"v_lshrrev_b32 v59, 1, v{FP}")
    p(f"v_add_u32 v58, v58, v59")
    p(f"v_xor_b32 v58, v58, v{J}")
    p(f"v_lshlrev_b32 v58, 4, v58")
    p(f"v_mul_u32_u24 v59, 3072, v{FP}")
    p(f"v_add_u32 v58, v58, v59")
    p(f"v_add_u32 v{WA[0][0]}, s47, v58")
    for d in range(1, 4): p(f"v_xor_b32 v{WA[0][d]}, {32*d}, v{WA[0][0]}")
    for d in range(4): p(f"v_add_u32 v{WA[1][d]}, {2*XBUF}, v{WA[0][d]}")
    I, G, SI = 57, 56, 58
    p(f"v_and_b32 v{SI}, 7, v{I}")
    p(f"v_lshlrev_b32 v{SI}, 1, v{SI}")
    p(f"v_lshrrev_b32 v59, 3, v{I}")
    p(f"v_or_b32 v{SI}, v{SI}, v59")
    p(f"v_lshlrev_b32 v59, 1, v{G}")
    p(f"v_xor_b32 v59, v59, v{SI}")
    p(f"v_mul_u32_u24 v60, 768, v{I}")
    p(f"v_add_u32 v60, s47, v60")
    for b3 in range(2):
        for b0 in range(2):
            r = RA[0][2 * b3 + b0]
            p(f"v_xor_b32 v{r}, {8*b3+b0}, v59")
            p(f"v_lshl_add_u32 v{r}, v{r}, 4, v60")
            p(f"v_add_u32 v{RA[1][2*b3+b0]}, {2*XBUF}, v{r}")
    p(f"v_lshlrev_b32 v{MXR}, 4, v{I}")
    p(f"v_lshrrev_b32 v59, 1, v{G}")
    p(f"v_lshlrev_b32 v59, 10, v59")
    p(f"v_and_b32 v60, 1, v{G}")
    p(f"v_lshl_add_u32 v59, v60, 3, v59")
    p(f"v_add_u32 v59, v59, v{MXR}")
    p(f"v_add_u32 v{QBA}, {QBL_OFF}, v59")
    p(f"v_add_u32 v{MXR}, {MX_OFF}, v{MXR}")
    p("s_lshl_b32 s48, s20, 2")
    p(f"v_add_u32 v{MXW}, s48, v{MXR}")
    p(f"v_add_u32 v{WXR}, {WX_OFF}, v{VL16}")
    p("s_lshr_b32 s48, s20, 1")
    p("s_lshl_b32 s48, s48, 10")
    p("s_and_b32 s49, s20, 1")
    p("s_lshl_b32 s49, s49, 3")
    p("s_add_u32 s48, s48, s49")
    p(f"v_add_u32 v{WXW}, s48, v{WXR}")
    I = 56
    p(f"v_lshrrev_b32 v{I}, 2, v0")
    p(f"v_and_b32 v{SI}, 7, v{I}")
    p(f"v_lshlrev_b32 v{SI}, 1, v{SI}")
    p(f"v_lshrrev_b32 v59, 3, v{I}")
    p(f"v_or_b32 v{SI}, v{SI}, v59")
    p(f"v_and_b32 v59, 3, v0")
    p(f"v_lshrrev_b32 v60, 1, v59")
    p(f"v_xor_b32 v{SI}, v{SI}, v60")
    p(f"v_and_b32 v59, 1, v59")
    p(f"v_lshlrev_b32 v59, 3, v59")
    p(f"v_mul_u32_u24 v60, 768, v{I}")
    p(f"v_add_u32 v60, v60, v59")
    p("s_mul_i32 s48, s20, 6")
    for q in range(6):
        p(f"s_add_u32 s49, s48, {q}")
        p("s_and_b32 s50, s49, 7")
        p("s_lshl_b32 s50, s50, 1")
        p("s_lshr_b32 s49, s49, 3")
        p("s_lshl_b32 s49, s49, 8")
        p(f"v_xor_b32 v{TR[q]}, s50, v{SI}")
        p(f"v_lshl_add_u32 v{TR[q]}, v{TR[q]}, 4, v60")
        p(f"v_add_u32 v{TR[q]}, s49, v{TR[q]}")
    for r in range(4):
        mov64(p, 30 + 2 * r, sum(1 << (20 * g + r) for g in range(4)))
    for r in range(1, 4):
        mov64(p, 38 + 2 * (r - 1), 0x1111111111111111 << r)
    p("s_mov_b32 s44, 0xffff0000")
    p(f"s_mov_b32 s45, 0x{f2u(1.0 / C):08x}")
    p(f"s_mov_b32 s46, 0x{f2u(1e-5):08x}")
    p("s_mov_b32 s51, 0x00003f80")
    p("s_mov_b32 s3, 0x3f800000")
    p("s_cmp_lt_u32 s20, s97 ;@noload")
    p("s_cselect_b32 s89, 0, 0xf149f2ca")
    for r in range(24): p(f"v_mov_b32 v{ACC+r}, 0")
    p(f"v_mov_b32 v{M}, 0xf149f2ca")
    p(f"v_mov_b32 v{L}, 0")
    p(f"v_mov_b32 v{Z}, 0")
    p("v_mov_b32 v56, 0x3f803f80")
    for r in range(4): p(f"v_accvgpr_write_b32 a{aONE+r}, v56")

    tr_slot = [0]
    def wa(slot, d, t): return (WA[0][d], slot * XBUF + 768 * d + 256 * t) if slot < 2 else (WA[1][d], 768 * d + 256 * t)
    def ra(slot, ks):
        i = 2 * ((ks >> 1) & 1) + (ks & 1)
        return (RA[0][i], slot * XBUF + 256 * (ks >> 2)) if slot < 2 else (RA[1][i], 256 * (ks >> 2))

    def m_reads(s, t, xa=aXA):
        for ks in range(4 * t, 4 * t + 4):
            r, off = ra(s % 3, ks)
            p(f"ds_read_b128 a[{xa+4*ks}:{xa+4*ks+3}], v{r} offset:{off}")
    def m_mfma(s, t, b=0, what="gol", xa=aXA):
        d1, d3 = D1B[b], D3B[b]
        G_, O_, L_ = [], [], []
        for ks in range(4 * t, 4 * t + 4):
            x = f"a[{xa+4*ks}:{xa+4*ks+3}]"
            c1 = "0" if ks == 0 else f"v[{d1}:{d1+3}]"
            c2 = "0" if ks == 0 else f"v[{D2}:{D2+3}]"
            c3 = "0" if ks == 0 else f"v[{d3}:{d3+3}]"
            G_.append(f"v_mfma_f32_16x16x32_bf16 v[{D2}:{D2+3}], {x}, {x}, {c2}")
            O_.append(f"v_mfma_f32_16x16x32_bf16 v[{d3}:{d3+3}], {x}, a[{aONE}:{aONE+3}], {c3}")
            L_.append(f"v_mfma_f32_16x16x32_bf16 v[{d1}:{d1+3}], {x}, a[{aQB+4*ks}:{aQB+4*ks+3}], {c1}")
        if what == "l":
            for x in L_: p(x)
        elif what == "go":
            for g_, o_ in zip(G_, O_): p(g_); p(o_)
        elif t < 2:
            for g_, o_, l_ in zip(G_, O_, L_): p(g_); p(o_); p(l_)
        else:
            for g_, o_ in zip(G_, O_): p(g_); p(o_)
            for l_ in L_: p(l_)
    def stats(b):
        d3, rs = D3B[b], RSB[b]
        p(f"v_cndmask_b32 v{Uu}, 0, v{D2}, s[30:31]")
        for r in range(1, 4):
            p(f"v_cndmask_b32 v{Uu}, v{Uu}, v{D2+r}, s[{30+2*r}:{31+2*r}]")
        p(f"v_cndmask_b32 v{SS}, v{d3}, v{d3+1}, s[38:39]")
        p(f"v_cndmask_b32 v{SS}, v{SS}, v{d3+2}, s[40:41]")
        p(f"v_add_f32_dpp v{Uu}, v{Uu}, v{Uu} row_ror:4 row_mask:0xf bank_mask:0xf")
        p(f"v_cndmask_b32 v{SS}, v{SS}, v{d3+3}, s[42:43]")
        p(f"v_mov_b32 v{TM}, s46")
        p(f"v_add_f32_dpp v{Uu}, v{Uu}, v{Uu} row_ror:8 row_mask:0xf bank_mask:0xf")
        p(f"v_mul_f32 v{SS}, s45, v{SS}")
        p(f"v_fma_f32 v{Uu}, v{Uu}, s45, v{TM}")
        p(f"v_fma_f32 v{Uu}, -v{SS}, v{SS}, v{Uu}")
        p(f"v_max_f32 v{Uu}, s46, v{Uu}")
        p(f"v_rsq_f32 v{rs}, v{Uu}")
    def stage_G(s, b):
        for t in range(3): m_reads(s, t)
        mark('t', 120)
        for t in range(3): m_mfma(s, t, b, "go")
        stats(b)

    def stage_A(s, ld, fuse, thirds=(0, 1, 2)):
        slot = s % 3; k = s & 1
        for t in thirds:
            if (s, t) == qpos: qk_issue()
            f1 = F1R(k, t)
            mark('use', lidx[(s, 'f1', t)])
            for j in range(4):
                p(f"v_lshlrev_b32 v{U+2*j}, 16, v{f1+j}")
                p(f"v_and_b32 v{U+2*j+1}, s44, v{f1+j}")
            mark('free', (k, 'f1', t))
            for d in range(4):
                f0 = F0R(k, t, d)
                mark('use', lidx[(s, t, d)])
                for j in range(4):
                    p(f"v_dot2_f32_bf16 v{TT+2*j}, v{f0+j}, s51, v{U+2*j}")
                    p(f"v_dot2_f32_bf16 v{TT+2*j+1}, v{f0+j}, s3, v{U+2*j+1}")
                for j in range(4):
                    p(f"v_cvt_pk_bf16_f32 v{f0+j}, v{TT+2*j}, v{TT+2*j+1}")
                r, off = wa(slot, d, t)
                p(f"ds_write_b128 v{r}, v[{f0}:{f0+3}] offset:{off}")
                mark('free', (k, t, d))
            if fuse:
                m_reads(s, t)
                mark('t', 120)
                m_mfma(s, t)
        if fuse: stats(0)

    def stage_M(tiles, pre):
        if pre:
            for b, s in enumerate(tiles):
                for t in range(3): m_reads(s, t, XAB[b])
            mark('t', 100)
            for b, s in enumerate(tiles):
                for t in range(3): m_mfma(s, t, b, "l", XAB[b])
        else:
            for b, s in enumerate(tiles):
                if b == 0:
                    for t in range(3): m_reads(s, t, XAB[0])
                    mark('t', 120)
                if b + 1 < len(tiles):
                    for t in range(3): m_reads(tiles[b + 1], t, XAB[b + 1])
                for t in range(3): m_mfma(s, t, b, "gol", XAB[b])
                stats(b)

    qpos = None
    qk_loads = []
    qk_loads.append("s_mul_i32 s48, s20, 6144")
    qk_loads.append(f"s_add_u32 s48, s48, {QKF_OFF}")
    qk_loads.append("s_add_u32 s49, s48, 4096")
    for q in range(6):
        so, off = ("s48", 1024 * q) if q < 4 else ("s49", 1024 * (q - 4))
        qk_loads.append(f"buffer_load_dwordx4 v[{QKR+4*q}:{QKR+4*q+3}], v{VL16}, s[16:19], {so} offen offset:{off} sc1")
    def qk_issue():
        for x in qk_loads: p(x)
    def qb_setup():
        mark('t', 300)
        poll_block(p, name, qk_loads, list(range(QKR, QKR + 24)), VTAG, TM, preissued=True, lock=True)
        for q in range(6):
            p(f"v_cvt_pk_bf16_f32 v{QKR+4*q}, v{QKR+4*q}, v{QKR+4*q+1}")
            p(f"v_cvt_pk_bf16_f32 v{QKR+4*q+1}, v{QKR+4*q+2}, v{QKR+4*q+3}")
            p("s_mul_i32 s48, s20, 6")
            p(f"s_add_u32 s48, s48, {q}")
            p("s_lshr_b32 s49, s48, 2")
            p("s_lshl_b32 s49, s49, 11")
            p("s_and_b32 s48, s48, 3")
            p("s_lshl_b32 s48, s48, 8")
            p("s_add_u32 s48, s48, s49")
            p(f"v_add_u32 v{TM}, s48, v{QBA}")
            p(f"ds_write_b64 v{TM}, v[{QKR+4*q}:{QKR+4*q+1}]")
        p("s_barrier")
        p(f"v_add_u32 v{TM}, {QBL_OFF}, v{VL16}")
        for ks in range(12):
            p(f"ds_read_b128 a[{aQB+4*ks}:{aQB+4*ks+3}], v{TM} offset:{1024*ks}")
        for ks in range(12):
            c = "0" if ks == 0 else f"v[{D1}:{D1+3}]"
            p(f"v_mfma_f32_16x16x32_bf16 v[{D1}:{D1+3}], a[{aONE}:{aONE+3}], a[{aQB+4*ks}:{aQB+4*ks+3}], {c}")
        p(f"v_mul_f32 v{SN}, s45, v{D1}")

    first_bc = [True]
    def set_tr(slot):
        if slot != tr_slot[0]:
            dlt = (slot - tr_slot[0]) * XBUF
            for q in range(6):
                if dlt > 0: p(f"v_add_u32 v{TR[q]}, {dlt}, v{TR[q]}")
                else: p(f"v_subrev_u32 v{TR[q]}, {-dlt}, v{TR[q]}")
            tr_slot[0] = slot
    def tr_list(xt):
        trs = []
        for kst in range(2):
            for q in range(6):
                for h in range(2):
                    j = 2 * kst + h
                    a = xt + 8 * q + 4 * kst + 2 * h
                    trs.append(f"ds_read_b64_tr_b16 a[{a}:{a+1}], v{TR[q]} offset:{j*XT}")
        return trs
    def stage_B(tiles):
        nb = len(tiles)
        set_tr(tiles[0] % 3)
        for b, s in enumerate(tiles):
            d1, d3, rs = D1B[b], D3B[b], RSB[b]
            for r in range(4):
                p(f"v_fma_f32 v{d1+r}, -v{d3+r}, v{SN}, v{d1+r}")
            for r in range(4):
                p(f"v_mul_f32_dpp v{d1+r}, v{rs}, v{d1+r} quad_perm:[{r},{r},{r},{r}] row_mask:0xf bank_mask:0xf")
            if s == SP:
                for r in range(4): p(f"v_add_f32 v{d1+r}, s89, v{d1+r}")
        vals = [D1B[b] + r for b in range(nb) for r in range(4)]
        p(f"v_max3_f32 v{TM}, v{vals[0]}, v{vals[1]}, v{vals[2]}")
        rest = vals[3:]
        while len(rest) >= 2:
            p(f"v_max3_f32 v{TM}, v{TM}, v{rest[0]}, v{rest[1]}"); rest = rest[2:]
        if rest: p(f"v_max_f32 v{TM}, v{TM}, v{rest[0]}")
        xg_reduce(p, "v_max_f32", TM, TM2)
        p(f"ds_write_b32 v{MXW}, v{TM}")
        mark('t', 100)
        p("s_barrier")
        p(f"ds_read_b128 v[{D2}:{D2+3}], v{MXR}")
        mark('t', 80)
        trs = tr_list(XTB[0])
        for x in trs[:12]: p(x)
        p(f"v_max3_f32 v{TM}, v{D2}, v{D2+1}, v{D2+2}")
        p(f"v_max3_f32 v{TM}, v{TM}, v{D2+3}, v{M}")
        p(f"v_sub_f32 v{AL}, v{M}, v{TM}")
        p(f"v_mov_b32 v{M}, v{TM}")
        p(f"v_exp_f32 v{AL}, v{AL}")
        for v in vals: p(f"v_sub_f32 v{v}, v{v}, v{M}")
        for v in vals: p(f"v_exp_f32 v{v}, v{v}")
        for x in trs[12:]: p(x)
        p(f"v_add_f32 v{TM}, v{vals[0]}, v{vals[1]}")
        p(f"v_add_f32 v{TM2}, v{vals[2]}, v{vals[3]}")
        for i in range(4, len(vals), 2):
            p(f"v_add_f32 v{TM}, v{TM}, v{vals[i]}")
            p(f"v_add_f32 v{TM2}, v{TM2}, v{vals[i+1]}")
        p(f"v_add_f32 v{TM}, v{TM}, v{TM2}")
        p(f"v_fma_f32 v{L}, v{L}, v{AL}, v{TM}")
        for b in range(nb):
            d1, rs, wf = D1B[b], RSB[b], WFB[b]
            for r in range(4):
                p(f"v_mul_f32_dpp v{d1+r}, v{rs}, v{d1+r} quad_perm:[{r},{r},{r},{r}] row_mask:0xf bank_mask:0xf")
            p(f"v_cvt_pk_bf16_f32 v{wf}, v{d1}, v{d1+1}")
            p(f"v_cvt_pk_bf16_f32 v{wf+1}, v{d1+2}, v{d1+3}")
            p(f"ds_write_b64 v{WXW}, v[{wf}:{wf+1}] offset:{2048*b}")
        if nb > 1:
            set_tr(tiles[1] % 3)
            for x in tr_list(XTB[1]): p(x)
        p(f"v_mul_f32 v{Z}, v{Z}, v{AL}")
        for b in range(nb):
            for r in range(4): p(f"v_fma_f32 v{Z}, v{D1B[b]+r}, v{D3B[b]+r}, v{Z}")
        if not first_bc[0]:
            for r in range(24): p(f"v_mul_f32 v{ACC+r}, v{ACC+r}, v{AL}")
        first_bc[0] = False
        p("s_barrier")

    def stage_C(tiles):
        nb = len(tiles)
        WR = [(D1, D2), (212, 216), (D1, D2)]
        for b in range(min(nb, 2)):
            p(f"ds_read_b128 v[{WR[b][0]}:{WR[b][0]+3}], v{WXR} offset:{2048*b}")
            p(f"ds_read_b128 v[{WR[b][1]}:{WR[b][1]+3}], v{WXR} offset:{2048*b + 1024}")
        mark('t', 120)
        for b in range(nb):
            xt = XTB[b & 1]
            for kst in range(2):
                bb = WR[b][kst]
                for q in range(6):
                    a = xt + 8 * q + 4 * kst
                    p(f"v_mfma_f32_16x16x32_bf16 v[{ACC+4*q}:{ACC+4*q+3}], a[{a}:{a+3}], v[{bb}:{bb+3}], v[{ACC+4*q}:{ACC+4*q+3}]")
            if b == 0 and nb == 3:
                set_tr(tiles[2] % 3)
                for x in tr_list(XTB[0]): p(x)
                p(f"ds_read_b128 v[{WR[2][0]}:{WR[2][0]+3}], v{WXR} offset:{2048*2}")
                p(f"ds_read_b128 v[{WR[2][1]}:{WR[2][1]+3}], v{WXR} offset:{2048*2 + 1024}")
        if nb == 3 or True:
            pass

    stamp = Prof(p, opt, 52)
    sched = opt.get("sched", "A0 G00 A1 G11 A2 G22 I40 Q I47 S X012 A3 A4 M34 F5 F6 F7 F8 F9")
    stamp("init")
    for tok in sched.replace("_", " ").split():
        if tok == "S":
            mark('log', 'S0'); qb_setup(); stamp("S")
        elif tok == "Q": qk_issue()
        elif tok[0] == "I":
            mark('force', 15 * int(tok[1]) + int(tok[2:]))
        elif tok[0] == "W":
            mark('until', int(tok[1:]) * 210)
        elif tok[0] in "AF":
            s = int(tok[1])
            if len(tok) == 3:
                stage_A(s, None, False, (int(tok[2]),))
                if tok[2] == "2" and s < 3: stamp(tok[:2])
            else:
                stage_A(s, None, tok[0] == "F")
                if tok[0] == "F":
                    stage_B([s]); stage_C([s])
                if tok[0] == "F" or s < 3: stamp(tok)
        elif tok[0] == "G":
            stage_G(int(tok[1]), int(tok[2]))
        elif tok[0] in "MX":
            tiles = [int(c) for c in tok[1:]]
            stage_M(tiles, tok[0] == "X"); stage_B(tiles); stage_C(tiles); stamp(tok)
        mark('log', tok)
    body = p.items[stream_start:]
    sched_out = schedule_loads(body, loads, pace=opt.get("pace", 300), lat=opt.get("lat", 1500), dmax=opt.get("dmax", 7), verbose=True)
    p.items[stream_start:] = sched_out

    if opt.get("streamonly"):
        p("s_endpgm")
        return
    p("s_mul_i32 s24, s2, 24576")
    p("s_mul_i32 s25, s20, 6144")
    p("s_add_u32 s24, s24, s25")
    p(f"s_add_u32 s24, s24, {PART_OFF}")
    p("s_add_u32 s25, s24, 4096")
    xg_reduce(p, "v_add_f32", L, TM2)
    xg_reduce(p, "v_add_f32", Z, TM2)
    p(f"ds_write_b32 v{MXW}, v{L}")
    p(f"ds_write_b32 v{MXW}, v{Z} offset:{LZ_OFF - MX_OFF}")
    for q in range(6):
        tag_regs(p, range(ACC + 4 * q, ACC + 4 * q + 4), VTAG)
        so, off = ("s24", 1024 * q) if q < 4 else ("s25", 1024 * (q - 4))
        p(f"buffer_store_dwordx4 v[{ACC+4*q}:{ACC+4*q+3}], v{VL16}, s[16:19], {so} offen offset:{off} sc1")
    p("s_barrier")
    p("s_cmp_lg_u32 s20, 0")
    p(f"s_cbranch_scc1 {name}_red")
    p(f"ds_read_b128 v[56:59], v{MXR}")
    p(f"ds_read_b128 v[60:63], v{MXR} offset:{LZ_OFF - MX_OFF}")
    p("v_add_f32 v56, v56, v57")
    p("v_add_f32 v58, v58, v59")
    p("v_add_f32 v65, v56, v58")
    p("v_add_f32 v60, v60, v61")
    p("v_add_f32 v62, v62, v63")
    p("v_add_f32 v66, v60, v62")
    p(f"v_mov_b32 v64, v{M}")
    p(f"v_mov_b32 v67, v{VTAG}")
    p("s_lshl_b32 s24, s2, 8")
    p(f"s_add_u32 s24, s24, {ML_OFF}")
    p("s_mov_b64 exec, 0xffff")
    p(f"buffer_store_dwordx4 v[64:67], v{VL16}, s[16:19], s24 offen sc1")
    p("s_mov_b64 exec, -1")
    p(f"{name}_red: ;@restore red")
    stamp("pub")
    p("s_cmp_ge_u32 s21, 192")
    p(f"s_cbranch_scc1 {name}_sdone ;@nodrain")
    p("s_lshr_b32 s24, s21, 3")
    p("s_lshr_b32 s25, s21, 1")
    p("s_and_b32 s25, s25, 3")
    p("s_and_b32 s26, s21, 1")
    p("v_and_b32 v56, 7, v0")
    p("v_lshrrev_b32 v57, 3, v0")
    p("v_mul_u32_u24 v58, 24576, v57")
    p("v_lshl_add_u32 v58, v56, 4, v58")
    p("v_lshlrev_b32 v59, 8, v57")
    p("v_lshl_add_u32 v59, v56, 4, v59")
    p(f"s_mul_i32 s27, s20, {64*24576}")
    p("s_lshl_b32 s28, s24, 10")
    p("s_add_u32 s27, s27, s28")
    p("s_lshl_b32 s28, s25, 8")
    p("s_add_u32 s27, s27, s28")
    p("s_lshl_b32 s28, s26, 7")
    p("s_add_u32 s27, s27, s28")
    p(f"s_add_u32 s27, s27, {PART_OFF}")
    p("s_lshl_b32 s29, s20, 14")
    p("s_add_u32 s29, s29, s28")
    p(f"s_add_u32 s29, s29, {ML_OFF}")
    PM = 76; PP = 108
    RL = f"{name}_rr"
    p("s_mov_b32 s50, 0xff")
    p("s_mov_b32 s51, 0")
    p(f"s_mov_b32 s{S_SPIN}, 0")
    p(f"{RL}_loop:")
    for i in range(8):
        p(f"s_bitcmp0_b32 s50, {i}")
        p(f"s_cbranch_scc1 {RL}_a{i} ;@nodrain")
        p(f"s_add_u32 s48, s29, {2048*i}")
        p(f"buffer_load_dwordx4 v[{PM+4*i}:{PM+4*i+3}], v59, s[16:19], s48 offen sc1")
        p(f"{RL}_a{i}:")
        p(f"s_bitcmp0_b32 s51, {i}")
        p(f"s_cbranch_scc1 {RL}_b{i} ;@nodrain")
        p(f"s_add_u32 s49, s27, {8*24576*i}")
        p(f"buffer_load_dwordx4 v[{PP+4*i}:{PP+4*i+3}], v58, s[16:19], s49 offen sc1")
        p(f"{RL}_b{i}:")
    p("s_waitcnt vmcnt(0)")
    for i in range(8):
        p(f"s_bitcmp0_b32 s51, {i}")
        p(f"s_cbranch_scc1 {RL}_c{i} ;@nodrain")
        check_tags(p, list(range(PP + 4 * i, PP + 4 * i + 4)), VTAG, 60)
        p(f"s_cbranch_vccnz {RL}_c{i} ;@nodrain")
        p(f"s_bitset0_b32 s51, {i}")
        p(f"{RL}_c{i}:")
        p(f"s_bitcmp0_b32 s50, {i}")
        p(f"s_cbranch_scc1 {RL}_d{i} ;@nodrain")
        p(f"v_xor_b32 v60, v{PM+4*i+3}, v{VTAG}")
        p(f"v_and_b32 v60, s{S_MASK}, v60")
        p("v_cmp_ne_u32 vcc, 0, v60")
        p(f"s_cbranch_vccnz {RL}_d{i} ;@nodrain")
        p(f"s_bitset0_b32 s50, {i}")
        p(f"s_bitset1_b32 s51, {i}")
        p(f"{RL}_d{i}:")
    p("s_or_b32 s48, s50, s51")
    p("s_cmp_eq_u32 s48, 0")
    p(f"s_cbranch_scc1 {RL}_done ;@nodrain")
    p(f"s_add_u32 s{S_SPIN}, s{S_SPIN}, 1")
    p(f"s_cmp_lt_u32 s{S_SPIN}, {SPIN_MAX}")
    p(f"s_cbranch_scc1 {RL}_loop ;@nodrain")
    if DIAG[0]:
        uid[0] += 1
        p("s_mov_b64 vcc, 1")
        diag_store(p, uid[0], "s50")
    p(f"{RL}_done:")
    p("s_nop 7")
    stamp("redin")
    MV, T = 61, 62
    p(f"v_max3_f32 v{MV}, v{PM}, v{PM+4}, v{PM+8}")
    p(f"v_max3_f32 v{MV}, v{MV}, v{PM+12}, v{PM+16}")
    p(f"v_max3_f32 v{MV}, v{MV}, v{PM+20}, v{PM+24}")
    p(f"v_max_f32 v{MV}, v{MV}, v{PM+28}")
    p(f"v_max_f32_dpp v{MV}, v{MV}, v{MV} row_ror:8 row_mask:0xf bank_mask:0xf")
    xg_reduce(p, "v_max_f32", MV, T)
    for i in range(8): p(f"v_sub_f32 v{PM+4*i}, v{PM+4*i}, v{MV}")
    for i in range(8): p(f"v_exp_f32 v{PM+4*i}, v{PM+4*i}")
    for r in range(4): p(f"v_mul_f32 v{64+r}, v{PM}, v{PP+r}")
    for i in range(1, 8):
        for r in range(4): p(f"v_fma_f32 v{64+r}, v{PM+4*i}, v{PP+4*i+r}, v{64+r}")
    for r in range(4): p(f"v_add_f32_dpp v{64+r}, v{64+r}, v{64+r} row_ror:8 row_mask:0xf bank_mask:0xf")
    for r in range(4): xg_reduce(p, "v_add_f32", 64 + r, T)
    p("v_lshlrev_b32 v63, 7, v56")
    p("s_lshl_b32 s28, s20, 5")
    p("v_add_u32 v68, s28, v63")
    p(f"ds_write_b128 v68, v[64:67]")
    p(f"ds_write_b32 v68, v{MV} offset:16")
    p("s_barrier")
    p("s_cmp_lg_u32 s20, 0")
    p(f"s_cbranch_scc1 {name}_sdone ;@nodrain")
    for v in range(4):
        p(f"ds_read_b128 v[{76+8*v}:{79+8*v}], v63 offset:{32*v}")
        p(f"ds_read_b32 v{80+8*v}, v63 offset:{32*v+16}")
    p("v_max3_f32 v61, v80, v88, v96")
    p("v_max_f32 v61, v61, v104")
    for v in range(4): p(f"v_sub_f32 v{80+8*v}, v{80+8*v}, v61")
    for v in range(4): p(f"v_exp_f32 v{80+8*v}, v{80+8*v}")
    for r in range(4): p(f"v_mul_f32 v{64+r}, v80, v{76+r}")
    for v in range(1, 4):
        for r in range(4): p(f"v_fma_f32 v{64+r}, v{80+8*v}, v{76+8*v+r}, v{64+r}")
    tag_regs(p, range(64, 68), VTAG)
    p("s_lshl_b32 s24, s24, 10")
    p("s_lshl_b32 s25, s25, 8")
    p("s_add_u32 s24, s24, s25")
    p("s_lshl_b32 s26, s26, 7")
    p("s_add_u32 s24, s24, s26")
    p(f"s_add_u32 s24, s24, {UF_OFF}")
    p("s_mov_b64 exec, 0xff")
    p(f"buffer_store_dwordx4 v[64:67], v{VL16}, s[16:19], s24 offen sc1")
    stamp("redout")
    p(f"{name}_sdone:")
    if stamp.on:
        p("s_cmp_lg_u32 s20, 0")
        p(f"s_cbranch_scc1 {name}_done ;@nodrain")
        stamp.dump("streamer")
    p("s_endpgm")

def gen_special(p, name, opt):
    if opt.get("streamonly"):
        p("s_endpgm"); return
    stamp = Prof(p, opt, 64, 92)
    VL16, VI, VG, VTAG, VAB = 1, 2, 3, 4, 5
    LA = list(range(216, 228))
    RS = 784
    TILE_LDS = 16 * RS
    p("s_load_dwordx2 s[4:5], s[0:1], 0")
    p("s_load_dwordx4 s[8:11], s[0:1], 24")
    p("s_load_dwordx4 s[12:15], s[0:1], 40")
    p("s_load_dwordx2 s[6:7], s[0:1], 56")
    p(f"v_lshlrev_b32 v{VL16}, 4, v0")
    p(f"v_and_b32 v{VI}, 15, v0")
    p(f"v_lshrrev_b32 v{VG}, 4, v0")
    p(f"v_mul_u32_u24 v{VAB}, {RS}, v{VI}")
    p(f"v_lshl_add_u32 v{VAB}, v{VG}, 4, v{VAB}")
    for a in range(12):
        p(f"v_add_u32 v6, {1024*a}, v{VL16}")
        p("v_lshrrev_b32 v7, 8, v6")
        p("v_mul_u32_u24 v7, 21846, v7")
        p("v_lshrrev_b32 v7, 16, v7")
        p(f"v_lshl_add_u32 v{LA[a]}, v7, 4, v6")
    p("s_waitcnt lgkmcnt(0)")
    p(f"s_load_dword s94, s[22:23], {N_OFF}")
    srd(p, 16, 22, WS_USED)
    srd(p, 24, 8, W_BYTES)
    srd(p, 28, 10, W_BYTES)
    srd(p, 32, 4, Q_BYTES)
    srd(p, 36, 12, W_BYTES)
    srd(p, 40, 14, W_BYTES)
    srd(p, 44, 6, Q_BYTES)
    aONE = 144
    ONES = f"a[{aONE}:{aONE+3}]"
    def consts():
        for r in range(4): mov64(p, 52 + 2 * r, sum(1 << (20 * g + r) for g in range(4)))
        p(f"s_mov_b32 s60, 0x{f2u(1.0 / C):08x}")
        p(f"s_mov_b32 s61, 0x{f2u(1e-5):08x}")
        p("v_mov_b32 v6, 0x3f803f80")
        for r in range(4): p(f"v_accvgpr_write_b32 a{aONE+r}, v6")
        p("s_waitcnt lgkmcnt(0)")
        p("s_add_u32 s94, s94, 1")
        p(f"s_and_b32 s{S_TAG}, s94, 0xff")
        p(f"v_mov_b32 v{VTAG}, s{S_TAG}")
    p("s_cmp_ge_u32 s100, 6")
    p(f"s_cbranch_scc1 {name}_st2")
    WQS = 64
    QS = 16
    LQ = 0
    LWQ = 12544
    p("v_lshrrev_b32 v7, 3, v0")
    p("v_and_b32 v8, 7, v0")
    p("v_mul_u32_u24 v9, 768, v7")
    p("v_lshl_add_u32 v9, v8, 4, v9")
    p("v_mul_u32_u24 v10, 144, v7")
    p("v_lshl_add_u32 v10, v8, 4, v10")
    p("s_mul_i32 s48, s20, 3072")
    for a in range(3):
        p(f"buffer_load_dwordx4 v[{QS+4*a}:{QS+4*a+3}], v{VL16}, s[32:35], s48 offen offset:{1024*a}")
    p("s_lshl_b32 s48, s100, 7")
    p(f"s_mul_i32 s49, s20, {96*768}")
    p("s_add_u32 s48, s48, s49")
    for a in range(12):
        p(f"buffer_load_dwordx4 v[{WQS+4*a}:{WQS+4*a+3}], v9, s[24:27], s48 offen")
        if a < 11: p(f"s_add_u32 s48, s48, {8*768}")
    consts()
    stamp("issued")
    p("s_mul_i32 s48, s20, 3136")
    for a in range(3):
        p(f"v_add_u32 v6, s48, v{LA[a]}")
        p(f"ds_write_b128 v6, v[{QS+4*a}:{QS+4*a+3}] offset:{LQ}")
    p(f"s_mul_i32 s48, s20, {96*144}")
    p("v_add_u32 v10, s48, v10")
    for a in range(12):
        p(f"ds_write_b128 v10, v[{WQS+4*a}:{WQS+4*a+3}] offset:{LWQ + 8*144*a}")
    stamp("s1ld")
    p("s_barrier")
    stamp("s1bar")
    QFR = 16
    for ks in range(12):
        p(f"ds_read_b128 v[{QFR+4*ks}:{QFR+4*ks+3}], v{VAB} offset:{LQ + 64*ks}")
    p("v_lshrrev_b32 v10, 2, v0")
    p("v_and_b32 v10, 3, v10")
    p(f"v_lshl_add_u32 v10, v{VG}, 3, v10")
    p("v_mul_u32_u24 v10, 144, v10")
    p("v_and_b32 v11, 3, v0")
    p("v_lshl_add_u32 v10, v11, 3, v10")
    p("s_lshl_b32 s48, s20, 5")
    p("v_add_u32 v10, s48, v10")
    aWT = 0
    for ks in range(12):
        for h in range(2):
            p(f"ds_read_b64_tr_b16 a[{aWT+4*ks+2*h}:{aWT+4*ks+2*h+1}], v10 offset:{LWQ + 32*144*ks + 4*144*h}")
    for ks in range(12):
        q = f"v[{QFR+4*ks}:{QFR+4*ks+3}]"
        p(f"v_mfma_f32_16x16x32_bf16 v[116:119], {q}, {q}, {'0' if ks == 0 else 'v[116:119]'}")
        p(f"v_mfma_f32_16x16x32_bf16 v[112:115], {ONES}, {q}, {'0' if ks == 0 else 'v[112:115]'}")
    for ks in range(12):
        a = f"a[{aWT+4*ks}:{aWT+4*ks+3}]"
        q = f"v[{QFR+4*ks}:{QFR+4*ks+3}]"
        p(f"v_mfma_f32_16x16x32_bf16 v[120:123], {a}, {q}, {'0' if ks == 0 else 'v[120:123]'}")
        p(f"v_mfma_f32_16x16x32_bf16 v[124:127], {a}, {ONES}, {'0' if ks == 0 else 'v[124:127]'}")
        if ks == 1:
            p("v_cndmask_b32 v12, 0, v116, s[52:53]")
            for r in range(1, 4): p(f"v_cndmask_b32 v12, v12, v{116+r}, s[{52+2*r}:{53+2*r}]")
            p("v_mul_f32 v14, s60, v112")
        if ks == 3: xg_reduce(p, "v_add_f32", 12, 13)
        if ks == 6:
            p("v_mov_b32 v13, s61")
            p("v_fma_f32 v12, v12, s60, v13")
            p("v_fma_f32 v12, -v14, v14, v12")
            p("v_max_f32 v12, s61, v12")
            p("v_rsq_f32 v15, v12")
    stamp("s1mf")
    for r in range(4): p(f"v_fma_f32 v{120+r}, -v14, v{124+r}, v{120+r}")
    for r in range(4): p(f"v_mul_f32 v{120+r}, v{120+r}, v15")
    tag_regs(p, range(120, 124), VTAG)
    p("s_lshl_b32 s48, s100, 2")
    p("s_add_u32 s48, s48, s20")
    p("s_lshl_b32 s48, s48, 10")
    p(f"s_add_u32 s48, s48, {QF_OFF}")
    p(f"buffer_store_dwordx4 v[120:123], v{VL16}, s[16:19], s48 offen sc1")
    stamp("st1")
    p(f"s_branch {name}_sp_w")
    p(f"{name}_st2: ;@restore st2")
    WKS = 64
    p("s_sub_u32 s21, s100, 6")
    p("s_lshl_b32 s21, s21, 2")
    p("s_add_u32 s21, s21, s20")
    p("s_mul_i32 s48, s21, 12288")
    for a in range(12):
        if a % 4 == 0 and a: p("s_add_u32 s48, s48, 4096")
        p(f"buffer_load_dwordx4 v[{WKS+4*a}:{WKS+4*a+3}], v{VL16}, s[28:31], s48 offen offset:{1024*(a%4)}")
    consts()
    stamp("issued")
    LWK = 0
    LQB = 4 * TILE_LDS
    p(f"s_mul_i32 s48, s20, {TILE_LDS}")
    for a in range(12):
        p(f"v_add_u32 v6, s48, v{LA[a]}")
        p(f"ds_write_b128 v6, v[{WKS+4*a}:{WKS+4*a+3}] offset:{LWK}")
    p(f"v_add_u32 v7, s48, v{VAB}")
    aWK = 48
    for ks in range(12):
        p(f"ds_read_b128 a[{aWK+4*ks}:{aWK+4*ks+3}], v7 offset:{LWK + 64*ks}")
    QR = 120
    loads = ["s_mul_i32 s48, s20, 6144", f"s_add_u32 s48, s48, {QF_OFF}", "s_add_u32 s49, s48, 4096"]
    for q in range(6):
        so, off = ("s48", 1024 * q) if q < 4 else ("s49", 1024 * (q - 4))
        loads.append(f"buffer_load_dwordx4 v[{QR+4*q}:{QR+4*q+3}], v{VL16}, s[16:19], {so} offen offset:{off} sc1")
    poll_block(p, name, loads, list(range(QR, QR + 24)), VTAG, 12)
    stamp("qf_in")
    p(f"v_lshrrev_b32 v7, 1, v{VG}")
    p("v_lshlrev_b32 v7, 8, v7")
    p(f"v_lshl_add_u32 v7, v{VI}, 4, v7")
    p(f"v_and_b32 v8, 1, v{VG}")
    p("v_lshl_add_u32 v7, v8, 3, v7")
    p("s_mul_i32 s48, s20, 3072")
    p("v_add_u32 v7, s48, v7")
    for q in range(6):
        p(f"v_cvt_pk_bf16_f32 v{QR+4*q}, v{QR+4*q}, v{QR+4*q+1}")
        p(f"v_cvt_pk_bf16_f32 v{QR+4*q+1}, v{QR+4*q+2}, v{QR+4*q+3}")
        p(f"ds_write_b64 v7, v[{QR+4*q}:{QR+4*q+1}] offset:{LQB + 512*q}")
    p("s_barrier")
    stamp("s2bar")
    for pp in range(12):
        p(f"ds_read_b128 v[{16+4*pp}:{19+4*pp}], v{VL16} offset:{LQB + 1024*pp}")
    for pp in range(12):
        p(f"v_mfma_f32_16x16x32_bf16 v[112:115], a[{aWK+4*pp}:{aWK+4*pp+3}], v[{16+4*pp}:{19+4*pp}], {'0' if pp == 0 else 'v[112:115]'}")
    for r in range(4): p(f"v_mul_f32 v{112+r}, 0x{f2u(SCALE*LOG2E):08x}, v{112+r}")
    tag_regs(p, range(112, 116), VTAG)
    p("s_lshl_b32 s48, s21, 10")
    p(f"s_add_u32 s48, s48, {QKF_OFF}")
    p(f"buffer_store_dwordx4 v[112:115], v{VL16}, s[16:19], s48 offen sc1")
    stamp("st2")
    p(f"{name}_sp_w:")
    p("s_waitcnt lgkmcnt(0)")
    p("s_nop 7")
    p("s_nop 7")
    p("s_barrier")
    p("v_mov_b32 v12, 0")
    p("v_mov_b32 v13, 0")
    p("v_mov_b32 v14, 0")
    p("v_mov_b32 v15, 0")
    tag_regs(p, range(12, 16), VTAG)
    p("s_mul_i32 s48, s2, 24576")
    p("s_mul_i32 s49, s20, 6144")
    p("s_add_u32 s48, s48, s49")
    p(f"s_add_u32 s48, s48, {PART_OFF}")
    p("s_add_u32 s49, s48, 4096")
    for q in range(6):
        so, off = ("s48", 1024 * q) if q < 4 else ("s49", 1024 * (q - 4))
        p(f"buffer_store_dwordx4 v[12:15], v{VL16}, s[16:19], {so} offen offset:{off} sc1")
    p("v_mov_b32 v16, 0xf149f2ca")
    p("v_mov_b32 v17, 0")
    p("v_mov_b32 v18, 0")
    p(f"v_mov_b32 v19, v{VTAG}")
    p("s_lshl_b32 s48, s2, 8")
    p("s_lshl_b32 s49, s20, 6")
    p("s_add_u32 s48, s48, s49")
    p(f"s_add_u32 s48, s48, {ML_OFF}")
    p("s_mov_b64 exec, 0xf")
    p(f"buffer_store_dwordx4 v[16:19], v{VL16}, s[16:19], s48 offen sc1")
    p("s_mov_b64 exec, -1")
    NE = 2
    LWO = 4 * 2 * TILE_LDS
    WRS = 80
    p("v_lshrrev_b32 v7, 2, v0")
    p("v_and_b32 v8, 3, v0")
    p("v_mul_u32_u24 v9, 768, v7")
    p("v_lshl_add_u32 v9, v8, 4, v9")
    p(f"v_mul_u32_u24 v10, {WRS}, v7")
    p("v_lshl_add_u32 v10, v8, 4, v10")
    p("s_lshl_b32 s48, s100, 6")
    p(f"s_mul_i32 s49, s20, {96*768}")
    p("s_add_u32 s48, s48, s49")
    for a in range(6):
        p(f"buffer_load_dwordx4 v[{20+4*a}:{23+4*a}], v9, s[40:43], s48 offen")
        if a < 5: p(f"s_add_u32 s48, s48, {16*768}")
    WVS = 64
    def wv_load(tile):
        b = WVS + 48 * (tile & 1)
        p(f"s_mul_i32 s50, s20, {6*12288}")
        p(f"s_add_u32 s50, s50, {tile*12288}")
        for a in range(12):
            if a % 4 == 0 and a: p("s_add_u32 s50, s50, 4096")
            p(f"buffer_load_dwordx4 v[{b+4*a}:{b+4*a+3}], v{VL16}, s[36:39], s50 offen offset:{1024*(a%4)}")
    wv_load(0); wv_load(1)
    p(f"s_mul_i32 s49, s20, {96*WRS}")
    p("v_add_u32 v10, s49, v10")
    p(f"v_add_u32 v10, {LWO}, v10")
    for a in range(6):
        p(f"ds_write_b128 v10, v[{20+4*a}:{23+4*a}] offset:{16*WRS*a}")
    p("s_barrier")
    p("v_lshrrev_b32 v10, 2, v0")
    p("v_and_b32 v10, 3, v10")
    p(f"v_lshl_add_u32 v10, v{VG}, 3, v10")
    p(f"v_mul_u32_u24 v10, {WRS}, v10")
    p("v_and_b32 v11, 3, v0")
    p("v_lshl_add_u32 v10, v11, 3, v10")
    p(f"v_add_u32 v10, {LWO}, v10")
    for e in range(NE):
        for ks in range(12):
            for h in range(2):
                p(f"ds_read_b64_tr_b16 a[{48*e+4*ks+2*h}:{48*e+4*ks+2*h+1}], v10 offset:{32*e + 32*WRS*ks + 4*WRS*h}")
    p(f"s_mul_i32 s63, s20, {TILE_LDS}")
    for a in range(12): p(f"v_add_u32 v{LA[a]}, s63, v{LA[a]}")
    p(f"v_add_u32 v{VAB}, s63, v{VAB}")
    WF = 160
    DW = 20
    aXV = 96
    for tile in range(6):
        b = WVS + 48 * (tile & 1)
        for a in range(12): p(f"ds_write_b128 v{LA[a]}, v[{b+4*a}:{b+4*a+3}]")
        if tile + 2 < 6: wv_load(tile + 2)
        for ks in range(12): p(f"ds_read_b128 a[{aXV+4*ks}:{aXV+4*ks+3}], v{VAB} offset:{64*ks}")
        for ks in range(12):
            for e in range(NE):
                d = DW + 8 * e + 4 * (tile & 1)
                p(f"v_mfma_f32_16x16x32_bf16 v[{d}:{d+3}], a[{aXV+4*ks}:{aXV+4*ks+3}], a[{48*e+4*ks}:{48*e+4*ks+3}], {'0' if ks == 0 else f'v[{d}:{d+3}]'}")
        if tile & 1:
            for e in range(NE):
                w = WF + 12 * e + 4 * (tile >> 1)
                for k in range(4):
                    p(f"v_cvt_pk_bf16_f32 v{w+k}, v{DW+8*e+2*k}, v{DW+8*e+2*k+1}")
    for e in range(NE):
        for pr in range(3):
            w = WF + 12 * e + 4 * pr
            p(f"v_mfma_f32_16x16x32_bf16 v[{44+4*e}:{47+4*e}], v[{w}:{w+3}], {ONES}, {'0' if pr == 0 else f'v[{44+4*e}:{47+4*e}]'}")
    stamp("wvo")
    p(f"v_mul_u32_u24 v7, 768, v{VI}")
    p(f"v_lshl_add_u32 v7, v{VG}, 3, v7")
    p("s_lshl_b32 s62, s100, 1")
    p("s_and_b32 s48, s20, 1")
    p("s_add_u32 s62, s62, s48")
    p("s_lshl_b32 s62, s62, 5")
    p("buffer_load_dwordx2 v[56:57], v7, s[32:35], s62 offen")
    PM = 64
    FL = f"{name}_fm"
    p("s_lshl_b32 s63, s20, 14")
    p(f"s_add_u32 s63, s63, {ML_OFF}")
    p(f"s_mov_b32 s{S_SPIN}, 0")
    p(f"s_add_u32 s48, s63, {1024*15}")
    p(f"{FL}_pre:")
    p(f"buffer_load_dwordx4 v[{PM}:{PM+3}], v{VL16}, s[16:19], s48 offen sc1")
    p("s_waitcnt vmcnt(0)")
    p(f"v_xor_b32 v12, v{PM+3}, v{VTAG}")
    p(f"v_and_b32 v12, s{S_MASK}, v12")
    p("v_cmp_ne_u32 vcc, 0, v12")
    p(f"s_cbranch_vccz {FL}_go ;@nodrain")
    p("s_sleep 6")
    p(f"s_add_u32 s{S_SPIN}, s{S_SPIN}, 1")
    p(f"s_cmp_lt_u32 s{S_SPIN}, {SPIN_MAX}")
    p(f"s_cbranch_scc1 {FL}_pre ;@nodrain")
    p(f"{FL}_go:")
    p("s_mov_b32 s50, 0xffff")
    p(f"s_mov_b32 s{S_SPIN}, 0")
    p(f"{FL}_loop:")
    for i in range(16):
        p(f"s_bitcmp0_b32 s50, {i}")
        p(f"s_cbranch_scc1 {FL}_a{i} ;@nodrain")
        p(f"s_add_u32 s48, s63, {1024*i}")
        p(f"buffer_load_dwordx4 v[{PM+4*i}:{PM+4*i+3}], v{VL16}, s[16:19], s48 offen sc1")
        p(f"{FL}_a{i}:")
    p("s_waitcnt vmcnt(0)")
    for i in range(16):
        p(f"s_bitcmp0_b32 s50, {i}")
        p(f"s_cbranch_scc1 {FL}_c{i} ;@nodrain")
        p(f"v_xor_b32 v12, v{PM+4*i+3}, v{VTAG}")
        p(f"v_and_b32 v12, s{S_MASK}, v12")
        p("v_cmp_ne_u32 vcc, 0, v12")
        p(f"s_cbranch_vccnz {FL}_c{i} ;@nodrain")
        p(f"s_bitset0_b32 s50, {i}")
        p(f"{FL}_c{i}:")
    p("s_cmp_eq_u32 s50, 0")
    p(f"s_cbranch_scc1 {FL}_done ;@nodrain")
    p(f"s_add_u32 s{S_SPIN}, s{S_SPIN}, 1")
    p(f"s_cmp_lt_u32 s{S_SPIN}, {SPIN_MAX}")
    p(f"s_cbranch_scc1 {FL}_loop ;@nodrain")
    p(f"{FL}_done:")
    p("s_nop 7")
    stamp("ml_in")
    MV, T = 8, 9
    p(f"v_max3_f32 v{MV}, v{PM}, v{PM+4}, v{PM+8}")
    for i in range(3, 15, 2): p(f"v_max3_f32 v{MV}, v{MV}, v{PM+4*i}, v{PM+4*i+4}")
    p(f"v_max_f32 v{MV}, v{MV}, v{PM+60}")
    xg_reduce(p, "v_max_f32", MV, T)
    for i in range(16): p(f"v_sub_f32 v{PM+4*i}, v{PM+4*i}, v{MV}")
    for i in range(16): p(f"v_exp_f32 v{PM+4*i}, v{PM+4*i}")
    p(f"v_mul_f32 v13, v{PM}, v{PM+1}")
    p(f"v_mul_f32 v14, v{PM}, v{PM+2}")
    for i in range(1, 16):
        p(f"v_fma_f32 v13, v{PM+4*i}, v{PM+4*i+1}, v13")
        p(f"v_fma_f32 v14, v{PM+4*i}, v{PM+4*i+2}, v14")
    xg_reduce(p, "v_add_f32", 13, T)
    xg_reduce(p, "v_add_f32", 14, T)
    p(f"v_mov_b32 v12, v{MV}")
    p("v_mov_b32 v15, 0")
    LX = 0
    p("s_barrier")
    p(f"v_lshlrev_b32 v9, 6, v{VI}")
    p("s_lshl_b32 s48, s20, 4")
    p("v_add_u32 v8, s48, v9")
    p(f"ds_write_b128 v8, v[12:15] offset:{LX}")
    p("s_barrier")
    for v in range(4): p(f"ds_read_b128 v[{64+4*v}:{67+4*v}], v9 offset:{LX + 16*v}")
    p("v_max3_f32 v8, v64, v68, v72")
    p("v_max_f32 v8, v8, v76")
    for v in range(4): p(f"v_sub_f32 v{64+4*v}, v{64+4*v}, v8")
    for v in range(4): p(f"v_exp_f32 v{64+4*v}, v{64+4*v}")
    p("v_mul_f32 v13, v64, v65")
    p("v_mul_f32 v14, v64, v66")
    for v in range(1, 4):
        p(f"v_fma_f32 v13, v{64+4*v}, v{65+4*v}, v13")
        p(f"v_fma_f32 v14, v{64+4*v}, v{66+4*v}, v14")
    p("v_rcp_f32 v13, v13")
    p("v_mul_f32 v14, s60, v14")
    UR = 64
    loads = ["s_mul_i32 s48, s20, 6144", f"s_add_u32 s48, s48, {UF_OFF}", "s_add_u32 s49, s48, 4096"]
    for q in range(6):
        so, off = ("s48", 1024 * q) if q < 4 else ("s49", 1024 * (q - 4))
        loads.append(f"buffer_load_dwordx4 v[{UR+4*q}:{UR+4*q+3}], v{VL16}, s[16:19], {so} offen offset:{off} sc1")
    poll_block(p, name, loads, list(range(UR, UR + 24)), VTAG, 12)
    stamp("u_in")
    for pr in range(3):
        for k in range(4):
            p(f"v_cvt_pk_bf16_f32 v{96+4*pr+k}, v{UR+8*pr+2*k}, v{UR+8*pr+2*k+1}")
    for pr in range(3):
        for e in range(NE):
            w = WF + 12 * e + 4 * pr
            d = 20 + 4 * e
            p(f"v_mfma_f32_16x16x32_bf16 v[{d}:{d+3}], v[{w}:{w+3}], v[{96+4*pr}:{99+4*pr}], {'0' if pr == 0 else f'v[{d}:{d+3}]'}")
    for e in range(NE):
        for r in range(4): p(f"v_fma_f32 v{20+4*e+r}, -v14, v{44+4*e+r}, v{20+4*e+r}")
    LF = 4096
    p("s_lshl_b32 s48, s20, 10")
    p(f"v_add_u32 v8, s48, v{VL16}")
    for e in range(NE): p(f"ds_write_b128 v8, v[{20+4*e}:{23+4*e}] offset:{LF + 4096*e}")
    p("s_barrier")
    p(f"s_cmp_ge_u32 s20, {NE}")
    p(f"s_cbranch_scc1 {name}_done ;@nodrain")
    p("s_lshl_b32 s48, s20, 12")
    p(f"v_add_u32 v8, s48, v{VL16}")
    for v in range(4): p(f"ds_read_b128 v[{64+4*v}:{67+4*v}], v8 offset:{LF + 1024*v}")
    p("v_lshlrev_b32 v80, 16, v56")
    p("v_and_b32 v81, 0xffff0000, v56")
    p("v_lshlrev_b32 v82, 16, v57")
    p("v_and_b32 v83, 0xffff0000, v57")
    for r in range(4):
        p(f"v_add_f32 v{64+r}, v{64+r}, v{68+r}")
        p(f"v_add_f32 v{72+r}, v{72+r}, v{76+r}")
        p(f"v_add_f32 v{64+r}, v{64+r}, v{72+r}")
        p(f"v_fma_f32 v{64+r}, v{64+r}, v13, v{80+r}")
    p("v_cvt_pk_bf16_f32 v64, v64, v65")
    p("v_cvt_pk_bf16_f32 v65, v66, v67")
    p("buffer_store_dwordx2 v[64:65], v7, s[44:47], s62 offen")
    p("s_add_u32 s48, s100, s20")
    p("s_cmp_lg_u32 s48, 0")
    p(f"s_cbranch_scc1 {name}_spe ;@nodrain")
    p("v_mov_b32 v8, s94")
    p(f"v_mov_b32 v9, {N_OFF}")
    p("s_mov_b64 exec, 1")
    p("buffer_store_dword v8, v9, s[16:19], 0 offen")
    p(f"{name}_spe:")
    if stamp.on:
        p("s_cmp_lg_u32 s20, 0")
        p(f"s_cbranch_scc1 {name}_done ;@nodrain")
        p("s_waitcnt vmcnt(0)")
        stamp("end")
        stamp.dump("special")

def kernel_text(name, p):
    body = p.finalize(True)
    return [f".globl {name}", ".p2align 8", f".type {name},@function", f"{name}:"] + body

def kd_text(name, info):
    return [".p2align 6", f".amdhsa_kernel {name}", f"  .amdhsa_next_free_vgpr {info['vgpr']}", "  .amdhsa_next_free_sgpr 102",
            f"  .amdhsa_accum_offset {info['accum']}", "  .amdhsa_group_segment_fixed_size 0", "  .amdhsa_kernarg_size 80",
            "  .amdhsa_user_sgpr_count 2", "  .amdhsa_user_sgpr_kernarg_segment_ptr 1", "  .amdhsa_system_sgpr_workgroup_id_x 1",
            "  .amdhsa_float_denorm_mode_32 3", ".end_amdhsa_kernel"]

HEADER = open("standalone__detection_seg_dino__vision.s.ref").read().split("; Override launch")[0]

def build(path, opt):
    DIAG[0] = bool(opt.get("diag"))
    global SPIN_MAX
    SPIN_MAX = opt.get("spin", SPIN_MAX)
    name = "standalone__detection_seg_dino__vision_kernel"
    p, info = gen_kernel(name, opt)
    text = kernel_text(name, p)
    out = (HEADER.rstrip() + "\n" + f"; @launch grid=({info['grid']},1,1) block=({info['block']},1,1) lds={info['lds']}\n"
           + '.amdgcn_target "amdgcn-amd-amdhsa--gfx950"\n.text\n' + "\n".join(text) + '\n.section .rodata,"a"\n' + "\n".join(kd_text(name, info)) + "\n")
    open(path, "w").write(out)

if __name__ == "__main__":
    opt = {}
    path = sys.argv[1] if len(sys.argv) > 1 else "k2.s"
    for a in sys.argv[2:]:
        k, v = a.split("=", 1)
        opt[k] = int(v) if v.lstrip('-').isdigit() else v
    build(path, opt)
    if LABELS:
        import json
        json.dump(LABELS, open(path[:-2] + ".labels.json", "w"))
```

```python
import sys, math, struct, re
from dsl import Prog

C = 384
F0_BYTES = 113246208
F1_BYTES = 28311552
W_BYTES = 294912
Q_BYTES = 12288
N_OFF = 0
QF_OFF = 4096
QKF_OFF = QF_OFF + 24576
UF_OFF = QKF_OFF + 24576
ML_OFF = UF_OFF + 24576
M2_OFF = ML_OFF + 65536
PART_OFF = 262144
WS_USED = PART_OFF + 256 * 12288
NRED = 192
NSPEC = 12
PROF_OFF = 163840
SPIN_MAX = 1048576

def f2u(x): return struct.unpack('<I', struct.pack('<f', x))[0]
LOG2E = 1.4426950408889634
SCALE = C ** -0.5

def srd(p, base_s, ptr_lo, nbytes):
    p(f"s_mov_b32 s{base_s}, s{ptr_lo}")
    p(f"s_and_b32 s{base_s+1}, s{ptr_lo+1}, 0xffff")
    p(f"s_mov_b32 s{base_s+2}, {nbytes}")
    p(f"s_mov_b32 s{base_s+3}, 0x20000")

def mov64(p, s, val):
    p(f"s_mov_b32 s{s}, 0x{val & 0xffffffff:08x}")
    p(f"s_mov_b32 s{s+1}, 0x{(val >> 32) & 0xffffffff:08x}")

def xg_reduce(p, op, a, tmp):
    p(f"v_mov_b32 v{tmp}, v{a}")
    p(f"v_permlane32_swap_b32 v{a}, v{tmp}")
    p(f"{op} v{a}, v{a}, v{tmp}")
    p(f"v_mov_b32 v{tmp}, v{a}")
    p(f"v_permlane16_swap_b32 v{a}, v{tmp}")
    p(f"{op} v{a}, v{a}, v{tmp}")

S_MASK = 93
S_TAG = 95
S_SPIN = 92

def tag_regs(p, regs, vtag):
    for r in regs: p(f"v_bfi_b32 v{r}, s{S_MASK}, v{vtag}, v{r}")

def check_tags(p, regs, vtag, vacc):
    regs = list(regs)
    for r in regs: p(f"v_xor_b32 v{r}, v{r}, v{vtag}")
    p(f"v_or_b32 v{vacc}, v{regs[0]}, v{regs[1]}")
    rest = regs[2:]
    while len(rest) >= 2:
        p(f"v_or3_b32 v{vacc}, v{vacc}, v{rest[0]}, v{rest[1]}"); rest = rest[2:]
    if rest: p(f"v_or_b32 v{vacc}, v{vacc}, v{rest[0]}")
    p(f"v_and_b32 v{vacc}, s{S_MASK}, v{vacc}")
    p(f"v_cmp_ne_u32 vcc, 0, v{vacc}")

from dsl import Ins
def est_cycles(text):
    t = text.split(';')[0].strip()
    if not t or t.endswith(':'): return 0
    mn = t.split()[0]
    if mn.startswith('v_mfma'): return 16
    if mn.startswith('v_exp') or mn.startswith('v_rsq') or mn.startswith('v_rcp'): return 8
    if mn.startswith('v_'): return 4
    if mn.startswith('ds_write_b128'): return 16
    if mn.startswith('ds_write'): return 8
    if mn.startswith('ds_read'): return 8
    if mn == 's_barrier': return 80
    if mn.startswith('buffer_'): return 8
    return 4

def schedule_loads(items, loads, pace, lat, dmax, t0=0, verbose=False, policy='model', nreal=150):
    out = []; now = t0
    land = []
    issue_t = []
    free = set(); k = 0
    extras = []
    def landed():
        return sum(1 for x in land if x <= now)
    locked = [False]; credit = [0]; dm = [dmax]; consumed = [0]; gap = [0]; pos = [0]; lastpos = [-10**9]
    def try_issue():
        nonlocal k, now
        if locked[0]: return
        while k < len(loads):
            L = loads[k]
            if L['key'] is not None and L['key'] not in free: break
            if policy == 'model':
                if len(land) - landed() >= dm[0]: break
            else:
                if k - consumed[0] >= dm[0]: break
                if pos[0] - lastpos[0] < gap[0]: break
            for x in L['pre']: out.append(x); now += 4
            out.append(L['ins']); now += 8
            lastpos[0] = pos[0]
            if L['key'] is not None: free.discard(L['key'])
            prev = land[-1] if land else 0
            land.append(max(now + lat, prev + pace)); issue_t.append(now)
            k += 1
    for it in items:
        if isinstance(it, tuple):
            if it[0] == 'use':
                j = it[1]
                while k <= j:
                    L = loads[k]
                    assert L['key'] is None or L['key'] in free, ('slot not free', k, L)
                    for x in L['pre']: out.append(x); now += 4
                    out.append(L['ins']); now += 8
                    if L['key'] is not None: free.discard(L['key'])
                    prev = land[-1] if land else 0
                    land.append(max(now + lat, prev + pace)); issue_t.append(now); k += 1
                now = max(now, land[j])
                consumed[0] = j + 1
                try_issue()
            elif it[0] == 'free': free.add(it[1]); try_issue()
            elif it[0] == 't': now += it[1]; try_issue()
            elif it[0] == 'dmax': dm[0] = it[1]; try_issue()
            elif it[0] == 'gap': gap[0] = it[1]
            elif it[0] == 'zstart': lastpos[0] = -10**9
            elif it[0] == 'zend':
                g = gap[0]; gap[0] = 0; try_issue(); gap[0] = g
            elif it[0] == 'until': now = max(now, it[1]); try_issue()
            elif it[0] == 'force':
                while k < it[1]:
                    L = loads[k]
                    assert L['key'] is None or L['key'] in free, ('slot not free', k, L)
                    for x in L['pre']: out.append(x); now += 4
                    out.append(L['ins']); now += 8
                    if L['key'] is not None: free.discard(L['key'])
                    prev = land[-1] if land else 0
                    land.append(max(now + lat, prev + pace)); issue_t.append(now); k += 1
                    if len(land) > 12: now = max(now, land[-13])
            elif it[0] == 'log':
                if verbose: print(f"   model {it[1]:8s} t={now/2100:.2f}us issued={k}")
            elif it[0] == 'lock': locked[0] = True
            elif it[0] == 'unlock': locked[0] = False
            continue
        out.append(it)
        c = est_cycles(it)
        if it.lstrip().startswith('v_mfma'): credit[0] = 2
        elif credit[0] > 0 and c <= 8: c = 0; credit[0] -= 1
        else: credit[0] = 0
        now += c; pos[0] += c
        if '@noload' not in it: try_issue()
    assert k >= nreal, (k, nreal)
    return out

def timeout_diag(p, site, extra="0", vacc=None):
    p("s_load_dwordx2 s[86:87], s[0:1], 64")
    p("s_lshl_b32 s85, s2, 8")
    p("s_or_b32 s85, s85, s20")
    p("s_or_b32 s85, s85, 0x1000000")
    p("s_waitcnt lgkmcnt(0)")
    p("v_mov_b32 v254, s85") if False else None
DIAG = [False]
def diag_store(p, site, val):
    p("s_load_dwordx2 s[86:87], s[0:1], 64")
    p("s_lshl_b32 s85, s2, 8")
    p("s_or_b32 s85, s85, s20")
    p("s_or_b32 s85, s85, 0x1000000")
    p("s_waitcnt lgkmcnt(0)")
    p("s_mov_b64 s[88:89], exec") if False else None
    p("v_mov_b32 v250, s85")
    p(f"v_mov_b32 v251, {val}")
    p(f"v_mov_b32 v249, {8*site}")
    p("s_ff1_i32_b64 s84, vcc")
    p("s_nop 4")
    p("v_readlane_b32 s83, v251, s84")
    p("s_nop 4")
    p("v_mov_b32 v251, s84")
    p("v_lshlrev_b32 v251, 16, v251")
    p("v_or_b32 v251, s83, v251")
    p("global_store_dwordx2 v249, v[250:251], s[86:87]")
    p("s_waitcnt vmcnt(0)")
def tagpat(p, base):
    for j in range(4):
        p(f"s_lshr_b32 s{base+j}, s{S_TAG}, {2*j}")
        p(f"s_and_b32 s48, s{base+j}, 2")
        p(f"s_lshl_b32 s48, s48, 15")
        p(f"s_and_b32 s{base+j}, s{base+j}, 1")
        p(f"s_or_b32 s{base+j}, s{base+j}, s48")

uid = [0]
def poll_block(p, name, loads, regs, vtag, vacc, preissued=False, lock=False, sleep=1):
    if lock: p.items.append(('lock',))
    uid[0] += 1
    L = f"{name}_pl{uid[0]}"
    if not preissued:
        for x in loads: p(x)
    check_tags(p, regs, vtag, vacc)
    p(f"s_cbranch_vccz {L}_ok")
    p(f"s_mov_b32 s{S_SPIN}, 0")
    p(f"{L}_retry:")
    if sleep: p(f"s_sleep {sleep}")
    for x in loads: p(x)
    p("s_waitcnt vmcnt(0)")
    check_tags(p, regs, vtag, vacc)
    p(f"s_cbranch_vccz {L}_fin")
    p(f"s_add_u32 s{S_SPIN}, s{S_SPIN}, 1")
    p(f"s_cmp_lt_u32 s{S_SPIN}, {SPIN_MAX}")
    p(f"s_cbranch_scc1 {L}_retry")
    if DIAG[0]: diag_store(p, uid[0], f"v{vacc}")
    p(f"{L}_fin:")
    p("s_nop 7")
    p("s_nop 7")
    p(f"{L}_ok: ;@restore {L}")
    if lock: p.items.append(('unlock',))

class Prof:
    def __init__(self, p, opt, base, lim=88):
        self.opt = opt; self.lim = lim; self.p = p; self.on = opt.get("prof", 0); self.lbl = []; self.base = base; self.skip = opt.get("skip", "").split(",")
    def __call__(self, lbl, fine=False):
        if self.on == 7:
            if not self.lbl and self.base == 52: self.lbl = ["z%d" % i for i in range(11)]
            return
        if self.on == 6 and lbl not in ("init", "S", "X012", "pub"): return
        if self.on == 5:
            if lbl in ("init", "S", "F9"):
                for ins in ("s_memtime", "s_memrealtime"):
                    i = len(self.lbl); self.lbl.append(lbl + ins[2:])
                    self.p(f"{ins} s[{self.base+2*i}:{self.base+2*i+1}]")
            return
        if self.on == 4:
            if not fine: return
        elif fine: return
        if self.on and lbl not in self.skip and self.base + 2 * len(self.lbl) < self.lim:
            i = len(self.lbl); self.lbl.append(lbl)
            self.p(f"{'s_memtime' if self.on == 4 else 's_memrealtime'} s[{self.base+2*i}:{self.base+2*i+1}]")
    def dump(self, tagname, srdbase=16):
        if not self.on: return
        p = self.p
        wg = self.opt.get("dbg_" + tagname)
        if wg is not None:
            uid[0] += 1
            p("s_waitcnt vmcnt(0) lgkmcnt(0)")
            p(f"s_cmp_lg_u32 s2, {wg}")
            p(f"s_cbranch_scc1 dbgskip{uid[0]} ;@nodrain")
            p("s_load_dwordx2 s[4:5], s[0:1], 64")
            p("s_waitcnt lgkmcnt(0)")
            p("s_mov_b64 exec, 1")
            p("v_mov_b32 v1, 0")
            off = self.opt.get("dbgoff_" + tagname, 0)
            for i in range(len(self.lbl)):
                if self.on == 5: p(f"v_mov_b32 v2, s{self.base+2*i}")
                else:
                    p(f"s_sub_u32 s3, s{self.base+2*i}, s98")
                    p("v_mov_b32 v2, s3")
                p(f"global_store_dword v1, v2, s[4:5] offset:{4*(off+i)}")
            p(f"dbgskip{uid[0]}:")
        p("s_waitcnt vmcnt(0) lgkmcnt(0)")
        p("s_mov_b64 exec, 1")
        p("s_lshl_b32 s3, s2, 7")
        p(f"s_add_u32 s3, s3, {PROF_OFF}")
        p("v_mov_b32 v1, 0")
        p("v_mov_b32 v2, s98")
        p(f"buffer_store_dword v2, v1, s[{srdbase}:{srdbase+3}], s3 offen")
        for i in range(len(self.lbl)):
            p(f"v_mov_b32 v2, s{self.base+2*i}")
            p(f"buffer_store_dword v2, v1, s[{srdbase}:{srdbase+3}], s3 offen offset:{4*(i+1)}")
        if tagname == "streamer" and self.on == 6:
            p("s_mov_b64 exec, 0x7f")
            p("v_lshlrev_b32 v1, 2, v0")
            p(f"buffer_store_dword v239, v1, s[{srdbase}:{srdbase+3}], s3 offen offset:64")
            p("s_mov_b64 exec, 1")
            p("v_mov_b32 v1, 0")
        if tagname == "streamer":
            p("v_mov_b32 v2, s86")
            p(f"buffer_store_dword v2, v1, s[{srdbase}:{srdbase+3}], s3 offen offset:124")
        print(tagname, "stamps:", self.lbl)
        LABELS[tagname] = list(self.lbl)
LABELS = {}

def gen_kernel(name, opt):
    p = Prog()
    prof = opt.get("prof", 0)
    p("s_cmp_ge_u32 s2, 256")
    p(f"s_cbranch_scc1 {name}_done ;@nodrain")
    if prof: p("s_memrealtime s[98:99]")
    p("s_load_dwordx2 s[22:23], s[0:1], 72")
    p("s_load_dwordx4 s[4:7], s[0:1], 8")
    p("v_readfirstlane_b32 s20, v0")
    p("v_and_b32 v0, 63, v0")
    p("s_lshr_b32 s20, s20, 6")
    p(f"s_mov_b32 s{S_MASK}, 0xff")
    p("s_lshr_b32 s100, s2, 3")
    p("s_lshl_b32 s100, s100, 2")
    p("s_and_b32 s21, s2, 7")
    p("s_add_u32 s100, s100, s21")
    p("s_sub_u32 s101, s100, 4")
    p(f"s_sub_u32 s3, s2, {NSPEC}")
    p("s_cmp_lt_u32 s2, 24")
    p("s_cselect_b32 s101, s101, s3")
    p("s_cselect_b32 s3, s21, 7")
    p("s_mov_b32 s21, s101")
    p("s_cmp_lt_u32 s3, 4")
    p(f"s_cbranch_scc1 {name}_special")
    gen_streamer(p, name, opt)
    p(f"{name}_special: ;@restore entry")
    gen_special(p, name, opt)
    p(f"{name}_done:")
    p("s_endpgm")
    return p, dict(vgpr=252 + 196, accum=252, lds=160256, grid=256, block=256)

def gen_streamer(p, name, opt):
    NT = " nt" if opt.get("nt", True) else ""
    prof = opt.get("prof", 0)
    NS = 10
    SP = opt.get("sp", 8)
    ST = lambda k: 76 + 60 * k
    F1R = lambda k, t: ST(k) + 4 * t
    F0R = lambda k, t, d: ST(k) + 12 + 16 * t + 4 * d
    VF0, VF1, VL16 = 1, 2, 3
    WA = [[4, 5, 6, 7], [216, 217, 218, 219]]
    RA = [[11, 12, 13, 14], [220, 221, 222, 223]]
    VTAG = 8
    QBA = 9
    TR = [15, 16, 17, 18, 19, 20]
    MXW, MXR, WXW, WXR = 21, 22, 23, 24
    M, L, Z, SN = 25, 26, 27, 28
    ACC = 32
    D1, D2, D3 = 56, 60, 64
    Uu, SS, RS, TM, TM2, AL, WF = 68, 69, 70, 71, 72, 73, 74
    U = 196; TT = 204
    QK = 212 + 12
    QKR = 212
    aQB, aXA, aXT, aONE = 0, 48, 96, 192
    XBUF = 49152; XT = 12288
    MX_OFF = 147456; LZ_OFF = MX_OFF + 256; QBL_OFF = LZ_OFF + 256; WX_OFF = QBL_OFF
    D1B = [56, 212, 216]; D3B = [64, 240, 244]; RSB = [70, 248, 249]; WFB = [74, 220, 222]
    XAB = [48, 96, 144]
    XTB = [96, 144]
    WA[1] = [228, 229, 230, 231]; RA[1] = [232, 233, 234, 235]
    QKR = 204 - 0
    QKR = 212
    WA[1] = [236, 237, 238, 239]; RA[1] = [29, 30, 31, 10]
    QKR = 212

    NSTR = 256 - NSPEC
    base_cnt = 9216 // NSTR; nbig = 9216 - base_cnt * NSTR
    assert base_cnt == 37
    glob = opt.get("glob", 1)
    if not glob:
        p(f"s_mul_i32 s96, s21, {base_cnt}")
        p(f"s_min_u32 s97, s21, {nbig}")
        p("s_add_u32 s96, s96, s97")
        p(f"s_cmp_lt_u32 s21, {nbig}")
        p("s_cselect_b32 s97, 2, 1")
        p("s_add_u32 s90, s96, s20")
        p("s_add_u32 s91, s90, s97")
        p("s_sub_u32 s91, s91, 4")
    else:
        p(f"s_min_u32 s97, s21, {nbig}")
        p("s_add_u32 s91, s21, s97")
        p("s_add_u32 s91, s91, s20")
        p(f"s_cmp_lt_u32 s21, {nbig}")
        p("s_cselect_b32 s97, 2, 1")
        p("s_lshl_b32 s90, s21, 2")
        p("s_add_u32 s90, s90, s20")
    FP, J = 56, 57
    p(f"v_lshrrev_b32 v{FP}, 4, v0")
    p(f"v_and_b32 v{J}, 15, v0")
    p(f"v_mul_u32_u24 v{VF0}, 1536, v{FP}")
    p(f"v_lshl_add_u32 v{VF0}, v{J}, 4, v{VF0}")
    p(f"v_mul_u32_u24 v{VF1}, 768, v{FP}")
    p(f"v_lshl_add_u32 v{VF1}, v{J}, 4, v{VF1}")
    p(f"v_lshlrev_b32 v{VL16}, 4, v0")
    p("s_waitcnt lgkmcnt(0)")
    srd(p, 8, 4, F0_BYTES)
    srd(p, 12, 6, F1_BYTES)
    srd(p, 16, 22, WS_USED)
    p(f"s_load_dword s94, s[22:23], {N_OFF}")

    LOOP = opt.get("loop", 1)
    full = 4 * NSTR; part = NSTR + nbig
    p("s_sub_u32 s91, s91, s90")
    p("s_mov_b32 s96, -1")
    p("s_cmp_lt_u32 s20, s97")
    p("s_cselect_b32 s89, 0, 0xf149f2ca")
    def tile_offsets(s):
        p("s_add_u32 s96, s96, 1")
        p(f"s_mul_i32 s27, s96, {full}")
        p("s_add_u32 s27, s27, s90")
        p(f"s_cmp_gt_u32 s96, {SP}")
        p(f"s_cselect_b32 s28, {(part - full) & 0xffffffff}, 0")
        p("s_add_u32 s27, s27, s28")
        p(f"s_cmp_eq_u32 s96, {SP}")
        p("s_cselect_b32 s28, s91, 0")
        p("s_cselect_b32 s23, s89, 0")
        p("s_add_u32 s27, s27, s28")
        p("s_mul_i32 s24, s27, 3072")
        p(f"s_mul_hi_u32 s28, s27, {(2**32 + 47)//48}")
        p("s_mul_i32 s29, s28, 48")
        p("s_sub_u32 s29, s27, s29")
        p("s_mul_i32 s25, s28, 589824")
        p("s_mul_i32 s29, s29, 6144")
        p("s_add_u32 s25, s25, s29")
        p("s_add_u32 s26, s25, 294912")
        p(f"s_cmp_ge_u32 s96, {NS}")
        p("s_cselect_b32 s23, 1, s23")
        p("s_cmp_eq_u32 s23, 0")
        p(f"s_cselect_b32 s10, {F0_BYTES}, 0")
        p(f"s_cselect_b32 s14, {F1_BYTES}, 0")
    loads = []
    lidx = {}
    class Cap:
        def __init__(self): self.l = []
        def __call__(self, x): self.l.append(x)
    def build_loads():
        nonlocal p
        for s in range(NS + 2):
            keep = p; p = Cap(); tile_offsets(s); pre = p.l; p = keep
            for t in range(3):
                r = F1R(s & 1, t)
                lidx[(s, 'f1', t)] = len(loads)
                loads.append(dict(pre=pre, key=(s & 1, 'f1', t) if s >= 2 else None,
                                  ins=f"buffer_load_dwordx4 v[{r}:{r+3}], v{VF1}, s[12:15], s24 offen offset:{256*t}{NT}"))
                pre = []
                for d in range(4):
                    r = F0R(s & 1, t, d)
                    so = "s25" if d < 2 else "s26"
                    lidx[(s, t, d)] = len(loads)
                    loads.append(dict(pre=[], key=(s & 1, t, d) if s >= 2 else None,
                                      ins=f"buffer_load_dwordx4 v[{r}:{r+3}], v{VF0}, s[8:11], {so} offen offset:{256*t + 768*(d&1)}{NT}"))
    build_loads()
    def mark(*a): p.items.append(a)
    stream_start = len(p.items)
    mark('t', 0)

    p("s_waitcnt lgkmcnt(0)")
    p("s_add_u32 s94, s94, 1")
    p(f"s_and_b32 s{S_TAG}, s94, 0xff")
    p(f"v_mov_b32 v{VTAG}, s{S_TAG}")
    tagpat(p, 4)

    p(f"s_mul_i32 s47, s20, {XT}")
    p(f"v_and_b32 v58, 1, v{FP}")
    p(f"v_lshlrev_b32 v58, 3, v58")
    p(f"v_lshrrev_b32 v59, 1, v{FP}")
    p(f"v_add_u32 v58, v58, v59")
    p(f"v_xor_b32 v58, v58, v{J}")
    p(f"v_lshlrev_b32 v58, 4, v58")
    p(f"v_mul_u32_u24 v59, 3072, v{FP}")
    p(f"v_add_u32 v58, v58, v59")
    p(f"v_add_u32 v{WA[0][0]}, s47, v58")
    for d in range(1, 4): p(f"v_xor_b32 v{WA[0][d]}, {32*d}, v{WA[0][0]}")
    for d in range(4): p(f"v_add_u32 v{WA[1][d]}, {2*XBUF}, v{WA[0][d]}")
    I, G, SI = 57, 56, 58
    p(f"v_and_b32 v{SI}, 7, v{I}")
    p(f"v_lshlrev_b32 v{SI}, 1, v{SI}")
    p(f"v_lshrrev_b32 v59, 3, v{I}")
    p(f"v_or_b32 v{SI}, v{SI}, v59")
    p(f"v_lshlrev_b32 v59, 1, v{G}")
    p(f"v_xor_b32 v59, v59, v{SI}")
    p(f"v_mul_u32_u24 v60, 768, v{I}")
    p(f"v_add_u32 v60, s47, v60")
    for b3 in range(2):
        for b0 in range(2):
            r = RA[0][2 * b3 + b0]
            p(f"v_xor_b32 v{r}, {8*b3+b0}, v59")
            p(f"v_lshl_add_u32 v{r}, v{r}, 4, v60")
            p(f"v_add_u32 v{RA[1][2*b3+b0]}, {2*XBUF}, v{r}")
    p(f"v_lshlrev_b32 v{MXR}, 4, v{I}")
    p(f"v_lshrrev_b32 v59, 1, v{G}")
    p(f"v_lshlrev_b32 v59, 10, v59")
    p(f"v_and_b32 v60, 1, v{G}")
    p(f"v_lshl_add_u32 v59, v60, 3, v59")
    p(f"v_add_u32 v59, v59, v{MXR}")
    p(f"v_add_u32 v{QBA}, {QBL_OFF}, v59")
    p(f"v_add_u32 v{MXR}, {MX_OFF}, v{MXR}")
    p("s_lshl_b32 s48, s20, 2")
    p(f"v_add_u32 v{MXW}, s48, v{MXR}")
    p(f"v_add_u32 v{WXR}, {WX_OFF}, v{VL16}")
    p("s_lshr_b32 s48, s20, 1")
    p("s_lshl_b32 s48, s48, 10")
    p("s_and_b32 s49, s20, 1")
    p("s_lshl_b32 s49, s49, 3")
    p("s_add_u32 s48, s48, s49")
    p(f"v_add_u32 v{WXW}, s48, v{WXR}")
    I = 56
    p(f"v_lshrrev_b32 v{I}, 2, v0")
    p(f"v_and_b32 v{SI}, 7, v{I}")
    p(f"v_lshlrev_b32 v{SI}, 1, v{SI}")
    p(f"v_lshrrev_b32 v59, 3, v{I}")
    p(f"v_or_b32 v{SI}, v{SI}, v59")
    p(f"v_and_b32 v59, 3, v0")
    p(f"v_lshrrev_b32 v60, 1, v59")
    p(f"v_xor_b32 v{SI}, v{SI}, v60")
    p(f"v_and_b32 v59, 1, v59")
    p(f"v_lshlrev_b32 v59, 3, v59")
    p(f"v_mul_u32_u24 v60, 768, v{I}")
    p(f"v_add_u32 v60, v60, v59")
    p("s_mul_i32 s48, s20, 6")
    for q in range(6):
        p(f"s_add_u32 s49, s48, {q}")
        p("s_and_b32 s50, s49, 7")
        p("s_lshl_b32 s50, s50, 1")
        p("s_lshr_b32 s49, s49, 3")
        p("s_lshl_b32 s49, s49, 8")
        p(f"v_xor_b32 v{TR[q]}, s50, v{SI}")
        p(f"v_lshl_add_u32 v{TR[q]}, v{TR[q]}, 4, v60")
        p(f"v_add_u32 v{TR[q]}, s49, v{TR[q]}")
    for r in range(4):
        mov64(p, 30 + 2 * r, sum(1 << (20 * g + r) for g in range(4)))
    for r in range(1, 4):
        mov64(p, 38 + 2 * (r - 1), 0x1111111111111111 << r)
    p("s_mov_b32 s44, 0xffff0000")
    p("s_mov_b32 s87, 0xffffff00")
    p(f"s_mov_b32 s45, 0x{f2u(1.0 / C):08x}")
    p(f"s_mov_b32 s46, 0x{f2u(1e-5):08x}")
    p("s_mov_b32 s51, 0x00003f80")
    p("s_mov_b32 s3, 0x3f800000")
    for r in range(24): p(f"v_mov_b32 v{ACC+r}, 0")
    p(f"v_mov_b32 v{M}, 0xf149f2ca")
    p(f"v_mov_b32 v{L}, 0")
    p(f"v_mov_b32 v{Z}, 0")
    p("v_mov_b32 v56, 0x3f803f80")
    for r in range(4): p(f"v_accvgpr_write_b32 a{aONE+r}, v56")

    tr_slot = [0]
    dyn = [False]
    def wa(slot, d, t):
        if dyn[0]: return (WA[0][d], 768 * d + 256 * t)
        return (WA[0][d], slot * XBUF + 768 * d + 256 * t) if slot < 2 else (WA[1][d], 768 * d + 256 * t)
    def ra(slot, ks):
        i = 2 * ((ks >> 1) & 1) + (ks & 1)
        if dyn[0]: return (RA[0][i], 256 * (ks >> 2))
        return (RA[0][i], slot * XBUF + 256 * (ks >> 2)) if slot < 2 else (RA[1][i], 256 * (ks >> 2))

    def m_reads(s, t, xa=aXA):
        for ks in range(4 * t, 4 * t + 4):
            r, off = ra(s % 3, ks)
            p(f"ds_read_b128 a[{xa+4*ks}:{xa+4*ks+3}], v{r} offset:{off}")
    def m_mfma(s, t, b=0, what="gol", xa=aXA):
        d1, d3 = D1B[b], D3B[b]
        G_, O_, L_ = [], [], []
        for ks in range(4 * t, 4 * t + 4):
            x = f"a[{xa+4*ks}:{xa+4*ks+3}]"
            c1 = "0" if ks == 0 else f"v[{d1}:{d1+3}]"
            c2 = "0" if ks == 0 else f"v[{D2}:{D2+3}]"
            c3 = "0" if ks == 0 else f"v[{d3}:{d3+3}]"
            G_.append(f"v_mfma_f32_16x16x32_bf16 v[{D2}:{D2+3}], {x}, {x}, {c2}")
            O_.append(f"v_mfma_f32_16x16x32_bf16 v[{d3}:{d3+3}], {x}, a[{aONE}:{aONE+3}], {c3}")
            L_.append(f"v_mfma_f32_16x16x32_bf16 v[{d1}:{d1+3}], {x}, a[{aQB+4*ks}:{aQB+4*ks+3}], {c1}")
        if what == "l":
            for x in L_: p(x)
        elif what == "go":
            for g_, o_ in zip(G_, O_): p(g_); p(o_)
        elif t < 2:
            for g_, o_, l_ in zip(G_, O_, L_): p(g_); p(o_); p(l_)
        else:
            for g_, o_ in zip(G_, O_): p(g_); p(o_)
            for l_ in L_: p(l_)
    def stats(b):
        d3, rs = D3B[b], RSB[b]
        p(f"v_cndmask_b32 v{Uu}, 0, v{D2}, s[30:31]")
        for r in range(1, 4):
            p(f"v_cndmask_b32 v{Uu}, v{Uu}, v{D2+r}, s[{30+2*r}:{31+2*r}]")
        p(f"v_cndmask_b32 v{SS}, v{d3}, v{d3+1}, s[38:39]")
        p(f"v_cndmask_b32 v{SS}, v{SS}, v{d3+2}, s[40:41]")
        p(f"v_add_f32_dpp v{Uu}, v{Uu}, v{Uu} row_ror:4 row_mask:0xf bank_mask:0xf")
        p(f"v_cndmask_b32 v{SS}, v{SS}, v{d3+3}, s[42:43]")
        p(f"v_mov_b32 v{TM}, s46")
        p(f"v_add_f32_dpp v{Uu}, v{Uu}, v{Uu} row_ror:8 row_mask:0xf bank_mask:0xf")
        p(f"v_mul_f32 v{SS}, s45, v{SS}")
        p(f"v_fma_f32 v{Uu}, v{Uu}, s45, v{TM}")
        p(f"v_fma_f32 v{Uu}, -v{SS}, v{SS}, v{Uu}")
        p(f"v_max_f32 v{Uu}, s46, v{Uu}")
        p(f"v_rsq_f32 v{rs}, v{Uu}")
    def stage_G(s, b):
        for t in range(3): m_reads(s, t)
        mark('t', 120)
        for t in range(3): m_mfma(s, t, b, "go")
        stats(b)

    def stage_A(s, ld, fuse, thirds=(0, 1, 2)):
        slot = s % 3; k = s & 1
        for t in thirds:
            if (s, t) == qpos: qk_issue()
            f1 = F1R(k, t)
            mark('use', lidx[(s, 'f1', t)])
            for j in range(4):
                p(f"v_lshlrev_b32 v{U+2*j}, 16, v{f1+j}")
                p(f"v_and_b32 v{U+2*j+1}, s44, v{f1+j}")
            mark('free', (k, 'f1', t))
            for d in range(4):
                f0 = F0R(k, t, d)
                mark('use', lidx[(s, t, d)])
                for j in range(4):
                    p(f"v_dot2_f32_bf16 v{TT+2*j}, v{f0+j}, s51, v{U+2*j}")
                    p(f"v_dot2_f32_bf16 v{TT+2*j+1}, v{f0+j}, s3, v{U+2*j+1}")
                for j in range(4):
                    p(f"v_cvt_pk_bf16_f32 v{f0+j}, v{TT+2*j}, v{TT+2*j+1}")
                r, off = wa(slot, d, t)
                p(f"ds_write_b128 v{r}, v[{f0}:{f0+3}] offset:{off}")
                mark('free', (k, t, d))
            if fuse:
                m_reads(s, t)
                mark('t', 120)
                m_mfma(s, t)
        if fuse: stats(0)

    def stage_M(tiles, pre):
        if pre:
            for b, s in enumerate(tiles):
                for t in range(3): m_reads(s, t, XAB[b])
            mark('t', 100)
            for b, s in enumerate(tiles):
                for t in range(3): m_mfma(s, t, b, "l", XAB[b])
        else:
            for b, s in enumerate(tiles):
                if b == 0:
                    for t in range(3): m_reads(s, t, XAB[0])
                    mark('t', 120)
                if b + 1 < len(tiles):
                    for t in range(3): m_reads(tiles[b + 1], t, XAB[b + 1])
                for t in range(3): m_mfma(s, t, b, "gol", XAB[b])
                stats(b)

    qpos = None
    qk_loads = []
    qk_loads.append("s_mul_i32 s48, s20, 6144")
    qk_loads.append(f"s_add_u32 s48, s48, {QKF_OFF}")
    qk_loads.append("s_add_u32 s49, s48, 4096")
    for q in range(6):
        so, off = ("s48", 1024 * q) if q < 4 else ("s49", 1024 * (q - 4))
        qk_loads.append(f"buffer_load_dwordx4 v[{QKR+4*q}:{QKR+4*q+3}], v{VL16}, s[16:19], {so} offen offset:{off} sc1")
    def qk_issue():
        for x in qk_loads: p(x)
    def qb_setup(fused=False):
        QA = [196 + q for q in range(6)]
        for q in range(6):
            p("s_mul_i32 s48, s20, 6")
            p(f"s_add_u32 s48, s48, {q}")
            p("s_lshr_b32 s49, s48, 2")
            p("s_lshl_b32 s49, s49, 11")
            p("s_and_b32 s48, s48, 3")
            p("s_lshl_b32 s48, s48, 8")
            p("s_add_u32 s48, s48, s49")
            p(f"v_add_u32 v{QA[q]}, s48, v{QBA}")
        p(f"v_add_u32 v202, {QBL_OFF}, v{VL16}")
        if fused:
            for t in range(3): m_reads(0, t, 96)
            for t in range(3): m_reads(1, t, 144)
        mark('t', 300)
        stamp("Q0")
        if opt.get("prof") == 1: p(f"s_mov_b32 s{S_SPIN}, 0xffff")
        poll_block(p, name, qk_loads, list(range(QKR, QKR + 24)), VTAG, TM, preissued=True, lock=True)
        stamp("Qok")
        if opt.get("prof") == 1: p(f"s_mov_b32 s86, s{S_SPIN}")
        for q in range(6):
            p(f"v_cvt_pk_bf16_f32 v{QKR+4*q}, v{QKR+4*q}, v{QKR+4*q+1}")
            p(f"v_cvt_pk_bf16_f32 v{QKR+4*q+1}, v{QKR+4*q+2}, v{QKR+4*q+3}")
            p(f"ds_write_b64 v{QA[q]}, v[{QKR+4*q}:{QKR+4*q+1}]")
        p("s_barrier")
        stamp("Sbar")
        for ks in range(12):
            p(f"ds_read_b128 a[{aQB+4*ks}:{aQB+4*ks+3}], v202 offset:{1024*ks}")
        mark('t', 100)
        if not fused:
            for ks in range(12):
                c = "0" if ks == 0 else f"v[{D1}:{D1+3}]"
                p(f"v_mfma_f32_16x16x32_bf16 v[{D1}:{D1+3}], a[{aONE}:{aONE+3}], a[{aQB+4*ks}:{aQB+4*ks+3}], {c}")
            p(f"v_mul_f32 v{SN}, s45, v{D1}")
        else:
            xa = [96, 144, 48]
            for ks in range(12):
                qb = f"a[{aQB+4*ks}:{aQB+4*ks+3}]"
                p(f"v_mfma_f32_16x16x32_bf16 v[{D2}:{D2+3}], a[{aONE}:{aONE+3}], {qb}, {'0' if ks == 0 else f'v[{D2}:{D2+3}]'}")
                for b in range(3):
                    d1 = D1B[b]
                    p(f"v_mfma_f32_16x16x32_bf16 v[{d1}:{d1+3}], a[{xa[b]+4*ks}:{xa[b]+4*ks+3}], {qb}, {'0' if ks == 0 else f'v[{d1}:{d1+3}]'}")
            p(f"v_mul_f32 v{SN}, s45, v{D2}")

    first_bc = [True]
    def set_tr(slot):
        if slot != tr_slot[0]:
            dlt = (slot - tr_slot[0]) * XBUF
            for q in range(6):
                if dlt > 0: p(f"v_add_u32 v{TR[q]}, {dlt}, v{TR[q]}")
                else: p(f"v_subrev_u32 v{TR[q]}, {-dlt}, v{TR[q]}")
            tr_slot[0] = slot
    def tr_list(xt):
        trs = []
        for kst in range(2):
            for q in range(6):
                for h in range(2):
                    j = 2 * kst + h
                    a = xt + 8 * q + 4 * kst + 2 * h
                    trs.append(f"ds_read_b64_tr_b16 a[{a}:{a+1}], v{TR[q]} offset:{j*XT}")
        return trs
    def stage_B(tiles):
        nb = len(tiles)
        set_tr(tiles[0] % 3)
        for b, s in enumerate(tiles):
            d1, d3, rs = D1B[b], D3B[b], RSB[b]
            for r in range(4):
                p(f"v_fma_f32 v{d1+r}, -v{d3+r}, v{SN}, v{d1+r}")
            for r in range(4):
                p(f"v_mul_f32_dpp v{d1+r}, v{rs}, v{d1+r} quad_perm:[{r},{r},{r},{r}] row_mask:0xf bank_mask:0xf")
            if s == SP:
                for r in range(4): p(f"v_add_f32 v{d1+r}, s89, v{d1+r}")
        vals = [D1B[b] + r for b in range(nb) for r in range(4)]
        p(f"v_max3_f32 v{TM}, v{vals[0]}, v{vals[1]}, v{vals[2]}")
        rest = vals[3:]
        while len(rest) >= 2:
            p(f"v_max3_f32 v{TM}, v{TM}, v{rest[0]}, v{rest[1]}"); rest = rest[2:]
        if rest: p(f"v_max_f32 v{TM}, v{TM}, v{rest[0]}")
        xg_reduce(p, "v_max_f32", TM, TM2)
        p(f"ds_write_b32 v{MXW}, v{TM}")
        mark('t', 100)
        p("s_barrier")
        p(f"ds_read_b128 v[{D2}:{D2+3}], v{MXR}")
        mark('t', 80)
        trs = tr_list(XTB[0])
        for x in trs[:12]: p(x)
        p(f"v_max3_f32 v{TM}, v{D2}, v{D2+1}, v{D2+2}")
        p(f"v_max3_f32 v{TM}, v{TM}, v{D2+3}, v{M}")
        p(f"v_and_b32 v{TM}, s87, v{TM}")
        p(f"v_sub_f32 v{AL}, v{M}, v{TM}")
        p(f"v_mov_b32 v{M}, v{TM}")
        p(f"v_exp_f32 v{AL}, v{AL}")
        for v in vals: p(f"v_sub_f32 v{v}, v{v}, v{M}")
        for v in vals: p(f"v_exp_f32 v{v}, v{v}")
        for x in trs[12:]: p(x)
        p(f"v_add_f32 v{TM}, v{vals[0]}, v{vals[1]}")
        p(f"v_add_f32 v{TM2}, v{vals[2]}, v{vals[3]}")
        for i in range(4, len(vals), 2):
            p(f"v_add_f32 v{TM}, v{TM}, v{vals[i]}")
            p(f"v_add_f32 v{TM2}, v{TM2}, v{vals[i+1]}")
        p(f"v_add_f32 v{TM}, v{TM}, v{TM2}")
        p(f"v_fma_f32 v{L}, v{L}, v{AL}, v{TM}")
        for b in range(nb):
            d1, rs, wf = D1B[b], RSB[b], WFB[b]
            for r in range(4):
                p(f"v_mul_f32_dpp v{d1+r}, v{rs}, v{d1+r} quad_perm:[{r},{r},{r},{r}] row_mask:0xf bank_mask:0xf")
            p(f"v_cvt_pk_bf16_f32 v{wf}, v{d1}, v{d1+1}")
            p(f"v_cvt_pk_bf16_f32 v{wf+1}, v{d1+2}, v{d1+3}")
            p(f"ds_write_b64 v{WXW}, v[{wf}:{wf+1}] offset:{2048*b}")
        if nb > 1:
            set_tr(tiles[1] % 3)
            for x in tr_list(XTB[1]): p(x)
        p(f"v_mul_f32 v{Z}, v{Z}, v{AL}")
        for b in range(nb):
            for r in range(4): p(f"v_fma_f32 v{Z}, v{D1B[b]+r}, v{D3B[b]+r}, v{Z}")
        if not first_bc[0]:
            for r in range(24): p(f"v_mul_f32 v{ACC+r}, v{ACC+r}, v{AL}")
        first_bc[0] = False
        p("s_barrier")

    def stage_C(tiles):
        nb = len(tiles)
        WR = [(D1, D2), (212, 216), (D1, D2)]
        for b in range(min(nb, 2)):
            p(f"ds_read_b128 v[{WR[b][0]}:{WR[b][0]+3}], v{WXR} offset:{2048*b}")
            p(f"ds_read_b128 v[{WR[b][1]}:{WR[b][1]+3}], v{WXR} offset:{2048*b + 1024}")
        mark('t', 120)
        for b in range(nb):
            xt = XTB[b & 1]
            for kst in range(2):
                bb = WR[b][kst]
                for q in range(6):
                    a = xt + 8 * q + 4 * kst
                    p(f"v_mfma_f32_16x16x32_bf16 v[{ACC+4*q}:{ACC+4*q+3}], a[{a}:{a+3}], v[{bb}:{bb+3}], v[{ACC+4*q}:{ACC+4*q+3}]")
            if b == 0 and nb == 3:
                set_tr(tiles[2] % 3)
                for x in tr_list(XTB[0]): p(x)
                p(f"ds_read_b128 v[{WR[2][0]}:{WR[2][0]+3}], v{WXR} offset:{2048*2}")
                p(f"ds_read_b128 v[{WR[2][1]}:{WR[2][1]+3}], v{WXR} offset:{2048*2 + 1024}")
        if nb == 3 or True:
            pass


    PR, LSUM, ZSUM, WR2, FLR4 = 212, 216, 217, 224, 232
    FLW, FLR = 250, 251
    FL_OFF = WX_OFF + 8192
    THR = opt.get("thr", 8)
    class Sub:
        def __enter__(self):
            self.keep = p.items; p.items = []; return self
        def __exit__(self, *a):
            self.items = p.items; p.items = self.keep
    def merge(mf, sec, lead, per=2):
        i = 0
        def take(n):
            nonlocal i
            while i < len(sec) and (n > 0 or isinstance(sec[i], tuple)):
                p.items.append(sec[i])
                if not isinstance(sec[i], tuple): n -= 1
                i += 1
        take(lead)
        for m in mf:
            p.items.append(m); take(per)
        take(10 ** 6)
    def a_third(s, t):
        with Sub() as c: stage_A(s, None, False, (t,))
        return c.items
    def m_list(s, t):
        with Sub() as c: m_mfma(s, t)
        return c.items
    f2_init = [False]
    pendC = [None]
    def c_list(wr, xt):
        out = []
        for kst in range(2):
            bb = wr + 4 * kst
            for q in range(6):
                a = xt + 8 * q + 4 * kst
                out.append(f"v_mfma_f32_16x16x32_bf16 v[{ACC+4*q}:{ACC+4*q+3}], a[{a}:{a+3}], v[{bb}:{bb+3}], v[{ACC+4*q}:{ACC+4*q+3}]")
        return out
    def flush_C():
        if pendC[0]:
            for x in pendC[0]: p(x)
            pendC[0] = None
    def w_chain(src, exact_dm=None):
        rs, d3, wf = RSB[0], D3B[0], WFB[0]
        for r in range(4): p(f"v_exp_f32 v{PR+r}, v{src+r}")
        p(f"v_add_f32 v{LSUM}, v{PR}, v{PR+1}")
        p(f"v_add_f32 v{ZSUM}, v{PR+2}, v{PR+3}")
        p(f"v_add_f32 v{LSUM}, v{LSUM}, v{ZSUM}")
        for r in range(4):
            p(f"v_mul_f32_dpp v{PR+r}, v{rs}, v{PR+r} quad_perm:[{r},{r},{r},{r}] row_mask:0xf bank_mask:0xf")
        p(f"v_cvt_pk_bf16_f32 v{wf}, v{PR}, v{PR+1}")
        p(f"v_cvt_pk_bf16_f32 v{wf+1}, v{PR+2}, v{PR+3}")
        p(f"ds_write_b64 v{WXW}, v[{wf}:{wf+1}]")
        p(f"v_mul_f32 v{ZSUM}, v{PR}, v{d3}")
        for r in range(1, 4): p(f"v_fma_f32 v{ZSUM}, v{PR+r}, v{d3+r}, v{ZSUM}")
    def m2_publish():
        mark('lock')
        p(f"v_bfi_b32 v{TM}, s{S_MASK}, v{VTAG}, v{M}")
        p(f"v_bfe_u32 v{TM2}, v0, 2, 2")
        p(f"v_lshlrev_b32 v{TM2}, 12, v{TM2}")
        p(f"v_and_b32 v{AL}, 3, v0")
        p(f"v_lshl_add_u32 v{TM2}, v{AL}, 2, v{TM2}")
        p("s_lshl_b32 s48, s2, 4")
        p(f"s_add_u32 s48, s48, {M2_OFF}")
        p("s_cmp_eq_u32 s20, 0")
        p(f"s_cbranch_scc0 {name}_m2skip ;@nodrain")
        p("s_mov_b64 exec, 0xffff")
        p(f"buffer_store_dword v{TM}, v{TM2}, s[16:19], s48 offen sc1")
        p("s_mov_b64 exec, -1")
        p(f"{name}_m2skip:")
        mark('unlock')
    def stage_F2(s, last):
        if not f2_init[0]:
            f2_init[0] = True
            p(f"s_lshl_b32 s48, s20, 2")
            p(f"s_add_u32 s48, s48, {FL_OFF}")
            p(f"v_mov_b32 v{FLW}, s48")
            p(f"v_mov_b32 v{FLR}, {FL_OFF}")
            p(f"s_mov_b32 s88, 0x{f2u(float(THR)):08x}")
        d1, d3, rs = D1B[0], D3B[0], RSB[0]
        if LOOP:
            first = not dyn[0]
            if first:
                assert s % 3 == 0
                set_tr(0)
                p("s_mov_b32 s47, 0")
                p(f"s_mov_b32 s100, {s - 1}")
                p("s_mov_b32 s101, 0")
                dyn[0] = True
            p(f".set ZB{s}, 0")
            mark('zstart')
            mark('lock')
            if not first:
                p("s_add_u32 s47, s47, 1")
                p(f"s_mov_b32 s48, {XBUF}")
                p("s_cmp_eq_u32 s47, 3")
                p(f"s_cselect_b32 s48, {(-2*XBUF) & 0xffffffff}, s48")
                p("s_cselect_b32 s47, 0, s47")
            p("s_add_u32 s100, s100, 1")
            p(f"s_cmp_eq_u32 s100, {SP}")
            p("s_cselect_b32 s22, s89, 0")
            mark('unlock')
            if not first:
                for r in WA[0] + RA[0] + TR: p(f"v_add_u32 v{r}, s48, v{r}")
        def fz(i):
            if opt.get("prof") == 7 and (s & 1): p(f"s_memtime s[{52+2*i}:{53+2*i}]")
        fz(0)
        a0 = a_third(s, 0)
        if pendC[0]:
            merge(pendC[0], a0, lead=16); pendC[0] = None
        else:
            p.items.extend(a0)
        fz(1)
        m_reads(s, 0)
        merge(m_list(s, 0), a_third(s, 1), lead=20)
        fz(2)
        m_reads(s, 1)
        merge(m_list(s, 1), a_third(s, 2), lead=20)
        fz(3)
        m_reads(s, 2)
        if not LOOP: set_tr(s % 3)
        p("s_barrier")
        fz(4)
        trs = tr_list(XTB[0])
        merge(m_list(s, 2), trs, lead=2, per=2)
        fz(5)
        stats(0)
        fz(6)
        for r in range(4):
            p(f"v_fma_f32 v{d1+r}, -v{d3+r}, v{SN}, v{d1+r}")
        for r in range(4):
            p(f"v_mul_f32_dpp v{d1+r}, v{rs}, v{d1+r} quad_perm:[{r},{r},{r},{r}] row_mask:0xf bank_mask:0xf")
        if LOOP:
            for r in range(4): p(f"v_add_f32 v{d1+r}, s22, v{d1+r}")
        elif s == SP:
            for r in range(4): p(f"v_add_f32 v{d1+r}, s89, v{d1+r}")
        for r in range(4): p(f"v_sub_f32 v{d1+r}, v{d1+r}, v{M}")
        p(f"v_max3_f32 v{TM}, v{d1}, v{d1+1}, v{d1+2}")
        p(f"v_max_f32 v{TM}, v{TM}, v{d1+3}")
        p(f"v_cmp_lt_f32 vcc, s88, v{TM}")
        mark('lock')
        fz(7)
        for r in range(4): p(f"v_exp_f32 v{PR+r}, v{d1+r}")
        p("s_cmp_lg_u64 vcc, 0")
        p("s_cselect_b32 s48, 1, 0")
        mark('unlock')
        p(f"v_mov_b32 v{TM2}, s48")
        p(f"v_add_f32 v{LSUM}, v{PR}, v{PR+1}")
        p(f"v_add_f32 v{ZSUM}, v{PR+2}, v{PR+3}")
        p(f"ds_write_b32 v{FLW}, v{TM2}")
        p(f"v_add_f32 v{LSUM}, v{LSUM}, v{ZSUM}")
        wf = WFB[0]
        for r in range(4):
            p(f"v_mul_f32_dpp v{PR+r}, v{rs}, v{PR+r} quad_perm:[{r},{r},{r},{r}] row_mask:0xf bank_mask:0xf")
        p(f"v_cvt_pk_bf16_f32 v{wf}, v{PR}, v{PR+1}")
        p(f"v_cvt_pk_bf16_f32 v{wf+1}, v{PR+2}, v{PR+3}")
        p(f"ds_write_b64 v{WXW}, v[{wf}:{wf+1}]")
        p(f"v_mul_f32 v{ZSUM}, v{PR}, v{d3}")
        for r in range(1, 4): p(f"v_fma_f32 v{ZSUM}, v{PR+r}, v{d3+r}, v{ZSUM}")
        fz(8)
        p("s_barrier")
        fz(9)
        p(f"ds_read_b128 v[{FLR4}:{FLR4+3}], v{FLR}")
        p(f"ds_read_b128 v[{WR2}:{WR2+3}], v{WXR}")
        p(f"ds_read_b128 v[{WR2+4}:{WR2+7}], v{WXR} offset:1024")
        mark('t', 100)
        mark('lock')
        p(f"v_or3_b32 v{TM}, v{FLR4}, v{FLR4+1}, v{FLR4+2}")
        p(f"v_or_b32 v{TM}, v{TM}, v{FLR4+3}")
        p(f"v_cmp_ne_u32 vcc, 0, v{TM}")
        uid[0] += 1
        Lb = f"{name}_lz{uid[0]}"
        p(f"s_cbranch_vccz {Lb}")
        p("s_waitcnt lgkmcnt(0)")
        p(f"v_max3_f32 v{TM}, v{d1}, v{d1+1}, v{d1+2}")
        p(f"v_max_f32 v{TM}, v{TM}, v{d1+3}")
        xg_reduce(p, "v_max_f32", TM, TM2)
        p(f"ds_write_b32 v{MXW}, v{TM}")
        p("s_barrier")
        p(f"ds_read_b128 v[{FLR4}:{FLR4+3}], v{MXR}")
        p(f"v_max3_f32 v{TM}, v{FLR4}, v{FLR4+1}, v{FLR4+2}")
        p(f"v_max3_f32 v{TM}, v{TM}, v{FLR4+3}, 0")
        p(f"v_add_f32 v{TM2}, v{M}, v{TM}")
        p(f"v_and_b32 v{TM2}, s87, v{TM2}")
        p(f"v_sub_f32 v{TM}, v{TM2}, v{M}")
        p(f"v_mov_b32 v{M}, v{TM2}")
        p(f"v_sub_f32 v{AL}, 0, v{TM}")
        p(f"v_exp_f32 v{AL}, v{AL}")
        for r in range(4): p(f"v_sub_f32 v{d1+r}, v{d1+r}, v{TM}")
        for r in range(24): p(f"v_mul_f32 v{ACC+r}, v{ACC+r}, v{AL}")
        p(f"v_mul_f32 v{L}, v{L}, v{AL}")
        p(f"v_mul_f32 v{Z}, v{Z}, v{AL}")
        w_chain(d1)
        p("s_barrier")
        p(f"ds_read_b128 v[{WR2}:{WR2+3}], v{WXR}")
        p(f"ds_read_b128 v[{WR2+4}:{WR2+7}], v{WXR} offset:1024")
        p("s_waitcnt lgkmcnt(0)")
        p("s_nop 7")
        p(f"{Lb}: ;@restore {Lb}")
        mark('unlock')
        if last and not LOOP: m2_publish()
        p(f"v_add_f32 v{L}, v{L}, v{LSUM}")
        p(f"v_add_f32 v{Z}, v{Z}, v{ZSUM}")
        fz(10)
        if LOOP and opt.get("prof") == 6:
            mark('lock')
            p("s_memrealtime s[84:85]")
            p("s_sub_u32 s83, s100, 3")
            p("s_mov_b32 m0, s83")
            p("s_waitcnt lgkmcnt(0)")
            p("v_writelane_b32 v239, s84, m0")
            mark('unlock')
        if LOOP: mark('zend')
        cl = c_list(WR2, XTB[0])
        if last and not LOOP:
            for x in cl: p(x)
        else:
            pendC[0] = cl

    stamp = Prof(p, opt, 52, 86)
    sched = opt.get("sched", "A0 G00 A1 G11 A2 Q G22 D11 P140 D30 T Y D20 Z3 Z4 Z5 Z6 Z7 Z8 Z9")
    stamp("init")
    for tok in sched.replace("_", " ").split():
        if tok == "S":
            mark('log', 'S0'); qb_setup(); stamp("S")
        elif tok == "T":
            mark('log', 'T0'); qb_setup(True); stamp("S")
        elif tok == "Y":
            stage_B([0, 1, 2]); stage_C([0, 1, 2]); stamp("X012")
        elif tok == "Q": qk_issue()
        elif tok[0] == "I":
            mark('force', 15 * int(tok[1]) + int(tok[2:]))
        elif tok[0] == "D":
            mark('dmax', int(tok[1:]))
        elif tok[0] == "P":
            mark('gap', int(tok[1:]))
        elif tok[0] == "W":
            mark('until', int(tok[1:]) * 210)
        elif tok[0] == "Z":
            s = int(tok[1]); stage_F2(s, s == NS - 1)
            if not LOOP: stamp(tok)
        elif tok[0] in "AF":
            s = int(tok[1])
            if len(tok) == 3:
                stage_A(s, None, False, (int(tok[2]),))
                if tok[2] == "2" and s < 3: stamp(tok[:2])
            else:
                stage_A(s, None, tok[0] == "F")
                if tok[0] == "F":
                    stage_B([s]); stage_C([s])
                if tok[0] == "F" or s < 3: stamp(tok)
        elif tok[0] == "G":
            stage_G(int(tok[1]), int(tok[2]))
        elif tok[0] in "MX":
            tiles = [int(c) for c in tok[1:]]
            stage_M(tiles, tok[0] == "X"); stage_B(tiles); stage_C(tiles); stamp(tok)
        mark('log', tok)
    if LOOP:
        p(".set ZEND, 0")
        mark('lock')
        m2_publish()
        mark('lock')
        flush_C()
        stamp("Z9")
    body = p.items[stream_start:]
    sched_out = schedule_loads(body, loads, pace=opt.get("pace", 300), lat=opt.get("lat", 1500), dmax=opt.get("dmax", 7), verbose=True, policy=opt.get("policy", "dist"))
    p.items[stream_start:] = sched_out

    if opt.get("streamonly"):
        p("s_endpgm")
        return
    p(f"v_lshrrev_b32 v56, 2, v0")
    p(f"v_lshlrev_b32 v56, 14, v56")
    p(f"v_and_b32 v57, 3, v0")
    p(f"v_lshl_add_u32 v56, v57, 4, v56")
    p(f"s_mul_i32 s24, s20, {3*16*16384}")
    p("s_lshl_b32 s25, s2, 6")
    p("s_add_u32 s24, s24, s25")
    p(f"s_add_u32 s24, s24, {PART_OFF}")
    p(f"v_mov_b32 v{TM}, 0x00010001")
    for k in range(3):
        b = ACC + 8 * k
        for j in range(4): p(f"v_cvt_pk_bf16_f32 v{b+j}, v{b+2*j}, v{b+2*j+1}")
        for j in range(4): p(f"v_bfi_b32 v{b+j}, v{TM}, s{4+j}, v{b+j}")
        p(f"buffer_store_dwordx4 v[{b}:{b+3}], v56, s[16:19], s24 offen sc1")
        if k < 2: p(f"s_add_u32 s24, s24, {16*16384}")
    xg_reduce(p, "v_add_f32", L, TM2)
    xg_reduce(p, "v_add_f32", Z, TM2)
    p(f"ds_write_b32 v{MXW}, v{L}")
    p(f"ds_write_b32 v{MXW}, v{Z} offset:{LZ_OFF - MX_OFF}")
    p("s_barrier")
    p("s_cmp_lg_u32 s20, 0")
    p(f"s_cbranch_scc1 {name}_red")
    p(f"ds_read_b128 v[56:59], v{MXR}")
    p(f"ds_read_b128 v[60:63], v{MXR} offset:{LZ_OFF - MX_OFF}")
    p("v_add_f32 v56, v56, v57")
    p("v_add_f32 v58, v58, v59")
    p("v_add_f32 v65, v56, v58")
    p("v_add_f32 v60, v60, v61")
    p("v_add_f32 v62, v62, v63")
    p("v_add_f32 v66, v60, v62")
    p(f"v_mov_b32 v64, v{M}")
    p(f"v_mov_b32 v67, v{VTAG}")
    p("s_lshl_b32 s24, s2, 8")
    p(f"s_add_u32 s24, s24, {ML_OFF}")
    p("s_mov_b64 exec, 0xffff")
    p(f"buffer_store_dwordx4 v[64:67], v{VL16}, s[16:19], s24 offen sc1")
    p("s_mov_b64 exec, -1")
    p(f"{name}_red: ;@restore red")
    stamp("pub")
    p(f"s_cmp_ge_u32 s21, {NRED}")
    p(f"s_cbranch_scc1 {name}_sdone ;@nodrain")
    p("s_lshr_b32 s24, s21, 4")
    p("s_lshr_b32 s25, s21, 2")
    p("s_and_b32 s25, s25, 3")
    p("s_and_b32 s26, s21, 3")
    p("v_and_b32 v56, 3, v0")
    p(f"v_mov_b32 v58, v{VL16}")
    p("v_lshlrev_b32 v59, 2, v0")
    p("s_lshl_b32 s27, s21, 14")
    p("s_lshl_b32 s28, s20, 12")
    p("s_add_u32 s27, s27, s28")
    p(f"s_add_u32 s27, s27, {PART_OFF}")
    p("s_lshl_b32 s29, s20, 10")
    p("s_lshl_b32 s28, s26, 12")
    p("s_add_u32 s29, s29, s28")
    p(f"s_add_u32 s29, s29, {M2_OFF}")
    PM = 76; PP = 108; NP = 4
    RL = f"{name}_rr"
    gate = opt.get("gate", 8)
    p(f"s_mov_b32 s50, {(1 << NP) - 1}")
    p(f"s_mov_b32 s51, {(1 << NP) - 1}")
    p(f"s_mov_b32 s{S_SPIN}, 0")
    def m2_check(i, lbl):
        p(f"s_bitcmp0_b32 s50, {i}")
        p(f"s_cbranch_scc1 {lbl} ;@nodrain")
        p(f"v_xor_b32 v{PM+i}, v{PM+i}, v{VTAG}")
        p(f"v_and_b32 v60, s{S_MASK}, v{PM+i}")
        p("v_cmp_ne_u32 vcc, 0, v60")
        p(f"s_cbranch_vccnz {lbl} ;@nodrain")
        p(f"s_bitset0_b32 s50, {i}")
        p(f"{lbl}:")
    if opt.get("m2early", 1):
        for i in range(NP):
            p(f"buffer_load_dword v{PM+i}, v59, s[16:19], s29 offen offset:{256*i} sc1")
    if opt.get("ackwait", 1): p("s_waitcnt vmcnt(0)")
    if opt.get("m2early", 1):
        for i in range(NP): m2_check(i, f"{RL}_e{i}")
    stamp("ack")
    p(f"{RL}_loop:")
    p("s_andn2_b32 s47, s51, s50")
    p("s_bcnt1_i32_b32 s48, s50")
    p(f"s_cmp_le_u32 s48, {gate}")
    p("s_cselect_b32 s47, s51, s47")
    for i in range(NP):
        p(f"s_bitcmp0_b32 s50, {i}")
        p(f"s_cbranch_scc1 {RL}_a{i} ;@nodrain")
        p(f"buffer_load_dword v{PM+i}, v59, s[16:19], s29 offen offset:{256*i} sc1")
        p(f"{RL}_a{i}:")
        p(f"s_bitcmp0_b32 s47, {i}")
        p(f"s_cbranch_scc1 {RL}_b{i} ;@nodrain")
        p(f"buffer_load_dwordx4 v[{PP+4*i}:{PP+4*i+3}], v58, s[16:19], s27 offen offset:{1024*i} sc1")
        p(f"{RL}_b{i}:")
    p("s_waitcnt vmcnt(0)")
    for i in range(NP):
        p(f"s_bitcmp0_b32 s47, {i}")
        p(f"s_cbranch_scc1 {RL}_c{i} ;@nodrain")
        r = PP + 4 * i
        for j in range(4): p(f"v_xor_b32 v{r+j}, s{4+j}, v{r+j}")
        p(f"v_or3_b32 v60, v{r}, v{r+1}, v{r+2}")
        p(f"v_or_b32 v60, v60, v{r+3}")
        p("v_and_b32 v60, 0x00010001, v60")
        p("v_cmp_ne_u32 vcc, 0, v60")
        p(f"s_cbranch_vccnz {RL}_c{i} ;@nodrain")
        p(f"s_bitset0_b32 s51, {i}")
        p(f"{RL}_c{i}:")
        m2_check(i, f"{RL}_d{i}")
    p("s_or_b32 s48, s50, s51")
    p("s_cmp_eq_u32 s48, 0")
    p(f"s_cbranch_scc1 {RL}_done ;@nodrain")
    p(f"s_add_u32 s{S_SPIN}, s{S_SPIN}, 1")
    p(f"s_cmp_lt_u32 s{S_SPIN}, {SPIN_MAX}")
    p(f"s_cbranch_scc1 {RL}_loop ;@nodrain")
    if DIAG[0]:
        uid[0] += 1
        p("s_mov_b64 vcc, 1")
        diag_store(p, uid[0], "s50")
    p(f"{RL}_done:")
    p("s_nop 7")
    if opt.get("prof") == 1: p(f"s_mov_b32 s86, s{S_SPIN}")
    stamp("redin")
    MV, T = 61, 62
    p(f"v_max3_f32 v{MV}, v{PM}, v{PM+1}, v{PM+2}")
    p(f"v_max_f32 v{MV}, v{MV}, v{PM+3}")
    p("v_mov_b32 v63, 0x8000")
    A8 = 64
    p(f"v_max_f32_dpp v{MV}, v{MV}, v{MV} row_ror:4 row_mask:0xf bank_mask:0xf")
    for j in range(4):
        p(f"v_lshl_or_b32 v{140+2*j}, v{PP+j}, 16, v63")
        p(f"v_and_or_b32 v{141+2*j}, v{PP+j}, s44, v63")
    p(f"v_max_f32_dpp v{MV}, v{MV}, v{MV} row_ror:8 row_mask:0xf bank_mask:0xf")
    xg_reduce(p, "v_max_f32", MV, T)
    for i in range(NP): p(f"v_sub_f32 v{PM+i}, v{PM+i}, v{MV}")
    for i in range(NP): p(f"v_exp_f32 v{PM+i}, v{PM+i}")
    for i in range(NP):
        r = PP + 4 * i
        if i > 0:
            for j in range(4):
                p(f"v_lshl_or_b32 v{140+2*j}, v{r+j}, 16, v63")
                p(f"v_and_or_b32 v{141+2*j}, v{r+j}, s44, v63")
        for j in range(8):
            if i == 0: p(f"v_mul_f32 v{A8+j}, v{PM}, v{140+j}")
            else: p(f"v_fma_f32 v{A8+j}, v{PM+i}, v{140+j}, v{A8+j}")
    for j in range(4): p(f"v_permlane32_swap_b32 v{A8+j}, v{A8+j+4}")
    for j in range(4): p(f"v_add_f32 v{A8+j}, v{A8+j}, v{A8+j+4}")
    for j in range(2): p(f"v_permlane16_swap_b32 v{A8+j}, v{A8+j+2}")
    for j in range(2): p(f"v_add_f32 v{A8+j}, v{A8+j}, v{A8+j+2}")
    for j in range(2): p(f"v_add_f32_dpp v{A8+j}, v{A8+j}, v{A8+j} row_ror:4 row_mask:0xf bank_mask:0xf")
    p("v_lshlrev_b32 v72, 3, v0")
    p("s_lshl_b32 s28, s20, 9")
    p("v_add_u32 v73, s28, v72")
    for j in range(2): p(f"v_add_f32_dpp v{A8+j}, v{A8+j}, v{A8+j} row_ror:8 row_mask:0xf bank_mask:0xf")
    p("v_lshlrev_b32 v74, 2, v0")
    p("s_lshl_b32 s28, s20, 8")
    p("v_add_u32 v75, s28, v74")
    p(f"ds_write_b64 v73, v[{A8}:{A8+1}]")
    p(f"ds_write_b32 v75, v{MV} offset:2048")
    p("s_barrier")
    p("s_cmp_lg_u32 s20, 0")
    p(f"s_cbranch_scc1 {name}_sdone ;@nodrain")
    for v in range(4):
        p(f"ds_read_b32 v{84+v}, v74 offset:{2048 + 256*v}")
        p(f"ds_read_b64 v[{76+2*v}:{77+2*v}], v72 offset:{512*v}")
    p("v_lshrrev_b32 v66, 4, v0")
    p("v_lshlrev_b32 v66, 3, v66")
    p("v_lshl_add_u32 v66, v56, 5, v66")
    p("s_lshl_b32 s24, s21, 7")
    p(f"s_add_u32 s24, s24, {UF_OFF}")
    p("v_max3_f32 v61, v84, v85, v86")
    p("v_max_f32 v61, v61, v87")
    for v in range(4): p(f"v_sub_f32 v{84+v}, v{84+v}, v61")
    for v in range(4): p(f"v_exp_f32 v{84+v}, v{84+v}")
    for r in range(2): p(f"v_mul_f32 v{64+r}, v84, v{76+r}")
    for v in range(1, 4):
        for r in range(2): p(f"v_fma_f32 v{64+r}, v{84+v}, v{76+2*v+r}, v{64+r}")
    tag_regs(p, range(64, 66), VTAG)
    p("s_mov_b32 exec_lo, 0x000f000f")
    p("s_mov_b32 exec_hi, 0x000f000f")
    p("buffer_store_dwordx2 v[64:65], v66, s[16:19], s24 offen sc1")
    stamp("redout")
    p(f"{name}_sdone:")
    if stamp.on:
        p("s_cmp_lg_u32 s20, 0")
        p(f"s_cbranch_scc1 {name}_done ;@nodrain")
        stamp.dump("streamer")
    p("s_endpgm")

def gen_special(p, name, opt):
    if opt.get("streamonly"):
        p("s_endpgm"); return
    stamp = Prof(p, opt, 64, 92)
    VL16, VI, VG, VTAG, VAB = 1, 2, 3, 4, 5
    LA = list(range(216, 228))
    RS = 784
    TILE_LDS = 16 * RS
    p("s_load_dwordx2 s[4:5], s[0:1], 0")
    p("s_load_dwordx4 s[8:11], s[0:1], 24")
    p("s_load_dwordx4 s[12:15], s[0:1], 40")
    p("s_load_dwordx2 s[6:7], s[0:1], 56")
    p(f"v_lshlrev_b32 v{VL16}, 4, v0")
    p(f"v_and_b32 v{VI}, 15, v0")
    p(f"v_lshrrev_b32 v{VG}, 4, v0")
    p(f"v_mul_u32_u24 v{VAB}, {RS}, v{VI}")
    p(f"v_lshl_add_u32 v{VAB}, v{VG}, 4, v{VAB}")
    for a in range(12):
        p(f"v_add_u32 v6, {1024*a}, v{VL16}")
        p("v_lshrrev_b32 v7, 8, v6")
        p("v_mul_u32_u24 v7, 21846, v7")
        p("v_lshrrev_b32 v7, 16, v7")
        p(f"v_lshl_add_u32 v{LA[a]}, v7, 4, v6")
    p("s_waitcnt lgkmcnt(0)")
    p(f"s_load_dword s94, s[22:23], {N_OFF}")
    srd(p, 16, 22, WS_USED)
    srd(p, 24, 8, W_BYTES)
    srd(p, 28, 10, W_BYTES)
    srd(p, 32, 4, Q_BYTES)
    srd(p, 36, 12, W_BYTES)
    srd(p, 40, 14, W_BYTES)
    srd(p, 44, 6, Q_BYTES)
    aONE = 144
    ONES = f"a[{aONE}:{aONE+3}]"
    def consts():
        for r in range(4): mov64(p, 52 + 2 * r, sum(1 << (20 * g + r) for g in range(4)))
        p(f"s_mov_b32 s60, 0x{f2u(1.0 / C):08x}")
        p(f"s_mov_b32 s61, 0x{f2u(1e-5):08x}")
        p("v_mov_b32 v6, 0x3f803f80")
        for r in range(4): p(f"v_accvgpr_write_b32 a{aONE+r}, v6")
        p("s_waitcnt lgkmcnt(0)")
        p("s_add_u32 s94, s94, 1")
        p(f"s_and_b32 s{S_TAG}, s94, 0xff")
        p(f"v_mov_b32 v{VTAG}, s{S_TAG}")
    p("s_cmp_ge_u32 s100, 6")
    p(f"s_cbranch_scc1 {name}_st2")
    WQS = 64
    QS = 16
    LQ = 0
    LWQ = 12544
    p("v_lshrrev_b32 v7, 3, v0")
    p("v_and_b32 v8, 7, v0")
    p("v_mul_u32_u24 v9, 768, v7")
    p("v_lshl_add_u32 v9, v8, 4, v9")
    p("v_mul_u32_u24 v10, 144, v7")
    p("v_lshl_add_u32 v10, v8, 4, v10")
    p("s_mul_i32 s48, s20, 3072")
    for a in range(3):
        p(f"buffer_load_dwordx4 v[{QS+4*a}:{QS+4*a+3}], v{VL16}, s[32:35], s48 offen offset:{1024*a}")
    p("s_lshl_b32 s48, s100, 7")
    p(f"s_mul_i32 s49, s20, {96*768}")
    p("s_add_u32 s48, s48, s49")
    for a in range(12):
        p(f"buffer_load_dwordx4 v[{WQS+4*a}:{WQS+4*a+3}], v9, s[24:27], s48 offen")
        if a < 11: p(f"s_add_u32 s48, s48, {8*768}")
    consts()
    stamp("issued")
    p("s_mul_i32 s48, s20, 3136")
    for a in range(3):
        p(f"v_add_u32 v6, s48, v{LA[a]}")
        p(f"ds_write_b128 v6, v[{QS+4*a}:{QS+4*a+3}] offset:{LQ}")
    p("s_barrier")
    QFR = 16
    for ks in range(12):
        p(f"ds_read_b128 v[{QFR+4*ks}:{QFR+4*ks+3}], v{VAB} offset:{LQ + 64*ks}")
    for ks in range(12):
        q = f"v[{QFR+4*ks}:{QFR+4*ks+3}]"
        p(f"v_mfma_f32_16x16x32_bf16 v[116:119], {q}, {q}, {'0' if ks == 0 else 'v[116:119]'}")
        p(f"v_mfma_f32_16x16x32_bf16 v[112:115], {ONES}, {q}, {'0' if ks == 0 else 'v[112:115]'}")
    p(f"s_mul_i32 s48, s20, {96*144}")
    p("v_add_u32 v10, s48, v10")
    p("v_lshrrev_b32 v11, 2, v0")
    p("v_and_b32 v11, 3, v11")
    p(f"v_lshl_add_u32 v11, v{VG}, 3, v11")
    p("v_mul_u32_u24 v11, 144, v11")
    p("v_and_b32 v13, 3, v0")
    p("v_lshl_add_u32 v11, v13, 3, v11")
    p("s_lshl_b32 s48, s20, 5")
    p("v_add_u32 v11, s48, v11")
    p("v_cndmask_b32 v12, 0, v116, s[52:53]")
    for r in range(1, 4): p(f"v_cndmask_b32 v12, v12, v{116+r}, s[{52+2*r}:{53+2*r}]")
    p("v_mul_f32 v14, s60, v112")
    xg_reduce(p, "v_add_f32", 12, 13)
    p("v_mov_b32 v13, s61")
    p("v_fma_f32 v12, v12, s60, v13")
    p("v_fma_f32 v12, -v14, v14, v12")
    p("v_max_f32 v12, s61, v12")
    p("v_rsq_f32 v15, v12")
    for a in range(12):
        p(f"ds_write_b128 v10, v[{WQS+4*a}:{WQS+4*a+3}] offset:{LWQ + 8*144*a}")
    stamp("s1ld")
    p("s_barrier")
    stamp("s1bar")
    aWT = 0
    for ks in range(12):
        for h in range(2):
            p(f"ds_read_b64_tr_b16 a[{aWT+4*ks+2*h}:{aWT+4*ks+2*h+1}], v11 offset:{LWQ + 32*144*ks + 4*144*h}")
    for ks in range(12):
        a = f"a[{aWT+4*ks}:{aWT+4*ks+3}]"
        q = f"v[{QFR+4*ks}:{QFR+4*ks+3}]"
        p(f"v_mfma_f32_16x16x32_bf16 v[120:123], {a}, {q}, {'0' if ks == 0 else 'v[120:123]'}")
        p(f"v_mfma_f32_16x16x32_bf16 v[124:127], {a}, {ONES}, {'0' if ks == 0 else 'v[124:127]'}")
    stamp("s1mf")
    for r in range(4): p(f"v_fma_f32 v{120+r}, -v14, v{124+r}, v{120+r}")
    for r in range(4): p(f"v_mul_f32 v{120+r}, v{120+r}, v15")
    tag_regs(p, range(120, 124), VTAG)
    p("s_lshl_b32 s48, s100, 2")
    p("s_add_u32 s48, s48, s20")
    p("s_lshl_b32 s48, s48, 10")
    p(f"s_add_u32 s48, s48, {QF_OFF}")
    p(f"buffer_store_dwordx4 v[120:123], v{VL16}, s[16:19], s48 offen sc1")
    stamp("st1")
    p(f"s_branch {name}_sp_w")
    p(f"{name}_st2: ;@restore st2")
    WKS = 64
    p("s_sub_u32 s21, s100, 6")
    p("s_lshl_b32 s21, s21, 2")
    p("s_add_u32 s21, s21, s20")
    p("s_mul_i32 s48, s21, 12288")
    for a in range(12):
        if a % 4 == 0 and a: p("s_add_u32 s48, s48, 4096")
        p(f"buffer_load_dwordx4 v[{WKS+4*a}:{WKS+4*a+3}], v{VL16}, s[28:31], s48 offen offset:{1024*(a%4)}")
    consts()
    stamp("issued")
    LWK = 0
    LQB = 4 * TILE_LDS
    p(f"s_mul_i32 s48, s20, {TILE_LDS}")
    for a in range(12):
        p(f"v_add_u32 v6, s48, v{LA[a]}")
        p(f"ds_write_b128 v6, v[{WKS+4*a}:{WKS+4*a+3}] offset:{LWK}")
    p(f"v_add_u32 v7, s48, v{VAB}")
    aWK = 48
    for ks in range(12):
        p(f"ds_read_b128 a[{aWK+4*ks}:{aWK+4*ks+3}], v7 offset:{LWK + 64*ks}")
    QR = 120
    loads = ["s_mul_i32 s48, s20, 6144", f"s_add_u32 s48, s48, {QF_OFF}", "s_add_u32 s49, s48, 4096"]
    for q in range(6):
        so, off = ("s48", 1024 * q) if q < 4 else ("s49", 1024 * (q - 4))
        loads.append(f"buffer_load_dwordx4 v[{QR+4*q}:{QR+4*q+3}], v{VL16}, s[16:19], {so} offen offset:{off} sc1")
    poll_block(p, name, loads, list(range(QR, QR + 24)), VTAG, 12, sleep=0)
    stamp("qf_in")
    p(f"v_lshrrev_b32 v7, 1, v{VG}")
    p("v_lshlrev_b32 v7, 8, v7")
    p(f"v_lshl_add_u32 v7, v{VI}, 4, v7")
    p(f"v_and_b32 v8, 1, v{VG}")
    p("v_lshl_add_u32 v7, v8, 3, v7")
    p("s_mul_i32 s48, s20, 3072")
    p("v_add_u32 v7, s48, v7")
    for q in range(6):
        p(f"v_cvt_pk_bf16_f32 v{QR+4*q}, v{QR+4*q}, v{QR+4*q+1}")
        p(f"v_cvt_pk_bf16_f32 v{QR+4*q+1}, v{QR+4*q+2}, v{QR+4*q+3}")
        p(f"ds_write_b64 v7, v[{QR+4*q}:{QR+4*q+1}] offset:{LQB + 512*q}")
    p("s_barrier")
    stamp("s2bar")
    for pp in range(12):
        p(f"ds_read_b128 v[{16+4*pp}:{19+4*pp}], v{VL16} offset:{LQB + 1024*pp}")
    for pp in range(12):
        p(f"v_mfma_f32_16x16x32_bf16 v[112:115], a[{aWK+4*pp}:{aWK+4*pp+3}], v[{16+4*pp}:{19+4*pp}], {'0' if pp == 0 else 'v[112:115]'}")
    for r in range(4): p(f"v_mul_f32 v{112+r}, 0x{f2u(SCALE*LOG2E):08x}, v{112+r}")
    tag_regs(p, range(112, 116), VTAG)
    p("s_lshl_b32 s48, s21, 10")
    p(f"s_add_u32 s48, s48, {QKF_OFF}")
    p(f"buffer_store_dwordx4 v[112:115], v{VL16}, s[16:19], s48 offen sc1")
    stamp("st2")
    p(f"{name}_sp_w:")
    p("s_waitcnt lgkmcnt(0)")
    p("s_nop 7")
    p("s_nop 7")
    p("s_barrier")
    tagpat(p, 4)
    for j in range(4): p(f"v_mov_b32 v{12+j}, s{4+j}")
    p("v_lshrrev_b32 v17, 2, v0")
    p("v_lshlrev_b32 v17, 14, v17")
    p("v_and_b32 v18, 3, v0")
    p("v_lshl_add_u32 v17, v18, 4, v17")
    p(f"s_mul_i32 s48, s20, {3*16*16384}")
    p("s_lshl_b32 s49, s2, 6")
    p("s_add_u32 s48, s48, s49")
    p(f"s_add_u32 s48, s48, {PART_OFF}")
    for k in range(3):
        p("buffer_store_dwordx4 v[12:15], v17, s[16:19], s48 offen sc1")
        if k < 2: p(f"s_add_u32 s48, s48, {16*16384}")
    p("v_mov_b32 v16, 0xf149f2ca")
    p("v_mov_b32 v17, 0")
    p("v_mov_b32 v18, 0")
    p(f"v_mov_b32 v19, v{VTAG}")
    p("s_lshl_b32 s48, s2, 8")
    p("s_lshl_b32 s49, s20, 6")
    p("s_add_u32 s48, s48, s49")
    p(f"s_add_u32 s48, s48, {ML_OFF}")
    p("s_mov_b64 exec, 0xf")
    p(f"buffer_store_dwordx4 v[16:19], v{VL16}, s[16:19], s48 offen sc1")
    p(f"v_bfi_b32 v17, s{S_MASK}, v{VTAG}, v16")
    p(f"v_lshrrev_b32 v18, 2, v{VL16}")
    p("s_lshl_b32 s48, s20, 12")
    p("s_lshl_b32 s49, s2, 4")
    p("s_add_u32 s48, s48, s49")
    p(f"s_add_u32 s48, s48, {M2_OFF}")
    p("buffer_store_dword v17, v18, s[16:19], s48 offen sc1")
    p("s_mov_b64 exec, -1")
    NE = 2
    LWO = 4 * 2 * TILE_LDS
    WRS = 80
    p("v_lshrrev_b32 v7, 2, v0")
    p("v_and_b32 v8, 3, v0")
    p("v_mul_u32_u24 v9, 768, v7")
    p("v_lshl_add_u32 v9, v8, 4, v9")
    p(f"v_mul_u32_u24 v10, {WRS}, v7")
    p("v_lshl_add_u32 v10, v8, 4, v10")
    p("s_lshl_b32 s48, s100, 6")
    p(f"s_mul_i32 s49, s20, {96*768}")
    p("s_add_u32 s48, s48, s49")
    for a in range(6):
        p(f"buffer_load_dwordx4 v[{20+4*a}:{23+4*a}], v9, s[40:43], s48 offen")
        if a < 5: p(f"s_add_u32 s48, s48, {16*768}")
    WVS = 64
    def wv_load(tile):
        b = WVS + 48 * (tile & 1)
        p(f"s_mul_i32 s50, s20, {6*12288}")
        p(f"s_add_u32 s50, s50, {tile*12288}")
        for a in range(12):
            if a % 4 == 0 and a: p("s_add_u32 s50, s50, 4096")
            p(f"buffer_load_dwordx4 v[{b+4*a}:{b+4*a+3}], v{VL16}, s[36:39], s50 offen offset:{1024*(a%4)}")
    wv_load(0); wv_load(1)
    p(f"s_mul_i32 s49, s20, {96*WRS}")
    p("v_add_u32 v10, s49, v10")
    p(f"v_add_u32 v10, {LWO}, v10")
    for a in range(6):
        p(f"ds_write_b128 v10, v[{20+4*a}:{23+4*a}] offset:{16*WRS*a}")
    p("s_barrier")
    p("v_lshrrev_b32 v10, 2, v0")
    p("v_and_b32 v10, 3, v10")
    p(f"v_lshl_add_u32 v10, v{VG}, 3, v10")
    p(f"v_mul_u32_u24 v10, {WRS}, v10")
    p("v_and_b32 v11, 3, v0")
    p("v_lshl_add_u32 v10, v11, 3, v10")
    p(f"v_add_u32 v10, {LWO}, v10")
    for e in range(NE):
        for ks in range(12):
            for h in range(2):
                p(f"ds_read_b64_tr_b16 a[{48*e+4*ks+2*h}:{48*e+4*ks+2*h+1}], v10 offset:{32*e + 32*WRS*ks + 4*WRS*h}")
    p(f"s_mul_i32 s63, s20, {TILE_LDS}")
    for a in range(12): p(f"v_add_u32 v{LA[a]}, s63, v{LA[a]}")
    p(f"v_add_u32 v{VAB}, s63, v{VAB}")
    WF = 160
    DW = 20
    aXV = 96
    for tile in range(6):
        b = WVS + 48 * (tile & 1)
        for a in range(12): p(f"ds_write_b128 v{LA[a]}, v[{b+4*a}:{b+4*a+3}]")
        if tile + 2 < 6: wv_load(tile + 2)
        for ks in range(12): p(f"ds_read_b128 a[{aXV+4*ks}:{aXV+4*ks+3}], v{VAB} offset:{64*ks}")
        for ks in range(12):
            for e in range(NE):
                d = DW + 8 * e + 4 * (tile & 1)
                p(f"v_mfma_f32_16x16x32_bf16 v[{d}:{d+3}], a[{aXV+4*ks}:{aXV+4*ks+3}], a[{48*e+4*ks}:{48*e+4*ks+3}], {'0' if ks == 0 else f'v[{d}:{d+3}]'}")
        if tile & 1:
            for e in range(NE):
                w = WF + 12 * e + 4 * (tile >> 1)
                for k in range(4):
                    p(f"v_cvt_pk_bf16_f32 v{w+k}, v{DW+8*e+2*k}, v{DW+8*e+2*k+1}")
    for e in range(NE):
        for pr in range(3):
            w = WF + 12 * e + 4 * pr
            p(f"v_mfma_f32_16x16x32_bf16 v[{44+4*e}:{47+4*e}], v[{w}:{w+3}], {ONES}, {'0' if pr == 0 else f'v[{44+4*e}:{47+4*e}]'}")
    stamp("wvo")
    p(f"v_mul_u32_u24 v7, 768, v{VI}")
    p(f"v_lshl_add_u32 v7, v{VG}, 3, v7")
    p("s_lshl_b32 s62, s100, 1")
    p("s_and_b32 s48, s20, 1")
    p("s_add_u32 s62, s62, s48")
    p("s_lshl_b32 s62, s62, 5")
    p("buffer_load_dwordx2 v[56:57], v7, s[32:35], s62 offen")
    PM = 64
    FL = f"{name}_fm"
    p("s_lshl_b32 s63, s20, 14")
    p(f"s_add_u32 s63, s63, {ML_OFF}")
    p(f"s_mov_b32 s{S_SPIN}, 0")
    p(f"s_add_u32 s48, s63, {1024*15}")
    p(f"{FL}_pre:")
    p(f"buffer_load_dwordx4 v[{PM}:{PM+3}], v{VL16}, s[16:19], s48 offen sc1")
    p("s_waitcnt vmcnt(0)")
    p(f"v_xor_b32 v12, v{PM+3}, v{VTAG}")
    p(f"v_and_b32 v12, s{S_MASK}, v12")
    p("v_cmp_ne_u32 vcc, 0, v12")
    p(f"s_cbranch_vccz {FL}_go ;@nodrain")
    p("s_sleep 6")
    p(f"s_add_u32 s{S_SPIN}, s{S_SPIN}, 1")
    p(f"s_cmp_lt_u32 s{S_SPIN}, {SPIN_MAX}")
    p(f"s_cbranch_scc1 {FL}_pre ;@nodrain")
    p(f"{FL}_go:")
    p("s_mov_b32 s50, 0xffff")
    p(f"s_mov_b32 s{S_SPIN}, 0")
    p(f"{FL}_loop:")
    for i in range(16):
        p(f"s_bitcmp0_b32 s50, {i}")
        p(f"s_cbranch_scc1 {FL}_a{i} ;@nodrain")
        p(f"s_add_u32 s48, s63, {1024*i}")
        p(f"buffer_load_dwordx4 v[{PM+4*i}:{PM+4*i+3}], v{VL16}, s[16:19], s48 offen sc1")
        p(f"{FL}_a{i}:")
    p("s_waitcnt vmcnt(0)")
    for i in range(16):
        p(f"s_bitcmp0_b32 s50, {i}")
        p(f"s_cbranch_scc1 {FL}_c{i} ;@nodrain")
        p(f"v_xor_b32 v12, v{PM+4*i+3}, v{VTAG}")
        p(f"v_and_b32 v12, s{S_MASK}, v12")
        p("v_cmp_ne_u32 vcc, 0, v12")
        p(f"s_cbranch_vccnz {FL}_c{i} ;@nodrain")
        p(f"s_bitset0_b32 s50, {i}")
        p(f"{FL}_c{i}:")
    p("s_cmp_eq_u32 s50, 0")
    p(f"s_cbranch_scc1 {FL}_done ;@nodrain")
    p(f"s_add_u32 s{S_SPIN}, s{S_SPIN}, 1")
    p(f"s_cmp_lt_u32 s{S_SPIN}, {SPIN_MAX}")
    p(f"s_cbranch_scc1 {FL}_loop ;@nodrain")
    p(f"{FL}_done:")
    p("s_nop 7")
    stamp("ml_in")
    MV, T = 8, 9
    p(f"v_max3_f32 v{MV}, v{PM}, v{PM+4}, v{PM+8}")
    for i in range(3, 15, 2): p(f"v_max3_f32 v{MV}, v{MV}, v{PM+4*i}, v{PM+4*i+4}")
    p(f"v_max_f32 v{MV}, v{MV}, v{PM+60}")
    xg_reduce(p, "v_max_f32", MV, T)
    for i in range(16): p(f"v_sub_f32 v{PM+4*i}, v{PM+4*i}, v{MV}")
    for i in range(16): p(f"v_exp_f32 v{PM+4*i}, v{PM+4*i}")
    p(f"v_mul_f32 v13, v{PM}, v{PM+1}")
    p(f"v_mul_f32 v14, v{PM}, v{PM+2}")
    for i in range(1, 16):
        p(f"v_fma_f32 v13, v{PM+4*i}, v{PM+4*i+1}, v13")
        p(f"v_fma_f32 v14, v{PM+4*i}, v{PM+4*i+2}, v14")
    xg_reduce(p, "v_add_f32", 13, T)
    xg_reduce(p, "v_add_f32", 14, T)
    p(f"v_mov_b32 v12, v{MV}")
    p("v_mov_b32 v15, 0")
    LX = 0
    p("s_barrier")
    p(f"v_lshlrev_b32 v9, 6, v{VI}")
    p("s_lshl_b32 s48, s20, 4")
    p("v_add_u32 v8, s48, v9")
    p(f"ds_write_b128 v8, v[12:15] offset:{LX}")
    p("s_barrier")
    for v in range(4): p(f"ds_read_b128 v[{64+4*v}:{67+4*v}], v9 offset:{LX + 16*v}")
    p("v_max3_f32 v8, v64, v68, v72")
    p("v_max_f32 v8, v8, v76")
    for v in range(4): p(f"v_sub_f32 v{64+4*v}, v{64+4*v}, v8")
    for v in range(4): p(f"v_exp_f32 v{64+4*v}, v{64+4*v}")
    p("v_mul_f32 v13, v64, v65")
    p("v_mul_f32 v14, v64, v66")
    for v in range(1, 4):
        p(f"v_fma_f32 v13, v{64+4*v}, v{65+4*v}, v13")
        p(f"v_fma_f32 v14, v{64+4*v}, v{66+4*v}, v14")
    p("v_rcp_f32 v13, v13")
    p("v_mul_f32 v14, s60, v14")
    UR = 64
    p(f"v_lshlrev_b32 v10, 1, v{VL16}")
    loads = ["s_mul_i32 s48, s20, 6144", f"s_add_u32 s48, s48, {UF_OFF}", "s_add_u32 s49, s48, 4096"]
    for pr in range(3):
        for h in range(2):
            so, off = ("s48", 2048 * pr + 16 * h) if pr < 2 else ("s49", 16 * h)
            loads.append(f"buffer_load_dwordx4 v[{UR+8*pr+4*h}:{UR+8*pr+4*h+3}], v10, s[16:19], {so} offen offset:{off} sc1")
    poll_block(p, name, loads, list(range(UR, UR + 24)), VTAG, 12, sleep=0)
    stamp("u_in")
    for pr in range(3):
        for k in range(4):
            p(f"v_cvt_pk_bf16_f32 v{96+4*pr+k}, v{UR+8*pr+2*k}, v{UR+8*pr+2*k+1}")
    for pr in range(3):
        for e in range(NE):
            w = WF + 12 * e + 4 * pr
            d = 20 + 4 * e
            p(f"v_mfma_f32_16x16x32_bf16 v[{d}:{d+3}], v[{w}:{w+3}], v[{96+4*pr}:{99+4*pr}], {'0' if pr == 0 else f'v[{d}:{d+3}]'}")
    for e in range(NE):
        for r in range(4): p(f"v_fma_f32 v{20+4*e+r}, -v14, v{44+4*e+r}, v{20+4*e+r}")
    LF = 4096
    p("s_lshl_b32 s48, s20, 10")
    p(f"v_add_u32 v8, s48, v{VL16}")
    for e in range(NE): p(f"ds_write_b128 v8, v[{20+4*e}:{23+4*e}] offset:{LF + 4096*e}")
    p("s_barrier")
    p(f"s_cmp_ge_u32 s20, {NE}")
    p(f"s_cbranch_scc1 {name}_done ;@nodrain")
    p("s_lshl_b32 s48, s20, 12")
    p(f"v_add_u32 v8, s48, v{VL16}")
    for v in range(4): p(f"ds_read_b128 v[{64+4*v}:{67+4*v}], v8 offset:{LF + 1024*v}")
    p("v_lshlrev_b32 v80, 16, v56")
    p("v_and_b32 v81, 0xffff0000, v56")
    p("v_lshlrev_b32 v82, 16, v57")
    p("v_and_b32 v83, 0xffff0000, v57")
    for r in range(4):
        p(f"v_add_f32 v{64+r}, v{64+r}, v{68+r}")
        p(f"v_add_f32 v{72+r}, v{72+r}, v{76+r}")
        p(f"v_add_f32 v{64+r}, v{64+r}, v{72+r}")
        p(f"v_fma_f32 v{64+r}, v{64+r}, v13, v{80+r}")
    p("v_cvt_pk_bf16_f32 v64, v64, v65")
    p("v_cvt_pk_bf16_f32 v65, v66, v67")
    p("buffer_store_dwordx2 v[64:65], v7, s[44:47], s62 offen")
    p("s_add_u32 s48, s100, s20")
    p("s_cmp_lg_u32 s48, 0")
    p(f"s_cbranch_scc1 {name}_spe ;@nodrain")
    p("v_mov_b32 v8, s94")
    p(f"v_mov_b32 v9, {N_OFF}")
    p("s_mov_b64 exec, 1")
    p("buffer_store_dword v8, v9, s[16:19], 0 offen")
    p(f"{name}_spe:")
    if stamp.on:
        p("s_cmp_lg_u32 s20, 0")
        p(f"s_cbranch_scc1 {name}_done ;@nodrain")
        p("s_waitcnt vmcnt(0)")
        stamp("end")
        stamp.dump("special")

def fold_loop(body, name):
    idx = {}
    for i, l in enumerate(body):
        m = re.match(r"\s*\.set (ZB\d|ZEND), 0", l)
        if m: idx[m.group(1)] = i
    if "ZB4" not in idx: return [l for l in body if not l.strip().startswith(".set Z")]
    def seg(a, b):
        out = []
        for l in body[idx[a]:idx[b]]:
            if l.strip().startswith(".set Z"): continue
            out.append(l)
        return out
    def norm(ls): return [re.sub(r"_lz\d+", "_lzN", l) for l in ls]
    s1, s2, s3 = seg("ZB4", "ZB6"), seg("ZB6", "ZB8"), seg("ZB8", "ZEND")
    for a, b, nm in ((s1, s2, "Z6Z7"), (s1, s3, "Z8Z9")):
        na, nb = norm(a), norm(b)
        if na != nb:
            for i, (x, y) in enumerate(zip(na, nb)):
                if x != y:
                    print("loop segments differ at", nm, i, na[max(0, i-3):i+3], nb[max(0, i-3):i+3]); break
            raise Exception("segments not periodic: %d %d" % (len(na), len(nb)))
    pre = [l for l in body[:idx["ZB4"]] if not l.strip().startswith(".set Z")]
    post = [l for l in body[idx["ZEND"]:] if not l.strip().startswith(".set Z")]
    loop = [f"{name}_zloop:"] + s1 + ["  s_add_u32 s101, s101, 1", "  s_cmp_lt_u32 s101, 3", f"  s_cbranch_scc1 {name}_zloop"]
    print("folded loop: body", len(s1), "instructions")
    return pre + loop + post

def kernel_text(name, p):
    body = fold_loop(p.finalize(True), name)
    return [f".globl {name}", ".p2align 8", f".type {name},@function", f"{name}:"] + body

def kd_text(name, info):
    return [".p2align 6", f".amdhsa_kernel {name}", f"  .amdhsa_next_free_vgpr {info['vgpr']}", "  .amdhsa_next_free_sgpr 102",
            f"  .amdhsa_accum_offset {info['accum']}", "  .amdhsa_group_segment_fixed_size 0", "  .amdhsa_kernarg_size 80",
            "  .amdhsa_user_sgpr_count 2", "  .amdhsa_user_sgpr_kernarg_segment_ptr 1", "  .amdhsa_system_sgpr_workgroup_id_x 1",
            "  .amdhsa_float_denorm_mode_32 3", ".end_amdhsa_kernel"]

HEADER = open("standalone__detection_seg_dino__vision.s.ref").read().split("; Override launch")[0]

def build(path, opt):
    DIAG[0] = bool(opt.get("diag"))
    global SPIN_MAX
    SPIN_MAX = opt.get("spin", SPIN_MAX)
    name = "standalone__detection_seg_dino__vision_kernel"
    p, info = gen_kernel(name, opt)
    text = kernel_text(name, p)
    out = (HEADER.rstrip() + "\n" + f"; @launch grid=({info['grid']},1,1) block=({info['block']},1,1) lds={info['lds']}\n"
           + '.amdgcn_target "amdgcn-amd-amdhsa--gfx950"\n.text\n' + "\n".join(text) + '\n.section .rodata,"a"\n' + "\n".join(kd_text(name, info)) + "\n")
    open(path, "w").write(out)

if __name__ == "__main__":
    opt = {}
    path = sys.argv[1] if len(sys.argv) > 1 else "k2.s"
    for a in sys.argv[2:]:
        k, v = a.split("=", 1)
        opt[k] = int(v) if v.lstrip('-').isdigit() else v
    build(path, opt)
    if LABELS:
        import json
        json.dump(LABELS, open(path[:-2] + ".labels.json", "w"))
```

```python
import sys, math, struct, re
from dsl import Prog

C = 384
F0_BYTES = 113246208
F1_BYTES = 28311552
W_BYTES = 294912
Q_BYTES = 12288
N_OFF = 0
QF_OFF = 4096
QKF_OFF = QF_OFF + 24576
UF_OFF = QKF_OFF + 24576
ML_OFF = UF_OFF + 24576
M2_OFF = ML_OFF + 65536
PART_OFF = 262144
WS_USED = PART_OFF + 256 * 12288
NRED = 96
NSPEC = 12
PROF_OFF = 163840
SPIN_MAX = 1048576

def f2u(x): return struct.unpack('<I', struct.pack('<f', x))[0]
LOG2E = 1.4426950408889634
SCALE = C ** -0.5

def srd(p, base_s, ptr_lo, nbytes):
    p(f"s_mov_b32 s{base_s}, s{ptr_lo}")
    p(f"s_and_b32 s{base_s+1}, s{ptr_lo+1}, 0xffff")
    p(f"s_mov_b32 s{base_s+2}, {nbytes}")
    p(f"s_mov_b32 s{base_s+3}, 0x20000")

def mov64(p, s, val):
    p(f"s_mov_b32 s{s}, 0x{val & 0xffffffff:08x}")
    p(f"s_mov_b32 s{s+1}, 0x{(val >> 32) & 0xffffffff:08x}")

def xg_reduce(p, op, a, tmp):
    p(f"v_mov_b32 v{tmp}, v{a}")
    p(f"v_permlane32_swap_b32 v{a}, v{tmp}")
    p(f"{op} v{a}, v{a}, v{tmp}")
    p(f"v_mov_b32 v{tmp}, v{a}")
    p(f"v_permlane16_swap_b32 v{a}, v{tmp}")
    p(f"{op} v{a}, v{a}, v{tmp}")

S_MASK = 93
S_TAG = 95
S_SPIN = 92

def tag_regs(p, regs, vtag):
    for r in regs: p(f"v_bfi_b32 v{r}, s{S_MASK}, v{vtag}, v{r}")

def check_tags(p, regs, vtag, vacc):
    regs = list(regs)
    for r in regs: p(f"v_xor_b32 v{r}, v{r}, v{vtag}")
    p(f"v_or_b32 v{vacc}, v{regs[0]}, v{regs[1]}")
    rest = regs[2:]
    while len(rest) >= 2:
        p(f"v_or3_b32 v{vacc}, v{vacc}, v{rest[0]}, v{rest[1]}"); rest = rest[2:]
    if rest: p(f"v_or_b32 v{vacc}, v{vacc}, v{rest[0]}")
    p(f"v_and_b32 v{vacc}, s{S_MASK}, v{vacc}")
    p(f"v_cmp_ne_u32 vcc, 0, v{vacc}")

from dsl import Ins
def est_cycles(text):
    t = text.split(';')[0].strip()
    if not t or t.endswith(':'): return 0
    mn = t.split()[0]
    if mn.startswith('v_mfma'): return 16
    if mn.startswith('v_exp') or mn.startswith('v_rsq') or mn.startswith('v_rcp'): return 8
    if mn.startswith('v_'): return 4
    if mn.startswith('ds_write_b128'): return 16
    if mn.startswith('ds_write'): return 8
    if mn.startswith('ds_read'): return 8
    if mn == 's_barrier': return 80
    if mn.startswith('buffer_'): return 8
    return 4

def schedule_loads(items, loads, pace, lat, dmax, t0=0, verbose=False, policy='model', nreal=150):
    out = []; now = t0
    land = []
    issue_t = []
    free = set(); k = 0
    extras = []
    def landed():
        return sum(1 for x in land if x <= now)
    locked = [False]; credit = [0]; dm = [dmax]; consumed = [0]; gap = [0]; pos = [0]; lastpos = [-10**9]
    def try_issue():
        nonlocal k, now
        if locked[0]: return
        while k < len(loads):
            L = loads[k]
            if L['key'] is not None and L['key'] not in free: break
            if policy == 'model':
                if len(land) - landed() >= dm[0]: break
            else:
                if k - consumed[0] >= dm[0]: break
                if pos[0] - lastpos[0] < gap[0]: break
            for x in L['pre']: out.append(x); now += 4
            out.append(L['ins']); now += 8
            lastpos[0] = pos[0]
            if L['key'] is not None: free.discard(L['key'])
            prev = land[-1] if land else 0
            land.append(max(now + lat, prev + pace)); issue_t.append(now)
            k += 1
    for it in items:
        if isinstance(it, tuple):
            if it[0] == 'use':
                j = it[1]
                while k <= j:
                    L = loads[k]
                    assert L['key'] is None or L['key'] in free, ('slot not free', k, L)
                    for x in L['pre']: out.append(x); now += 4
                    out.append(L['ins']); now += 8
                    if L['key'] is not None: free.discard(L['key'])
                    prev = land[-1] if land else 0
                    land.append(max(now + lat, prev + pace)); issue_t.append(now); k += 1
                now = max(now, land[j])
                consumed[0] = j + 1
                try_issue()
            elif it[0] == 'free': free.add(it[1]); try_issue()
            elif it[0] == 't': now += it[1]; try_issue()
            elif it[0] == 'dmax': dm[0] = it[1]; try_issue()
            elif it[0] == 'gap': gap[0] = it[1]
            elif it[0] == 'zstart': lastpos[0] = -10**9
            elif it[0] == 'zend':
                g = gap[0]; gap[0] = 0; try_issue(); gap[0] = g
            elif it[0] == 'until': now = max(now, it[1]); try_issue()
            elif it[0] == 'force':
                while k < it[1]:
                    L = loads[k]
                    assert L['key'] is None or L['key'] in free, ('slot not free', k, L)
                    for x in L['pre']: out.append(x); now += 4
                    out.append(L['ins']); now += 8
                    if L['key'] is not None: free.discard(L['key'])
                    prev = land[-1] if land else 0
                    land.append(max(now + lat, prev + pace)); issue_t.append(now); k += 1
                    if len(land) > 12: now = max(now, land[-13])
            elif it[0] == 'log':
                if verbose: print(f"   model {it[1]:8s} t={now/2100:.2f}us issued={k}")
            elif it[0] == 'lock': locked[0] = True
            elif it[0] == 'unlock': locked[0] = False
            continue
        out.append(it)
        c = est_cycles(it)
        if it.lstrip().startswith('v_mfma'): credit[0] = 2
        elif credit[0] > 0 and c <= 8: c = 0; credit[0] -= 1
        else: credit[0] = 0
        now += c; pos[0] += c
        if '@noload' not in it: try_issue()
    assert k >= nreal, (k, nreal)
    return out

def timeout_diag(p, site, extra="0", vacc=None):
    p("s_load_dwordx2 s[86:87], s[0:1], 64")
    p("s_lshl_b32 s85, s2, 8")
    p("s_or_b32 s85, s85, s20")
    p("s_or_b32 s85, s85, 0x1000000")
    p("s_waitcnt lgkmcnt(0)")
    p("v_mov_b32 v254, s85") if False else None
DIAG = [False]
def diag_store(p, site, val):
    p("s_load_dwordx2 s[86:87], s[0:1], 64")
    p("s_lshl_b32 s85, s2, 8")
    p("s_or_b32 s85, s85, s20")
    p("s_or_b32 s85, s85, 0x1000000")
    p("s_waitcnt lgkmcnt(0)")
    p("s_mov_b64 s[88:89], exec") if False else None
    p("v_mov_b32 v250, s85")
    p(f"v_mov_b32 v251, {val}")
    p(f"v_mov_b32 v249, {8*site}")
    p("s_ff1_i32_b64 s84, vcc")
    p("s_nop 4")
    p("v_readlane_b32 s83, v251, s84")
    p("s_nop 4")
    p("v_mov_b32 v251, s84")
    p("v_lshlrev_b32 v251, 16, v251")
    p("v_or_b32 v251, s83, v251")
    p("global_store_dwordx2 v249, v[250:251], s[86:87]")
    p("s_waitcnt vmcnt(0)")
def tagpat(p, base):
    for j in range(4):
        p(f"s_lshr_b32 s{base+j}, s{S_TAG}, {2*j}")
        p(f"s_and_b32 s48, s{base+j}, 2")
        p(f"s_lshl_b32 s48, s48, 15")
        p(f"s_and_b32 s{base+j}, s{base+j}, 1")
        p(f"s_or_b32 s{base+j}, s{base+j}, s48")

uid = [0]
def poll_block(p, name, loads, regs, vtag, vacc, preissued=False, lock=False, sleep=1):
    if lock: p.items.append(('lock',))
    uid[0] += 1
    L = f"{name}_pl{uid[0]}"
    if not preissued:
        for x in loads: p(x)
    check_tags(p, regs, vtag, vacc)
    p(f"s_cbranch_vccz {L}_ok")
    p(f"s_mov_b32 s{S_SPIN}, 0")
    p(f"{L}_retry:")
    if sleep: p(f"s_sleep {sleep}")
    for x in loads: p(x)
    p("s_waitcnt vmcnt(0)")
    check_tags(p, regs, vtag, vacc)
    p(f"s_cbranch_vccz {L}_fin")
    p(f"s_add_u32 s{S_SPIN}, s{S_SPIN}, 1")
    p(f"s_cmp_lt_u32 s{S_SPIN}, {SPIN_MAX}")
    p(f"s_cbranch_scc1 {L}_retry")
    if DIAG[0]: diag_store(p, uid[0], f"v{vacc}")
    p(f"{L}_fin:")
    p("s_nop 7")
    p("s_nop 7")
    p(f"{L}_ok: ;@restore {L}")
    if lock: p.items.append(('unlock',))

class Prof:
    def __init__(self, p, opt, base, lim=88):
        self.opt = opt; self.lim = lim; self.p = p; self.on = opt.get("prof", 0); self.lbl = []; self.base = base; self.skip = opt.get("skip", "").split(",")
    def __call__(self, lbl, fine=False):
        if self.on == 7:
            if not self.lbl and self.base == 52: self.lbl = ["z%d" % i for i in range(11)]
            return
        if self.on == 6 and lbl not in ("init", "S", "X012", "pub"): return
        if self.on == 5:
            if lbl in ("init", "S", "F9"):
                for ins in ("s_memtime", "s_memrealtime"):
                    i = len(self.lbl); self.lbl.append(lbl + ins[2:])
                    self.p(f"{ins} s[{self.base+2*i}:{self.base+2*i+1}]")
            return
        if self.on == 4:
            if not fine: return
        elif fine: return
        if self.on and lbl not in self.skip and self.base + 2 * len(self.lbl) < self.lim:
            i = len(self.lbl); self.lbl.append(lbl)
            self.p(f"{'s_memtime' if self.on == 4 else 's_memrealtime'} s[{self.base+2*i}:{self.base+2*i+1}]")
    def dump(self, tagname, srdbase=16):
        if not self.on: return
        p = self.p
        wg = self.opt.get("dbg_" + tagname)
        if wg is not None:
            uid[0] += 1
            p("s_waitcnt vmcnt(0) lgkmcnt(0)")
            p(f"s_cmp_lg_u32 s2, {wg}")
            p(f"s_cbranch_scc1 dbgskip{uid[0]} ;@nodrain")
            p("s_load_dwordx2 s[4:5], s[0:1], 64")
            p("s_waitcnt lgkmcnt(0)")
            p("s_mov_b64 exec, 1")
            p("v_mov_b32 v1, 0")
            off = self.opt.get("dbgoff_" + tagname, 0)
            for i in range(len(self.lbl)):
                if self.on == 5: p(f"v_mov_b32 v2, s{self.base+2*i}")
                else:
                    p(f"s_sub_u32 s3, s{self.base+2*i}, s98")
                    p("v_mov_b32 v2, s3")
                p(f"global_store_dword v1, v2, s[4:5] offset:{4*(off+i)}")
            p(f"dbgskip{uid[0]}:")
        p("s_waitcnt vmcnt(0) lgkmcnt(0)")
        p("s_mov_b64 exec, 1")
        p("s_lshl_b32 s3, s2, 7")
        p(f"s_add_u32 s3, s3, {PROF_OFF}")
        p("v_mov_b32 v1, 0")
        p("v_mov_b32 v2, s98")
        p(f"buffer_store_dword v2, v1, s[{srdbase}:{srdbase+3}], s3 offen")
        for i in range(len(self.lbl)):
            p(f"v_mov_b32 v2, s{self.base+2*i}")
            p(f"buffer_store_dword v2, v1, s[{srdbase}:{srdbase+3}], s3 offen offset:{4*(i+1)}")
        if tagname == "streamer" and self.on == 6:
            p("s_mov_b64 exec, 0x7f")
            p("v_lshlrev_b32 v1, 2, v0")
            p(f"buffer_store_dword v239, v1, s[{srdbase}:{srdbase+3}], s3 offen offset:64")
            p("s_mov_b64 exec, 1")
            p("v_mov_b32 v1, 0")
        if tagname == "streamer":
            p("v_mov_b32 v2, s86")
            p(f"buffer_store_dword v2, v1, s[{srdbase}:{srdbase+3}], s3 offen offset:124")
        print(tagname, "stamps:", self.lbl)
        LABELS[tagname] = list(self.lbl)
LABELS = {}

def gen_kernel(name, opt):
    p = Prog()
    prof = opt.get("prof", 0)
    p("s_cmp_ge_u32 s2, 256")
    p(f"s_cbranch_scc1 {name}_done ;@nodrain")
    if prof: p("s_memrealtime s[98:99]")
    p("s_load_dwordx2 s[22:23], s[0:1], 72")
    p("s_load_dwordx4 s[4:7], s[0:1], 8")
    p("v_readfirstlane_b32 s20, v0")
    p("v_and_b32 v0, 63, v0")
    p("s_lshr_b32 s20, s20, 6")
    p(f"s_mov_b32 s{S_MASK}, 0xff")
    p("s_lshr_b32 s100, s2, 3")
    p("s_lshl_b32 s100, s100, 2")
    p("s_and_b32 s21, s2, 7")
    p("s_add_u32 s100, s100, s21")
    p("s_sub_u32 s101, s100, 4")
    p(f"s_sub_u32 s3, s2, {NSPEC}")
    p("s_cmp_lt_u32 s2, 24")
    p("s_cselect_b32 s101, s101, s3")
    p("s_cselect_b32 s3, s21, 7")
    p("s_mov_b32 s21, s101")
    p("s_cmp_lt_u32 s3, 4")
    p(f"s_cbranch_scc1 {name}_special")
    gen_streamer(p, name, opt)
    p(f"{name}_special: ;@restore entry")
    gen_special(p, name, opt)
    p(f"{name}_done:")
    p("s_endpgm")
    return p, dict(vgpr=252 + 196, accum=252, lds=160256, grid=256, block=256)

def gen_streamer(p, name, opt):
    NT = " nt" if opt.get("nt", True) else ""
    prof = opt.get("prof", 0)
    NS = 10
    SP = opt.get("sp", 8)
    ST = lambda k: 76 + 60 * k
    F1R = lambda k, t: ST(k) + 4 * t
    F0R = lambda k, t, d: ST(k) + 12 + 16 * t + 4 * d
    VF0, VF1, VL16 = 1, 2, 3
    WA = [[4, 5, 6, 7], [216, 217, 218, 219]]
    RA = [[11, 12, 13, 14], [220, 221, 222, 223]]
    VTAG = 8
    QBA = 9
    TR = [15, 16, 17, 18, 19, 20]
    MXW, MXR, WXW, WXR = 21, 22, 23, 24
    M, L, Z, SN = 25, 26, 27, 28
    ACC = 32
    D1, D2, D3 = 56, 60, 64
    Uu, SS, RS, TM, TM2, AL, WF = 68, 69, 70, 71, 72, 73, 74
    U = 196; TT = 204
    QK = 212 + 12
    QKR = 212
    aQB, aXA, aXT, aONE = 0, 48, 96, 192
    XBUF = 49152; XT = 12288
    MX_OFF = 147456; LZ_OFF = MX_OFF + 256; QBL_OFF = LZ_OFF + 256; WX_OFF = QBL_OFF
    D1B = [56, 212, 216]; D3B = [64, 240, 244]; RSB = [70, 248, 249]; WFB = [74, 220, 222]
    XAB = [48, 96, 144]
    XTB = [96, 144]
    WA[1] = [228, 229, 230, 231]; RA[1] = [232, 233, 234, 235]
    QKR = 204 - 0
    QKR = 212
    WA[1] = [236, 237, 238, 239]; RA[1] = [29, 30, 31, 10]
    QKR = 212

    NSTR = 256 - NSPEC
    base_cnt = 9216 // NSTR; nbig = 9216 - base_cnt * NSTR
    assert base_cnt == 37
    glob = opt.get("glob", 1)
    if not glob:
        p(f"s_mul_i32 s96, s21, {base_cnt}")
        p(f"s_min_u32 s97, s21, {nbig}")
        p("s_add_u32 s96, s96, s97")
        p(f"s_cmp_lt_u32 s21, {nbig}")
        p("s_cselect_b32 s97, 2, 1")
        p("s_add_u32 s90, s96, s20")
        p("s_add_u32 s91, s90, s97")
        p("s_sub_u32 s91, s91, 4")
    else:
        p(f"s_min_u32 s97, s21, {nbig}")
        p("s_add_u32 s91, s21, s97")
        p("s_add_u32 s91, s91, s20")
        p(f"s_cmp_lt_u32 s21, {nbig}")
        p("s_cselect_b32 s97, 2, 1")
        p("s_lshl_b32 s90, s21, 2")
        p("s_add_u32 s90, s90, s20")
    FP, J = 56, 57
    p(f"v_lshrrev_b32 v{FP}, 4, v0")
    p(f"v_and_b32 v{J}, 15, v0")
    p(f"v_mul_u32_u24 v{VF0}, 1536, v{FP}")
    p(f"v_lshl_add_u32 v{VF0}, v{J}, 4, v{VF0}")
    p(f"v_mul_u32_u24 v{VF1}, 768, v{FP}")
    p(f"v_lshl_add_u32 v{VF1}, v{J}, 4, v{VF1}")
    p(f"v_lshlrev_b32 v{VL16}, 4, v0")
    p("s_waitcnt lgkmcnt(0)")
    srd(p, 8, 4, F0_BYTES)
    srd(p, 12, 6, F1_BYTES)
    srd(p, 16, 22, WS_USED)
    p(f"s_load_dword s94, s[22:23], {N_OFF}")

    LOOP = opt.get("loop", 1)
    full = 4 * NSTR; part = NSTR + nbig
    p("s_sub_u32 s91, s91, s90")
    p("s_mov_b32 s96, -1")
    p("s_cmp_lt_u32 s20, s97")
    p("s_cselect_b32 s89, 0, 0xf149f2ca")
    def tile_offsets(s):
        p("s_add_u32 s96, s96, 1")
        p(f"s_mul_i32 s27, s96, {full}")
        p("s_add_u32 s27, s27, s90")
        p(f"s_cmp_gt_u32 s96, {SP}")
        p(f"s_cselect_b32 s28, {(part - full) & 0xffffffff}, 0")
        p("s_add_u32 s27, s27, s28")
        p(f"s_cmp_eq_u32 s96, {SP}")
        p("s_cselect_b32 s28, s91, 0")
        p("s_cselect_b32 s23, s89, 0")
        p("s_add_u32 s27, s27, s28")
        p("s_mul_i32 s24, s27, 3072")
        p(f"s_mul_hi_u32 s28, s27, {(2**32 + 47)//48}")
        p("s_mul_i32 s29, s28, 48")
        p("s_sub_u32 s29, s27, s29")
        p("s_mul_i32 s25, s28, 589824")
        p("s_mul_i32 s29, s29, 6144")
        p("s_add_u32 s25, s25, s29")
        p("s_add_u32 s26, s25, 294912")
        p(f"s_cmp_ge_u32 s96, {NS}")
        p("s_cselect_b32 s23, 1, s23")
        p("s_cmp_eq_u32 s23, 0")
        p(f"s_cselect_b32 s10, {F0_BYTES}, 0")
        p(f"s_cselect_b32 s14, {F1_BYTES}, 0")
    loads = []
    lidx = {}
    class Cap:
        def __init__(self): self.l = []
        def __call__(self, x): self.l.append(x)
    def build_loads():
        nonlocal p
        for s in range(NS + 2):
            keep = p; p = Cap(); tile_offsets(s); pre = p.l; p = keep
            for t in range(3):
                r = F1R(s & 1, t)
                lidx[(s, 'f1', t)] = len(loads)
                loads.append(dict(pre=pre, key=(s & 1, 'f1', t) if s >= 2 else None,
                                  ins=f"buffer_load_dwordx4 v[{r}:{r+3}], v{VF1}, s[12:15], s24 offen offset:{256*t}{NT}"))
                pre = []
                for d in range(4):
                    r = F0R(s & 1, t, d)
                    so = "s25" if d < 2 else "s26"
                    lidx[(s, t, d)] = len(loads)
                    loads.append(dict(pre=[], key=(s & 1, t, d) if s >= 2 else None,
                                      ins=f"buffer_load_dwordx4 v[{r}:{r+3}], v{VF0}, s[8:11], {so} offen offset:{256*t + 768*(d&1)}{NT}"))
    build_loads()
    def mark(*a): p.items.append(a)
    stream_start = len(p.items)
    mark('t', 0)

    p("s_waitcnt lgkmcnt(0)")
    p("s_add_u32 s94, s94, 1")
    p(f"s_and_b32 s{S_TAG}, s94, 0xff")
    p(f"v_mov_b32 v{VTAG}, s{S_TAG}")
    tagpat(p, 4)

    p(f"s_mul_i32 s47, s20, {XT}")
    p(f"v_and_b32 v58, 1, v{FP}")
    p(f"v_lshlrev_b32 v58, 3, v58")
    p(f"v_lshrrev_b32 v59, 1, v{FP}")
    p(f"v_add_u32 v58, v58, v59")
    p(f"v_xor_b32 v58, v58, v{J}")
    p(f"v_lshlrev_b32 v58, 4, v58")
    p(f"v_mul_u32_u24 v59, 3072, v{FP}")
    p(f"v_add_u32 v58, v58, v59")
    p(f"v_add_u32 v{WA[0][0]}, s47, v58")
    for d in range(1, 4): p(f"v_xor_b32 v{WA[0][d]}, {32*d}, v{WA[0][0]}")
    for d in range(4): p(f"v_add_u32 v{WA[1][d]}, {2*XBUF}, v{WA[0][d]}")
    I, G, SI = 57, 56, 58
    p(f"v_and_b32 v{SI}, 7, v{I}")
    p(f"v_lshlrev_b32 v{SI}, 1, v{SI}")
    p(f"v_lshrrev_b32 v59, 3, v{I}")
    p(f"v_or_b32 v{SI}, v{SI}, v59")
    p(f"v_lshlrev_b32 v59, 1, v{G}")
    p(f"v_xor_b32 v59, v59, v{SI}")
    p(f"v_mul_u32_u24 v60, 768, v{I}")
    p(f"v_add_u32 v60, s47, v60")
    for b3 in range(2):
        for b0 in range(2):
            r = RA[0][2 * b3 + b0]
            p(f"v_xor_b32 v{r}, {8*b3+b0}, v59")
            p(f"v_lshl_add_u32 v{r}, v{r}, 4, v60")
            p(f"v_add_u32 v{RA[1][2*b3+b0]}, {2*XBUF}, v{r}")
    p(f"v_lshlrev_b32 v{MXR}, 4, v{I}")
    p(f"v_lshrrev_b32 v59, 1, v{G}")
    p(f"v_lshlrev_b32 v59, 10, v59")
    p(f"v_and_b32 v60, 1, v{G}")
    p(f"v_lshl_add_u32 v59, v60, 3, v59")
    p(f"v_add_u32 v59, v59, v{MXR}")
    p(f"v_add_u32 v{QBA}, {QBL_OFF}, v59")
    p(f"v_add_u32 v{MXR}, {MX_OFF}, v{MXR}")
    p("s_lshl_b32 s48, s20, 2")
    p(f"v_add_u32 v{MXW}, s48, v{MXR}")
    p(f"v_add_u32 v{WXR}, {WX_OFF}, v{VL16}")
    p("s_lshr_b32 s48, s20, 1")
    p("s_lshl_b32 s48, s48, 10")
    p("s_and_b32 s49, s20, 1")
    p("s_lshl_b32 s49, s49, 3")
    p("s_add_u32 s48, s48, s49")
    p(f"v_add_u32 v{WXW}, s48, v{WXR}")
    I = 56
    p(f"v_lshrrev_b32 v{I}, 2, v0")
    p(f"v_and_b32 v{SI}, 7, v{I}")
    p(f"v_lshlrev_b32 v{SI}, 1, v{SI}")
    p(f"v_lshrrev_b32 v59, 3, v{I}")
    p(f"v_or_b32 v{SI}, v{SI}, v59")
    p(f"v_and_b32 v59, 3, v0")
    p(f"v_lshrrev_b32 v60, 1, v59")
    p(f"v_xor_b32 v{SI}, v{SI}, v60")
    p(f"v_and_b32 v59, 1, v59")
    p(f"v_lshlrev_b32 v59, 3, v59")
    p(f"v_mul_u32_u24 v60, 768, v{I}")
    p(f"v_add_u32 v60, v60, v59")
    p("s_mul_i32 s48, s20, 6")
    for q in range(6):
        p(f"s_add_u32 s49, s48, {q}")
        p("s_and_b32 s50, s49, 7")
        p("s_lshl_b32 s50, s50, 1")
        p("s_lshr_b32 s49, s49, 3")
        p("s_lshl_b32 s49, s49, 8")
        p(f"v_xor_b32 v{TR[q]}, s50, v{SI}")
        p(f"v_lshl_add_u32 v{TR[q]}, v{TR[q]}, 4, v60")
        p(f"v_add_u32 v{TR[q]}, s49, v{TR[q]}")
    for r in range(4):
        mov64(p, 30 + 2 * r, sum(1 << (20 * g + r) for g in range(4)))
    for r in range(1, 4):
        mov64(p, 38 + 2 * (r - 1), 0x1111111111111111 << r)
    p("s_mov_b32 s44, 0xffff0000")
    p("s_mov_b32 s87, 0xffffff00")
    p(f"s_mov_b32 s45, 0x{f2u(1.0 / C):08x}")
    p(f"s_mov_b32 s46, 0x{f2u(1e-5):08x}")
    p("s_mov_b32 s51, 0x00003f80")
    p("s_mov_b32 s3, 0x3f800000")
    for r in range(24): p(f"v_mov_b32 v{ACC+r}, 0")
    p(f"v_mov_b32 v{M}, 0xf149f2ca")
    p(f"v_mov_b32 v{L}, 0")
    p(f"v_mov_b32 v{Z}, 0")
    p("v_mov_b32 v56, 0x3f803f80")
    for r in range(4): p(f"v_accvgpr_write_b32 a{aONE+r}, v56")

    tr_slot = [0]
    dyn = [False]
    def wa(slot, d, t):
        if dyn[0]: return (WA[0][d], 768 * d + 256 * t)
        return (WA[0][d], slot * XBUF + 768 * d + 256 * t) if slot < 2 else (WA[1][d], 768 * d + 256 * t)
    def ra(slot, ks):
        i = 2 * ((ks >> 1) & 1) + (ks & 1)
        if dyn[0]: return (RA[0][i], 256 * (ks >> 2))
        return (RA[0][i], slot * XBUF + 256 * (ks >> 2)) if slot < 2 else (RA[1][i], 256 * (ks >> 2))

    def m_reads(s, t, xa=aXA):
        for ks in range(4 * t, 4 * t + 4):
            r, off = ra(s % 3, ks)
            p(f"ds_read_b128 a[{xa+4*ks}:{xa+4*ks+3}], v{r} offset:{off}")
    def m_mfma(s, t, b=0, what="gol", xa=aXA):
        d1, d3 = D1B[b], D3B[b]
        G_, O_, L_ = [], [], []
        for ks in range(4 * t, 4 * t + 4):
            x = f"a[{xa+4*ks}:{xa+4*ks+3}]"
            c1 = "0" if ks == 0 else f"v[{d1}:{d1+3}]"
            c2 = "0" if ks == 0 else f"v[{D2}:{D2+3}]"
            c3 = "0" if ks == 0 else f"v[{d3}:{d3+3}]"
            G_.append(f"v_mfma_f32_16x16x32_bf16 v[{D2}:{D2+3}], {x}, {x}, {c2}")
            O_.append(f"v_mfma_f32_16x16x32_bf16 v[{d3}:{d3+3}], {x}, a[{aONE}:{aONE+3}], {c3}")
            L_.append(f"v_mfma_f32_16x16x32_bf16 v[{d1}:{d1+3}], {x}, a[{aQB+4*ks}:{aQB+4*ks+3}], {c1}")
        if what == "l":
            for x in L_: p(x)
        elif what == "go":
            for g_, o_ in zip(G_, O_): p(g_); p(o_)
        elif t < 2:
            for g_, o_, l_ in zip(G_, O_, L_): p(g_); p(o_); p(l_)
        else:
            for g_, o_ in zip(G_, O_): p(g_); p(o_)
            for l_ in L_: p(l_)
    def stats(b):
        d3, rs = D3B[b], RSB[b]
        p(f"v_cndmask_b32 v{Uu}, 0, v{D2}, s[30:31]")
        for r in range(1, 4):
            p(f"v_cndmask_b32 v{Uu}, v{Uu}, v{D2+r}, s[{30+2*r}:{31+2*r}]")
        p(f"v_cndmask_b32 v{SS}, v{d3}, v{d3+1}, s[38:39]")
        p(f"v_cndmask_b32 v{SS}, v{SS}, v{d3+2}, s[40:41]")
        p(f"v_add_f32_dpp v{Uu}, v{Uu}, v{Uu} row_ror:4 row_mask:0xf bank_mask:0xf")
        p(f"v_cndmask_b32 v{SS}, v{SS}, v{d3+3}, s[42:43]")
        p(f"v_mov_b32 v{TM}, s46")
        p(f"v_add_f32_dpp v{Uu}, v{Uu}, v{Uu} row_ror:8 row_mask:0xf bank_mask:0xf")
        p(f"v_mul_f32 v{SS}, s45, v{SS}")
        p(f"v_fma_f32 v{Uu}, v{Uu}, s45, v{TM}")
        p(f"v_fma_f32 v{Uu}, -v{SS}, v{SS}, v{Uu}")
        p(f"v_max_f32 v{Uu}, s46, v{Uu}")
        p(f"v_rsq_f32 v{rs}, v{Uu}")
    def stage_G(s, b):
        for t in range(3): m_reads(s, t)
        mark('t', 120)
        for t in range(3): m_mfma(s, t, b, "go")
        stats(b)

    def stage_A(s, ld, fuse, thirds=(0, 1, 2)):
        slot = s % 3; k = s & 1
        for t in thirds:
            if (s, t) == qpos: qk_issue()
            f1 = F1R(k, t)
            mark('use', lidx[(s, 'f1', t)])
            for j in range(4):
                p(f"v_lshlrev_b32 v{U+2*j}, 16, v{f1+j}")
                p(f"v_and_b32 v{U+2*j+1}, s44, v{f1+j}")
            mark('free', (k, 'f1', t))
            for d in range(4):
                f0 = F0R(k, t, d)
                mark('use', lidx[(s, t, d)])
                for j in range(4):
                    p(f"v_dot2_f32_bf16 v{TT+2*j}, v{f0+j}, s51, v{U+2*j}")
                    p(f"v_dot2_f32_bf16 v{TT+2*j+1}, v{f0+j}, s3, v{U+2*j+1}")
                for j in range(4):
                    p(f"v_cvt_pk_bf16_f32 v{f0+j}, v{TT+2*j}, v{TT+2*j+1}")
                r, off = wa(slot, d, t)
                p(f"ds_write_b128 v{r}, v[{f0}:{f0+3}] offset:{off}")
                mark('free', (k, t, d))
            if fuse:
                m_reads(s, t)
                mark('t', 120)
                m_mfma(s, t)
        if fuse: stats(0)

    def stage_M(tiles, pre):
        if pre:
            for b, s in enumerate(tiles):
                for t in range(3): m_reads(s, t, XAB[b])
            mark('t', 100)
            for b, s in enumerate(tiles):
                for t in range(3): m_mfma(s, t, b, "l", XAB[b])
        else:
            for b, s in enumerate(tiles):
                if b == 0:
                    for t in range(3): m_reads(s, t, XAB[0])
                    mark('t', 120)
                if b + 1 < len(tiles):
                    for t in range(3): m_reads(tiles[b + 1], t, XAB[b + 1])
                for t in range(3): m_mfma(s, t, b, "gol", XAB[b])
                stats(b)

    qpos = None
    qk_loads = []
    qk_loads.append("s_mul_i32 s48, s20, 6144")
    qk_loads.append(f"s_add_u32 s48, s48, {QKF_OFF}")
    qk_loads.append("s_add_u32 s49, s48, 4096")
    for q in range(6):
        so, off = ("s48", 1024 * q) if q < 4 else ("s49", 1024 * (q - 4))
        qk_loads.append(f"buffer_load_dwordx4 v[{QKR+4*q}:{QKR+4*q+3}], v{VL16}, s[16:19], {so} offen offset:{off} sc1")
    def qk_issue():
        for x in qk_loads: p(x)
    def qb_setup(fused=False):
        QA = [196 + q for q in range(6)]
        for q in range(6):
            p("s_mul_i32 s48, s20, 6")
            p(f"s_add_u32 s48, s48, {q}")
            p("s_lshr_b32 s49, s48, 2")
            p("s_lshl_b32 s49, s49, 11")
            p("s_and_b32 s48, s48, 3")
            p("s_lshl_b32 s48, s48, 8")
            p("s_add_u32 s48, s48, s49")
            p(f"v_add_u32 v{QA[q]}, s48, v{QBA}")
        p(f"v_add_u32 v202, {QBL_OFF}, v{VL16}")
        if fused:
            for t in range(3): m_reads(0, t, 96)
            for t in range(3): m_reads(1, t, 144)
        mark('t', 300)
        stamp("Q0")
        if opt.get("prof") == 1: p(f"s_mov_b32 s{S_SPIN}, 0xffff")
        poll_block(p, name, qk_loads, list(range(QKR, QKR + 24)), VTAG, TM, preissued=True, lock=True)
        stamp("Qok")
        if opt.get("prof") == 1: p(f"s_mov_b32 s86, s{S_SPIN}")
        for q in range(6):
            p(f"v_cvt_pk_bf16_f32 v{QKR+4*q}, v{QKR+4*q}, v{QKR+4*q+1}")
            p(f"v_cvt_pk_bf16_f32 v{QKR+4*q+1}, v{QKR+4*q+2}, v{QKR+4*q+3}")
            p(f"ds_write_b64 v{QA[q]}, v[{QKR+4*q}:{QKR+4*q+1}]")
        p("s_barrier")
        stamp("Sbar")
        for ks in range(12):
            p(f"ds_read_b128 a[{aQB+4*ks}:{aQB+4*ks+3}], v202 offset:{1024*ks}")
        mark('t', 100)
        if not fused:
            for ks in range(12):
                c = "0" if ks == 0 else f"v[{D1}:{D1+3}]"
                p(f"v_mfma_f32_16x16x32_bf16 v[{D1}:{D1+3}], a[{aONE}:{aONE+3}], a[{aQB+4*ks}:{aQB+4*ks+3}], {c}")
            p(f"v_mul_f32 v{SN}, s45, v{D1}")
        else:
            xa = [96, 144, 48]
            for ks in range(12):
                qb = f"a[{aQB+4*ks}:{aQB+4*ks+3}]"
                p(f"v_mfma_f32_16x16x32_bf16 v[{D2}:{D2+3}], a[{aONE}:{aONE+3}], {qb}, {'0' if ks == 0 else f'v[{D2}:{D2+3}]'}")
                for b in range(3):
                    d1 = D1B[b]
                    p(f"v_mfma_f32_16x16x32_bf16 v[{d1}:{d1+3}], a[{xa[b]+4*ks}:{xa[b]+4*ks+3}], {qb}, {'0' if ks == 0 else f'v[{d1}:{d1+3}]'}")
            p(f"v_mul_f32 v{SN}, s45, v{D2}")

    first_bc = [True]
    def set_tr(slot):
        if slot != tr_slot[0]:
            dlt = (slot - tr_slot[0]) * XBUF
            for q in range(6):
                if dlt > 0: p(f"v_add_u32 v{TR[q]}, {dlt}, v{TR[q]}")
                else: p(f"v_subrev_u32 v{TR[q]}, {-dlt}, v{TR[q]}")
            tr_slot[0] = slot
    def tr_list(xt):
        trs = []
        for kst in range(2):
            for q in range(6):
                for h in range(2):
                    j = 2 * kst + h
                    a = xt + 8 * q + 4 * kst + 2 * h
                    trs.append(f"ds_read_b64_tr_b16 a[{a}:{a+1}], v{TR[q]} offset:{j*XT}")
        return trs
    def stage_B(tiles):
        nb = len(tiles)
        set_tr(tiles[0] % 3)
        for b, s in enumerate(tiles):
            d1, d3, rs = D1B[b], D3B[b], RSB[b]
            for r in range(4):
                p(f"v_fma_f32 v{d1+r}, -v{d3+r}, v{SN}, v{d1+r}")
            for r in range(4):
                p(f"v_mul_f32_dpp v{d1+r}, v{rs}, v{d1+r} quad_perm:[{r},{r},{r},{r}] row_mask:0xf bank_mask:0xf")
            if s == SP:
                for r in range(4): p(f"v_add_f32 v{d1+r}, s89, v{d1+r}")
        vals = [D1B[b] + r for b in range(nb) for r in range(4)]
        p(f"v_max3_f32 v{TM}, v{vals[0]}, v{vals[1]}, v{vals[2]}")
        rest = vals[3:]
        while len(rest) >= 2:
            p(f"v_max3_f32 v{TM}, v{TM}, v{rest[0]}, v{rest[1]}"); rest = rest[2:]
        if rest: p(f"v_max_f32 v{TM}, v{TM}, v{rest[0]}")
        xg_reduce(p, "v_max_f32", TM, TM2)
        p(f"ds_write_b32 v{MXW}, v{TM}")
        mark('t', 100)
        p("s_barrier")
        p(f"ds_read_b128 v[{D2}:{D2+3}], v{MXR}")
        mark('t', 80)
        trs = tr_list(XTB[0])
        for x in trs[:12]: p(x)
        p(f"v_max3_f32 v{TM}, v{D2}, v{D2+1}, v{D2+2}")
        p(f"v_max3_f32 v{TM}, v{TM}, v{D2+3}, v{M}")
        p(f"v_and_b32 v{TM}, s87, v{TM}")
        p(f"v_sub_f32 v{AL}, v{M}, v{TM}")
        p(f"v_mov_b32 v{M}, v{TM}")
        p(f"v_exp_f32 v{AL}, v{AL}")
        for v in vals: p(f"v_sub_f32 v{v}, v{v}, v{M}")
        for v in vals: p(f"v_exp_f32 v{v}, v{v}")
        for x in trs[12:]: p(x)
        p(f"v_add_f32 v{TM}, v{vals[0]}, v{vals[1]}")
        p(f"v_add_f32 v{TM2}, v{vals[2]}, v{vals[3]}")
        for i in range(4, len(vals), 2):
            p(f"v_add_f32 v{TM}, v{TM}, v{vals[i]}")
            p(f"v_add_f32 v{TM2}, v{TM2}, v{vals[i+1]}")
        p(f"v_add_f32 v{TM}, v{TM}, v{TM2}")
        p(f"v_fma_f32 v{L}, v{L}, v{AL}, v{TM}")
        for b in range(nb):
            d1, rs, wf = D1B[b], RSB[b], WFB[b]
            for r in range(4):
                p(f"v_mul_f32_dpp v{d1+r}, v{rs}, v{d1+r} quad_perm:[{r},{r},{r},{r}] row_mask:0xf bank_mask:0xf")
            p(f"v_cvt_pk_bf16_f32 v{wf}, v{d1}, v{d1+1}")
            p(f"v_cvt_pk_bf16_f32 v{wf+1}, v{d1+2}, v{d1+3}")
            p(f"ds_write_b64 v{WXW}, v[{wf}:{wf+1}] offset:{2048*b}")
        if nb > 1:
            set_tr(tiles[1] % 3)
            for x in tr_list(XTB[1]): p(x)
        p(f"v_mul_f32 v{Z}, v{Z}, v{AL}")
        for b in range(nb):
            for r in range(4): p(f"v_fma_f32 v{Z}, v{D1B[b]+r}, v{D3B[b]+r}, v{Z}")
        if not first_bc[0]:
            for r in range(24): p(f"v_mul_f32 v{ACC+r}, v{ACC+r}, v{AL}")
        first_bc[0] = False
        p("s_barrier")

    def stage_C(tiles):
        nb = len(tiles)
        WR = [(D1, D2), (212, 216), (D1, D2)]
        for b in range(min(nb, 2)):
            p(f"ds_read_b128 v[{WR[b][0]}:{WR[b][0]+3}], v{WXR} offset:{2048*b}")
            p(f"ds_read_b128 v[{WR[b][1]}:{WR[b][1]+3}], v{WXR} offset:{2048*b + 1024}")
        mark('t', 120)
        for b in range(nb):
            xt = XTB[b & 1]
            for kst in range(2):
                bb = WR[b][kst]
                for q in range(6):
                    a = xt + 8 * q + 4 * kst
                    p(f"v_mfma_f32_16x16x32_bf16 v[{ACC+4*q}:{ACC+4*q+3}], a[{a}:{a+3}], v[{bb}:{bb+3}], v[{ACC+4*q}:{ACC+4*q+3}]")
            if b == 0 and nb == 3:
                set_tr(tiles[2] % 3)
                for x in tr_list(XTB[0]): p(x)
                p(f"ds_read_b128 v[{WR[2][0]}:{WR[2][0]+3}], v{WXR} offset:{2048*2}")
                p(f"ds_read_b128 v[{WR[2][1]}:{WR[2][1]+3}], v{WXR} offset:{2048*2 + 1024}")
        if nb == 3 or True:
            pass


    PR, LSUM, ZSUM, WR2, FLR4 = 212, 216, 217, 224, 232
    FLW, FLR = 250, 251
    FL_OFF = WX_OFF + 8192
    THR = opt.get("thr", 8)
    class Sub:
        def __enter__(self):
            self.keep = p.items; p.items = []; return self
        def __exit__(self, *a):
            self.items = p.items; p.items = self.keep
    def merge(mf, sec, lead, per=2):
        i = 0
        def take(n):
            nonlocal i
            while i < len(sec) and (n > 0 or isinstance(sec[i], tuple)):
                p.items.append(sec[i])
                if not isinstance(sec[i], tuple): n -= 1
                i += 1
        take(lead)
        for m in mf:
            p.items.append(m); take(per)
        take(10 ** 6)
    def a_third(s, t):
        with Sub() as c: stage_A(s, None, False, (t,))
        return c.items
    def m_list(s, t):
        with Sub() as c: m_mfma(s, t)
        return c.items
    f2_init = [False]
    pendC = [None]
    def c_list(wr, xt):
        out = []
        for kst in range(2):
            bb = wr + 4 * kst
            for q in range(6):
                a = xt + 8 * q + 4 * kst
                out.append(f"v_mfma_f32_16x16x32_bf16 v[{ACC+4*q}:{ACC+4*q+3}], a[{a}:{a+3}], v[{bb}:{bb+3}], v[{ACC+4*q}:{ACC+4*q+3}]")
        return out
    def flush_C():
        if pendC[0]:
            for x in pendC[0]: p(x)
            pendC[0] = None
    def w_chain(src, exact_dm=None):
        rs, d3, wf = RSB[0], D3B[0], WFB[0]
        for r in range(4): p(f"v_exp_f32 v{PR+r}, v{src+r}")
        p(f"v_add_f32 v{LSUM}, v{PR}, v{PR+1}")
        p(f"v_add_f32 v{ZSUM}, v{PR+2}, v{PR+3}")
        p(f"v_add_f32 v{LSUM}, v{LSUM}, v{ZSUM}")
        for r in range(4):
            p(f"v_mul_f32_dpp v{PR+r}, v{rs}, v{PR+r} quad_perm:[{r},{r},{r},{r}] row_mask:0xf bank_mask:0xf")
        p(f"v_cvt_pk_bf16_f32 v{wf}, v{PR}, v{PR+1}")
        p(f"v_cvt_pk_bf16_f32 v{wf+1}, v{PR+2}, v{PR+3}")
        p(f"ds_write_b64 v{WXW}, v[{wf}:{wf+1}]")
        p(f"v_mul_f32 v{ZSUM}, v{PR}, v{d3}")
        for r in range(1, 4): p(f"v_fma_f32 v{ZSUM}, v{PR+r}, v{d3+r}, v{ZSUM}")
    def m2_publish():
        mark('lock')
        p(f"v_bfi_b32 v{TM}, s{S_MASK}, v{VTAG}, v{M}")
        p(f"v_lshrrev_b32 v{TM2}, 2, v{VL16}")
        p("s_lshl_b32 s48, s2, 6")
        p(f"s_add_u32 s48, s48, {M2_OFF}")
        p("s_cmp_eq_u32 s20, 0")
        p(f"s_cbranch_scc0 {name}_m2skip ;@nodrain")
        p("s_mov_b64 exec, 0xffff")
        p(f"buffer_store_dword v{TM}, v{TM2}, s[16:19], s48 offen sc1")
        p("s_mov_b64 exec, -1")
        p(f"{name}_m2skip:")
        mark('unlock')
    def stage_F2(s, last):
        if not f2_init[0]:
            f2_init[0] = True
            p(f"s_lshl_b32 s48, s20, 2")
            p(f"s_add_u32 s48, s48, {FL_OFF}")
            p(f"v_mov_b32 v{FLW}, s48")
            p(f"v_mov_b32 v{FLR}, {FL_OFF}")
            p(f"s_mov_b32 s88, 0x{f2u(float(THR)):08x}")
        d1, d3, rs = D1B[0], D3B[0], RSB[0]
        if LOOP:
            first = not dyn[0]
            if first:
                assert s % 3 == 0
                set_tr(0)
                p("s_mov_b32 s47, 0")
                p(f"s_mov_b32 s100, {s - 1}")
                p("s_mov_b32 s101, 0")
                dyn[0] = True
            p(f".set ZB{s}, 0")
            mark('zstart')
            mark('lock')
            if not first:
                p("s_add_u32 s47, s47, 1")
                p(f"s_mov_b32 s48, {XBUF}")
                p("s_cmp_eq_u32 s47, 3")
                p(f"s_cselect_b32 s48, {(-2*XBUF) & 0xffffffff}, s48")
                p("s_cselect_b32 s47, 0, s47")
            p("s_add_u32 s100, s100, 1")
            p(f"s_cmp_eq_u32 s100, {SP}")
            p("s_cselect_b32 s22, s89, 0")
            mark('unlock')
            if not first:
                for r in WA[0] + RA[0] + TR: p(f"v_add_u32 v{r}, s48, v{r}")
        def fz(i):
            if opt.get("prof") == 7 and (s & 1): p(f"s_memtime s[{52+2*i}:{53+2*i}]")
        fz(0)
        a0 = a_third(s, 0)
        if pendC[0]:
            merge(pendC[0], a0, lead=16); pendC[0] = None
        else:
            p.items.extend(a0)
        fz(1)
        m_reads(s, 0)
        merge(m_list(s, 0), a_third(s, 1), lead=20)
        fz(2)
        m_reads(s, 1)
        merge(m_list(s, 1), a_third(s, 2), lead=20)
        fz(3)
        m_reads(s, 2)
        if not LOOP: set_tr(s % 3)
        p("s_barrier")
        fz(4)
        trs = tr_list(XTB[0])
        merge(m_list(s, 2), trs, lead=2, per=2)
        fz(5)
        stats(0)
        fz(6)
        for r in range(4):
            p(f"v_fma_f32 v{d1+r}, -v{d3+r}, v{SN}, v{d1+r}")
        for r in range(4):
            p(f"v_mul_f32_dpp v{d1+r}, v{rs}, v{d1+r} quad_perm:[{r},{r},{r},{r}] row_mask:0xf bank_mask:0xf")
        if LOOP:
            for r in range(4): p(f"v_add_f32 v{d1+r}, s22, v{d1+r}")
        elif s == SP:
            for r in range(4): p(f"v_add_f32 v{d1+r}, s89, v{d1+r}")
        for r in range(4): p(f"v_sub_f32 v{d1+r}, v{d1+r}, v{M}")
        p(f"v_max3_f32 v{TM}, v{d1}, v{d1+1}, v{d1+2}")
        p(f"v_max_f32 v{TM}, v{TM}, v{d1+3}")
        p(f"v_cmp_lt_f32 vcc, s88, v{TM}")
        mark('lock')
        fz(7)
        for r in range(4): p(f"v_exp_f32 v{PR+r}, v{d1+r}")
        p("s_cmp_lg_u64 vcc, 0")
        p("s_cselect_b32 s48, 1, 0")
        mark('unlock')
        p(f"v_mov_b32 v{TM2}, s48")
        p(f"v_add_f32 v{LSUM}, v{PR}, v{PR+1}")
        p(f"v_add_f32 v{ZSUM}, v{PR+2}, v{PR+3}")
        p(f"ds_write_b32 v{FLW}, v{TM2}")
        p(f"v_add_f32 v{LSUM}, v{LSUM}, v{ZSUM}")
        wf = WFB[0]
        for r in range(4):
            p(f"v_mul_f32_dpp v{PR+r}, v{rs}, v{PR+r} quad_perm:[{r},{r},{r},{r}] row_mask:0xf bank_mask:0xf")
        p(f"v_cvt_pk_bf16_f32 v{wf}, v{PR}, v{PR+1}")
        p(f"v_cvt_pk_bf16_f32 v{wf+1}, v{PR+2}, v{PR+3}")
        p(f"ds_write_b64 v{WXW}, v[{wf}:{wf+1}]")
        p(f"v_mul_f32 v{ZSUM}, v{PR}, v{d3}")
        for r in range(1, 4): p(f"v_fma_f32 v{ZSUM}, v{PR+r}, v{d3+r}, v{ZSUM}")
        fz(8)
        p("s_barrier")
        fz(9)
        p(f"ds_read_b128 v[{FLR4}:{FLR4+3}], v{FLR}")
        p(f"ds_read_b128 v[{WR2}:{WR2+3}], v{WXR}")
        p(f"ds_read_b128 v[{WR2+4}:{WR2+7}], v{WXR} offset:1024")
        mark('t', 100)
        mark('lock')
        p(f"v_or3_b32 v{TM}, v{FLR4}, v{FLR4+1}, v{FLR4+2}")
        p(f"v_or_b32 v{TM}, v{TM}, v{FLR4+3}")
        p(f"v_cmp_ne_u32 vcc, 0, v{TM}")
        uid[0] += 1
        Lb = f"{name}_lz{uid[0]}"
        p(f"s_cbranch_vccz {Lb}")
        p("s_waitcnt lgkmcnt(0)")
        p(f"v_max3_f32 v{TM}, v{d1}, v{d1+1}, v{d1+2}")
        p(f"v_max_f32 v{TM}, v{TM}, v{d1+3}")
        xg_reduce(p, "v_max_f32", TM, TM2)
        p(f"ds_write_b32 v{MXW}, v{TM}")
        p("s_barrier")
        p(f"ds_read_b128 v[{FLR4}:{FLR4+3}], v{MXR}")
        p(f"v_max3_f32 v{TM}, v{FLR4}, v{FLR4+1}, v{FLR4+2}")
        p(f"v_max3_f32 v{TM}, v{TM}, v{FLR4+3}, 0")
        p(f"v_add_f32 v{TM2}, v{M}, v{TM}")
        p(f"v_and_b32 v{TM2}, s87, v{TM2}")
        p(f"v_sub_f32 v{TM}, v{TM2}, v{M}")
        p(f"v_mov_b32 v{M}, v{TM2}")
        p(f"v_sub_f32 v{AL}, 0, v{TM}")
        p(f"v_exp_f32 v{AL}, v{AL}")
        for r in range(4): p(f"v_sub_f32 v{d1+r}, v{d1+r}, v{TM}")
        for r in range(24): p(f"v_mul_f32 v{ACC+r}, v{ACC+r}, v{AL}")
        p(f"v_mul_f32 v{L}, v{L}, v{AL}")
        p(f"v_mul_f32 v{Z}, v{Z}, v{AL}")
        w_chain(d1)
        p("s_barrier")
        p(f"ds_read_b128 v[{WR2}:{WR2+3}], v{WXR}")
        p(f"ds_read_b128 v[{WR2+4}:{WR2+7}], v{WXR} offset:1024")
        p("s_waitcnt lgkmcnt(0)")
        p("s_nop 7")
        p(f"{Lb}: ;@restore {Lb}")
        mark('unlock')
        if last and not LOOP: m2_publish()
        p(f"v_add_f32 v{L}, v{L}, v{LSUM}")
        p(f"v_add_f32 v{Z}, v{Z}, v{ZSUM}")
        fz(10)
        if LOOP and opt.get("prof") == 6:
            mark('lock')
            p("s_memrealtime s[84:85]")
            p("s_sub_u32 s83, s100, 3")
            p("s_mov_b32 m0, s83")
            p("s_waitcnt lgkmcnt(0)")
            p("v_writelane_b32 v239, s84, m0")
            mark('unlock')
        if LOOP: mark('zend')
        cl = c_list(WR2, XTB[0])
        if last and not LOOP:
            for x in cl: p(x)
        else:
            pendC[0] = cl

    stamp = Prof(p, opt, 52, 86)
    sched = opt.get("sched", "A0 G00 A1 G11 A2 Q G22 D11 P140 D30 T Y D20 Z3 Z4 Z5 Z6 Z7 Z8 Z9")
    stamp("init")
    for tok in sched.replace("_", " ").split():
        if tok == "S":
            mark('log', 'S0'); qb_setup(); stamp("S")
        elif tok == "T":
            mark('log', 'T0'); qb_setup(True); stamp("S")
        elif tok == "Y":
            stage_B([0, 1, 2]); stage_C([0, 1, 2]); stamp("X012")
        elif tok == "Q": qk_issue()
        elif tok[0] == "I":
            mark('force', 15 * int(tok[1]) + int(tok[2:]))
        elif tok[0] == "D":
            mark('dmax', int(tok[1:]))
        elif tok[0] == "P":
            mark('gap', int(tok[1:]))
        elif tok[0] == "W":
            mark('until', int(tok[1:]) * 210)
        elif tok[0] == "Z":
            s = int(tok[1]); stage_F2(s, s == NS - 1)
            if not LOOP: stamp(tok)
        elif tok[0] in "AF":
            s = int(tok[1])
            if len(tok) == 3:
                stage_A(s, None, False, (int(tok[2]),))
                if tok[2] == "2" and s < 3: stamp(tok[:2])
            else:
                stage_A(s, None, tok[0] == "F")
                if tok[0] == "F":
                    stage_B([s]); stage_C([s])
                if tok[0] == "F" or s < 3: stamp(tok)
        elif tok[0] == "G":
            stage_G(int(tok[1]), int(tok[2]))
        elif tok[0] in "MX":
            tiles = [int(c) for c in tok[1:]]
            stage_M(tiles, tok[0] == "X"); stage_B(tiles); stage_C(tiles); stamp(tok)
        mark('log', tok)
    if LOOP:
        p(".set ZEND, 0")
        mark('lock')
        m2_publish()
        mark('lock')
        flush_C()
        stamp("Z9")
    body = p.items[stream_start:]
    sched_out = schedule_loads(body, loads, pace=opt.get("pace", 300), lat=opt.get("lat", 1500), dmax=opt.get("dmax", 7), verbose=True, policy=opt.get("policy", "dist"))
    p.items[stream_start:] = sched_out

    if opt.get("streamonly"):
        p("s_endpgm")
        return
    p("s_mul_i32 s24, s2, 12288")
    p("s_mul_i32 s25, s20, 3072")
    p("s_add_u32 s24, s24, s25")
    p(f"s_add_u32 s24, s24, {PART_OFF}")
    p(f"v_mov_b32 v{TM}, 0x00010001")
    for k in range(3):
        b = ACC + 8 * k
        for j in range(4): p(f"v_cvt_pk_bf16_f32 v{b+j}, v{b+2*j}, v{b+2*j+1}")
        for j in range(4): p(f"v_bfi_b32 v{b+j}, v{TM}, s{4+j}, v{b+j}")
        p(f"buffer_store_dwordx4 v[{b}:{b+3}], v{VL16}, s[16:19], s24 offen offset:{1024*k} sc1")
    xg_reduce(p, "v_add_f32", L, TM2)
    xg_reduce(p, "v_add_f32", Z, TM2)
    p(f"ds_write_b32 v{MXW}, v{L}")
    p(f"ds_write_b32 v{MXW}, v{Z} offset:{LZ_OFF - MX_OFF}")
    p("s_barrier")
    p("s_cmp_lg_u32 s20, 0")
    p(f"s_cbranch_scc1 {name}_red")
    p(f"ds_read_b128 v[56:59], v{MXR}")
    p(f"ds_read_b128 v[60:63], v{MXR} offset:{LZ_OFF - MX_OFF}")
    p("v_add_f32 v56, v56, v57")
    p("v_add_f32 v58, v58, v59")
    p("v_add_f32 v65, v56, v58")
    p("v_add_f32 v60, v60, v61")
    p("v_add_f32 v62, v62, v63")
    p("v_add_f32 v66, v60, v62")
    p(f"v_mov_b32 v64, v{M}")
    p(f"v_mov_b32 v67, v{VTAG}")
    p("s_lshl_b32 s24, s2, 8")
    p(f"s_add_u32 s24, s24, {ML_OFF}")
    p("s_mov_b64 exec, 0xffff")
    p(f"buffer_store_dwordx4 v[64:67], v{VL16}, s[16:19], s24 offen sc1")
    p("s_mov_b64 exec, -1")
    p(f"{name}_red: ;@restore red")
    stamp("pub")
    p(f"s_cmp_ge_u32 s21, {NRED}")
    p(f"s_cbranch_scc1 {name}_sdone ;@nodrain")
    p("s_lshr_b32 s24, s21, 3")
    p("s_lshr_b32 s25, s21, 1")
    p("s_and_b32 s25, s25, 3")
    p("s_and_b32 s26, s21, 1")
    p("v_and_b32 v56, 7, v0")
    p("v_lshrrev_b32 v57, 3, v0")
    p("v_mul_u32_u24 v58, 12288, v57")
    p("v_lshl_add_u32 v58, v56, 4, v58")
    p("v_lshlrev_b32 v59, 6, v57")
    p("v_lshl_add_u32 v59, v56, 2, v59")
    p(f"s_mul_i32 s27, s20, {64*12288}")
    p("s_lshl_b32 s28, s24, 10")
    p("s_add_u32 s27, s27, s28")
    p("s_lshl_b32 s28, s25, 8")
    p("s_add_u32 s27, s27, s28")
    p("s_lshl_b32 s28, s26, 7")
    p("s_add_u32 s27, s27, s28")
    p(f"s_add_u32 s27, s27, {PART_OFF}")
    p("s_lshl_b32 s29, s20, 12")
    p("s_lshl_b32 s28, s26, 5")
    p("s_add_u32 s29, s29, s28")
    p(f"s_add_u32 s29, s29, {M2_OFF}")
    PM = 76; PP = 108
    RL = f"{name}_rr"
    gate = opt.get("gate", 8)
    p("s_mov_b32 s50, 0xff")
    p("s_mov_b32 s51, 0xff")
    p(f"s_mov_b32 s{S_SPIN}, 0")
    if opt.get("ackwait", 1): p("s_waitcnt vmcnt(0)")
    p(f"{RL}_loop:")
    p("s_andn2_b32 s47, s51, s50")
    p("s_bcnt1_i32_b32 s48, s50")
    p(f"s_cmp_le_u32 s48, {gate}")
    p("s_cselect_b32 s47, s51, s47")
    for i in range(8):
        p(f"s_bitcmp0_b32 s50, {i}")
        p(f"s_cbranch_scc1 {RL}_a{i} ;@nodrain")
        p(f"s_add_u32 s48, s29, {512*i}")
        p(f"buffer_load_dword v{PM+i}, v59, s[16:19], s48 offen sc1")
        p(f"{RL}_a{i}:")
        p(f"s_bitcmp0_b32 s47, {i}")
        p(f"s_cbranch_scc1 {RL}_b{i} ;@nodrain")
        p(f"s_add_u32 s49, s27, {8*12288*i}")
        p(f"buffer_load_dwordx4 v[{PP+4*i}:{PP+4*i+3}], v58, s[16:19], s49 offen sc1")
        p(f"{RL}_b{i}:")
    p("s_waitcnt vmcnt(0)")
    for i in range(8):
        p(f"s_bitcmp0_b32 s47, {i}")
        p(f"s_cbranch_scc1 {RL}_c{i} ;@nodrain")
        r = PP + 4 * i
        for j in range(4): p(f"v_xor_b32 v{r+j}, s{4+j}, v{r+j}")
        p(f"v_or3_b32 v60, v{r}, v{r+1}, v{r+2}")
        p(f"v_or_b32 v60, v60, v{r+3}")
        p("v_and_b32 v60, 0x00010001, v60")
        p("v_cmp_ne_u32 vcc, 0, v60")
        p(f"s_cbranch_vccnz {RL}_c{i} ;@nodrain")
        p(f"s_bitset0_b32 s51, {i}")
        p(f"{RL}_c{i}:")
        p(f"s_bitcmp0_b32 s50, {i}")
        p(f"s_cbranch_scc1 {RL}_d{i} ;@nodrain")
        p(f"v_xor_b32 v{PM+i}, v{PM+i}, v{VTAG}")
        p(f"v_and_b32 v60, s{S_MASK}, v{PM+i}")
        p("v_cmp_ne_u32 vcc, 0, v60")
        p(f"s_cbranch_vccnz {RL}_d{i} ;@nodrain")
        p(f"s_bitset0_b32 s50, {i}")
        p(f"{RL}_d{i}:")
    p("s_or_b32 s48, s50, s51")
    p("s_cmp_eq_u32 s48, 0")
    p(f"s_cbranch_scc1 {RL}_done ;@nodrain")
    p(f"s_add_u32 s{S_SPIN}, s{S_SPIN}, 1")
    p(f"s_cmp_lt_u32 s{S_SPIN}, {SPIN_MAX}")
    p(f"s_cbranch_scc1 {RL}_loop ;@nodrain")
    if DIAG[0]:
        uid[0] += 1
        p("s_mov_b64 vcc, 1")
        diag_store(p, uid[0], "s50")
    p(f"{RL}_done:")
    p("s_nop 7")
    stamp("redin")
    MV, T = 61, 62
    p(f"v_max3_f32 v{MV}, v{PM}, v{PM+1}, v{PM+2}")
    p(f"v_max3_f32 v{MV}, v{MV}, v{PM+3}, v{PM+4}")
    p(f"v_max3_f32 v{MV}, v{MV}, v{PM+5}, v{PM+6}")
    p(f"v_max_f32 v{MV}, v{MV}, v{PM+7}")
    p("v_mov_b32 v63, 0x8000")
    p(f"v_max_f32_dpp v{MV}, v{MV}, v{MV} row_ror:8 row_mask:0xf bank_mask:0xf")
    xg_reduce(p, "v_max_f32", MV, T)
    for i in range(8): p(f"v_sub_f32 v{PM+i}, v{PM+i}, v{MV}")
    for i in range(8): p(f"v_exp_f32 v{PM+i}, v{PM+i}")
    A8 = 64
    for i in range(8):
        r = PP + 4 * i
        for j in range(4):
            p(f"v_lshl_or_b32 v{140+2*j}, v{r+j}, 16, v63")
            p(f"v_and_or_b32 v{141+2*j}, v{r+j}, s44, v63")
        for j in range(8):
            if i == 0: p(f"v_mul_f32 v{A8+j}, v{PM}, v{140+j}")
            else: p(f"v_fma_f32 v{A8+j}, v{PM+i}, v{140+j}, v{A8+j}")
    for j in range(4): p(f"v_permlane32_swap_b32 v{A8+j}, v{A8+j+4}")
    for j in range(4): p(f"v_add_f32 v{A8+j}, v{A8+j}, v{A8+j+4}")
    for j in range(2): p(f"v_permlane16_swap_b32 v{A8+j}, v{A8+j+2}")
    for j in range(2): p(f"v_add_f32 v{A8+j}, v{A8+j}, v{A8+j+2}")
    for j in range(2): p(f"v_add_f32_dpp v{A8+j}, v{A8+j}, v{A8+j} row_ror:8 row_mask:0xf bank_mask:0xf")
    p("v_lshlrev_b32 v72, 3, v0")
    p("s_lshl_b32 s28, s20, 9")
    p("v_add_u32 v73, s28, v72")
    p(f"ds_write_b64 v73, v[{A8}:{A8+1}]")
    p("v_lshlrev_b32 v74, 2, v0")
    p("s_lshl_b32 s28, s20, 8")
    p("v_add_u32 v75, s28, v74")
    p(f"ds_write_b32 v75, v{MV} offset:2048")
    p("s_barrier")
    p("s_cmp_lg_u32 s20, 0")
    p(f"s_cbranch_scc1 {name}_sdone ;@nodrain")
    for v in range(4):
        p(f"ds_read_b32 v{84+v}, v74 offset:{2048 + 256*v}")
        p(f"ds_read_b64 v[{76+2*v}:{77+2*v}], v72 offset:{512*v}")
    p("v_max3_f32 v61, v84, v85, v86")
    p("v_max_f32 v61, v61, v87")
    for v in range(4): p(f"v_sub_f32 v{84+v}, v{84+v}, v61")
    for v in range(4): p(f"v_exp_f32 v{84+v}, v{84+v}")
    for r in range(2): p(f"v_mul_f32 v{64+r}, v84, v{76+r}")
    for v in range(1, 4):
        for r in range(2): p(f"v_fma_f32 v{64+r}, v{84+v}, v{76+2*v+r}, v{64+r}")
    tag_regs(p, range(64, 66), VTAG)
    p("v_lshrrev_b32 v66, 5, v0")
    p("v_lshlrev_b32 v66, 10, v66")
    p("v_lshl_add_u32 v66, v56, 4, v66")
    p("v_bfe_u32 v67, v0, 4, 1")
    p("v_lshl_add_u32 v66, v67, 3, v66")
    p("s_lshl_b32 s24, s24, 11")
    p("s_lshl_b32 s25, s25, 8")
    p("s_add_u32 s24, s24, s25")
    p("s_lshl_b32 s26, s26, 7")
    p("s_add_u32 s24, s24, s26")
    p(f"s_add_u32 s24, s24, {UF_OFF}")
    p("s_mov_b32 exec_lo, 0x00ff00ff")
    p("s_mov_b32 exec_hi, 0x00ff00ff")
    p("buffer_store_dwordx2 v[64:65], v66, s[16:19], s24 offen sc1")
    stamp("redout")
    p(f"{name}_sdone:")
    if stamp.on:
        p("s_cmp_lg_u32 s20, 0")
        p(f"s_cbranch_scc1 {name}_done ;@nodrain")
        stamp.dump("streamer")
    p("s_endpgm")

def gen_special(p, name, opt):
    if opt.get("streamonly"):
        p("s_endpgm"); return
    stamp = Prof(p, opt, 64, 92)
    VL16, VI, VG, VTAG, VAB = 1, 2, 3, 4, 5
    LA = list(range(216, 228))
    RS = 784
    TILE_LDS = 16 * RS
    p("s_load_dwordx2 s[4:5], s[0:1], 0")
    p("s_load_dwordx4 s[8:11], s[0:1], 24")
    p("s_load_dwordx4 s[12:15], s[0:1], 40")
    p("s_load_dwordx2 s[6:7], s[0:1], 56")
    p(f"v_lshlrev_b32 v{VL16}, 4, v0")
    p(f"v_and_b32 v{VI}, 15, v0")
    p(f"v_lshrrev_b32 v{VG}, 4, v0")
    p(f"v_mul_u32_u24 v{VAB}, {RS}, v{VI}")
    p(f"v_lshl_add_u32 v{VAB}, v{VG}, 4, v{VAB}")
    for a in range(12):
        p(f"v_add_u32 v6, {1024*a}, v{VL16}")
        p("v_lshrrev_b32 v7, 8, v6")
        p("v_mul_u32_u24 v7, 21846, v7")
        p("v_lshrrev_b32 v7, 16, v7")
        p(f"v_lshl_add_u32 v{LA[a]}, v7, 4, v6")
    p("s_waitcnt lgkmcnt(0)")
    p(f"s_load_dword s94, s[22:23], {N_OFF}")
    srd(p, 16, 22, WS_USED)
    srd(p, 24, 8, W_BYTES)
    srd(p, 28, 10, W_BYTES)
    srd(p, 32, 4, Q_BYTES)
    srd(p, 36, 12, W_BYTES)
    srd(p, 40, 14, W_BYTES)
    srd(p, 44, 6, Q_BYTES)
    aONE = 144
    ONES = f"a[{aONE}:{aONE+3}]"
    def consts():
        for r in range(4): mov64(p, 52 + 2 * r, sum(1 << (20 * g + r) for g in range(4)))
        p(f"s_mov_b32 s60, 0x{f2u(1.0 / C):08x}")
        p(f"s_mov_b32 s61, 0x{f2u(1e-5):08x}")
        p("v_mov_b32 v6, 0x3f803f80")
        for r in range(4): p(f"v_accvgpr_write_b32 a{aONE+r}, v6")
        p("s_waitcnt lgkmcnt(0)")
        p("s_add_u32 s94, s94, 1")
        p(f"s_and_b32 s{S_TAG}, s94, 0xff")
        p(f"v_mov_b32 v{VTAG}, s{S_TAG}")
    p("s_cmp_ge_u32 s100, 6")
    p(f"s_cbranch_scc1 {name}_st2")
    WQS = 64
    QS = 16
    LQ = 0
    LWQ = 12544
    p("v_lshrrev_b32 v7, 3, v0")
    p("v_and_b32 v8, 7, v0")
    p("v_mul_u32_u24 v9, 768, v7")
    p("v_lshl_add_u32 v9, v8, 4, v9")
    p("v_mul_u32_u24 v10, 144, v7")
    p("v_lshl_add_u32 v10, v8, 4, v10")
    p("s_mul_i32 s48, s20, 3072")
    for a in range(3):
        p(f"buffer_load_dwordx4 v[{QS+4*a}:{QS+4*a+3}], v{VL16}, s[32:35], s48 offen offset:{1024*a}")
    p("s_lshl_b32 s48, s100, 7")
    p(f"s_mul_i32 s49, s20, {96*768}")
    p("s_add_u32 s48, s48, s49")
    for a in range(12):
        p(f"buffer_load_dwordx4 v[{WQS+4*a}:{WQS+4*a+3}], v9, s[24:27], s48 offen")
        if a < 11: p(f"s_add_u32 s48, s48, {8*768}")
    consts()
    stamp("issued")
    p("s_mul_i32 s48, s20, 3136")
    for a in range(3):
        p(f"v_add_u32 v6, s48, v{LA[a]}")
        p(f"ds_write_b128 v6, v[{QS+4*a}:{QS+4*a+3}] offset:{LQ}")
    p("s_barrier")
    QFR = 16
    for ks in range(12):
        p(f"ds_read_b128 v[{QFR+4*ks}:{QFR+4*ks+3}], v{VAB} offset:{LQ + 64*ks}")
    for ks in range(12):
        q = f"v[{QFR+4*ks}:{QFR+4*ks+3}]"
        p(f"v_mfma_f32_16x16x32_bf16 v[116:119], {q}, {q}, {'0' if ks == 0 else 'v[116:119]'}")
        p(f"v_mfma_f32_16x16x32_bf16 v[112:115], {ONES}, {q}, {'0' if ks == 0 else 'v[112:115]'}")
    p(f"s_mul_i32 s48, s20, {96*144}")
    p("v_add_u32 v10, s48, v10")
    p("v_lshrrev_b32 v11, 2, v0")
    p("v_and_b32 v11, 3, v11")
    p(f"v_lshl_add_u32 v11, v{VG}, 3, v11")
    p("v_mul_u32_u24 v11, 144, v11")
    p("v_and_b32 v13, 3, v0")
    p("v_lshl_add_u32 v11, v13, 3, v11")
    p("s_lshl_b32 s48, s20, 5")
    p("v_add_u32 v11, s48, v11")
    p("v_cndmask_b32 v12, 0, v116, s[52:53]")
    for r in range(1, 4): p(f"v_cndmask_b32 v12, v12, v{116+r}, s[{52+2*r}:{53+2*r}]")
    p("v_mul_f32 v14, s60, v112")
    xg_reduce(p, "v_add_f32", 12, 13)
    p("v_mov_b32 v13, s61")
    p("v_fma_f32 v12, v12, s60, v13")
    p("v_fma_f32 v12, -v14, v14, v12")
    p("v_max_f32 v12, s61, v12")
    p("v_rsq_f32 v15, v12")
    for a in range(12):
        p(f"ds_write_b128 v10, v[{WQS+4*a}:{WQS+4*a+3}] offset:{LWQ + 8*144*a}")
    stamp("s1ld")
    p("s_barrier")
    stamp("s1bar")
    aWT = 0
    for ks in range(12):
        for h in range(2):
            p(f"ds_read_b64_tr_b16 a[{aWT+4*ks+2*h}:{aWT+4*ks+2*h+1}], v11 offset:{LWQ + 32*144*ks + 4*144*h}")
    for ks in range(12):
        a = f"a[{aWT+4*ks}:{aWT+4*ks+3}]"
        q = f"v[{QFR+4*ks}:{QFR+4*ks+3}]"
        p(f"v_mfma_f32_16x16x32_bf16 v[120:123], {a}, {q}, {'0' if ks == 0 else 'v[120:123]'}")
        p(f"v_mfma_f32_16x16x32_bf16 v[124:127], {a}, {ONES}, {'0' if ks == 0 else 'v[124:127]'}")
    stamp("s1mf")
    for r in range(4): p(f"v_fma_f32 v{120+r}, -v14, v{124+r}, v{120+r}")
    for r in range(4): p(f"v_mul_f32 v{120+r}, v{120+r}, v15")
    tag_regs(p, range(120, 124), VTAG)
    p("s_lshl_b32 s48, s100, 2")
    p("s_add_u32 s48, s48, s20")
    p("s_lshl_b32 s48, s48, 10")
    p(f"s_add_u32 s48, s48, {QF_OFF}")
    p(f"buffer_store_dwordx4 v[120:123], v{VL16}, s[16:19], s48 offen sc1")
    stamp("st1")
    p(f"s_branch {name}_sp_w")
    p(f"{name}_st2: ;@restore st2")
    WKS = 64
    p("s_sub_u32 s21, s100, 6")
    p("s_lshl_b32 s21, s21, 2")
    p("s_add_u32 s21, s21, s20")
    p("s_mul_i32 s48, s21, 12288")
    for a in range(12):
        if a % 4 == 0 and a: p("s_add_u32 s48, s48, 4096")
        p(f"buffer_load_dwordx4 v[{WKS+4*a}:{WKS+4*a+3}], v{VL16}, s[28:31], s48 offen offset:{1024*(a%4)}")
    consts()
    stamp("issued")
    LWK = 0
    LQB = 4 * TILE_LDS
    p(f"s_mul_i32 s48, s20, {TILE_LDS}")
    for a in range(12):
        p(f"v_add_u32 v6, s48, v{LA[a]}")
        p(f"ds_write_b128 v6, v[{WKS+4*a}:{WKS+4*a+3}] offset:{LWK}")
    p(f"v_add_u32 v7, s48, v{VAB}")
    aWK = 48
    for ks in range(12):
        p(f"ds_read_b128 a[{aWK+4*ks}:{aWK+4*ks+3}], v7 offset:{LWK + 64*ks}")
    QR = 120
    loads = ["s_mul_i32 s48, s20, 6144", f"s_add_u32 s48, s48, {QF_OFF}", "s_add_u32 s49, s48, 4096"]
    for q in range(6):
        so, off = ("s48", 1024 * q) if q < 4 else ("s49", 1024 * (q - 4))
        loads.append(f"buffer_load_dwordx4 v[{QR+4*q}:{QR+4*q+3}], v{VL16}, s[16:19], {so} offen offset:{off} sc1")
    poll_block(p, name, loads, list(range(QR, QR + 24)), VTAG, 12, sleep=0)
    stamp("qf_in")
    p(f"v_lshrrev_b32 v7, 1, v{VG}")
    p("v_lshlrev_b32 v7, 8, v7")
    p(f"v_lshl_add_u32 v7, v{VI}, 4, v7")
    p(f"v_and_b32 v8, 1, v{VG}")
    p("v_lshl_add_u32 v7, v8, 3, v7")
    p("s_mul_i32 s48, s20, 3072")
    p("v_add_u32 v7, s48, v7")
    for q in range(6):
        p(f"v_cvt_pk_bf16_f32 v{QR+4*q}, v{QR+4*q}, v{QR+4*q+1}")
        p(f"v_cvt_pk_bf16_f32 v{QR+4*q+1}, v{QR+4*q+2}, v{QR+4*q+3}")
        p(f"ds_write_b64 v7, v[{QR+4*q}:{QR+4*q+1}] offset:{LQB + 512*q}")
    p("s_barrier")
    stamp("s2bar")
    for pp in range(12):
        p(f"ds_read_b128 v[{16+4*pp}:{19+4*pp}], v{VL16} offset:{LQB + 1024*pp}")
    for pp in range(12):
        p(f"v_mfma_f32_16x16x32_bf16 v[112:115], a[{aWK+4*pp}:{aWK+4*pp+3}], v[{16+4*pp}:{19+4*pp}], {'0' if pp == 0 else 'v[112:115]'}")
    for r in range(4): p(f"v_mul_f32 v{112+r}, 0x{f2u(SCALE*LOG2E):08x}, v{112+r}")
    tag_regs(p, range(112, 116), VTAG)
    p("s_lshl_b32 s48, s21, 10")
    p(f"s_add_u32 s48, s48, {QKF_OFF}")
    p(f"buffer_store_dwordx4 v[112:115], v{VL16}, s[16:19], s48 offen sc1")
    stamp("st2")
    p(f"{name}_sp_w:")
    p("s_waitcnt lgkmcnt(0)")
    p("s_nop 7")
    p("s_nop 7")
    p("s_barrier")
    tagpat(p, 4)
    for j in range(4): p(f"v_mov_b32 v{12+j}, s{4+j}")
    p("s_mul_i32 s48, s2, 12288")
    p("s_mul_i32 s49, s20, 3072")
    p("s_add_u32 s48, s48, s49")
    p(f"s_add_u32 s48, s48, {PART_OFF}")
    for k in range(3):
        p(f"buffer_store_dwordx4 v[12:15], v{VL16}, s[16:19], s48 offen offset:{1024*k} sc1")
    p("v_mov_b32 v16, 0xf149f2ca")
    p("v_mov_b32 v17, 0")
    p("v_mov_b32 v18, 0")
    p(f"v_mov_b32 v19, v{VTAG}")
    p("s_lshl_b32 s48, s2, 8")
    p("s_lshl_b32 s49, s20, 6")
    p("s_add_u32 s48, s48, s49")
    p(f"s_add_u32 s48, s48, {ML_OFF}")
    p("s_mov_b64 exec, 0xf")
    p(f"buffer_store_dwordx4 v[16:19], v{VL16}, s[16:19], s48 offen sc1")
    p(f"v_bfi_b32 v17, s{S_MASK}, v{VTAG}, v16")
    p(f"v_lshrrev_b32 v18, 2, v{VL16}")
    p("s_lshl_b32 s48, s2, 6")
    p("s_lshl_b32 s49, s20, 4")
    p("s_add_u32 s48, s48, s49")
    p(f"s_add_u32 s48, s48, {M2_OFF}")
    p("buffer_store_dword v17, v18, s[16:19], s48 offen sc1")
    p("s_mov_b64 exec, -1")
    NE = 2
    LWO = 4 * 2 * TILE_LDS
    WRS = 80
    p("v_lshrrev_b32 v7, 2, v0")
    p("v_and_b32 v8, 3, v0")
    p("v_mul_u32_u24 v9, 768, v7")
    p("v_lshl_add_u32 v9, v8, 4, v9")
    p(f"v_mul_u32_u24 v10, {WRS}, v7")
    p("v_lshl_add_u32 v10, v8, 4, v10")
    p("s_lshl_b32 s48, s100, 6")
    p(f"s_mul_i32 s49, s20, {96*768}")
    p("s_add_u32 s48, s48, s49")
    for a in range(6):
        p(f"buffer_load_dwordx4 v[{20+4*a}:{23+4*a}], v9, s[40:43], s48 offen")
        if a < 5: p(f"s_add_u32 s48, s48, {16*768}")
    WVS = 64
    def wv_load(tile):
        b = WVS + 48 * (tile & 1)
        p(f"s_mul_i32 s50, s20, {6*12288}")
        p(f"s_add_u32 s50, s50, {tile*12288}")
        for a in range(12):
            if a % 4 == 0 and a: p("s_add_u32 s50, s50, 4096")
            p(f"buffer_load_dwordx4 v[{b+4*a}:{b+4*a+3}], v{VL16}, s[36:39], s50 offen offset:{1024*(a%4)}")
    wv_load(0); wv_load(1)
    p(f"s_mul_i32 s49, s20, {96*WRS}")
    p("v_add_u32 v10, s49, v10")
    p(f"v_add_u32 v10, {LWO}, v10")
    for a in range(6):
        p(f"ds_write_b128 v10, v[{20+4*a}:{23+4*a}] offset:{16*WRS*a}")
    p("s_barrier")
    p("v_lshrrev_b32 v10, 2, v0")
    p("v_and_b32 v10, 3, v10")
    p(f"v_lshl_add_u32 v10, v{VG}, 3, v10")
    p(f"v_mul_u32_u24 v10, {WRS}, v10")
    p("v_and_b32 v11, 3, v0")
    p("v_lshl_add_u32 v10, v11, 3, v10")
    p(f"v_add_u32 v10, {LWO}, v10")
    for e in range(NE):
        for ks in range(12):
            for h in range(2):
                p(f"ds_read_b64_tr_b16 a[{48*e+4*ks+2*h}:{48*e+4*ks+2*h+1}], v10 offset:{32*e + 32*WRS*ks + 4*WRS*h}")
    p(f"s_mul_i32 s63, s20, {TILE_LDS}")
    for a in range(12): p(f"v_add_u32 v{LA[a]}, s63, v{LA[a]}")
    p(f"v_add_u32 v{VAB}, s63, v{VAB}")
    WF = 160
    DW = 20
    aXV = 96
    for tile in range(6):
        b = WVS + 48 * (tile & 1)
        for a in range(12): p(f"ds_write_b128 v{LA[a]}, v[{b+4*a}:{b+4*a+3}]")
        if tile + 2 < 6: wv_load(tile + 2)
        for ks in range(12): p(f"ds_read_b128 a[{aXV+4*ks}:{aXV+4*ks+3}], v{VAB} offset:{64*ks}")
        for ks in range(12):
            for e in range(NE):
                d = DW + 8 * e + 4 * (tile & 1)
                p(f"v_mfma_f32_16x16x32_bf16 v[{d}:{d+3}], a[{aXV+4*ks}:{aXV+4*ks+3}], a[{48*e+4*ks}:{48*e+4*ks+3}], {'0' if ks == 0 else f'v[{d}:{d+3}]'}")
        if tile & 1:
            for e in range(NE):
                w = WF + 12 * e + 4 * (tile >> 1)
                for k in range(4):
                    p(f"v_cvt_pk_bf16_f32 v{w+k}, v{DW+8*e+2*k}, v{DW+8*e+2*k+1}")
    for e in range(NE):
        for pr in range(3):
            w = WF + 12 * e + 4 * pr
            p(f"v_mfma_f32_16x16x32_bf16 v[{44+4*e}:{47+4*e}], v[{w}:{w+3}], {ONES}, {'0' if pr == 0 else f'v[{44+4*e}:{47+4*e}]'}")
    stamp("wvo")
    p(f"v_mul_u32_u24 v7, 768, v{VI}")
    p(f"v_lshl_add_u32 v7, v{VG}, 3, v7")
    p("s_lshl_b32 s62, s100, 1")
    p("s_and_b32 s48, s20, 1")
    p("s_add_u32 s62, s62, s48")
    p("s_lshl_b32 s62, s62, 5")
    p("buffer_load_dwordx2 v[56:57], v7, s[32:35], s62 offen")
    PM = 64
    FL = f"{name}_fm"
    p("s_lshl_b32 s63, s20, 14")
    p(f"s_add_u32 s63, s63, {ML_OFF}")
    p(f"s_mov_b32 s{S_SPIN}, 0")
    p(f"s_add_u32 s48, s63, {1024*15}")
    p(f"{FL}_pre:")
    p(f"buffer_load_dwordx4 v[{PM}:{PM+3}], v{VL16}, s[16:19], s48 offen sc1")
    p("s_waitcnt vmcnt(0)")
    p(f"v_xor_b32 v12, v{PM+3}, v{VTAG}")
    p(f"v_and_b32 v12, s{S_MASK}, v12")
    p("v_cmp_ne_u32 vcc, 0, v12")
    p(f"s_cbranch_vccz {FL}_go ;@nodrain")
    p("s_sleep 6")
    p(f"s_add_u32 s{S_SPIN}, s{S_SPIN}, 1")
    p(f"s_cmp_lt_u32 s{S_SPIN}, {SPIN_MAX}")
    p(f"s_cbranch_scc1 {FL}_pre ;@nodrain")
    p(f"{FL}_go:")
    p("s_mov_b32 s50, 0xffff")
    p(f"s_mov_b32 s{S_SPIN}, 0")
    p(f"{FL}_loop:")
    for i in range(16):
        p(f"s_bitcmp0_b32 s50, {i}")
        p(f"s_cbranch_scc1 {FL}_a{i} ;@nodrain")
        p(f"s_add_u32 s48, s63, {1024*i}")
        p(f"buffer_load_dwordx4 v[{PM+4*i}:{PM+4*i+3}], v{VL16}, s[16:19], s48 offen sc1")
        p(f"{FL}_a{i}:")
    p("s_waitcnt vmcnt(0)")
    for i in range(16):
        p(f"s_bitcmp0_b32 s50, {i}")
        p(f"s_cbranch_scc1 {FL}_c{i} ;@nodrain")
        p(f"v_xor_b32 v12, v{PM+4*i+3}, v{VTAG}")
        p(f"v_and_b32 v12, s{S_MASK}, v12")
        p("v_cmp_ne_u32 vcc, 0, v12")
        p(f"s_cbranch_vccnz {FL}_c{i} ;@nodrain")
        p(f"s_bitset0_b32 s50, {i}")
        p(f"{FL}_c{i}:")
    p("s_cmp_eq_u32 s50, 0")
    p(f"s_cbranch_scc1 {FL}_done ;@nodrain")
    p(f"s_add_u32 s{S_SPIN}, s{S_SPIN}, 1")
    p(f"s_cmp_lt_u32 s{S_SPIN}, {SPIN_MAX}")
    p(f"s_cbranch_scc1 {FL}_loop ;@nodrain")
    p(f"{FL}_done:")
    p("s_nop 7")
    stamp("ml_in")
    MV, T = 8, 9
    p(f"v_max3_f32 v{MV}, v{PM}, v{PM+4}, v{PM+8}")
    for i in range(3, 15, 2): p(f"v_max3_f32 v{MV}, v{MV}, v{PM+4*i}, v{PM+4*i+4}")
    p(f"v_max_f32 v{MV}, v{MV}, v{PM+60}")
    xg_reduce(p, "v_max_f32", MV, T)
    for i in range(16): p(f"v_sub_f32 v{PM+4*i}, v{PM+4*i}, v{MV}")
    for i in range(16): p(f"v_exp_f32 v{PM+4*i}, v{PM+4*i}")
    p(f"v_mul_f32 v13, v{PM}, v{PM+1}")
    p(f"v_mul_f32 v14, v{PM}, v{PM+2}")
    for i in range(1, 16):
        p(f"v_fma_f32 v13, v{PM+4*i}, v{PM+4*i+1}, v13")
        p(f"v_fma_f32 v14, v{PM+4*i}, v{PM+4*i+2}, v14")
    xg_reduce(p, "v_add_f32", 13, T)
    xg_reduce(p, "v_add_f32", 14, T)
    p(f"v_mov_b32 v12, v{MV}")
    p("v_mov_b32 v15, 0")
    LX = 0
    p("s_barrier")
    p(f"v_lshlrev_b32 v9, 6, v{VI}")
    p("s_lshl_b32 s48, s20, 4")
    p("v_add_u32 v8, s48, v9")
    p(f"ds_write_b128 v8, v[12:15] offset:{LX}")
    p("s_barrier")
    for v in range(4): p(f"ds_read_b128 v[{64+4*v}:{67+4*v}], v9 offset:{LX + 16*v}")
    p("v_max3_f32 v8, v64, v68, v72")
    p("v_max_f32 v8, v8, v76")
    for v in range(4): p(f"v_sub_f32 v{64+4*v}, v{64+4*v}, v8")
    for v in range(4): p(f"v_exp_f32 v{64+4*v}, v{64+4*v}")
    p("v_mul_f32 v13, v64, v65")
    p("v_mul_f32 v14, v64, v66")
    for v in range(1, 4):
        p(f"v_fma_f32 v13, v{64+4*v}, v{65+4*v}, v13")
        p(f"v_fma_f32 v14, v{64+4*v}, v{66+4*v}, v14")
    p("v_rcp_f32 v13, v13")
    p("v_mul_f32 v14, s60, v14")
    UR = 64
    loads = ["s_mul_i32 s48, s20, 6144", f"s_add_u32 s48, s48, {UF_OFF}", "s_add_u32 s49, s48, 4096"]
    for q in range(6):
        so, off = ("s48", 1024 * q) if q < 4 else ("s49", 1024 * (q - 4))
        loads.append(f"buffer_load_dwordx4 v[{UR+4*q}:{UR+4*q+3}], v{VL16}, s[16:19], {so} offen offset:{off} sc1")
    poll_block(p, name, loads, list(range(UR, UR + 24)), VTAG, 12, sleep=0)
    stamp("u_in")
    for pr in range(3):
        for k in range(4):
            p(f"v_cvt_pk_bf16_f32 v{96+4*pr+k}, v{UR+8*pr+2*k}, v{UR+8*pr+2*k+1}")
    for pr in range(3):
        for e in range(NE):
            w = WF + 12 * e + 4 * pr
            d = 20 + 4 * e
            p(f"v_mfma_f32_16x16x32_bf16 v[{d}:{d+3}], v[{w}:{w+3}], v[{96+4*pr}:{99+4*pr}], {'0' if pr == 0 else f'v[{d}:{d+3}]'}")
    for e in range(NE):
        for r in range(4): p(f"v_fma_f32 v{20+4*e+r}, -v14, v{44+4*e+r}, v{20+4*e+r}")
    LF = 4096
    p("s_lshl_b32 s48, s20, 10")
    p(f"v_add_u32 v8, s48, v{VL16}")
    for e in range(NE): p(f"ds_write_b128 v8, v[{20+4*e}:{23+4*e}] offset:{LF + 4096*e}")
    p("s_barrier")
    p(f"s_cmp_ge_u32 s20, {NE}")
    p(f"s_cbranch_scc1 {name}_done ;@nodrain")
    p("s_lshl_b32 s48, s20, 12")
    p(f"v_add_u32 v8, s48, v{VL16}")
    for v in range(4): p(f"ds_read_b128 v[{64+4*v}:{67+4*v}], v8 offset:{LF + 1024*v}")
    p("v_lshlrev_b32 v80, 16, v56")
    p("v_and_b32 v81, 0xffff0000, v56")
    p("v_lshlrev_b32 v82, 16, v57")
    p("v_and_b32 v83, 0xffff0000, v57")
    for r in range(4):
        p(f"v_add_f32 v{64+r}, v{64+r}, v{68+r}")
        p(f"v_add_f32 v{72+r}, v{72+r}, v{76+r}")
        p(f"v_add_f32 v{64+r}, v{64+r}, v{72+r}")
        p(f"v_fma_f32 v{64+r}, v{64+r}, v13, v{80+r}")
    p("v_cvt_pk_bf16_f32 v64, v64, v65")
    p("v_cvt_pk_bf16_f32 v65, v66, v67")
    p("buffer_store_dwordx2 v[64:65], v7, s[44:47], s62 offen")
    p("s_add_u32 s48, s100, s20")
    p("s_cmp_lg_u32 s48, 0")
    p(f"s_cbranch_scc1 {name}_spe ;@nodrain")
    p("v_mov_b32 v8, s94")
    p(f"v_mov_b32 v9, {N_OFF}")
    p("s_mov_b64 exec, 1")
    p("buffer_store_dword v8, v9, s[16:19], 0 offen")
    p(f"{name}_spe:")
    if stamp.on:
        p("s_cmp_lg_u32 s20, 0")
        p(f"s_cbranch_scc1 {name}_done ;@nodrain")
        p("s_waitcnt vmcnt(0)")
        stamp("end")
        stamp.dump("special")

def fold_loop(body, name):
    idx = {}
    for i, l in enumerate(body):
        m = re.match(r"\s*\.set (ZB\d|ZEND), 0", l)
        if m: idx[m.group(1)] = i
    if "ZB4" not in idx: return [l for l in body if not l.strip().startswith(".set Z")]
    def seg(a, b):
        out = []
        for l in body[idx[a]:idx[b]]:
            if l.strip().startswith(".set Z"): continue
            out.append(l)
        return out
    def norm(ls): return [re.sub(r"_lz\d+", "_lzN", l) for l in ls]
    s1, s2, s3 = seg("ZB4", "ZB6"), seg("ZB6", "ZB8"), seg("ZB8", "ZEND")
    for a, b, nm in ((s1, s2, "Z6Z7"), (s1, s3, "Z8Z9")):
        na, nb = norm(a), norm(b)
        if na != nb:
            for i, (x, y) in enumerate(zip(na, nb)):
                if x != y:
                    print("loop segments differ at", nm, i, na[max(0, i-3):i+3], nb[max(0, i-3):i+3]); break
            raise Exception("segments not periodic: %d %d" % (len(na), len(nb)))
    pre = [l for l in body[:idx["ZB4"]] if not l.strip().startswith(".set Z")]
    post = [l for l in body[idx["ZEND"]:] if not l.strip().startswith(".set Z")]
    loop = [f"{name}_zloop:"] + s1 + ["  s_add_u32 s101, s101, 1", "  s_cmp_lt_u32 s101, 3", f"  s_cbranch_scc1 {name}_zloop"]
    print("folded loop: body", len(s1), "instructions")
    return pre + loop + post

def kernel_text(name, p):
    body = fold_loop(p.finalize(True), name)
    return [f".globl {name}", ".p2align 8", f".type {name},@function", f"{name}:"] + body

def kd_text(name, info):
    return [".p2align 6", f".amdhsa_kernel {name}", f"  .amdhsa_next_free_vgpr {info['vgpr']}", "  .amdhsa_next_free_sgpr 102",
            f"  .amdhsa_accum_offset {info['accum']}", "  .amdhsa_group_segment_fixed_size 0", "  .amdhsa_kernarg_size 80",
            "  .amdhsa_user_sgpr_count 2", "  .amdhsa_user_sgpr_kernarg_segment_ptr 1", "  .amdhsa_system_sgpr_workgroup_id_x 1",
            "  .amdhsa_float_denorm_mode_32 3", ".end_amdhsa_kernel"]

HEADER = open("standalone__detection_seg_dino__vision.s.ref").read().split("; Override launch")[0]

def build(path, opt):
    DIAG[0] = bool(opt.get("diag"))
    global SPIN_MAX
    SPIN_MAX = opt.get("spin", SPIN_MAX)
    name = "standalone__detection_seg_dino__vision_kernel"
    p, info = gen_kernel(name, opt)
    text = kernel_text(name, p)
    out = (HEADER.rstrip() + "\n" + f"; @launch grid=({info['grid']},1,1) block=({info['block']},1,1) lds={info['lds']}\n"
           + '.amdgcn_target "amdgcn-amd-amdhsa--gfx950"\n.text\n' + "\n".join(text) + '\n.section .rodata,"a"\n' + "\n".join(kd_text(name, info)) + "\n")
    open(path, "w").write(out)

if __name__ == "__main__":
    opt = {}
    path = sys.argv[1] if len(sys.argv) > 1 else "k2.s"
    for a in sys.argv[2:]:
        k, v = a.split("=", 1)
        opt[k] = int(v) if v.lstrip('-').isdigit() else v
    build(path, opt)
    if LABELS:
        import json
        json.dump(LABELS, open(path[:-2] + ".labels.json", "w"))
```

```python
import sys, math, struct, re
from dsl import Prog

C = 384
F0_BYTES = 113246208
F1_BYTES = 28311552
W_BYTES = 294912
Q_BYTES = 12288
N_OFF = 0
QF_OFF = 4096
QKF_OFF = QF_OFF + 24576
UF_OFF = QKF_OFF + 24576
ML_OFF = UF_OFF + 24576
M2_OFF = ML_OFF + 65536
PART_OFF = 262144
WS_USED = PART_OFF + 256 * 12288
NRED = 192
NSPEC = 12
PROF_OFF = 163840
SPIN_MAX = 1048576

def f2u(x): return struct.unpack('<I', struct.pack('<f', x))[0]
LOG2E = 1.4426950408889634
SCALE = C ** -0.5

def srd(p, base_s, ptr_lo, nbytes):
    p(f"s_mov_b32 s{base_s}, s{ptr_lo}")
    p(f"s_and_b32 s{base_s+1}, s{ptr_lo+1}, 0xffff")
    p(f"s_mov_b32 s{base_s+2}, {nbytes}")
    p(f"s_mov_b32 s{base_s+3}, 0x20000")

def mov64(p, s, val):
    p(f"s_mov_b32 s{s}, 0x{val & 0xffffffff:08x}")
    p(f"s_mov_b32 s{s+1}, 0x{(val >> 32) & 0xffffffff:08x}")

def xg_reduce(p, op, a, tmp):
    p(f"v_mov_b32 v{tmp}, v{a}")
    p(f"v_permlane32_swap_b32 v{a}, v{tmp}")
    p(f"{op} v{a}, v{a}, v{tmp}")
    p(f"v_mov_b32 v{tmp}, v{a}")
    p(f"v_permlane16_swap_b32 v{a}, v{tmp}")
    p(f"{op} v{a}, v{a}, v{tmp}")

S_MASK = 93
S_TAG = 95
S_SPIN = 92

def tag_regs(p, regs, vtag):
    for r in regs: p(f"v_bfi_b32 v{r}, s{S_MASK}, v{vtag}, v{r}")

def check_tags(p, regs, vtag, vacc):
    regs = list(regs)
    for r in regs: p(f"v_xor_b32 v{r}, v{r}, v{vtag}")
    p(f"v_or_b32 v{vacc}, v{regs[0]}, v{regs[1]}")
    rest = regs[2:]
    while len(rest) >= 2:
        p(f"v_or3_b32 v{vacc}, v{vacc}, v{rest[0]}, v{rest[1]}"); rest = rest[2:]
    if rest: p(f"v_or_b32 v{vacc}, v{vacc}, v{rest[0]}")
    p(f"v_and_b32 v{vacc}, s{S_MASK}, v{vacc}")
    p(f"v_cmp_ne_u32 vcc, 0, v{vacc}")

from dsl import Ins
def est_cycles(text):
    t = text.split(';')[0].strip()
    if not t or t.endswith(':'): return 0
    mn = t.split()[0]
    if mn.startswith('v_mfma'): return 16
    if mn.startswith('v_exp') or mn.startswith('v_rsq') or mn.startswith('v_rcp'): return 8
    if mn.startswith('v_'): return 4
    if mn.startswith('ds_write_b128'): return 16
    if mn.startswith('ds_write'): return 8
    if mn.startswith('ds_read'): return 8
    if mn == 's_barrier': return 80
    if mn.startswith('buffer_'): return 8
    return 4

def schedule_loads(items, loads, pace, lat, dmax, t0=0, verbose=False, policy='model', nreal=150):
    out = []; now = t0
    land = []
    issue_t = []
    free = set(); k = 0
    extras = []
    def landed():
        return sum(1 for x in land if x <= now)
    locked = [False]; credit = [0]; dm = [dmax]; consumed = [0]; gap = [0]; pos = [0]; lastpos = [-10**9]
    def try_issue():
        nonlocal k, now
        if locked[0]: return
        while k < len(loads):
            L = loads[k]
            if L['key'] is not None and L['key'] not in free: break
            if policy == 'model':
                if len(land) - landed() >= dm[0]: break
            else:
                if k - consumed[0] >= dm[0]: break
                if pos[0] - lastpos[0] < gap[0]: break
            for x in L['pre']: out.append(x); now += 4
            out.append(L['ins']); now += 8
            lastpos[0] = pos[0]
            if L['key'] is not None: free.discard(L['key'])
            prev = land[-1] if land else 0
            land.append(max(now + lat, prev + pace)); issue_t.append(now)
            k += 1
    for it in items:
        if isinstance(it, tuple):
            if it[0] == 'use':
                j = it[1]
                while k <= j:
                    L = loads[k]
                    assert L['key'] is None or L['key'] in free, ('slot not free', k, L)
                    for x in L['pre']: out.append(x); now += 4
                    out.append(L['ins']); now += 8
                    if L['key'] is not None: free.discard(L['key'])
                    prev = land[-1] if land else 0
                    land.append(max(now + lat, prev + pace)); issue_t.append(now); k += 1
                now = max(now, land[j])
                consumed[0] = j + 1
                try_issue()
            elif it[0] == 'free': free.add(it[1]); try_issue()
            elif it[0] == 't': now += it[1]; try_issue()
            elif it[0] == 'dmax': dm[0] = it[1]; try_issue()
            elif it[0] == 'gap': gap[0] = it[1]
            elif it[0] == 'zstart': lastpos[0] = -10**9
            elif it[0] == 'zend':
                g = gap[0]; gap[0] = 0; try_issue(); gap[0] = g
            elif it[0] == 'until': now = max(now, it[1]); try_issue()
            elif it[0] == 'force':
                while k < it[1]:
                    L = loads[k]
                    assert L['key'] is None or L['key'] in free, ('slot not free', k, L)
                    for x in L['pre']: out.append(x); now += 4
                    out.append(L['ins']); now += 8
                    if L['key'] is not None: free.discard(L['key'])
                    prev = land[-1] if land else 0
                    land.append(max(now + lat, prev + pace)); issue_t.append(now); k += 1
                    if len(land) > 12: now = max(now, land[-13])
            elif it[0] == 'log':
                if verbose: print(f"   model {it[1]:8s} t={now/2100:.2f}us issued={k}")
            elif it[0] == 'lock': locked[0] = True
            elif it[0] == 'unlock': locked[0] = False
            continue
        out.append(it)
        c = est_cycles(it)
        if it.lstrip().startswith('v_mfma'): credit[0] = 2
        elif credit[0] > 0 and c <= 8: c = 0; credit[0] -= 1
        else: credit[0] = 0
        now += c; pos[0] += c
        if '@noload' not in it: try_issue()
    assert k >= nreal, (k, nreal)
    return out

def timeout_diag(p, site, extra="0", vacc=None):
    p("s_load_dwordx2 s[86:87], s[0:1], 64")
    p("s_lshl_b32 s85, s2, 8")
    p("s_or_b32 s85, s85, s20")
    p("s_or_b32 s85, s85, 0x1000000")
    p("s_waitcnt lgkmcnt(0)")
    p("v_mov_b32 v254, s85") if False else None
DIAG = [False]
def diag_store(p, site, val):
    p("s_load_dwordx2 s[86:87], s[0:1], 64")
    p("s_lshl_b32 s85, s2, 8")
    p("s_or_b32 s85, s85, s20")
    p("s_or_b32 s85, s85, 0x1000000")
    p("s_waitcnt lgkmcnt(0)")
    p("s_mov_b64 s[88:89], exec") if False else None
    p("v_mov_b32 v250, s85")
    p(f"v_mov_b32 v251, {val}")
    p(f"v_mov_b32 v249, {8*site}")
    p("s_ff1_i32_b64 s84, vcc")
    p("s_nop 4")
    p("v_readlane_b32 s83, v251, s84")
    p("s_nop 4")
    p("v_mov_b32 v251, s84")
    p("v_lshlrev_b32 v251, 16, v251")
    p("v_or_b32 v251, s83, v251")
    p("global_store_dwordx2 v249, v[250:251], s[86:87]")
    p("s_waitcnt vmcnt(0)")
def tagpat(p, base):
    for j in range(4):
        p(f"s_lshr_b32 s{base+j}, s{S_TAG}, {2*j}")
        p(f"s_and_b32 s48, s{base+j}, 2")
        p(f"s_lshl_b32 s48, s48, 15")
        p(f"s_and_b32 s{base+j}, s{base+j}, 1")
        p(f"s_or_b32 s{base+j}, s{base+j}, s48")

uid = [0]
def poll_block(p, name, loads, regs, vtag, vacc, preissued=False, lock=False, sleep=1):
    if lock: p.items.append(('lock',))
    uid[0] += 1
    L = f"{name}_pl{uid[0]}"
    if not preissued:
        for x in loads: p(x)
    check_tags(p, regs, vtag, vacc)
    p(f"s_cbranch_vccz {L}_ok")
    p(f"s_mov_b32 s{S_SPIN}, 0")
    p(f"{L}_retry:")
    if sleep: p(f"s_sleep {sleep}")
    for x in loads: p(x)
    p("s_waitcnt vmcnt(0)")
    check_tags(p, regs, vtag, vacc)
    p(f"s_cbranch_vccz {L}_fin")
    p(f"s_add_u32 s{S_SPIN}, s{S_SPIN}, 1")
    p(f"s_cmp_lt_u32 s{S_SPIN}, {SPIN_MAX}")
    p(f"s_cbranch_scc1 {L}_retry")
    if DIAG[0]: diag_store(p, uid[0], f"v{vacc}")
    p(f"{L}_fin:")
    p("s_nop 7")
    p("s_nop 7")
    p(f"{L}_ok: ;@restore {L}")
    if lock: p.items.append(('unlock',))

class Prof:
    def __init__(self, p, opt, base, lim=88):
        self.opt = opt; self.lim = lim; self.p = p; self.on = opt.get("prof", 0); self.lbl = []; self.base = base; self.skip = opt.get("skip", "").split(",")
    def __call__(self, lbl, fine=False):
        if self.on == 7:
            if not self.lbl and self.base == 52: self.lbl = ["z%d" % i for i in range(11)]
            return
        if self.on == 6 and lbl not in ("init", "S", "X012", "pub"): return
        if self.on == 5:
            if lbl in ("init", "S", "F9"):
                for ins in ("s_memtime", "s_memrealtime"):
                    i = len(self.lbl); self.lbl.append(lbl + ins[2:])
                    self.p(f"{ins} s[{self.base+2*i}:{self.base+2*i+1}]")
            return
        if self.on == 4:
            if not fine: return
        elif fine: return
        if self.on and lbl not in self.skip and self.base + 2 * len(self.lbl) < self.lim:
            i = len(self.lbl); self.lbl.append(lbl)
            self.p(f"{'s_memtime' if self.on == 4 else 's_memrealtime'} s[{self.base+2*i}:{self.base+2*i+1}]")
    def dump(self, tagname, srdbase=16):
        if not self.on: return
        p = self.p
        wg = self.opt.get("dbg_" + tagname)
        if wg is not None:
            uid[0] += 1
            p("s_waitcnt vmcnt(0) lgkmcnt(0)")
            p(f"s_cmp_lg_u32 s2, {wg}")
            p(f"s_cbranch_scc1 dbgskip{uid[0]} ;@nodrain")
            p("s_load_dwordx2 s[4:5], s[0:1], 64")
            p("s_waitcnt lgkmcnt(0)")
            p("s_mov_b64 exec, 1")
            p("v_mov_b32 v1, 0")
            off = self.opt.get("dbgoff_" + tagname, 0)
            for i in range(len(self.lbl)):
                if self.on == 5: p(f"v_mov_b32 v2, s{self.base+2*i}")
                else:
                    p(f"s_sub_u32 s3, s{self.base+2*i}, s98")
                    p("v_mov_b32 v2, s3")
                p(f"global_store_dword v1, v2, s[4:5] offset:{4*(off+i)}")
            p(f"dbgskip{uid[0]}:")
        p("s_waitcnt vmcnt(0) lgkmcnt(0)")
        p("s_mov_b64 exec, 1")
        p("s_lshl_b32 s3, s2, 7")
        p(f"s_add_u32 s3, s3, {PROF_OFF}")
        p("v_mov_b32 v1, 0")
        p("v_mov_b32 v2, s98")
        p(f"buffer_store_dword v2, v1, s[{srdbase}:{srdbase+3}], s3 offen")
        for i in range(len(self.lbl)):
            p(f"v_mov_b32 v2, s{self.base+2*i}")
            p(f"buffer_store_dword v2, v1, s[{srdbase}:{srdbase+3}], s3 offen offset:{4*(i+1)}")
        if tagname == "streamer" and self.on == 6:
            p("s_mov_b64 exec, 0x7f")
            p("v_lshlrev_b32 v1, 2, v0")
            p(f"buffer_store_dword v239, v1, s[{srdbase}:{srdbase+3}], s3 offen offset:64")
            p("s_mov_b64 exec, 1")
            p("v_mov_b32 v1, 0")
        if tagname == "streamer":
            p("v_mov_b32 v2, s86")
            p(f"buffer_store_dword v2, v1, s[{srdbase}:{srdbase+3}], s3 offen offset:124")
        print(tagname, "stamps:", self.lbl)
        LABELS[tagname] = list(self.lbl)
LABELS = {}

def gen_kernel(name, opt):
    p = Prog()
    prof = opt.get("prof", 0)
    p("s_cmp_ge_u32 s2, 256")
    p(f"s_cbranch_scc1 {name}_done ;@nodrain")
    if prof: p("s_memrealtime s[98:99]")
    p("s_load_dwordx2 s[22:23], s[0:1], 72")
    p("s_load_dwordx4 s[4:7], s[0:1], 8")
    p("v_readfirstlane_b32 s20, v0")
    p("v_and_b32 v0, 63, v0")
    p("s_lshr_b32 s20, s20, 6")
    p(f"s_mov_b32 s{S_MASK}, 0xff")
    p("s_lshr_b32 s100, s2, 3")
    p("s_lshl_b32 s100, s100, 2")
    p("s_and_b32 s21, s2, 7")
    p("s_add_u32 s100, s100, s21")
    p("s_sub_u32 s101, s100, 4")
    p(f"s_sub_u32 s3, s2, {NSPEC}")
    p("s_cmp_lt_u32 s2, 24")
    p("s_cselect_b32 s101, s101, s3")
    p("s_cselect_b32 s3, s21, 7")
    p("s_mov_b32 s21, s101")
    p("s_cmp_lt_u32 s3, 4")
    p(f"s_cbranch_scc1 {name}_special")
    gen_streamer(p, name, opt)
    p(f"{name}_special: ;@restore entry")
    gen_special(p, name, opt)
    p(f"{name}_done:")
    p("s_endpgm")
    return p, dict(vgpr=252 + 196, accum=252, lds=160256, grid=256, block=256)

def gen_streamer(p, name, opt):
    NT = " nt" if opt.get("nt", True) else ""
    prof = opt.get("prof", 0)
    NS = 10
    SP = opt.get("sp", 9 if opt.get("bal", 0) else 8)
    ST = lambda k: 76 + 60 * k
    F1R = lambda k, t: ST(k) + 4 * t
    F0R = lambda k, t, d: ST(k) + 12 + 16 * t + 4 * d
    VF0, VF1, VL16 = 1, 2, 3
    WA = [[4, 5, 6, 7], [216, 217, 218, 219]]
    RA = [[11, 12, 13, 14], [220, 221, 222, 223]]
    VTAG = 8
    QBA = 9
    TR = [15, 16, 17, 18, 19, 20]
    MXW, MXR, WXW, WXR = 21, 22, 23, 24
    M, L, Z, SN = 25, 26, 27, 28
    ACC = 32
    D1, D2, D3 = 56, 60, 64
    Uu, SS, RS, TM, TM2, AL, WF = 68, 69, 70, 71, 72, 73, 74
    U = 196; TT = 204
    QK = 212 + 12
    QKR = 212
    aQB, aXA, aXT, aONE = 0, 48, 96, 192
    XBUF = 49152; XT = 12288
    MX_OFF = 147456; LZ_OFF = MX_OFF + 256; QBL_OFF = LZ_OFF + 256; WX_OFF = QBL_OFF
    D1B = [56, 212, 216]; D3B = [64, 240, 244]; RSB = [70, 248, 249]; WFB = [74, 220, 222]
    XAB = [48, 96, 144]
    XTB = [96, 144]
    WA[1] = [228, 229, 230, 231]; RA[1] = [232, 233, 234, 235]
    QKR = 204 - 0
    QKR = 212
    WA[1] = [236, 237, 238, 239]; RA[1] = [29, 30, 31, 10]
    QKR = 212

    NSTR = 256 - NSPEC
    base_cnt = 9216 // NSTR; nbig = 9216 - base_cnt * NSTR
    assert base_cnt == 37
    glob = opt.get("glob", 1)
    if not glob:
        p(f"s_mul_i32 s96, s21, {base_cnt}")
        p(f"s_min_u32 s97, s21, {nbig}")
        p("s_add_u32 s96, s96, s97")
        p(f"s_cmp_lt_u32 s21, {nbig}")
        p("s_cselect_b32 s97, 2, 1")
        p("s_add_u32 s90, s96, s20")
        p("s_add_u32 s91, s90, s97")
        p("s_sub_u32 s91, s91, 4")
    else:
        if opt.get("bal", 0):
            p("s_sub_u32 s91, s2, 24")
            p("s_lshr_b32 s91, s91, 3")
            p("s_lshl_b32 s91, s91, 2")
            p("s_and_b32 s97, s2, 3")
            p("s_add_u32 s91, s91, s97")
            p("s_min_u32 s96, s91, 84")
            p("s_cmp_lt_u32 s91, 84")
            p("s_cselect_b32 s97, 4, 3")
            p("s_mul_i32 s91, s91, 3")
            p("s_add_u32 s91, s91, s96")
            p("s_add_u32 s91, s91, s20")
            p("s_and_b32 s96, s2, 4")
            p("s_cmp_eq_u32 s96, 0")
            p("s_cselect_b32 s97, s97, 0")
        else:
            p(f"s_min_u32 s97, s21, {nbig}")
            p("s_add_u32 s91, s21, s97")
            p("s_add_u32 s91, s91, s20")
            p(f"s_cmp_lt_u32 s21, {nbig}")
            p("s_cselect_b32 s97, 2, 1")
        p("s_lshl_b32 s90, s21, 2")
        p("s_add_u32 s90, s90, s20")
    FP, J = 56, 57
    p(f"v_lshrrev_b32 v{FP}, 4, v0")
    p(f"v_and_b32 v{J}, 15, v0")
    p(f"v_mul_u32_u24 v{VF0}, 1536, v{FP}")
    p(f"v_lshl_add_u32 v{VF0}, v{J}, 4, v{VF0}")
    p(f"v_mul_u32_u24 v{VF1}, 768, v{FP}")
    p(f"v_lshl_add_u32 v{VF1}, v{J}, 4, v{VF1}")
    p(f"v_lshlrev_b32 v{VL16}, 4, v0")
    p("s_waitcnt lgkmcnt(0)")
    srd(p, 8, 4, F0_BYTES)
    srd(p, 12, 6, F1_BYTES)
    srd(p, 16, 22, WS_USED)
    p(f"s_load_dword s94, s[22:23], {N_OFF}")

    LOOP = opt.get("loop", 1)
    full = 4 * NSTR; part = NSTR + nbig
    p("s_sub_u32 s91, s91, s90")
    p("s_mov_b32 s96, -1")
    p("s_cmp_lt_u32 s20, s97")
    p("s_cselect_b32 s89, 0, 0xf149f2ca")
    def tile_offsets(s):
        p("s_add_u32 s96, s96, 1")
        p(f"s_mul_i32 s27, s96, {full}")
        p("s_add_u32 s27, s27, s90")
        p(f"s_cmp_gt_u32 s96, {SP}")
        p(f"s_cselect_b32 s28, {(part - full) & 0xffffffff}, 0")
        p("s_add_u32 s27, s27, s28")
        p(f"s_cmp_eq_u32 s96, {SP}")
        p("s_cselect_b32 s28, s91, 0")
        p("s_cselect_b32 s23, s89, 0")
        p("s_add_u32 s27, s27, s28")
        p("s_mul_i32 s24, s27, 3072")
        p(f"s_mul_hi_u32 s28, s27, {(2**32 + 47)//48}")
        p("s_mul_i32 s29, s28, 48")
        p("s_sub_u32 s29, s27, s29")
        p("s_mul_i32 s25, s28, 589824")
        p("s_mul_i32 s29, s29, 6144")
        p("s_add_u32 s25, s25, s29")
        p("s_add_u32 s26, s25, 294912")
        p(f"s_cmp_ge_u32 s96, {NS}")
        p("s_cselect_b32 s23, 1, s23")
        p("s_cmp_eq_u32 s23, 0")
        p(f"s_cselect_b32 s10, {F0_BYTES}, 0")
        p(f"s_cselect_b32 s14, {F1_BYTES}, 0")
    loads = []
    lidx = {}
    class Cap:
        def __init__(self): self.l = []
        def __call__(self, x): self.l.append(x)
    def build_loads():
        nonlocal p
        for s in range(NS + 2):
            keep = p; p = Cap(); tile_offsets(s); pre = p.l; p = keep
            for t in range(3):
                r = F1R(s & 1, t)
                lidx[(s, 'f1', t)] = len(loads)
                loads.append(dict(pre=pre, key=(s & 1, 'f1', t) if s >= 2 else None,
                                  ins=f"buffer_load_dwordx4 v[{r}:{r+3}], v{VF1}, s[12:15], s24 offen offset:{256*t}{NT}"))
                pre = []
                for d in range(4):
                    r = F0R(s & 1, t, d)
                    so = "s25" if d < 2 else "s26"
                    lidx[(s, t, d)] = len(loads)
                    loads.append(dict(pre=[], key=(s & 1, t, d) if s >= 2 else None,
                                      ins=f"buffer_load_dwordx4 v[{r}:{r+3}], v{VF0}, s[8:11], {so} offen offset:{256*t + 768*(d&1)}{NT}"))
    build_loads()
    def mark(*a): p.items.append(a)
    stream_start = len(p.items)
    mark('t', 0)

    p("s_waitcnt lgkmcnt(0)")
    p("s_add_u32 s94, s94, 1")
    p(f"s_and_b32 s{S_TAG}, s94, 0xff")
    p(f"v_mov_b32 v{VTAG}, s{S_TAG}")
    tagpat(p, 4)

    p(f"s_mul_i32 s47, s20, {XT}")
    p(f"v_and_b32 v58, 1, v{FP}")
    p(f"v_lshlrev_b32 v58, 3, v58")
    p(f"v_lshrrev_b32 v59, 1, v{FP}")
    p(f"v_add_u32 v58, v58, v59")
    p(f"v_xor_b32 v58, v58, v{J}")
    p(f"v_lshlrev_b32 v58, 4, v58")
    p(f"v_mul_u32_u24 v59, 3072, v{FP}")
    p(f"v_add_u32 v58, v58, v59")
    p(f"v_add_u32 v{WA[0][0]}, s47, v58")
    for d in range(1, 4): p(f"v_xor_b32 v{WA[0][d]}, {32*d}, v{WA[0][0]}")
    for d in range(4): p(f"v_add_u32 v{WA[1][d]}, {2*XBUF}, v{WA[0][d]}")
    I, G, SI = 57, 56, 58
    p(f"v_and_b32 v{SI}, 7, v{I}")
    p(f"v_lshlrev_b32 v{SI}, 1, v{SI}")
    p(f"v_lshrrev_b32 v59, 3, v{I}")
    p(f"v_or_b32 v{SI}, v{SI}, v59")
    p(f"v_lshlrev_b32 v59, 1, v{G}")
    p(f"v_xor_b32 v59, v59, v{SI}")
    p(f"v_mul_u32_u24 v60, 768, v{I}")
    p(f"v_add_u32 v60, s47, v60")
    for b3 in range(2):
        for b0 in range(2):
            r = RA[0][2 * b3 + b0]
            p(f"v_xor_b32 v{r}, {8*b3+b0}, v59")
            p(f"v_lshl_add_u32 v{r}, v{r}, 4, v60")
            p(f"v_add_u32 v{RA[1][2*b3+b0]}, {2*XBUF}, v{r}")
    p(f"v_lshlrev_b32 v{MXR}, 4, v{I}")
    p(f"v_lshrrev_b32 v59, 1, v{G}")
    p(f"v_lshlrev_b32 v59, 10, v59")
    p(f"v_and_b32 v60, 1, v{G}")
    p(f"v_lshl_add_u32 v59, v60, 3, v59")
    p(f"v_add_u32 v59, v59, v{MXR}")
    p(f"v_add_u32 v{QBA}, {QBL_OFF}, v59")
    p(f"v_add_u32 v{MXR}, {MX_OFF}, v{MXR}")
    p("s_lshl_b32 s48, s20, 2")
    p(f"v_add_u32 v{MXW}, s48, v{MXR}")
    p(f"v_add_u32 v{WXR}, {WX_OFF}, v{VL16}")
    p("s_lshr_b32 s48, s20, 1")
    p("s_lshl_b32 s48, s48, 10")
    p("s_and_b32 s49, s20, 1")
    p("s_lshl_b32 s49, s49, 3")
    p("s_add_u32 s48, s48, s49")
    p(f"v_add_u32 v{WXW}, s48, v{WXR}")
    I = 56
    p(f"v_lshrrev_b32 v{I}, 2, v0")
    p(f"v_and_b32 v{SI}, 7, v{I}")
    p(f"v_lshlrev_b32 v{SI}, 1, v{SI}")
    p(f"v_lshrrev_b32 v59, 3, v{I}")
    p(f"v_or_b32 v{SI}, v{SI}, v59")
    p(f"v_and_b32 v59, 3, v0")
    p(f"v_lshrrev_b32 v60, 1, v59")
    p(f"v_xor_b32 v{SI}, v{SI}, v60")
    p(f"v_and_b32 v59, 1, v59")
    p(f"v_lshlrev_b32 v59, 3, v59")
    p(f"v_mul_u32_u24 v60, 768, v{I}")
    p(f"v_add_u32 v60, v60, v59")
    p("s_mul_i32 s48, s20, 6")
    for q in range(6):
        p(f"s_add_u32 s49, s48, {q}")
        p("s_and_b32 s50, s49, 7")
        p("s_lshl_b32 s50, s50, 1")
        p("s_lshr_b32 s49, s49, 3")
        p("s_lshl_b32 s49, s49, 8")
        p(f"v_xor_b32 v{TR[q]}, s50, v{SI}")
        p(f"v_lshl_add_u32 v{TR[q]}, v{TR[q]}, 4, v60")
        p(f"v_add_u32 v{TR[q]}, s49, v{TR[q]}")
    for r in range(4):
        mov64(p, 30 + 2 * r, sum(1 << (20 * g + r) for g in range(4)))
    for r in range(1, 4):
        mov64(p, 38 + 2 * (r - 1), 0x1111111111111111 << r)
    p("s_mov_b32 s44, 0xffff0000")
    p("s_mov_b32 s87, 0xffffff00")
    p(f"s_mov_b32 s45, 0x{f2u(1.0 / C):08x}")
    p(f"s_mov_b32 s46, 0x{f2u(1e-5):08x}")
    p("s_mov_b32 s51, 0x00003f80")
    p("s_mov_b32 s3, 0x3f800000")
    for r in range(24): p(f"v_mov_b32 v{ACC+r}, 0")
    p(f"v_mov_b32 v{M}, 0xf149f2ca")
    p(f"v_mov_b32 v{L}, 0")
    p(f"v_mov_b32 v{Z}, 0")
    p("v_mov_b32 v56, 0x3f803f80")
    for r in range(4): p(f"v_accvgpr_write_b32 a{aONE+r}, v56")

    tr_slot = [0]
    dyn = [False]
    def wa(slot, d, t):
        if dyn[0]: return (WA[0][d], 768 * d + 256 * t)
        return (WA[0][d], slot * XBUF + 768 * d + 256 * t) if slot < 2 else (WA[1][d], 768 * d + 256 * t)
    def ra(slot, ks):
        i = 2 * ((ks >> 1) & 1) + (ks & 1)
        if dyn[0]: return (RA[0][i], 256 * (ks >> 2))
        return (RA[0][i], slot * XBUF + 256 * (ks >> 2)) if slot < 2 else (RA[1][i], 256 * (ks >> 2))

    def m_reads(s, t, xa=aXA):
        for ks in range(4 * t, 4 * t + 4):
            r, off = ra(s % 3, ks)
            p(f"ds_read_b128 a[{xa+4*ks}:{xa+4*ks+3}], v{r} offset:{off}")
    def m_mfma(s, t, b=0, what="gol", xa=aXA):
        d1, d3 = D1B[b], D3B[b]
        G_, O_, L_ = [], [], []
        for ks in range(4 * t, 4 * t + 4):
            x = f"a[{xa+4*ks}:{xa+4*ks+3}]"
            c1 = "0" if ks == 0 else f"v[{d1}:{d1+3}]"
            c2 = "0" if ks == 0 else f"v[{D2}:{D2+3}]"
            c3 = "0" if ks == 0 else f"v[{d3}:{d3+3}]"
            G_.append(f"v_mfma_f32_16x16x32_bf16 v[{D2}:{D2+3}], {x}, {x}, {c2}")
            O_.append(f"v_mfma_f32_16x16x32_bf16 v[{d3}:{d3+3}], {x}, a[{aONE}:{aONE+3}], {c3}")
            L_.append(f"v_mfma_f32_16x16x32_bf16 v[{d1}:{d1+3}], {x}, a[{aQB+4*ks}:{aQB+4*ks+3}], {c1}")
        if what == "l":
            for x in L_: p(x)
        elif what == "go":
            for g_, o_ in zip(G_, O_): p(g_); p(o_)
        elif t < 2:
            for g_, o_, l_ in zip(G_, O_, L_): p(g_); p(o_); p(l_)
        else:
            for g_, o_ in zip(G_, O_): p(g_); p(o_)
            for l_ in L_: p(l_)
    def stats(b):
        d3, rs = D3B[b], RSB[b]
        p(f"v_cndmask_b32 v{Uu}, 0, v{D2}, s[30:31]")
        for r in range(1, 4):
            p(f"v_cndmask_b32 v{Uu}, v{Uu}, v{D2+r}, s[{30+2*r}:{31+2*r}]")
        p(f"v_cndmask_b32 v{SS}, v{d3}, v{d3+1}, s[38:39]")
        p(f"v_cndmask_b32 v{SS}, v{SS}, v{d3+2}, s[40:41]")
        p(f"v_add_f32_dpp v{Uu}, v{Uu}, v{Uu} row_ror:4 row_mask:0xf bank_mask:0xf")
        p(f"v_cndmask_b32 v{SS}, v{SS}, v{d3+3}, s[42:43]")
        p(f"v_mov_b32 v{TM}, s46")
        p(f"v_add_f32_dpp v{Uu}, v{Uu}, v{Uu} row_ror:8 row_mask:0xf bank_mask:0xf")
        p(f"v_mul_f32 v{SS}, s45, v{SS}")
        p(f"v_fma_f32 v{Uu}, v{Uu}, s45, v{TM}")
        p(f"v_fma_f32 v{Uu}, -v{SS}, v{SS}, v{Uu}")
        p(f"v_max_f32 v{Uu}, s46, v{Uu}")
        p(f"v_rsq_f32 v{rs}, v{Uu}")
    def stage_G(s, b):
        for t in range(3): m_reads(s, t)
        mark('t', 120)
        for t in range(3): m_mfma(s, t, b, "go")
        stats(b)

    def stage_A(s, ld, fuse, thirds=(0, 1, 2)):
        slot = s % 3; k = s & 1
        for t in thirds:
            if (s, t) == qpos: qk_issue()
            f1 = F1R(k, t)
            mark('use', lidx[(s, 'f1', t)])
            for j in range(4):
                p(f"v_lshlrev_b32 v{U+2*j}, 16, v{f1+j}")
                p(f"v_and_b32 v{U+2*j+1}, s44, v{f1+j}")
            mark('free', (k, 'f1', t))
            for d in range(4):
                f0 = F0R(k, t, d)
                mark('use', lidx[(s, t, d)])
                for j in range(4):
                    p(f"v_dot2_f32_bf16 v{TT+2*j}, v{f0+j}, s51, v{U+2*j}")
                    p(f"v_dot2_f32_bf16 v{TT+2*j+1}, v{f0+j}, s3, v{U+2*j+1}")
                for j in range(4):
                    p(f"v_cvt_pk_bf16_f32 v{f0+j}, v{TT+2*j}, v{TT+2*j+1}")
                r, off = wa(slot, d, t)
                p(f"ds_write_b128 v{r}, v[{f0}:{f0+3}] offset:{off}")
                mark('free', (k, t, d))
            if fuse:
                m_reads(s, t)
                mark('t', 120)
                m_mfma(s, t)
        if fuse: stats(0)

    def stage_M(tiles, pre):
        if pre:
            for b, s in enumerate(tiles):
                for t in range(3): m_reads(s, t, XAB[b])
            mark('t', 100)
            for b, s in enumerate(tiles):
                for t in range(3): m_mfma(s, t, b, "l", XAB[b])
        else:
            for b, s in enumerate(tiles):
                if b == 0:
                    for t in range(3): m_reads(s, t, XAB[0])
                    mark('t', 120)
                if b + 1 < len(tiles):
                    for t in range(3): m_reads(tiles[b + 1], t, XAB[b + 1])
                for t in range(3): m_mfma(s, t, b, "gol", XAB[b])
                stats(b)

    qpos = None
    qk_loads = []
    qk_loads.append("s_mul_i32 s48, s20, 6144")
    qk_loads.append(f"s_add_u32 s48, s48, {QKF_OFF}")
    qk_loads.append("s_add_u32 s49, s48, 4096")
    for q in range(6):
        so, off = ("s48", 1024 * q) if q < 4 else ("s49", 1024 * (q - 4))
        qk_loads.append(f"buffer_load_dwordx4 v[{QKR+4*q}:{QKR+4*q+3}], v{VL16}, s[16:19], {so} offen offset:{off} sc1")
    def qk_issue():
        for x in qk_loads: p(x)
    def qb_setup(fused=False):
        QA = [196 + q for q in range(6)]
        for q in range(6):
            p("s_mul_i32 s48, s20, 6")
            p(f"s_add_u32 s48, s48, {q}")
            p("s_lshr_b32 s49, s48, 2")
            p("s_lshl_b32 s49, s49, 11")
            p("s_and_b32 s48, s48, 3")
            p("s_lshl_b32 s48, s48, 8")
            p("s_add_u32 s48, s48, s49")
            p(f"v_add_u32 v{QA[q]}, s48, v{QBA}")
        p(f"v_add_u32 v202, {QBL_OFF}, v{VL16}")
        if fused:
            for t in range(3): m_reads(0, t, 96)
            for t in range(3): m_reads(1, t, 144)
        mark('t', 300)
        stamp("Q0")
        if opt.get("prof") == 1: p(f"s_mov_b32 s{S_SPIN}, 0xffff")
        poll_block(p, name, qk_loads, list(range(QKR, QKR + 24)), VTAG, TM, preissued=True, lock=True)
        stamp("Qok")
        if opt.get("prof") == 1: p(f"s_mov_b32 s86, s{S_SPIN}")
        for q in range(6):
            p(f"v_cvt_pk_bf16_f32 v{QKR+4*q}, v{QKR+4*q}, v{QKR+4*q+1}")
            p(f"v_cvt_pk_bf16_f32 v{QKR+4*q+1}, v{QKR+4*q+2}, v{QKR+4*q+3}")
            p(f"ds_write_b64 v{QA[q]}, v[{QKR+4*q}:{QKR+4*q+1}]")
        p("s_barrier")
        stamp("Sbar")
        for ks in range(12):
            p(f"ds_read_b128 a[{aQB+4*ks}:{aQB+4*ks+3}], v202 offset:{1024*ks}")
        mark('t', 100)
        if not fused:
            for ks in range(12):
                c = "0" if ks == 0 else f"v[{D1}:{D1+3}]"
                p(f"v_mfma_f32_16x16x32_bf16 v[{D1}:{D1+3}], a[{aONE}:{aONE+3}], a[{aQB+4*ks}:{aQB+4*ks+3}], {c}")
            p(f"v_mul_f32 v{SN}, s45, v{D1}")
        else:
            xa = [96, 144, 48]
            for ks in range(12):
                qb = f"a[{aQB+4*ks}:{aQB+4*ks+3}]"
                p(f"v_mfma_f32_16x16x32_bf16 v[{D2}:{D2+3}], a[{aONE}:{aONE+3}], {qb}, {'0' if ks == 0 else f'v[{D2}:{D2+3}]'}")
                for b in range(3):
                    d1 = D1B[b]
                    p(f"v_mfma_f32_16x16x32_bf16 v[{d1}:{d1+3}], a[{xa[b]+4*ks}:{xa[b]+4*ks+3}], {qb}, {'0' if ks == 0 else f'v[{d1}:{d1+3}]'}")
            p(f"v_mul_f32 v{SN}, s45, v{D2}")

    first_bc = [True]
    def set_tr(slot):
        if slot != tr_slot[0]:
            dlt = (slot - tr_slot[0]) * XBUF
            for q in range(6):
                if dlt > 0: p(f"v_add_u32 v{TR[q]}, {dlt}, v{TR[q]}")
                else: p(f"v_subrev_u32 v{TR[q]}, {-dlt}, v{TR[q]}")
            tr_slot[0] = slot
    def tr_list(xt):
        trs = []
        for kst in range(2):
            for q in range(6):
                for h in range(2):
                    j = 2 * kst + h
                    a = xt + 8 * q + 4 * kst + 2 * h
                    trs.append(f"ds_read_b64_tr_b16 a[{a}:{a+1}], v{TR[q]} offset:{j*XT}")
        return trs
    def stage_B(tiles):
        nb = len(tiles)
        set_tr(tiles[0] % 3)
        for b, s in enumerate(tiles):
            d1, d3, rs = D1B[b], D3B[b], RSB[b]
            for r in range(4):
                p(f"v_fma_f32 v{d1+r}, -v{d3+r}, v{SN}, v{d1+r}")
            for r in range(4):
                p(f"v_mul_f32_dpp v{d1+r}, v{rs}, v{d1+r} quad_perm:[{r},{r},{r},{r}] row_mask:0xf bank_mask:0xf")
            if s == SP:
                for r in range(4): p(f"v_add_f32 v{d1+r}, s89, v{d1+r}")
        vals = [D1B[b] + r for b in range(nb) for r in range(4)]
        p(f"v_max3_f32 v{TM}, v{vals[0]}, v{vals[1]}, v{vals[2]}")
        rest = vals[3:]
        while len(rest) >= 2:
            p(f"v_max3_f32 v{TM}, v{TM}, v{rest[0]}, v{rest[1]}"); rest = rest[2:]
        if rest: p(f"v_max_f32 v{TM}, v{TM}, v{rest[0]}")
        xg_reduce(p, "v_max_f32", TM, TM2)
        p(f"ds_write_b32 v{MXW}, v{TM}")
        mark('t', 100)
        p("s_barrier")
        p(f"ds_read_b128 v[{D2}:{D2+3}], v{MXR}")
        mark('t', 80)
        trs = tr_list(XTB[0])
        for x in trs[:12]: p(x)
        p(f"v_max3_f32 v{TM}, v{D2}, v{D2+1}, v{D2+2}")
        p(f"v_max3_f32 v{TM}, v{TM}, v{D2+3}, v{M}")
        p(f"v_and_b32 v{TM}, s87, v{TM}")
        p(f"v_sub_f32 v{AL}, v{M}, v{TM}")
        p(f"v_mov_b32 v{M}, v{TM}")
        p(f"v_exp_f32 v{AL}, v{AL}")
        for v in vals: p(f"v_sub_f32 v{v}, v{v}, v{M}")
        for v in vals: p(f"v_exp_f32 v{v}, v{v}")
        for x in trs[12:]: p(x)
        p(f"v_add_f32 v{TM}, v{vals[0]}, v{vals[1]}")
        p(f"v_add_f32 v{TM2}, v{vals[2]}, v{vals[3]}")
        for i in range(4, len(vals), 2):
            p(f"v_add_f32 v{TM}, v{TM}, v{vals[i]}")
            p(f"v_add_f32 v{TM2}, v{TM2}, v{vals[i+1]}")
        p(f"v_add_f32 v{TM}, v{TM}, v{TM2}")
        p(f"v_fma_f32 v{L}, v{L}, v{AL}, v{TM}")
        for b in range(nb):
            d1, rs, wf = D1B[b], RSB[b], WFB[b]
            for r in range(4):
                p(f"v_mul_f32_dpp v{d1+r}, v{rs}, v{d1+r} quad_perm:[{r},{r},{r},{r}] row_mask:0xf bank_mask:0xf")
            p(f"v_cvt_pk_bf16_f32 v{wf}, v{d1}, v{d1+1}")
            p(f"v_cvt_pk_bf16_f32 v{wf+1}, v{d1+2}, v{d1+3}")
            p(f"ds_write_b64 v{WXW}, v[{wf}:{wf+1}] offset:{2048*b}")
        if nb > 1:
            set_tr(tiles[1] % 3)
            for x in tr_list(XTB[1]): p(x)
        p(f"v_mul_f32 v{Z}, v{Z}, v{AL}")
        for b in range(nb):
            for r in range(4): p(f"v_fma_f32 v{Z}, v{D1B[b]+r}, v{D3B[b]+r}, v{Z}")
        if not first_bc[0]:
            for r in range(24): p(f"v_mul_f32 v{ACC+r}, v{ACC+r}, v{AL}")
        first_bc[0] = False
        p("s_barrier")

    def stage_C(tiles):
        nb = len(tiles)
        WR = [(D1, D2), (212, 216), (D1, D2)]
        for b in range(min(nb, 2)):
            p(f"ds_read_b128 v[{WR[b][0]}:{WR[b][0]+3}], v{WXR} offset:{2048*b}")
            p(f"ds_read_b128 v[{WR[b][1]}:{WR[b][1]+3}], v{WXR} offset:{2048*b + 1024}")
        mark('t', 120)
        for b in range(nb):
            xt = XTB[b & 1]
            for kst in range(2):
                bb = WR[b][kst]
                for q in range(6):
                    a = xt + 8 * q + 4 * kst
                    p(f"v_mfma_f32_16x16x32_bf16 v[{ACC+4*q}:{ACC+4*q+3}], a[{a}:{a+3}], v[{bb}:{bb+3}], v[{ACC+4*q}:{ACC+4*q+3}]")
            if b == 0 and nb == 3:
                set_tr(tiles[2] % 3)
                for x in tr_list(XTB[0]): p(x)
                p(f"ds_read_b128 v[{WR[2][0]}:{WR[2][0]+3}], v{WXR} offset:{2048*2}")
                p(f"ds_read_b128 v[{WR[2][1]}:{WR[2][1]+3}], v{WXR} offset:{2048*2 + 1024}")
        if nb == 3 or True:
            pass


    PR, LSUM, ZSUM, WR2, FLR4 = 212, 216, 217, 224, 232
    FLW, FLR = 250, 251
    FL_OFF = WX_OFF + 8192
    THR = opt.get("thr", 8)
    class Sub:
        def __enter__(self):
            self.keep = p.items; p.items = []; return self
        def __exit__(self, *a):
            self.items = p.items; p.items = self.keep
    def merge(mf, sec, lead, per=2):
        i = 0
        def take(n):
            nonlocal i
            while i < len(sec) and (n > 0 or isinstance(sec[i], tuple)):
                p.items.append(sec[i])
                if not isinstance(sec[i], tuple): n -= 1
                i += 1
        take(lead)
        for m in mf:
            p.items.append(m); take(per)
        take(10 ** 6)
    def a_third(s, t):
        with Sub() as c: stage_A(s, None, False, (t,))
        return c.items
    def m_list(s, t):
        with Sub() as c: m_mfma(s, t)
        return c.items
    f2_init = [False]
    pendC = [None]
    def c_list(wr, xt):
        out = []
        for kst in range(2):
            bb = wr + 4 * kst
            for q in range(6):
                a = xt + 8 * q + 4 * kst
                out.append(f"v_mfma_f32_16x16x32_bf16 v[{ACC+4*q}:{ACC+4*q+3}], a[{a}:{a+3}], v[{bb}:{bb+3}], v[{ACC+4*q}:{ACC+4*q+3}]")
        return out
    def flush_C():
        if pendC[0]:
            for x in pendC[0]: p(x)
            pendC[0] = None
    def w_chain(src, exact_dm=None):
        rs, d3, wf = RSB[0], D3B[0], WFB[0]
        for r in range(4): p(f"v_exp_f32 v{PR+r}, v{src+r}")
        p(f"v_add_f32 v{LSUM}, v{PR}, v{PR+1}")
        p(f"v_add_f32 v{ZSUM}, v{PR+2}, v{PR+3}")
        p(f"v_add_f32 v{LSUM}, v{LSUM}, v{ZSUM}")
        for r in range(4):
            p(f"v_mul_f32_dpp v{PR+r}, v{rs}, v{PR+r} quad_perm:[{r},{r},{r},{r}] row_mask:0xf bank_mask:0xf")
        p(f"v_cvt_pk_bf16_f32 v{wf}, v{PR}, v{PR+1}")
        p(f"v_cvt_pk_bf16_f32 v{wf+1}, v{PR+2}, v{PR+3}")
        p(f"ds_write_b64 v{WXW}, v[{wf}:{wf+1}]")
        p(f"v_mul_f32 v{ZSUM}, v{PR}, v{d3}")
        for r in range(1, 4): p(f"v_fma_f32 v{ZSUM}, v{PR+r}, v{d3+r}, v{ZSUM}")
    def m2_publish():
        mark('lock')
        p(f"v_bfi_b32 v{TM}, s{S_MASK}, v{VTAG}, v{M}")
        p(f"v_bfe_u32 v{TM2}, v0, 2, 2")
        p(f"v_lshlrev_b32 v{TM2}, 12, v{TM2}")
        p(f"v_and_b32 v{AL}, 3, v0")
        p(f"v_lshl_add_u32 v{TM2}, v{AL}, 2, v{TM2}")
        p("s_lshl_b32 s48, s2, 4")
        p(f"s_add_u32 s48, s48, {M2_OFF}")
        p("s_cmp_eq_u32 s20, 0")
        p(f"s_cbranch_scc0 {name}_m2skip ;@nodrain")
        p("s_mov_b64 exec, 0xffff")
        p(f"buffer_store_dword v{TM}, v{TM2}, s[16:19], s48 offen sc1")
        p("s_mov_b64 exec, -1")
        p(f"{name}_m2skip:")
        mark('unlock')
    def stage_F2(s, last):
        if not f2_init[0]:
            f2_init[0] = True
            p(f"s_lshl_b32 s48, s20, 2")
            p(f"s_add_u32 s48, s48, {FL_OFF}")
            p(f"v_mov_b32 v{FLW}, s48")
            p(f"v_mov_b32 v{FLR}, {FL_OFF}")
            p(f"s_mov_b32 s88, 0x{f2u(float(THR)):08x}")
        d1, d3, rs = D1B[0], D3B[0], RSB[0]
        if LOOP:
            first = not dyn[0]
            if first:
                assert s % 3 == 0
                set_tr(0)
                p("s_mov_b32 s47, 0")
                p(f"s_mov_b32 s100, {s - 1}")
                p("s_mov_b32 s101, 0")
                dyn[0] = True
            p(f".set ZB{s}, 0")
            mark('zstart')
            mark('lock')
            if not first:
                p("s_add_u32 s47, s47, 1")
                p(f"s_mov_b32 s48, {XBUF}")
                p("s_cmp_eq_u32 s47, 3")
                p(f"s_cselect_b32 s48, {(-2*XBUF) & 0xffffffff}, s48")
                p("s_cselect_b32 s47, 0, s47")
            p("s_add_u32 s100, s100, 1")
            p(f"s_cmp_eq_u32 s100, {SP}")
            p("s_cselect_b32 s22, s89, 0")
            mark('unlock')
            if not first:
                for r in WA[0] + RA[0] + TR: p(f"v_add_u32 v{r}, s48, v{r}")
        def fz(i):
            if opt.get("prof") == 7 and (s & 1): p(f"s_memtime s[{52+2*i}:{53+2*i}]")
        fz(0)
        a0 = a_third(s, 0)
        if pendC[0]:
            merge(pendC[0], a0, lead=16); pendC[0] = None
        else:
            p.items.extend(a0)
        fz(1)
        m_reads(s, 0)
        merge(m_list(s, 0), a_third(s, 1), lead=20)
        fz(2)
        m_reads(s, 1)
        merge(m_list(s, 1), a_third(s, 2), lead=20)
        fz(3)
        m_reads(s, 2)
        if not LOOP: set_tr(s % 3)
        p("s_barrier")
        fz(4)
        trs = tr_list(XTB[0])
        merge(m_list(s, 2), trs, lead=2, per=2)
        fz(5)
        stats(0)
        fz(6)
        for r in range(4):
            p(f"v_fma_f32 v{d1+r}, -v{d3+r}, v{SN}, v{d1+r}")
        for r in range(4):
            p(f"v_mul_f32_dpp v{d1+r}, v{rs}, v{d1+r} quad_perm:[{r},{r},{r},{r}] row_mask:0xf bank_mask:0xf")
        if LOOP:
            for r in range(4): p(f"v_add_f32 v{d1+r}, s22, v{d1+r}")
        elif s == SP:
            for r in range(4): p(f"v_add_f32 v{d1+r}, s89, v{d1+r}")
        for r in range(4): p(f"v_sub_f32 v{d1+r}, v{d1+r}, v{M}")
        p(f"v_max3_f32 v{TM}, v{d1}, v{d1+1}, v{d1+2}")
        p(f"v_max_f32 v{TM}, v{TM}, v{d1+3}")
        p(f"v_cmp_lt_f32 vcc, s88, v{TM}")
        mark('lock')
        fz(7)
        for r in range(4): p(f"v_exp_f32 v{PR+r}, v{d1+r}")
        p("s_cmp_lg_u64 vcc, 0")
        p("s_cselect_b32 s48, 1, 0")
        mark('unlock')
        p(f"v_mov_b32 v{TM2}, s48")
        p(f"v_add_f32 v{LSUM}, v{PR}, v{PR+1}")
        p(f"v_add_f32 v{ZSUM}, v{PR+2}, v{PR+3}")
        p(f"ds_write_b32 v{FLW}, v{TM2}")
        p(f"v_add_f32 v{LSUM}, v{LSUM}, v{ZSUM}")
        wf = WFB[0]
        for r in range(4):
            p(f"v_mul_f32_dpp v{PR+r}, v{rs}, v{PR+r} quad_perm:[{r},{r},{r},{r}] row_mask:0xf bank_mask:0xf")
        p(f"v_cvt_pk_bf16_f32 v{wf}, v{PR}, v{PR+1}")
        p(f"v_cvt_pk_bf16_f32 v{wf+1}, v{PR+2}, v{PR+3}")
        p(f"ds_write_b64 v{WXW}, v[{wf}:{wf+1}]")
        p(f"v_mul_f32 v{ZSUM}, v{PR}, v{d3}")
        for r in range(1, 4): p(f"v_fma_f32 v{ZSUM}, v{PR+r}, v{d3+r}, v{ZSUM}")
        fz(8)
        p("s_barrier")
        fz(9)
        p(f"ds_read_b128 v[{FLR4}:{FLR4+3}], v{FLR}")
        p(f"ds_read_b128 v[{WR2}:{WR2+3}], v{WXR}")
        p(f"ds_read_b128 v[{WR2+4}:{WR2+7}], v{WXR} offset:1024")
        mark('t', 100)
        mark('lock')
        p(f"v_or3_b32 v{TM}, v{FLR4}, v{FLR4+1}, v{FLR4+2}")
        p(f"v_or_b32 v{TM}, v{TM}, v{FLR4+3}")
        p(f"v_cmp_ne_u32 vcc, 0, v{TM}")
        uid[0] += 1
        Lb = f"{name}_lz{uid[0]}"
        p(f"s_cbranch_vccz {Lb}")
        p("s_waitcnt lgkmcnt(0)")
        p(f"v_max3_f32 v{TM}, v{d1}, v{d1+1}, v{d1+2}")
        p(f"v_max_f32 v{TM}, v{TM}, v{d1+3}")
        xg_reduce(p, "v_max_f32", TM, TM2)
        p(f"ds_write_b32 v{MXW}, v{TM}")
        p("s_barrier")
        p(f"ds_read_b128 v[{FLR4}:{FLR4+3}], v{MXR}")
        p(f"v_max3_f32 v{TM}, v{FLR4}, v{FLR4+1}, v{FLR4+2}")
        p(f"v_max3_f32 v{TM}, v{TM}, v{FLR4+3}, 0")
        p(f"v_add_f32 v{TM2}, v{M}, v{TM}")
        p(f"v_and_b32 v{TM2}, s87, v{TM2}")
        p(f"v_sub_f32 v{TM}, v{TM2}, v{M}")
        p(f"v_mov_b32 v{M}, v{TM2}")
        p(f"v_sub_f32 v{AL}, 0, v{TM}")
        p(f"v_exp_f32 v{AL}, v{AL}")
        for r in range(4): p(f"v_sub_f32 v{d1+r}, v{d1+r}, v{TM}")
        for r in range(24): p(f"v_mul_f32 v{ACC+r}, v{ACC+r}, v{AL}")
        p(f"v_mul_f32 v{L}, v{L}, v{AL}")
        p(f"v_mul_f32 v{Z}, v{Z}, v{AL}")
        w_chain(d1)
        p("s_barrier")
        p(f"ds_read_b128 v[{WR2}:{WR2+3}], v{WXR}")
        p(f"ds_read_b128 v[{WR2+4}:{WR2+7}], v{WXR} offset:1024")
        p("s_waitcnt lgkmcnt(0)")
        p("s_nop 7")
        p(f"{Lb}: ;@restore {Lb}")
        mark('unlock')
        if last and not LOOP: m2_publish()
        p(f"v_add_f32 v{L}, v{L}, v{LSUM}")
        p(f"v_add_f32 v{Z}, v{Z}, v{ZSUM}")
        fz(10)
        if LOOP and opt.get("prof") == 6:
            mark('lock')
            p("s_memrealtime s[84:85]")
            p("s_sub_u32 s83, s100, 3")
            p("s_mov_b32 m0, s83")
            p("s_waitcnt lgkmcnt(0)")
            p("v_writelane_b32 v239, s84, m0")
            mark('unlock')
        if LOOP: mark('zend')
        cl = c_list(WR2, XTB[0])
        if last and not LOOP:
            for x in cl: p(x)
        else:
            pendC[0] = cl

    stamp = Prof(p, opt, 52, 86)
    sched = opt.get("sched", "A0 G00 A1 G11 A2 Q G22 D11 P140 D30 T Y D20 Z3 Z4 Z5 Z6 Z7 Z8 Z9")
    stamp("init")
    for tok in sched.replace("_", " ").split():
        if tok == "S":
            mark('log', 'S0'); qb_setup(); stamp("S")
        elif tok == "T":
            mark('log', 'T0'); qb_setup(True); stamp("S")
        elif tok == "Y":
            stage_B([0, 1, 2]); stage_C([0, 1, 2]); stamp("X012")
        elif tok == "Q": qk_issue()
        elif tok[0] == "I":
            mark('force', 15 * int(tok[1]) + int(tok[2:]))
        elif tok[0] == "D":
            mark('dmax', int(tok[1:]))
        elif tok[0] == "P":
            mark('gap', int(tok[1:]))
        elif tok[0] == "W":
            mark('until', int(tok[1:]) * 210)
        elif tok[0] == "Z":
            s = int(tok[1]); stage_F2(s, s == NS - 1)
            if not LOOP: stamp(tok)
        elif tok[0] in "AF":
            s = int(tok[1])
            if len(tok) == 3:
                stage_A(s, None, False, (int(tok[2]),))
                if tok[2] == "2" and s < 3: stamp(tok[:2])
            else:
                stage_A(s, None, tok[0] == "F")
                if tok[0] == "F":
                    stage_B([s]); stage_C([s])
                if tok[0] == "F" or s < 3: stamp(tok)
        elif tok[0] == "G":
            stage_G(int(tok[1]), int(tok[2]))
        elif tok[0] in "MX":
            tiles = [int(c) for c in tok[1:]]
            stage_M(tiles, tok[0] == "X"); stage_B(tiles); stage_C(tiles); stamp(tok)
        mark('log', tok)
    if LOOP:
        p(".set ZEND, 0")
        mark('lock')
        p("s_waitcnt vmcnt(0)")
        m2_publish()
        mark('lock')
        flush_C()
        stamp("Z9")
    if opt.get("noload"):
        for L_ in loads[75:]: L_['ins'] = "s_nop 0" if opt["noload"] == 1 else ""
    body = p.items[stream_start:]
    sched_out = schedule_loads(body, loads, pace=opt.get("pace", 300), lat=opt.get("lat", 1500), dmax=opt.get("dmax", 7), verbose=True, policy=opt.get("policy", "dist"))
    p.items[stream_start:] = sched_out

    if opt.get("streamonly"):
        p("s_endpgm")
        return
    p(f"v_lshrrev_b32 v56, 2, v0")
    p(f"v_lshlrev_b32 v56, 14, v56")
    p(f"v_and_b32 v57, 3, v0")
    p(f"v_lshl_add_u32 v56, v57, 4, v56")
    p(f"s_mul_i32 s24, s20, {3*16*16384}")
    p("s_lshl_b32 s25, s2, 6")
    p("s_add_u32 s24, s24, s25")
    p(f"s_add_u32 s24, s24, {PART_OFF}")
    p(f"v_mov_b32 v{TM}, 0x00010001")
    for k in range(3):
        b = ACC + 8 * k
        for j in range(4): p(f"v_cvt_pk_bf16_f32 v{b+j}, v{b+2*j}, v{b+2*j+1}")
        for j in range(4): p(f"v_bfi_b32 v{b+j}, v{TM}, s{4+j}, v{b+j}")
        p(f"buffer_store_dwordx4 v[{b}:{b+3}], v56, s[16:19], s24 offen sc1")
        if k < 2: p(f"s_add_u32 s24, s24, {16*16384}")
    xg_reduce(p, "v_add_f32", L, TM2)
    xg_reduce(p, "v_add_f32", Z, TM2)
    p(f"ds_write_b32 v{MXW}, v{L}")
    p(f"ds_write_b32 v{MXW}, v{Z} offset:{LZ_OFF - MX_OFF}")
    p("s_barrier")
    p("s_cmp_lg_u32 s20, 0")
    p(f"s_cbranch_scc1 {name}_red")
    p(f"ds_read_b128 v[56:59], v{MXR}")
    p(f"ds_read_b128 v[60:63], v{MXR} offset:{LZ_OFF - MX_OFF}")
    p("v_add_f32 v56, v56, v57")
    p("v_add_f32 v58, v58, v59")
    p("v_add_f32 v65, v56, v58")
    p("v_add_f32 v60, v60, v61")
    p("v_add_f32 v62, v62, v63")
    p("v_add_f32 v66, v60, v62")
    p(f"v_mov_b32 v64, v{M}")
    p(f"v_mov_b32 v67, v{VTAG}")
    p("s_lshl_b32 s24, s2, 8")
    p(f"s_add_u32 s24, s24, {ML_OFF}")
    p("s_mov_b64 exec, 0xffff")
    p(f"buffer_store_dwordx4 v[64:67], v{VL16}, s[16:19], s24 offen sc1")
    p("s_mov_b64 exec, -1")
    p(f"{name}_red: ;@restore red")
    stamp("pub")
    p(f"s_cmp_ge_u32 s21, {NRED}")
    p(f"s_cbranch_scc1 {name}_sdone ;@nodrain")
    p("s_lshr_b32 s24, s21, 4")
    p("s_lshr_b32 s25, s21, 2")
    p("s_and_b32 s25, s25, 3")
    p("s_and_b32 s26, s21, 3")
    p("v_and_b32 v56, 3, v0")
    p(f"v_mov_b32 v58, v{VL16}")
    p("v_lshlrev_b32 v59, 2, v0")
    p("s_lshl_b32 s27, s21, 14")
    p("s_lshl_b32 s28, s20, 12")
    p("s_add_u32 s27, s27, s28")
    p(f"s_add_u32 s27, s27, {PART_OFF}")
    p("s_lshl_b32 s29, s20, 10")
    p("s_lshl_b32 s28, s26, 12")
    p("s_add_u32 s29, s29, s28")
    p(f"s_add_u32 s29, s29, {M2_OFF}")
    PM = 76; PP = 108; NP = 4
    RL = f"{name}_rr"
    gate = opt.get("gate", 8)
    p(f"s_mov_b32 s50, {(1 << NP) - 1}")
    p(f"s_mov_b32 s51, {(1 << NP) - 1}")
    p(f"s_mov_b32 s{S_SPIN}, 0")
    def m2_check(i, lbl):
        p(f"s_bitcmp0_b32 s50, {i}")
        p(f"s_cbranch_scc1 {lbl} ;@nodrain")
        p(f"v_xor_b32 v{PM+i}, v{PM+i}, v{VTAG}")
        p(f"v_and_b32 v60, s{S_MASK}, v{PM+i}")
        p("v_cmp_ne_u32 vcc, 0, v60")
        p(f"s_cbranch_vccnz {lbl} ;@nodrain")
        p(f"s_bitset0_b32 s50, {i}")
        p(f"{lbl}:")
    if opt.get("m2early", 1):
        for i in range(NP):
            p(f"buffer_load_dword v{PM+i}, v59, s[16:19], s29 offen offset:{256*i} sc1")
    if opt.get("ackwait", 1): p("s_waitcnt vmcnt(0)")
    if opt.get("m2early", 1):
        for i in range(NP): m2_check(i, f"{RL}_e{i}")
    stamp("ack")
    p(f"{RL}_loop:")
    p("s_andn2_b32 s47, s51, s50")
    p("s_bcnt1_i32_b32 s48, s50")
    p(f"s_cmp_le_u32 s48, {gate}")
    p("s_cselect_b32 s47, s51, s47")
    for i in range(NP):
        p(f"s_bitcmp0_b32 s50, {i}")
        p(f"s_cbranch_scc1 {RL}_a{i} ;@nodrain")
        p(f"buffer_load_dword v{PM+i}, v59, s[16:19], s29 offen offset:{256*i} sc1")
        p(f"{RL}_a{i}:")
        p(f"s_bitcmp0_b32 s47, {i}")
        p(f"s_cbranch_scc1 {RL}_b{i} ;@nodrain")
        p(f"buffer_load_dwordx4 v[{PP+4*i}:{PP+4*i+3}], v58, s[16:19], s27 offen offset:{1024*i} sc1")
        p(f"{RL}_b{i}:")
    p("s_waitcnt vmcnt(0)")
    for i in range(NP):
        p(f"s_bitcmp0_b32 s47, {i}")
        p(f"s_cbranch_scc1 {RL}_c{i} ;@nodrain")
        r = PP + 4 * i
        for j in range(4): p(f"v_xor_b32 v{r+j}, s{4+j}, v{r+j}")
        p(f"v_or3_b32 v60, v{r}, v{r+1}, v{r+2}")
        p(f"v_or_b32 v60, v60, v{r+3}")
        p("v_and_b32 v60, 0x00010001, v60")
        p("v_cmp_ne_u32 vcc, 0, v60")
        p(f"s_cbranch_vccnz {RL}_c{i} ;@nodrain")
        p(f"s_bitset0_b32 s51, {i}")
        p(f"{RL}_c{i}:")
        m2_check(i, f"{RL}_d{i}")
    p("s_or_b32 s48, s50, s51")
    p("s_cmp_eq_u32 s48, 0")
    p(f"s_cbranch_scc1 {RL}_done ;@nodrain")
    p(f"s_add_u32 s{S_SPIN}, s{S_SPIN}, 1")
    p(f"s_cmp_lt_u32 s{S_SPIN}, {SPIN_MAX}")
    p(f"s_cbranch_scc1 {RL}_loop ;@nodrain")
    if DIAG[0]:
        uid[0] += 1
        p("s_mov_b64 vcc, 1")
        diag_store(p, uid[0], "s50")
    p(f"{RL}_done:")
    p("s_nop 7")
    if opt.get("prof") == 1: p(f"s_mov_b32 s86, s{S_SPIN}")
    stamp("redin")
    MV, T = 61, 62
    p(f"v_max3_f32 v{MV}, v{PM}, v{PM+1}, v{PM+2}")
    p(f"v_max_f32 v{MV}, v{MV}, v{PM+3}")
    p("v_mov_b32 v63, 0x8000")
    A8 = 64
    p(f"v_max_f32_dpp v{MV}, v{MV}, v{MV} row_ror:4 row_mask:0xf bank_mask:0xf")
    for j in range(4):
        p(f"v_lshl_or_b32 v{140+2*j}, v{PP+j}, 16, v63")
        p(f"v_and_or_b32 v{141+2*j}, v{PP+j}, s44, v63")
    p(f"v_max_f32_dpp v{MV}, v{MV}, v{MV} row_ror:8 row_mask:0xf bank_mask:0xf")
    xg_reduce(p, "v_max_f32", MV, T)
    for i in range(NP): p(f"v_sub_f32 v{PM+i}, v{PM+i}, v{MV}")
    for i in range(NP): p(f"v_exp_f32 v{PM+i}, v{PM+i}")
    for i in range(NP):
        r = PP + 4 * i
        if i > 0:
            for j in range(4):
                p(f"v_lshl_or_b32 v{140+2*j}, v{r+j}, 16, v63")
                p(f"v_and_or_b32 v{141+2*j}, v{r+j}, s44, v63")
        for j in range(8):
            if i == 0: p(f"v_mul_f32 v{A8+j}, v{PM}, v{140+j}")
            else: p(f"v_fma_f32 v{A8+j}, v{PM+i}, v{140+j}, v{A8+j}")
    for j in range(4): p(f"v_permlane32_swap_b32 v{A8+j}, v{A8+j+4}")
    for j in range(4): p(f"v_add_f32 v{A8+j}, v{A8+j}, v{A8+j+4}")
    for j in range(2): p(f"v_permlane16_swap_b32 v{A8+j}, v{A8+j+2}")
    for j in range(2): p(f"v_add_f32 v{A8+j}, v{A8+j}, v{A8+j+2}")
    for j in range(2): p(f"v_add_f32_dpp v{A8+j}, v{A8+j}, v{A8+j} row_ror:4 row_mask:0xf bank_mask:0xf")
    p("v_lshlrev_b32 v72, 3, v0")
    p("s_lshl_b32 s28, s20, 9")
    p("v_add_u32 v73, s28, v72")
    for j in range(2): p(f"v_add_f32_dpp v{A8+j}, v{A8+j}, v{A8+j} row_ror:8 row_mask:0xf bank_mask:0xf")
    p("v_lshlrev_b32 v74, 2, v0")
    p("s_lshl_b32 s28, s20, 8")
    p("v_add_u32 v75, s28, v74")
    p(f"ds_write_b64 v73, v[{A8}:{A8+1}]")
    p(f"ds_write_b32 v75, v{MV} offset:2048")
    p("s_barrier")
    p("s_cmp_lg_u32 s20, 0")
    p(f"s_cbranch_scc1 {name}_sdone ;@nodrain")
    for v in range(4):
        p(f"ds_read_b32 v{84+v}, v74 offset:{2048 + 256*v}")
        p(f"ds_read_b64 v[{76+2*v}:{77+2*v}], v72 offset:{512*v}")
    p("v_lshrrev_b32 v66, 4, v0")
    p("v_lshlrev_b32 v66, 3, v66")
    p("v_lshl_add_u32 v66, v56, 5, v66")
    p("s_lshl_b32 s24, s21, 7")
    p(f"s_add_u32 s24, s24, {UF_OFF}")
    p("v_max3_f32 v61, v84, v85, v86")
    p("v_max_f32 v61, v61, v87")
    for v in range(4): p(f"v_sub_f32 v{84+v}, v{84+v}, v61")
    for v in range(4): p(f"v_exp_f32 v{84+v}, v{84+v}")
    for r in range(2): p(f"v_mul_f32 v{64+r}, v84, v{76+r}")
    for v in range(1, 4):
        for r in range(2): p(f"v_fma_f32 v{64+r}, v{84+v}, v{76+2*v+r}, v{64+r}")
    tag_regs(p, range(64, 66), VTAG)
    p("s_mov_b32 exec_lo, 0x000f000f")
    p("s_mov_b32 exec_hi, 0x000f000f")
    p("buffer_store_dwordx2 v[64:65], v66, s[16:19], s24 offen sc1")
    stamp("redout")
    p(f"{name}_sdone:")
    if stamp.on:
        p("s_cmp_lg_u32 s20, 0")
        p(f"s_cbranch_scc1 {name}_done ;@nodrain")
        stamp.dump("streamer")
    p("s_endpgm")

def gen_special(p, name, opt):
    if opt.get("streamonly"):
        p("s_endpgm"); return
    stamp = Prof(p, opt, 64, 92)
    VL16, VI, VG, VTAG, VAB = 1, 2, 3, 4, 5
    LA = list(range(216, 228))
    RS = 784
    TILE_LDS = 16 * RS
    p("s_load_dwordx2 s[4:5], s[0:1], 0")
    p("s_load_dwordx4 s[8:11], s[0:1], 24")
    p("s_load_dwordx4 s[12:15], s[0:1], 40")
    p("s_load_dwordx2 s[6:7], s[0:1], 56")
    p(f"v_lshlrev_b32 v{VL16}, 4, v0")
    p(f"v_and_b32 v{VI}, 15, v0")
    p(f"v_lshrrev_b32 v{VG}, 4, v0")
    p(f"v_mul_u32_u24 v{VAB}, {RS}, v{VI}")
    p(f"v_lshl_add_u32 v{VAB}, v{VG}, 4, v{VAB}")
    for a in range(12):
        p(f"v_add_u32 v6, {1024*a}, v{VL16}")
        p("v_lshrrev_b32 v7, 8, v6")
        p("v_mul_u32_u24 v7, 21846, v7")
        p("v_lshrrev_b32 v7, 16, v7")
        p(f"v_lshl_add_u32 v{LA[a]}, v7, 4, v6")
    p("s_waitcnt lgkmcnt(0)")
    p(f"s_load_dword s94, s[22:23], {N_OFF}")
    srd(p, 16, 22, WS_USED)
    srd(p, 24, 8, W_BYTES)
    srd(p, 28, 10, W_BYTES)
    srd(p, 32, 4, Q_BYTES)
    srd(p, 36, 12, W_BYTES)
    srd(p, 40, 14, W_BYTES)
    srd(p, 44, 6, Q_BYTES)
    aONE = 144
    ONES = f"a[{aONE}:{aONE+3}]"
    def consts():
        for r in range(4): mov64(p, 52 + 2 * r, sum(1 << (20 * g + r) for g in range(4)))
        p(f"s_mov_b32 s60, 0x{f2u(1.0 / C):08x}")
        p(f"s_mov_b32 s61, 0x{f2u(1e-5):08x}")
        p("v_mov_b32 v6, 0x3f803f80")
        for r in range(4): p(f"v_accvgpr_write_b32 a{aONE+r}, v6")
        p("s_waitcnt lgkmcnt(0)")
        p("s_add_u32 s94, s94, 1")
        p(f"s_and_b32 s{S_TAG}, s94, 0xff")
        p(f"v_mov_b32 v{VTAG}, s{S_TAG}")
    p("s_cmp_ge_u32 s100, 6")
    p(f"s_cbranch_scc1 {name}_st2")
    WQS = 64
    QS = 16
    LQ = 0
    LWQ = 12544
    p("v_lshrrev_b32 v7, 3, v0")
    p("v_and_b32 v8, 7, v0")
    p("v_mul_u32_u24 v9, 768, v7")
    p("v_lshl_add_u32 v9, v8, 4, v9")
    p("v_mul_u32_u24 v10, 144, v7")
    p("v_lshl_add_u32 v10, v8, 4, v10")
    p("s_mul_i32 s48, s20, 3072")
    for a in range(3):
        p(f"buffer_load_dwordx4 v[{QS+4*a}:{QS+4*a+3}], v{VL16}, s[32:35], s48 offen offset:{1024*a}")
    p("s_lshl_b32 s48, s100, 7")
    p(f"s_mul_i32 s49, s20, {96*768}")
    p("s_add_u32 s48, s48, s49")
    for a in range(12):
        p(f"buffer_load_dwordx4 v[{WQS+4*a}:{WQS+4*a+3}], v9, s[24:27], s48 offen")
        if a < 11: p(f"s_add_u32 s48, s48, {8*768}")
    consts()
    stamp("issued")
    p("s_mul_i32 s48, s20, 3136")
    for a in range(3):
        p(f"v_add_u32 v6, s48, v{LA[a]}")
        p(f"ds_write_b128 v6, v[{QS+4*a}:{QS+4*a+3}] offset:{LQ}")
    p("s_barrier")
    QFR = 16
    for ks in range(12):
        p(f"ds_read_b128 v[{QFR+4*ks}:{QFR+4*ks+3}], v{VAB} offset:{LQ + 64*ks}")
    for ks in range(12):
        q = f"v[{QFR+4*ks}:{QFR+4*ks+3}]"
        p(f"v_mfma_f32_16x16x32_bf16 v[116:119], {q}, {q}, {'0' if ks == 0 else 'v[116:119]'}")
        p(f"v_mfma_f32_16x16x32_bf16 v[112:115], {ONES}, {q}, {'0' if ks == 0 else 'v[112:115]'}")
    p(f"s_mul_i32 s48, s20, {96*144}")
    p("v_add_u32 v10, s48, v10")
    p("v_lshrrev_b32 v11, 2, v0")
    p("v_and_b32 v11, 3, v11")
    p(f"v_lshl_add_u32 v11, v{VG}, 3, v11")
    p("v_mul_u32_u24 v11, 144, v11")
    p("v_and_b32 v13, 3, v0")
    p("v_lshl_add_u32 v11, v13, 3, v11")
    p("s_lshl_b32 s48, s20, 5")
    p("v_add_u32 v11, s48, v11")
    p("v_cndmask_b32 v12, 0, v116, s[52:53]")
    for r in range(1, 4): p(f"v_cndmask_b32 v12, v12, v{116+r}, s[{52+2*r}:{53+2*r}]")
    p("v_mul_f32 v14, s60, v112")
    xg_reduce(p, "v_add_f32", 12, 13)
    p("v_mov_b32 v13, s61")
    p("v_fma_f32 v12, v12, s60, v13")
    p("v_fma_f32 v12, -v14, v14, v12")
    p("v_max_f32 v12, s61, v12")
    p("v_rsq_f32 v15, v12")
    for a in range(12):
        p(f"ds_write_b128 v10, v[{WQS+4*a}:{WQS+4*a+3}] offset:{LWQ + 8*144*a}")
    stamp("s1ld")
    p("s_barrier")
    stamp("s1bar")
    aWT = 0
    for ks in range(12):
        for h in range(2):
            p(f"ds_read_b64_tr_b16 a[{aWT+4*ks+2*h}:{aWT+4*ks+2*h+1}], v11 offset:{LWQ + 32*144*ks + 4*144*h}")
    for ks in range(12):
        a = f"a[{aWT+4*ks}:{aWT+4*ks+3}]"
        q = f"v[{QFR+4*ks}:{QFR+4*ks+3}]"
        p(f"v_mfma_f32_16x16x32_bf16 v[120:123], {a}, {q}, {'0' if ks == 0 else 'v[120:123]'}")
        p(f"v_mfma_f32_16x16x32_bf16 v[124:127], {a}, {ONES}, {'0' if ks == 0 else 'v[124:127]'}")
    stamp("s1mf")
    for r in range(4): p(f"v_fma_f32 v{120+r}, -v14, v{124+r}, v{120+r}")
    for r in range(4): p(f"v_mul_f32 v{120+r}, v{120+r}, v15")
    tag_regs(p, range(120, 124), VTAG)
    p("s_lshl_b32 s48, s100, 2")
    p("s_add_u32 s48, s48, s20")
    p("s_lshl_b32 s48, s48, 10")
    p(f"s_add_u32 s48, s48, {QF_OFF}")
    p(f"buffer_store_dwordx4 v[120:123], v{VL16}, s[16:19], s48 offen sc1")
    stamp("st1")
    p(f"s_branch {name}_sp_w")
    p(f"{name}_st2: ;@restore st2")
    WKS = 64
    p("s_sub_u32 s21, s100, 6")
    p("s_lshl_b32 s21, s21, 2")
    p("s_add_u32 s21, s21, s20")
    p("s_mul_i32 s48, s21, 12288")
    for a in range(12):
        if a % 4 == 0 and a: p("s_add_u32 s48, s48, 4096")
        p(f"buffer_load_dwordx4 v[{WKS+4*a}:{WKS+4*a+3}], v{VL16}, s[28:31], s48 offen offset:{1024*(a%4)}")
    consts()
    stamp("issued")
    LWK = 0
    LQB = 4 * TILE_LDS
    p(f"s_mul_i32 s48, s20, {TILE_LDS}")
    for a in range(12):
        p(f"v_add_u32 v6, s48, v{LA[a]}")
        p(f"ds_write_b128 v6, v[{WKS+4*a}:{WKS+4*a+3}] offset:{LWK}")
    p(f"v_add_u32 v7, s48, v{VAB}")
    aWK = 48
    for ks in range(12):
        p(f"ds_read_b128 a[{aWK+4*ks}:{aWK+4*ks+3}], v7 offset:{LWK + 64*ks}")
    QR = 120
    loads = ["s_mul_i32 s48, s20, 6144", f"s_add_u32 s48, s48, {QF_OFF}", "s_add_u32 s49, s48, 4096"]
    for q in range(6):
        so, off = ("s48", 1024 * q) if q < 4 else ("s49", 1024 * (q - 4))
        loads.append(f"buffer_load_dwordx4 v[{QR+4*q}:{QR+4*q+3}], v{VL16}, s[16:19], {so} offen offset:{off} sc1")
    poll_block(p, name, loads, list(range(QR, QR + 24)), VTAG, 12, sleep=0)
    stamp("qf_in")
    p(f"v_lshrrev_b32 v7, 1, v{VG}")
    p("v_lshlrev_b32 v7, 8, v7")
    p(f"v_lshl_add_u32 v7, v{VI}, 4, v7")
    p(f"v_and_b32 v8, 1, v{VG}")
    p("v_lshl_add_u32 v7, v8, 3, v7")
    p("s_mul_i32 s48, s20, 3072")
    p("v_add_u32 v7, s48, v7")
    for q in range(6):
        p(f"v_cvt_pk_bf16_f32 v{QR+4*q}, v{QR+4*q}, v{QR+4*q+1}")
        p(f"v_cvt_pk_bf16_f32 v{QR+4*q+1}, v{QR+4*q+2}, v{QR+4*q+3}")
        p(f"ds_write_b64 v7, v[{QR+4*q}:{QR+4*q+1}] offset:{LQB + 512*q}")
    p("s_barrier")
    stamp("s2bar")
    for pp in range(12):
        p(f"ds_read_b128 v[{16+4*pp}:{19+4*pp}], v{VL16} offset:{LQB + 1024*pp}")
    for pp in range(12):
        p(f"v_mfma_f32_16x16x32_bf16 v[112:115], a[{aWK+4*pp}:{aWK+4*pp+3}], v[{16+4*pp}:{19+4*pp}], {'0' if pp == 0 else 'v[112:115]'}")
    for r in range(4): p(f"v_mul_f32 v{112+r}, 0x{f2u(SCALE*LOG2E):08x}, v{112+r}")
    tag_regs(p, range(112, 116), VTAG)
    p("s_lshl_b32 s48, s21, 10")
    p(f"s_add_u32 s48, s48, {QKF_OFF}")
    p(f"buffer_store_dwordx4 v[112:115], v{VL16}, s[16:19], s48 offen sc1")
    stamp("st2")
    p(f"{name}_sp_w:")
    p("s_waitcnt lgkmcnt(0)")
    p("s_nop 7")
    p("s_nop 7")
    p("s_barrier")
    tagpat(p, 4)
    for j in range(4): p(f"v_mov_b32 v{12+j}, s{4+j}")
    p("v_lshrrev_b32 v17, 2, v0")
    p("v_lshlrev_b32 v17, 14, v17")
    p("v_and_b32 v18, 3, v0")
    p("v_lshl_add_u32 v17, v18, 4, v17")
    p(f"s_mul_i32 s48, s20, {3*16*16384}")
    p("s_lshl_b32 s49, s2, 6")
    p("s_add_u32 s48, s48, s49")
    p(f"s_add_u32 s48, s48, {PART_OFF}")
    for k in range(3):
        p("buffer_store_dwordx4 v[12:15], v17, s[16:19], s48 offen sc1")
        if k < 2: p(f"s_add_u32 s48, s48, {16*16384}")
    p("v_mov_b32 v16, 0xf149f2ca")
    p("v_mov_b32 v17, 0")
    p("v_mov_b32 v18, 0")
    p(f"v_mov_b32 v19, v{VTAG}")
    p("s_lshl_b32 s48, s2, 8")
    p("s_lshl_b32 s49, s20, 6")
    p("s_add_u32 s48, s48, s49")
    p(f"s_add_u32 s48, s48, {ML_OFF}")
    p("s_mov_b64 exec, 0xf")
    p(f"buffer_store_dwordx4 v[16:19], v{VL16}, s[16:19], s48 offen sc1")
    p(f"v_bfi_b32 v17, s{S_MASK}, v{VTAG}, v16")
    p(f"v_lshrrev_b32 v18, 2, v{VL16}")
    p("s_lshl_b32 s48, s20, 12")
    p("s_lshl_b32 s49, s2, 4")
    p("s_add_u32 s48, s48, s49")
    p(f"s_add_u32 s48, s48, {M2_OFF}")
    p("buffer_store_dword v17, v18, s[16:19], s48 offen sc1")
    p("s_mov_b64 exec, -1")
    NE = 2
    LWO = 4 * 2 * TILE_LDS
    WRS = 80
    p("v_lshrrev_b32 v7, 2, v0")
    p("v_and_b32 v8, 3, v0")
    p("v_mul_u32_u24 v9, 768, v7")
    p("v_lshl_add_u32 v9, v8, 4, v9")
    p(f"v_mul_u32_u24 v10, {WRS}, v7")
    p("v_lshl_add_u32 v10, v8, 4, v10")
    p("s_lshl_b32 s48, s100, 6")
    p(f"s_mul_i32 s49, s20, {96*768}")
    p("s_add_u32 s48, s48, s49")
    for a in range(6):
        p(f"buffer_load_dwordx4 v[{20+4*a}:{23+4*a}], v9, s[40:43], s48 offen")
        if a < 5: p(f"s_add_u32 s48, s48, {16*768}")
    WVS = 64
    def wv_load(tile):
        b = WVS + 48 * (tile & 1)
        p(f"s_mul_i32 s50, s20, {6*12288}")
        p(f"s_add_u32 s50, s50, {tile*12288}")
        for a in range(12):
            if a % 4 == 0 and a: p("s_add_u32 s50, s50, 4096")
            p(f"buffer_load_dwordx4 v[{b+4*a}:{b+4*a+3}], v{VL16}, s[36:39], s50 offen offset:{1024*(a%4)}")
    wv_load(0); wv_load(1)
    p(f"s_mul_i32 s49, s20, {96*WRS}")
    p("v_add_u32 v10, s49, v10")
    p(f"v_add_u32 v10, {LWO}, v10")
    for a in range(6):
        p(f"ds_write_b128 v10, v[{20+4*a}:{23+4*a}] offset:{16*WRS*a}")
    p("s_barrier")
    p("v_lshrrev_b32 v10, 2, v0")
    p("v_and_b32 v10, 3, v10")
    p(f"v_lshl_add_u32 v10, v{VG}, 3, v10")
    p(f"v_mul_u32_u24 v10, {WRS}, v10")
    p("v_and_b32 v11, 3, v0")
    p("v_lshl_add_u32 v10, v11, 3, v10")
    p(f"v_add_u32 v10, {LWO}, v10")
    for e in range(NE):
        for ks in range(12):
            for h in range(2):
                p(f"ds_read_b64_tr_b16 a[{48*e+4*ks+2*h}:{48*e+4*ks+2*h+1}], v10 offset:{32*e + 32*WRS*ks + 4*WRS*h}")
    p(f"s_mul_i32 s63, s20, {TILE_LDS}")
    for a in range(12): p(f"v_add_u32 v{LA[a]}, s63, v{LA[a]}")
    p(f"v_add_u32 v{VAB}, s63, v{VAB}")
    WF = 160
    DW = 20
    aXV = 96
    for tile in range(6):
        b = WVS + 48 * (tile & 1)
        for a in range(12): p(f"ds_write_b128 v{LA[a]}, v[{b+4*a}:{b+4*a+3}]")
        if tile + 2 < 6: wv_load(tile + 2)
        for ks in range(12): p(f"ds_read_b128 a[{aXV+4*ks}:{aXV+4*ks+3}], v{VAB} offset:{64*ks}")
        for ks in range(12):
            for e in range(NE):
                d = DW + 8 * e + 4 * (tile & 1)
                p(f"v_mfma_f32_16x16x32_bf16 v[{d}:{d+3}], a[{aXV+4*ks}:{aXV+4*ks+3}], a[{48*e+4*ks}:{48*e+4*ks+3}], {'0' if ks == 0 else f'v[{d}:{d+3}]'}")
        if tile & 1:
            for e in range(NE):
                w = WF + 12 * e + 4 * (tile >> 1)
                for k in range(4):
                    p(f"v_cvt_pk_bf16_f32 v{w+k}, v{DW+8*e+2*k}, v{DW+8*e+2*k+1}")
    for e in range(NE):
        for pr in range(3):
            w = WF + 12 * e + 4 * pr
            p(f"v_mfma_f32_16x16x32_bf16 v[{44+4*e}:{47+4*e}], v[{w}:{w+3}], {ONES}, {'0' if pr == 0 else f'v[{44+4*e}:{47+4*e}]'}")
    stamp("wvo")
    p(f"v_mul_u32_u24 v7, 768, v{VI}")
    p(f"v_lshl_add_u32 v7, v{VG}, 3, v7")
    p("s_lshl_b32 s62, s100, 1")
    p("s_and_b32 s48, s20, 1")
    p("s_add_u32 s62, s62, s48")
    p("s_lshl_b32 s62, s62, 5")
    p("buffer_load_dwordx2 v[56:57], v7, s[32:35], s62 offen")
    PM = 64
    FL = f"{name}_fm"
    p("s_lshl_b32 s63, s20, 14")
    p(f"s_add_u32 s63, s63, {ML_OFF}")
    p(f"s_mov_b32 s{S_SPIN}, 0")
    p(f"s_add_u32 s48, s63, {1024*15}")
    p(f"{FL}_pre:")
    p(f"buffer_load_dwordx4 v[{PM}:{PM+3}], v{VL16}, s[16:19], s48 offen sc1")
    p("s_waitcnt vmcnt(0)")
    p(f"v_xor_b32 v12, v{PM+3}, v{VTAG}")
    p(f"v_and_b32 v12, s{S_MASK}, v12")
    p("v_cmp_ne_u32 vcc, 0, v12")
    p(f"s_cbranch_vccz {FL}_go ;@nodrain")
    p("s_sleep 6")
    p(f"s_add_u32 s{S_SPIN}, s{S_SPIN}, 1")
    p(f"s_cmp_lt_u32 s{S_SPIN}, {SPIN_MAX}")
    p(f"s_cbranch_scc1 {FL}_pre ;@nodrain")
    p(f"{FL}_go:")
    p("s_mov_b32 s50, 0xffff")
    p(f"s_mov_b32 s{S_SPIN}, 0")
    p(f"{FL}_loop:")
    for i in range(16):
        p(f"s_bitcmp0_b32 s50, {i}")
        p(f"s_cbranch_scc1 {FL}_a{i} ;@nodrain")
        p(f"s_add_u32 s48, s63, {1024*i}")
        p(f"buffer_load_dwordx4 v[{PM+4*i}:{PM+4*i+3}], v{VL16}, s[16:19], s48 offen sc1")
        p(f"{FL}_a{i}:")
    p("s_waitcnt vmcnt(0)")
    for i in range(16):
        p(f"s_bitcmp0_b32 s50, {i}")
        p(f"s_cbranch_scc1 {FL}_c{i} ;@nodrain")
        p(f"v_xor_b32 v12, v{PM+4*i+3}, v{VTAG}")
        p(f"v_and_b32 v12, s{S_MASK}, v12")
        p("v_cmp_ne_u32 vcc, 0, v12")
        p(f"s_cbranch_vccnz {FL}_c{i} ;@nodrain")
        p(f"s_bitset0_b32 s50, {i}")
        p(f"{FL}_c{i}:")
    p("s_cmp_eq_u32 s50, 0")
    p(f"s_cbranch_scc1 {FL}_done ;@nodrain")
    p(f"s_add_u32 s{S_SPIN}, s{S_SPIN}, 1")
    p(f"s_cmp_lt_u32 s{S_SPIN}, {SPIN_MAX}")
    p(f"s_cbranch_scc1 {FL}_loop ;@nodrain")
    p(f"{FL}_done:")
    p("s_nop 7")
    stamp("ml_in")
    MV, T = 8, 9
    p(f"v_max3_f32 v{MV}, v{PM}, v{PM+4}, v{PM+8}")
    for i in range(3, 15, 2): p(f"v_max3_f32 v{MV}, v{MV}, v{PM+4*i}, v{PM+4*i+4}")
    p(f"v_max_f32 v{MV}, v{MV}, v{PM+60}")
    xg_reduce(p, "v_max_f32", MV, T)
    for i in range(16): p(f"v_sub_f32 v{PM+4*i}, v{PM+4*i}, v{MV}")
    for i in range(16): p(f"v_exp_f32 v{PM+4*i}, v{PM+4*i}")
    p(f"v_mul_f32 v13, v{PM}, v{PM+1}")
    p(f"v_mul_f32 v14, v{PM}, v{PM+2}")
    for i in range(1, 16):
        p(f"v_fma_f32 v13, v{PM+4*i}, v{PM+4*i+1}, v13")
        p(f"v_fma_f32 v14, v{PM+4*i}, v{PM+4*i+2}, v14")
    xg_reduce(p, "v_add_f32", 13, T)
    xg_reduce(p, "v_add_f32", 14, T)
    p(f"v_mov_b32 v12, v{MV}")
    p("v_mov_b32 v15, 0")
    LX = 0
    p("s_barrier")
    p(f"v_lshlrev_b32 v9, 6, v{VI}")
    p("s_lshl_b32 s48, s20, 4")
    p("v_add_u32 v8, s48, v9")
    p(f"ds_write_b128 v8, v[12:15] offset:{LX}")
    p("s_barrier")
    for v in range(4): p(f"ds_read_b128 v[{64+4*v}:{67+4*v}], v9 offset:{LX + 16*v}")
    p("v_max3_f32 v8, v64, v68, v72")
    p("v_max_f32 v8, v8, v76")
    for v in range(4): p(f"v_sub_f32 v{64+4*v}, v{64+4*v}, v8")
    for v in range(4): p(f"v_exp_f32 v{64+4*v}, v{64+4*v}")
    p("v_mul_f32 v13, v64, v65")
    p("v_mul_f32 v14, v64, v66")
    for v in range(1, 4):
        p(f"v_fma_f32 v13, v{64+4*v}, v{65+4*v}, v13")
        p(f"v_fma_f32 v14, v{64+4*v}, v{66+4*v}, v14")
    p("v_rcp_f32 v13, v13")
    p("v_mul_f32 v14, s60, v14")
    UR = 64
    p(f"v_lshlrev_b32 v10, 1, v{VL16}")
    loads = ["s_mul_i32 s48, s20, 6144", f"s_add_u32 s48, s48, {UF_OFF}", "s_add_u32 s49, s48, 4096"]
    for pr in range(3):
        for h in range(2):
            so, off = ("s48", 2048 * pr + 16 * h) if pr < 2 else ("s49", 16 * h)
            loads.append(f"buffer_load_dwordx4 v[{UR+8*pr+4*h}:{UR+8*pr+4*h+3}], v10, s[16:19], {so} offen offset:{off} sc1")
    poll_block(p, name, loads, list(range(UR, UR + 24)), VTAG, 12, sleep=0)
    stamp("u_in")
    for pr in range(3):
        for k in range(4):
            p(f"v_cvt_pk_bf16_f32 v{96+4*pr+k}, v{UR+8*pr+2*k}, v{UR+8*pr+2*k+1}")
    for pr in range(3):
        for e in range(NE):
            w = WF + 12 * e + 4 * pr
            d = 20 + 4 * e
            p(f"v_mfma_f32_16x16x32_bf16 v[{d}:{d+3}], v[{w}:{w+3}], v[{96+4*pr}:{99+4*pr}], {'0' if pr == 0 else f'v[{d}:{d+3}]'}")
    for e in range(NE):
        for r in range(4): p(f"v_fma_f32 v{20+4*e+r}, -v14, v{44+4*e+r}, v{20+4*e+r}")
    LF = 4096
    p("s_lshl_b32 s48, s20, 10")
    p(f"v_add_u32 v8, s48, v{VL16}")
    for e in range(NE): p(f"ds_write_b128 v8, v[{20+4*e}:{23+4*e}] offset:{LF + 4096*e}")
    p("s_barrier")
    p(f"s_cmp_ge_u32 s20, {NE}")
    p(f"s_cbranch_scc1 {name}_done ;@nodrain")
    p("s_lshl_b32 s48, s20, 12")
    p(f"v_add_u32 v8, s48, v{VL16}")
    for v in range(4): p(f"ds_read_b128 v[{64+4*v}:{67+4*v}], v8 offset:{LF + 1024*v}")
    p("v_lshlrev_b32 v80, 16, v56")
    p("v_and_b32 v81, 0xffff0000, v56")
    p("v_lshlrev_b32 v82, 16, v57")
    p("v_and_b32 v83, 0xffff0000, v57")
    for r in range(4):
        p(f"v_add_f32 v{64+r}, v{64+r}, v{68+r}")
        p(f"v_add_f32 v{72+r}, v{72+r}, v{76+r}")
        p(f"v_add_f32 v{64+r}, v{64+r}, v{72+r}")
        p(f"v_fma_f32 v{64+r}, v{64+r}, v13, v{80+r}")
    p("v_cvt_pk_bf16_f32 v64, v64, v65")
    p("v_cvt_pk_bf16_f32 v65, v66, v67")
    p("buffer_store_dwordx2 v[64:65], v7, s[44:47], s62 offen")
    p("s_add_u32 s48, s100, s20")
    p("s_cmp_lg_u32 s48, 0")
    p(f"s_cbranch_scc1 {name}_spe ;@nodrain")
    p("v_mov_b32 v8, s94")
    p(f"v_mov_b32 v9, {N_OFF}")
    p("s_mov_b64 exec, 1")
    p("buffer_store_dword v8, v9, s[16:19], 0 offen")
    p(f"{name}_spe:")
    if stamp.on:
        p("s_cmp_lg_u32 s20, 0")
        p(f"s_cbranch_scc1 {name}_done ;@nodrain")
        p("s_waitcnt vmcnt(0)")
        stamp("end")
        stamp.dump("special")

BAL = [1]
def fold_loop(body, name):
    idx = {}
    for i, l in enumerate(body):
        m = re.match(r"\s*\.set (ZB\d|ZEND), 0", l)
        if m: idx[m.group(1)] = i
    if "ZB4" not in idx: return [l for l in body if not l.strip().startswith(".set Z")]
    def seg(a, b):
        out = []
        for l in body[idx[a]:idx[b]]:
            if l.strip().startswith(".set Z"): continue
            out.append(l)
        return out
    def norm(ls): return [re.sub(r"_lz\d+", "_lzN", l) for l in ls]
    s1, s2, s3 = seg("ZB4", "ZB6"), seg("ZB6", "ZB8"), seg("ZB8", "ZEND")
    for a, b, nm in ((s1, s2, "Z6Z7"), (s1, s3, "Z8Z9")):
        na, nb = norm(a), norm(b)
        if na != nb:
            for i, (x, y) in enumerate(zip(na, nb)):
                if x != y:
                    print("loop segments differ at", nm, i, na[max(0, i-3):i+3], nb[max(0, i-3):i+3]); break
            raise Exception("segments not periodic: %d %d" % (len(na), len(nb)))
    pre = [l for l in body[:idx["ZB4"]] if not l.strip().startswith(".set Z")]
    post = [l for l in body[idx["ZEND"]:] if not l.strip().startswith(".set Z")]
    h1 = seg("ZB4", "ZB5"); h2 = seg("ZB5", "ZB6")
    mid = []
    if BAL[0]:
        mid = ["  s_sub_u32 s48, s101, 2", "  s_or_b32 s48, s48, s97", "  s_cmp_eq_u32 s48, 0", f"  s_cbranch_scc1 {name}_zexit"]
    loop = [f"{name}_zloop:"] + h1 + mid + h2 + ["  s_add_u32 s101, s101, 1", "  s_cmp_lt_u32 s101, 3", f"  s_cbranch_scc1 {name}_zloop", f"{name}_zexit:"]
    print("folded loop: body", len(s1), "instructions")
    return pre + loop + post

def kernel_text(name, p):
    body = fold_loop(p.finalize(True), name)
    return [f".globl {name}", ".p2align 8", f".type {name},@function", f"{name}:"] + body

def kd_text(name, info):
    return [".p2align 6", f".amdhsa_kernel {name}", f"  .amdhsa_next_free_vgpr {info['vgpr']}", "  .amdhsa_next_free_sgpr 102",
            f"  .amdhsa_accum_offset {info['accum']}", "  .amdhsa_group_segment_fixed_size 0", "  .amdhsa_kernarg_size 80",
            "  .amdhsa_user_sgpr_count 2", "  .amdhsa_user_sgpr_kernarg_segment_ptr 1", "  .amdhsa_system_sgpr_workgroup_id_x 1",
            "  .amdhsa_float_denorm_mode_32 3", ".end_amdhsa_kernel"]

HEADER = open("standalone__detection_seg_dino__vision.s.ref").read().split("; Override launch")[0]

def build(path, opt):
    DIAG[0] = bool(opt.get("diag"))
    BAL[0] = opt.get("bal", 0) and opt.get("loop", 1)
    global SPIN_MAX
    SPIN_MAX = opt.get("spin", SPIN_MAX)
    name = "standalone__detection_seg_dino__vision_kernel"
    p, info = gen_kernel(name, opt)
    text = kernel_text(name, p)
    out = (HEADER.rstrip() + "\n" + f"; @launch grid=({info['grid']},1,1) block=({info['block']},1,1) lds={info['lds']}\n"
           + '.amdgcn_target "amdgcn-amd-amdhsa--gfx950"\n.text\n' + "\n".join(text) + '\n.section .rodata,"a"\n' + "\n".join(kd_text(name, info)) + "\n")
    open(path, "w").write(out)

if __name__ == "__main__":
    opt = {}
    path = sys.argv[1] if len(sys.argv) > 1 else "k2.s"
    for a in sys.argv[2:]:
        k, v = a.split("=", 1)
        opt[k] = int(v) if v.lstrip('-').isdigit() else v
    build(path, opt)
    if LABELS:
        import json
        json.dump(LABELS, open(path[:-2] + ".labels.json", "w"))
```

```python
import re

REG_RE = re.compile(r'^(-|abs\()?([vas])(\d+|\[(\d+):(\d+)\])\)?$')

def parse_reg(op):
    op = op.strip()
    if op.startswith('-'): op = op[1:]
    if op.startswith('abs(') and op.endswith(')'): op = op[4:-1]
    if op.startswith('|') and op.endswith('|'): op = op[1:-1]
    if op in ('vcc', 'vcc_lo', 'vcc_hi'): return [('x', 'vcc')]
    if op in ('exec', 'exec_lo', 'exec_hi'): return [('x', 'exec')]
    if op == 'm0': return [('x', 'm0')]
    m = re.match(r'^([vas])(\d+)$', op)
    if m: return [(m.group(1), int(m.group(2)))]
    m = re.match(r'^([vas])\[(\d+):(\d+)\]$', op)
    if m: return [(m.group(1), i) for i in range(int(m.group(2)), int(m.group(3)) + 1)]
    return []

TRANS = ('v_exp_f32', 'v_log_f32', 'v_rcp_f32', 'v_rsq_f32', 'v_sqrt_f32', 'v_sin_f32', 'v_cos_f32', 'v_rcp_iflag_f32')

class Ins:
    def __init__(self, text):
        self.text = text
        t = text.split(';')[0].strip()
        self.label = t.endswith(':')
        self.kind = 'other'
        self.reads = set(); self.writes = set()
        self.nop = 0
        if self.label or not t or t.startswith('.'):
            self.kind = 'label' if self.label else 'dir'
            return
        parts = t.split(None, 1)
        mn = parts[0]; self.mn = mn
        rest = parts[1] if len(parts) > 1 else ''
        ops = []; depth = 0; cur = ''
        for ch in rest:
            if ch == '[': depth += 1
            if ch == ']': depth -= 1
            if ch == ',' and depth == 0:
                ops.append(cur.strip()); cur = ''
            else: cur += ch
        if cur.strip(): ops.append(cur.strip())
        mods = ''
        if ops:
            sp = ops[-1].split(None, 1)
            ops[-1] = sp[0]
            if len(sp) > 1: mods = sp[1]
        self.ops = ops; self.mods = mods
        R = lambda i: set(parse_reg(ops[i])) if i < len(ops) else set()
        self.dpp = ('quad_perm' in mods or 'row_' in mods or mn.endswith('_dpp'))
        if mn == 'need':
            self.kind = 'need'
            for i in range(len(ops)): self.reads |= R(i)
        elif mn.startswith('v_mfma'):
            self.kind = 'mfma'
            self.writes = R(0); self.srcA = R(1); self.srcB = R(2); self.srcC = R(3)
            self.reads = self.srcA | self.srcB | self.srcC
            self.passes = 8 if '32x32' in mn else 4
            if '_f32_16x16x4_f32' in mn or '32x32x2_f32' in mn: raise Exception('sgemm not modelled')
        elif mn.startswith('v_'):
            self.kind = 'valu'
            self.trans = any(mn.startswith(x) for x in TRANS)
            base = mn.replace('_e32', '').replace('_e64', '').replace('_dpp', '')
            if base.startswith('v_cmp'):
                self.writes = R(0); self.reads = R(1) | R(2)
                if base.startswith('v_cmpx'): raise Exception('avoid v_cmpx')
            elif base.startswith('v_permlane') and 'swap' in base:
                self.writes = R(0) | R(1); self.reads = R(0) | R(1); self.permlane = True
            elif base in ('v_add_co_u32', 'v_sub_co_u32'):
                self.writes = R(0) | R(1); self.reads = R(2) | R(3)
            elif base in ('v_addc_co_u32',):
                self.writes = R(0) | R(1); self.reads = R(2) | R(3) | R(4)
            elif base in ('v_readfirstlane_b32', 'v_readlane_b32'):
                self.writes = R(0); self.reads = R(1) | R(2); self.readlane = True
            elif base in ('v_nop',):
                pass
            else:
                self.writes = R(0)
                for i in range(1, len(ops)): self.reads |= R(i)
                if base in ('v_fmac_f32', 'v_dot2c_f32_bf16', 'v_pk_fmac_f16', 'v_writelane_b32') or self.dpp:
                    self.reads |= R(0)
                if base == 'v_cndmask_b32' and len(ops) == 3: self.reads |= {('x', 'vcc')}
        elif mn.startswith('ds_'):
            self.kind = 'ds'
            if mn.startswith('ds_read') or mn.startswith('ds_bpermute') or mn.startswith('ds_permute') or mn.startswith('ds_swizzle') or '_rtn_' in mn:
                self.writes = R(0)
                for i in range(1, len(ops)): self.reads |= R(i)
                self.isload = True
            else:
                for i in range(len(ops)): self.reads |= R(i)
                self.isload = False
        elif mn.startswith('buffer_') or mn.startswith('global_'):
            self.kind = 'vmem'
            self.wide = ('x4' in mn or 'x3' in mn)
            if mn.startswith('buffer_inv') or mn.startswith('buffer_wbl2'):
                self.kind = 'vmemctl'
            elif mn.startswith('buffer_load'):
                if ' lds' in (' ' + mods):
                    for i in range(len(ops)): self.reads |= R(i)
                    self.reads |= {('x', 'm0')}
                    self.ldsdma = True
                else:
                    self.writes = R(0)
                    for i in range(1, len(ops)): self.reads |= R(i)
                self.isload = True
            elif mn.startswith('global_load_lds'):
                for i in range(len(ops)): self.reads |= R(i)
                self.reads |= {('x', 'm0')}
                self.ldsdma = True; self.isload = True
            elif mn.startswith('global_load'):
                self.writes = R(0)
                for i in range(1, len(ops)): self.reads |= R(i)
                self.isload = True
            elif mn.startswith('buffer_store'):
                for i in range(len(ops)): self.reads |= R(i)
                self.sdata = R(0); self.isload = False
            elif mn.startswith('global_store'):
                for i in range(len(ops)): self.reads |= R(i)
                self.sdata = R(1); self.isload = False
            elif 'atomic' in mn:
                ret = 'sc0' in mods.split()
                if ret:
                    self.writes = R(0)
                    for i in range(1, len(ops)): self.reads |= R(i)
                    if mn.startswith('buffer_'): self.reads |= R(0)
                else:
                    for i in range(len(ops)): self.reads |= R(i)
                self.isload = ret; self.sdata = set()
            else: raise Exception('vmem? ' + text)
        elif mn.startswith('s_'):
            self.kind = 'salu'
            if mn == 's_nop': self.nop = int(ops[0], 0) + 1
            elif mn == 's_waitcnt': self.kind = 'wait'
            elif mn == 's_barrier': self.kind = 'barrier'
            elif mn in ('s_endpgm', 's_sleep', 's_setprio', 's_branch') or mn.startswith('s_cbranch'):
                self.kind = 'ctl'
                if 'vcc' in mn: self.reads = {('x', 'vcc')}
                if 'exec' in mn: self.reads = {('x', 'exec')}
            elif mn.startswith('s_load') or mn.startswith('s_memtime') or mn.startswith('s_memrealtime'):
                self.kind = 'smem'
                self.writes = R(0)
                for i in range(1, len(ops)): self.reads |= R(i)
            elif mn.startswith('s_bitset'):
                self.writes = R(0); self.reads = R(0)
            elif mn.startswith('s_cmp') or mn.startswith('s_bitcmp'):
                for i in range(len(ops)): self.reads |= R(i)
            else:
                self.writes = R(0)
                for i in range(1, len(ops)): self.reads |= R(i)
                if 'saveexec' in mn: self.writes |= {('x', 'exec')}; self.reads |= {('x', 'exec')}
                if mn in ('s_addk_i32', 's_mulk_i32'): self.reads |= R(0)
        else:
            raise Exception('unknown instr: ' + text)

GUARD_LGKM = [False]
def vregs(s): return {r for r in s if r[0] in 'va'}
def sregs(s): return {r for r in s if r[0] == 's' or r == ('x', 'vcc')}

class Prog:
    def __init__(self):
        self.items = []
    def __call__(self, text):
        for line in text.split('\n'):
            if line.strip(): self.items.append(line.rstrip())
    def raw(self, text):
        self.items.append(text)

    def finalize(self, verbose=False):
        out = []
        vq = []
        lq = []
        sq = set()
        hist = []
        nnop = 0
        def emit(ins):
            out.append(('  ' + ins.text.split(';')[0].strip()) if ins.kind not in ('label',) else ins.text.split(';')[0].strip())
            if ins.kind in ('label', 'dir'): return
            hist.append(ins)
            if len(hist) > 40: del hist[0]
        def dist_needed(ins):
            need = 0
            d = 0
            for p in reversed(hist):
                req = 0
                if p.kind == 'valu':
                    w = p.writes
                    wv = vregs(w); ws = sregs(w)
                    if ins.kind == 'mfma' and wv & ins.reads: req = max(req, 2)
                    if p.mn.startswith('v_dot') and ins.kind in ('valu', 'mfma', 'ds', 'vmem') and (wv & (ins.reads | ins.writes)):
                        same_c = ins.kind == 'valu' and ins.mn == p.mn and not (wv & (set(parse_reg(ins.ops[1])) | set(parse_reg(ins.ops[2]))))
                        if not same_c: req = max(req, 3)
                    if ins.kind == 'valu':
                        if getattr(p, 'trans', False) and not getattr(ins, 'trans', False) and (wv & (ins.reads)): req = max(req, 1)
                        if getattr(p, 'trans', False) and getattr(ins, 'trans', False) and (wv & ins.reads): req = max(req, 1)
                        if ins.dpp and (wv & ins.reads): req = max(req, 2)
                        if getattr(ins, 'permlane', False) and (wv & ins.reads): req = max(req, 2)
                        if getattr(ins, 'readlane', False) and (wv & ins.reads): req = max(req, 1)
                        if ws & ins.reads: req = max(req, 4 if getattr(ins, 'readlane', False) else 2)
                    if ins.kind == 'vmem' and (ws & ins.reads): req = max(req, 5)
                    if ins.kind in ('salu', 'smem') and (ws & ins.reads): req = max(req, 4)
                    if ('x', 'exec') in w: raise Exception('valu exec write')
                if p.kind == 'mfma':
                    P = p.passes
                    big = 8 if P == 4 else 12
                    D = p.writes
                    if ins.kind == 'mfma':
                        if D & (ins.srcA | ins.srcB): req = max(req, big)
                        if D & ins.srcC:
                            if not (ins.srcC == D and ins.passes == P): req = max(req, 6 if P == 4 else 10)
                        if (D & ins.writes) and not (ins.srcC == D and ins.writes == D) and not (D & ins.srcC):
                            req = max(req, big)
                    elif ins.kind in ('valu', 'ds', 'vmem'):
                        if D & (ins.reads | ins.writes): req = max(req, big)
                        if ins.kind == 'valu' and (p.srcC & ins.writes): req = max(req, 3 if P == 4 else 7)
                if p.kind == 'vmem' and not getattr(p, 'isload', True) and getattr(p, 'wide', False):
                    if p.sdata & ins.writes: req = max(req, 2)
                if p.kind == 'salu' and ('x', 'm0') in p.writes:
                    if getattr(ins, 'ldsdma', False): req = max(req, 1)
                if p.kind == 'salu' and ('x', 'exec') in p.writes and ins.kind == 'valu' and ins.dpp:
                    req = max(req, 1)
                need = max(need, req - d)
                d += p.nop if p.nop else 1
                if d >= 20: break
            return need
        saved = {}
        for text in self.items:
            ins = Ins(text)
            mr = re.search(r'@restore (\w+)', text)
            if mr:
                vq, lq, sq, h = saved[mr.group(1)]
                vq = list(vq); lq = list(lq); sq = set(sq); hist[:] = list(h)
            if ins.kind in ('label', 'dir'):
                emit(ins); continue
            touch = ins.reads | ins.writes
            needv = None; needl = None
            if ins.kind != 'wait':
                for idx, (w, isd) in enumerate(vq):
                    if w & touch: needv = len(vq) - 1 - idx
                for idx, w in enumerate(lq):
                    if w & touch: needl = len(lq) - 1 - idx
                if sq & touch: needl = 0
                if ins.kind == 'barrier':
                    if lq: needl = 0
                if ins.kind == 'ctl' and ins.mn != 's_setprio' and ins.mn != 's_sleep' and ins.mn != 's_endpgm' and '@nodrain' not in text:
                    if any(w for (w, isd) in vq): needv = 0
                    if lq or sq: needl = 0
            if needv is not None or needl is not None:
                parts = []
                if needv is not None:
                    needv = min(needv, 63); parts.append('vmcnt(%d)' % needv); vq = vq[len(vq) - needv:] if needv else []
                if needl is not None and needl >= 15 and not sq:
                    lq = lq[len(lq) - needl:]
                    needl = None
                if needl is not None:
                    if sq: needl = 0
                    parts.append('lgkmcnt(%d)' % needl); lq = lq[len(lq) - needl:] if needl else []
                    if needl == 0: sq = set()
                if parts: emit(Ins('s_waitcnt ' + ' '.join(parts)))
            if ins.kind == 'wait':
                m = re.search(r'vmcnt\((\d+)\)', text)
                if m:
                    n = int(m.group(1)); vq = vq[len(vq) - n:] if n and n < len(vq) else ([] if n == 0 else vq)
                m = re.search(r'lgkmcnt\((\d+)\)', text)
                if m:
                    n = int(m.group(1)); lq = lq[len(lq) - n:] if n and n < len(lq) else ([] if n == 0 else lq)
                    if n == 0: sq = set()
            if ins.kind == 'vmem' and len(vq) >= 63:
                emit(Ins('s_waitcnt vmcnt(62)')); vq = vq[len(vq) - 62:]
            if ins.kind == 'ds' and len(lq) >= 15 and GUARD_LGKM[0]:
                emit(Ins('s_waitcnt lgkmcnt(14)')) if not sq else None
                if not sq: lq = lq[len(lq) - 14:]
            if ins.kind == 'need': continue
            n = dist_needed(ins)
            if n > 0:
                nnop += 1
                while n > 0:
                    k = min(n, 16); emit(Ins('s_nop %d' % (k - 1))); n -= k
            emit(ins)
            ms = re.search(r'@save (\w+)', text)
            if ms: saved[ms.group(1)] = (list(vq), list(lq), set(sq), list(hist))
            if ins.kind == 'vmem':
                vq.append((set(ins.writes), getattr(ins, 'ldsdma', False)))
            if ins.kind == 'ds':
                lq.append(set(ins.writes))
                if len(lq) > 15:
                    pass
            if ins.kind == 'smem': sq |= ins.writes
        if verbose: print('nops inserted:', nnop, 'instrs:', len(out))
        return out
```

```python
import sys, math, struct, re
from dsl import Prog

C = 384
F0_BYTES = 113246208
F1_BYTES = 28311552
W_BYTES = 294912
Q_BYTES = 12288
N_OFF = 0
QF_OFF = 4096
QKF_OFF = QF_OFF + 24576
UF_OFF = QKF_OFF + 24576
ML_OFF = UF_OFF + 24576
M2_OFF = ML_OFF + 65536
PART_OFF = 262144
WS_USED = PART_OFF + 256 * 12288
NRED = 192
NSPEC = 12
PROF_OFF = 163840
SPIN_MAX = 1048576

def f2u(x): return struct.unpack('<I', struct.pack('<f', x))[0]
LOG2E = 1.4426950408889634
SCALE = C ** -0.5

def srd(p, base_s, ptr_lo, nbytes):
    p(f"s_mov_b32 s{base_s}, s{ptr_lo}")
    p(f"s_and_b32 s{base_s+1}, s{ptr_lo+1}, 0xffff")
    p(f"s_mov_b32 s{base_s+2}, {nbytes}")
    p(f"s_mov_b32 s{base_s+3}, 0x20000")

def mov64(p, s, val):
    p(f"s_mov_b32 s{s}, 0x{val & 0xffffffff:08x}")
    p(f"s_mov_b32 s{s+1}, 0x{(val >> 32) & 0xffffffff:08x}")

def xg_reduce(p, op, a, tmp):
    p(f"v_mov_b32 v{tmp}, v{a}")
    p(f"v_permlane32_swap_b32 v{a}, v{tmp}")
    p(f"{op} v{a}, v{a}, v{tmp}")
    p(f"v_mov_b32 v{tmp}, v{a}")
    p(f"v_permlane16_swap_b32 v{a}, v{tmp}")
    p(f"{op} v{a}, v{a}, v{tmp}")

S_MASK = 93
S_TAG = 95
S_SPIN = 92

def tag_regs(p, regs, vtag):
    for r in regs: p(f"v_bfi_b32 v{r}, s{S_MASK}, v{vtag}, v{r}")

def check_tags(p, regs, vtag, vacc):
    regs = list(regs)
    for r in regs: p(f"v_xor_b32 v{r}, v{r}, v{vtag}")
    p(f"v_or_b32 v{vacc}, v{regs[0]}, v{regs[1]}")
    rest = regs[2:]
    while len(rest) >= 2:
        p(f"v_or3_b32 v{vacc}, v{vacc}, v{rest[0]}, v{rest[1]}"); rest = rest[2:]
    if rest: p(f"v_or_b32 v{vacc}, v{vacc}, v{rest[0]}")
    p(f"v_and_b32 v{vacc}, s{S_MASK}, v{vacc}")
    p(f"v_cmp_ne_u32 vcc, 0, v{vacc}")

from dsl import Ins
def est_cycles(text):
    t = text.split(';')[0].strip()
    if not t or t.endswith(':') or t.startswith('need') or t.startswith('.set'): return 0
    mn = t.split()[0]
    if mn.startswith('v_mfma'): return 16
    if mn.startswith('v_exp') or mn.startswith('v_rsq') or mn.startswith('v_rcp'): return 8
    if mn.startswith('v_'): return 4
    if mn.startswith('ds_write_b128'): return 16
    if mn.startswith('ds_write'): return 8
    if mn.startswith('ds_read'): return 8
    if mn == 's_barrier': return 80
    if mn.startswith('buffer_'): return 8
    return 4

def schedule_loads(items, loads, pace, lat, dmax, t0=0, verbose=False, policy='model', nreal=150):
    out = []; now = t0
    land = []
    issue_t = []
    free = set(); k = 0
    extras = []
    def landed():
        return sum(1 for x in land if x <= now)
    locked = [False]; credit = [0]; dm = [dmax]; consumed = [0]; gap = [0]; pos = [0]; lastpos = [-10**9]
    def try_issue():
        nonlocal k, now
        if locked[0]: return
        while k < len(loads):
            L = loads[k]
            if L['key'] is not None and L['key'] not in free: break
            if policy == 'model':
                if len(land) - landed() >= dm[0]: break
            else:
                if k - consumed[0] >= dm[0]: break
                if pos[0] - lastpos[0] < gap[0]: break
            for x in L['pre']: out.append(x); now += 4
            out.append(L['ins']); now += 8
            lastpos[0] = pos[0]
            if L['key'] is not None: free.discard(L['key'])
            prev = land[-1] if land else 0
            land.append(max(now + lat, prev + pace)); issue_t.append(now)
            k += 1
    for it in items:
        if isinstance(it, tuple):
            if it[0] == 'use':
                j = it[1]
                while k <= j:
                    L = loads[k]
                    assert L['key'] is None or L['key'] in free, ('slot not free', k, L)
                    for x in L['pre']: out.append(x); now += 4
                    out.append(L['ins']); now += 8
                    if L['key'] is not None: free.discard(L['key'])
                    prev = land[-1] if land else 0
                    land.append(max(now + lat, prev + pace)); issue_t.append(now); k += 1
                now = max(now, land[j])
                consumed[0] = max(consumed[0], j + 1)
                try_issue()
            elif it[0] == 'free': free.add(it[1]); try_issue()
            elif it[0] == 't': now += it[1]; try_issue()
            elif it[0] == 'dmax': dm[0] = it[1]; try_issue()
            elif it[0] == 'gap': gap[0] = it[1]
            elif it[0] == 'zstart': lastpos[0] = -10**9
            elif it[0] == 'zend':
                g = gap[0]; gap[0] = 0; try_issue(); gap[0] = g
            elif it[0] == 'until': now = max(now, it[1]); try_issue()
            elif it[0] == 'force':
                while k < it[1]:
                    L = loads[k]
                    assert L['key'] is None or L['key'] in free, ('slot not free', k, L)
                    for x in L['pre']: out.append(x); now += 4
                    out.append(L['ins']); now += 8
                    if L['key'] is not None: free.discard(L['key'])
                    prev = land[-1] if land else 0
                    land.append(max(now + lat, prev + pace)); issue_t.append(now); k += 1
                    if len(land) > 12: now = max(now, land[-13])
            elif it[0] == 'log':
                if verbose: print(f"   model {it[1]:8s} t={now/2100:.2f}us issued={k}")
            elif it[0] == 'lock': locked[0] = True
            elif it[0] == 'unlock': locked[0] = False
            continue
        out.append(it)
        c = est_cycles(it)
        if it.lstrip().startswith('v_mfma'): credit[0] = 2
        elif credit[0] > 0 and c <= 8: c = 0; credit[0] -= 1
        else: credit[0] = 0
        now += c; pos[0] += c
        if '@noload' not in it: try_issue()
    assert k >= nreal, (k, nreal)
    return out

def timeout_diag(p, site, extra="0", vacc=None):
    p("s_load_dwordx2 s[86:87], s[0:1], 64")
    p("s_lshl_b32 s85, s2, 8")
    p("s_or_b32 s85, s85, s20")
    p("s_or_b32 s85, s85, 0x1000000")
    p("s_waitcnt lgkmcnt(0)")
    p("v_mov_b32 v254, s85") if False else None
DIAG = [False]
def diag_store(p, site, val):
    p("s_load_dwordx2 s[86:87], s[0:1], 64")
    p("s_lshl_b32 s85, s2, 8")
    p("s_or_b32 s85, s85, s20")
    p("s_or_b32 s85, s85, 0x1000000")
    p("s_waitcnt lgkmcnt(0)")
    p("s_mov_b64 s[88:89], exec") if False else None
    p("v_mov_b32 v250, s85")
    p(f"v_mov_b32 v251, {val}")
    p(f"v_mov_b32 v249, {8*site}")
    p("s_ff1_i32_b64 s84, vcc")
    p("s_nop 4")
    p("v_readlane_b32 s83, v251, s84")
    p("s_nop 4")
    p("v_mov_b32 v251, s84")
    p("v_lshlrev_b32 v251, 16, v251")
    p("v_or_b32 v251, s83, v251")
    p("global_store_dwordx2 v249, v[250:251], s[86:87]")
    p("s_waitcnt vmcnt(0)")
def tagpat(p, base):
    for j in range(4):
        p(f"s_lshr_b32 s{base+j}, s{S_TAG}, {2*j}")
        p(f"s_and_b32 s48, s{base+j}, 2")
        p(f"s_lshl_b32 s48, s48, 15")
        p(f"s_and_b32 s{base+j}, s{base+j}, 1")
        p(f"s_or_b32 s{base+j}, s{base+j}, s48")

uid = [0]
def poll_block(p, name, loads, regs, vtag, vacc, preissued=False, lock=False, sleep=1):
    if lock: p.items.append(('lock',))
    uid[0] += 1
    L = f"{name}_pl{uid[0]}"
    if not preissued:
        for x in loads: p(x)
    check_tags(p, regs, vtag, vacc)
    p(f"s_cbranch_vccz {L}_ok")
    p(f"s_mov_b32 s{S_SPIN}, 0")
    p(f"{L}_retry:")
    if sleep: p(f"s_sleep {sleep}")
    for x in loads: p(x)
    p("s_waitcnt vmcnt(0)")
    check_tags(p, regs, vtag, vacc)
    p(f"s_cbranch_vccz {L}_fin")
    p(f"s_add_u32 s{S_SPIN}, s{S_SPIN}, 1")
    p(f"s_cmp_lt_u32 s{S_SPIN}, {SPIN_MAX}")
    p(f"s_cbranch_scc1 {L}_retry")
    if DIAG[0]: diag_store(p, uid[0], f"v{vacc}")
    p(f"{L}_fin:")
    p("s_nop 7")
    p("s_nop 7")
    p(f"{L}_ok: ;@restore {L}")
    if lock: p.items.append(('unlock',))

class Prof:
    def __init__(self, p, opt, base, lim=88):
        self.opt = opt; self.lim = lim; self.p = p; self.on = opt.get("prof", 0); self.lbl = []; self.base = base; self.skip = opt.get("skip", "").split(",")
    def __call__(self, lbl, fine=False):
        if self.on == 7:
            if not self.lbl and self.base == 52: self.lbl = ["z%d" % i for i in range(11)]
            return
        if self.on == 6 and lbl not in ("init", "S", "X012", "pub"): return
        if self.on == 5:
            if lbl in ("init", "S", "F9"):
                for ins in ("s_memtime", "s_memrealtime"):
                    i = len(self.lbl); self.lbl.append(lbl + ins[2:])
                    self.p(f"{ins} s[{self.base+2*i}:{self.base+2*i+1}]")
            return
        if self.on == 4:
            if not fine: return
        elif fine: return
        if self.on and lbl not in self.skip and self.base + 2 * len(self.lbl) < self.lim:
            i = len(self.lbl); self.lbl.append(lbl)
            self.p(f"{'s_memtime' if self.on == 4 else 's_memrealtime'} s[{self.base+2*i}:{self.base+2*i+1}]")
    def dump(self, tagname, srdbase=16):
        if not self.on: return
        p = self.p
        wg = self.opt.get("dbg_" + tagname)
        if wg is not None:
            uid[0] += 1
            p("s_waitcnt vmcnt(0) lgkmcnt(0)")
            p(f"s_cmp_lg_u32 s2, {wg}")
            p(f"s_cbranch_scc1 dbgskip{uid[0]} ;@nodrain")
            p("s_load_dwordx2 s[4:5], s[0:1], 64")
            p("s_waitcnt lgkmcnt(0)")
            p("s_mov_b64 exec, 1")
            p("v_mov_b32 v1, 0")
            off = self.opt.get("dbgoff_" + tagname, 0)
            for i in range(len(self.lbl)):
                if self.on == 5: p(f"v_mov_b32 v2, s{self.base+2*i}")
                else:
                    p(f"s_sub_u32 s3, s{self.base+2*i}, s98")
                    p("v_mov_b32 v2, s3")
                p(f"global_store_dword v1, v2, s[4:5] offset:{4*(off+i)}")
            p(f"dbgskip{uid[0]}:")
        p("s_waitcnt vmcnt(0) lgkmcnt(0)")
        p("s_mov_b64 exec, 1")
        p("s_lshl_b32 s3, s2, 7")
        p(f"s_add_u32 s3, s3, {PROF_OFF}")
        p("v_mov_b32 v1, 0")
        p("v_mov_b32 v2, s98")
        p(f"buffer_store_dword v2, v1, s[{srdbase}:{srdbase+3}], s3 offen")
        for i in range(len(self.lbl)):
            p(f"v_mov_b32 v2, s{self.base+2*i}")
            p(f"buffer_store_dword v2, v1, s[{srdbase}:{srdbase+3}], s3 offen offset:{4*(i+1)}")
        if tagname == "streamer" and self.on == 6:
            p("s_mov_b64 exec, 0x7f")
            p("v_lshlrev_b32 v1, 2, v0")
            p(f"buffer_store_dword v239, v1, s[{srdbase}:{srdbase+3}], s3 offen offset:64")
            p("s_mov_b64 exec, 1")
            p("v_mov_b32 v1, 0")
        if tagname == "streamer":
            p("v_mov_b32 v2, s86")
            p(f"buffer_store_dword v2, v1, s[{srdbase}:{srdbase+3}], s3 offen offset:124")
        print(tagname, "stamps:", self.lbl)
        LABELS[tagname] = list(self.lbl)
LABELS = {}

def gen_kernel(name, opt):
    p = Prog()
    prof = opt.get("prof", 0)
    p("s_cmp_ge_u32 s2, 256")
    p(f"s_cbranch_scc1 {name}_done ;@nodrain")
    if prof: p("s_memrealtime s[98:99]")
    p("s_load_dwordx2 s[22:23], s[0:1], 72")
    p("s_load_dwordx4 s[4:7], s[0:1], 8")
    p("v_readfirstlane_b32 s20, v0")
    p("v_and_b32 v0, 63, v0")
    p("s_lshr_b32 s20, s20, 6")
    p(f"s_mov_b32 s{S_MASK}, 0xff")
    p("s_lshr_b32 s100, s2, 3")
    p("s_lshl_b32 s100, s100, 2")
    p("s_and_b32 s21, s2, 7")
    p("s_add_u32 s100, s100, s21")
    p("s_sub_u32 s101, s100, 4")
    p(f"s_sub_u32 s3, s2, {NSPEC}")
    p("s_cmp_lt_u32 s2, 24")
    p("s_cselect_b32 s101, s101, s3")
    p("s_cselect_b32 s3, s21, 7")
    p("s_mov_b32 s21, s101")
    p("s_cmp_lt_u32 s3, 4")
    p(f"s_cbranch_scc1 {name}_special")
    gen_streamer(p, name, opt)
    p(f"{name}_special: ;@restore entry")
    gen_special(p, name, opt)
    p(f"{name}_done:")
    p("s_endpgm")
    return p, dict(vgpr=252 + 196, accum=252, lds=160256, grid=256, block=256)

def gen_streamer(p, name, opt):
    NT = " nt" if opt.get("nt", True) else ""
    prof = opt.get("prof", 0)
    NS = 10
    SP = opt.get("sp", 9 if opt.get("bal", 0) == 1 else 8)
    ST = lambda k: 76 + 60 * k
    F1R = lambda k, t: ST(k) + 4 * t
    F0R = lambda k, t, d: ST(k) + 12 + 16 * t + 4 * d
    VF0, VF1, VL16 = 1, 2, 3
    WA = [[4, 5, 6, 7], [216, 217, 218, 219]]
    RA = [[11, 12, 13, 14], [220, 221, 222, 223]]
    VTAG = 8
    QBA = 9
    TR = [15, 16, 17, 18, 19, 20]
    MXW, MXR, WXW, WXR = 21, 22, 23, 24
    M, L, Z, SN = 25, 26, 27, 28
    ACC = 32
    D1, D2, D3 = 56, 60, 64
    Uu, SS, RS, TM, TM2, AL, WF = 68, 69, 70, 71, 72, 73, 74
    U = 196; TT = 204
    QK = 212 + 12
    QKR = 212
    aQB, aXA, aXT, aONE = 0, 48, 96, 192
    XBUF = 49152; XT = 12288
    MX_OFF = 147456; LZ_OFF = MX_OFF + 256; QBL_OFF = LZ_OFF + 256; WX_OFF = QBL_OFF
    D1B = [56, 212, 216]; D3B = [64, 240, 244]; RSB = [70, 248, 249]; WFB = [74, 220, 222]
    XAB = [48, 96, 144]
    XTB = [96, 144]
    WA[1] = [228, 229, 230, 231]; RA[1] = [232, 233, 234, 235]
    QKR = 204 - 0
    QKR = 212
    WA[1] = [236, 237, 238, 239]; RA[1] = [29, 30, 31, 10]
    QKR = 212

    NSTR = 256 - NSPEC
    base_cnt = 9216 // NSTR; nbig = 9216 - base_cnt * NSTR
    assert base_cnt == 37
    glob = opt.get("glob", 1)
    if not glob:
        p(f"s_mul_i32 s96, s21, {base_cnt}")
        p(f"s_min_u32 s97, s21, {nbig}")
        p("s_add_u32 s96, s96, s97")
        p(f"s_cmp_lt_u32 s21, {nbig}")
        p("s_cselect_b32 s97, 2, 1")
        p("s_add_u32 s90, s96, s20")
        p("s_add_u32 s91, s90, s97")
        p("s_sub_u32 s91, s91, 4")
    else:
        if opt.get("bal", 0) == 2:
            NE3 = opt.get("ne3", 72); KL = 1
            p("s_sub_u32 s91, s2, 24")
            p("s_lshr_b32 s91, s91, 3")
            p("s_lshl_b32 s91, s91, 2")
            p("s_and_b32 s97, s2, 3")
            p("s_add_u32 s91, s91, s97")
            p(f"s_min_u32 s96, s91, {NE3}")
            p(f"s_cmp_lt_u32 s91, {NE3}")
            p("s_cselect_b32 s28, 3, 2")
            p("s_lshl_b32 s91, s91, 1")
            p("s_add_u32 s91, s91, s96")
            p("s_lshr_b32 s96, s2, 3")
            p("s_lshl_b32 s96, s96, 2")
            p("s_add_u32 s96, s96, s97")
            p(f"s_add_u32 s96, s96, {432 - 128}")
            p("s_and_b32 s29, s2, 4")
            p("s_cmp_eq_u32 s29, 0")
            p("s_cselect_b32 s91, s91, s96")
            p("s_cselect_b32 s97, s28, 1")
            p("s_add_u32 s91, s91, s20")
        elif opt.get("bal", 0):
            p("s_sub_u32 s91, s2, 24")
            p("s_lshr_b32 s91, s91, 3")
            p("s_lshl_b32 s91, s91, 2")
            p("s_and_b32 s97, s2, 3")
            p("s_add_u32 s91, s91, s97")
            p("s_min_u32 s96, s91, 84")
            p("s_cmp_lt_u32 s91, 84")
            p("s_cselect_b32 s97, 4, 3")
            p("s_mul_i32 s91, s91, 3")
            p("s_add_u32 s91, s91, s96")
            p("s_add_u32 s91, s91, s20")
            p("s_and_b32 s96, s2, 4")
            p("s_cmp_eq_u32 s96, 0")
            p("s_cselect_b32 s97, s97, 0")
        else:
            p(f"s_min_u32 s97, s21, {nbig}")
            p("s_add_u32 s91, s21, s97")
            p("s_add_u32 s91, s91, s20")
            p(f"s_cmp_lt_u32 s21, {nbig}")
            p("s_cselect_b32 s97, 2, 1")
        p("s_lshl_b32 s90, s21, 2")
        p("s_add_u32 s90, s90, s20")
    FP, J = 56, 57
    p(f"v_lshrrev_b32 v{FP}, 4, v0")
    p(f"v_and_b32 v{J}, 15, v0")
    p(f"v_mul_u32_u24 v{VF0}, 1536, v{FP}")
    p(f"v_lshl_add_u32 v{VF0}, v{J}, 4, v{VF0}")
    p(f"v_mul_u32_u24 v{VF1}, 768, v{FP}")
    p(f"v_lshl_add_u32 v{VF1}, v{J}, 4, v{VF1}")
    p(f"v_lshlrev_b32 v{VL16}, 4, v0")
    if opt.get("linear"):
        for t in range(3):
            p(f"v_add_u32 v58, {64*t}, v0")
            p("v_mul_u32_u24 v59, 1366, v58")
            p("v_lshrrev_b32 v59, 16, v59")
            p("v_mul_u32_u24 v60, 48, v59")
            p("v_sub_u32 v60, v58, v60")
            p(f"v_mul_u32_u24 v{240+t}, 1536, v59")
            p(f"v_lshl_add_u32 v{240+t}, v60, 4, v{240+t}")
    p("s_waitcnt lgkmcnt(0)")
    srd(p, 8, 4, F0_BYTES)
    srd(p, 12, 6, F1_BYTES)
    srd(p, 16, 22, WS_USED)
    p(f"s_load_dword s94, s[22:23], {N_OFF}")

    LOOP = opt.get("loop", 1)
    full = 4 * NSTR; part = NSTR + nbig
    p("s_sub_u32 s91, s91, s90")
    p("s_mov_b32 s96, -1")
    p("s_cmp_lt_u32 s20, s97")
    p("s_cselect_b32 s89, 0, 0xf149f2ca")
    def tile_offsets(s):
        p("s_add_u32 s96, s96, 1")
        p(f"s_mul_i32 s27, s96, {full}")
        p("s_add_u32 s27, s27, s90")
        p(f"s_cmp_gt_u32 s96, {SP}")
        p(f"s_cselect_b32 s28, {(part - full) & 0xffffffff}, 0")
        p("s_add_u32 s27, s27, s28")
        p(f"s_cmp_eq_u32 s96, {SP}")
        p("s_cselect_b32 s28, s91, 0")
        p("s_cselect_b32 s23, s89, 0")
        p("s_add_u32 s27, s27, s28")
        p("s_mul_i32 s24, s27, 3072")
        p(f"s_mul_hi_u32 s28, s27, {(2**32 + 47)//48}")
        p("s_mul_i32 s29, s28, 48")
        p("s_sub_u32 s29, s27, s29")
        p("s_mul_i32 s25, s28, 589824")
        p("s_mul_i32 s29, s29, 6144")
        p("s_add_u32 s25, s25, s29")
        p("s_add_u32 s26, s25, 294912")
        p(f"s_cmp_ge_u32 s96, {NS}")
        p("s_cselect_b32 s23, 1, s23")
        p("s_cmp_eq_u32 s23, 0")
        p(f"s_cselect_b32 s10, {F0_BYTES}, 0")
        p(f"s_cselect_b32 s14, {F1_BYTES}, 0")
    loads = []
    lidx = {}
    class Cap:
        def __init__(self): self.l = []
        def __call__(self, x): self.l.append(x)
    def build_loads():
        nonlocal p
        for s in range(NS + 2):
            keep = p; p = Cap(); tile_offsets(s); pre = p.l; p = keep
            for t in range(3):
                r = F1R(s & 1, t)
                lidx[(s, 'f1', t)] = len(loads)
                loads.append(dict(pre=pre, key=(s & 1, 'f1', t) if s >= 2 else None,
                                  ins=(f"buffer_load_dwordx4 v[{r}:{r+3}], v{VL16}, s[12:15], s24 offen offset:{1024*t}{NT}" if opt.get("linear") else
                                       f"buffer_load_dwordx4 v[{r}:{r+3}], v{VF1}, s[12:15], s24 offen offset:{256*t}{NT}")))
                pre = []
                for d in range(4):
                    r = F0R(s & 1, t, d)
                    so = "s25" if d < 2 else "s26"
                    lidx[(s, t, d)] = len(loads)
                    loads.append(dict(pre=[], key=(s & 1, t, d) if s >= 2 else None,
                                      ins=(f"buffer_load_dwordx4 v[{r}:{r+3}], v{240+t}, s[8:11], {so} offen offset:{768*(d&1)}{NT}" if opt.get("linear") else
                                           f"buffer_load_dwordx4 v[{r}:{r+3}], v{VF0}, s[8:11], {so} offen offset:{256*t + 768*(d&1)}{NT}")))
    build_loads()
    def mark(*a): p.items.append(a)
    stream_start = len(p.items)
    mark('t', 0)

    p("s_waitcnt lgkmcnt(0)")
    p("s_add_u32 s94, s94, 1")
    p(f"s_and_b32 s{S_TAG}, s94, 0xff")
    p(f"v_mov_b32 v{VTAG}, s{S_TAG}")
    tagpat(p, 4)

    p(f"s_mul_i32 s47, s20, {XT}")
    p(f"v_and_b32 v58, 1, v{FP}")
    p(f"v_lshlrev_b32 v58, 3, v58")
    p(f"v_lshrrev_b32 v59, 1, v{FP}")
    p(f"v_add_u32 v58, v58, v59")
    p(f"v_xor_b32 v58, v58, v{J}")
    p(f"v_lshlrev_b32 v58, 4, v58")
    p(f"v_mul_u32_u24 v59, 3072, v{FP}")
    p(f"v_add_u32 v58, v58, v59")
    p(f"v_add_u32 v{WA[0][0]}, s47, v58")
    for d in range(1, 4): p(f"v_xor_b32 v{WA[0][d]}, {32*d}, v{WA[0][0]}")
    for d in range(4): p(f"v_add_u32 v{WA[1][d]}, {2*XBUF}, v{WA[0][d]}")
    I, G, SI = 57, 56, 58
    p(f"v_and_b32 v{SI}, 7, v{I}")
    p(f"v_lshlrev_b32 v{SI}, 1, v{SI}")
    p(f"v_lshrrev_b32 v59, 3, v{I}")
    p(f"v_or_b32 v{SI}, v{SI}, v59")
    p(f"v_lshlrev_b32 v59, 1, v{G}")
    p(f"v_xor_b32 v59, v59, v{SI}")
    p(f"v_mul_u32_u24 v60, 768, v{I}")
    p(f"v_add_u32 v60, s47, v60")
    for b3 in range(2):
        for b0 in range(2):
            r = RA[0][2 * b3 + b0]
            p(f"v_xor_b32 v{r}, {8*b3+b0}, v59")
            p(f"v_lshl_add_u32 v{r}, v{r}, 4, v60")
            p(f"v_add_u32 v{RA[1][2*b3+b0]}, {2*XBUF}, v{r}")
    p(f"v_lshlrev_b32 v{MXR}, 4, v{I}")
    p(f"v_lshrrev_b32 v59, 1, v{G}")
    p(f"v_lshlrev_b32 v59, 10, v59")
    p(f"v_and_b32 v60, 1, v{G}")
    p(f"v_lshl_add_u32 v59, v60, 3, v59")
    p(f"v_add_u32 v59, v59, v{MXR}")
    p(f"v_add_u32 v{QBA}, {QBL_OFF}, v59")
    p(f"v_add_u32 v{MXR}, {MX_OFF}, v{MXR}")
    p("s_lshl_b32 s48, s20, 2")
    p(f"v_add_u32 v{MXW}, s48, v{MXR}")
    p(f"v_add_u32 v{WXR}, {WX_OFF}, v{VL16}")
    p("s_lshr_b32 s48, s20, 1")
    p("s_lshl_b32 s48, s48, 10")
    p("s_and_b32 s49, s20, 1")
    p("s_lshl_b32 s49, s49, 3")
    p("s_add_u32 s48, s48, s49")
    p(f"v_add_u32 v{WXW}, s48, v{WXR}")
    I = 56
    p(f"v_lshrrev_b32 v{I}, 2, v0")
    p(f"v_and_b32 v{SI}, 7, v{I}")
    p(f"v_lshlrev_b32 v{SI}, 1, v{SI}")
    p(f"v_lshrrev_b32 v59, 3, v{I}")
    p(f"v_or_b32 v{SI}, v{SI}, v59")
    p(f"v_and_b32 v59, 3, v0")
    p(f"v_lshrrev_b32 v60, 1, v59")
    p(f"v_xor_b32 v{SI}, v{SI}, v60")
    p(f"v_and_b32 v59, 1, v59")
    p(f"v_lshlrev_b32 v59, 3, v59")
    p(f"v_mul_u32_u24 v60, 768, v{I}")
    p(f"v_add_u32 v60, v60, v59")
    p("s_mul_i32 s48, s20, 6")
    for q in range(6):
        p(f"s_add_u32 s49, s48, {q}")
        p("s_and_b32 s50, s49, 7")
        p("s_lshl_b32 s50, s50, 1")
        p("s_lshr_b32 s49, s49, 3")
        p("s_lshl_b32 s49, s49, 8")
        p(f"v_xor_b32 v{TR[q]}, s50, v{SI}")
        p(f"v_lshl_add_u32 v{TR[q]}, v{TR[q]}, 4, v60")
        p(f"v_add_u32 v{TR[q]}, s49, v{TR[q]}")
    for r in range(4):
        mov64(p, 30 + 2 * r, sum(1 << (20 * g + r) for g in range(4)))
    for r in range(1, 4):
        mov64(p, 38 + 2 * (r - 1), 0x1111111111111111 << r)
    p("s_mov_b32 s44, 0xffff0000")
    p("s_mov_b32 s87, 0xffffff00")
    p(f"s_mov_b32 s45, 0x{f2u(1.0 / C):08x}")
    p(f"s_mov_b32 s46, 0x{f2u(1e-5):08x}")
    p("s_mov_b32 s51, 0x00003f80")
    p("s_mov_b32 s3, 0x3f800000")
    for r in range(24): p(f"v_mov_b32 v{ACC+r}, 0")
    p(f"v_mov_b32 v{M}, 0xf149f2ca")
    p(f"v_mov_b32 v{L}, 0")
    p(f"v_mov_b32 v{Z}, 0")
    p("v_mov_b32 v56, 0x3f803f80")
    for r in range(4): p(f"v_accvgpr_write_b32 a{aONE+r}, v56")

    tr_slot = [0]
    dyn = [False]
    def wa(slot, d, t):
        if dyn[0]: return (WA[0][d], 768 * d + 256 * t)
        return (WA[0][d], slot * XBUF + 768 * d + 256 * t) if slot < 2 else (WA[1][d], 768 * d + 256 * t)
    def ra(slot, ks):
        i = 2 * ((ks >> 1) & 1) + (ks & 1)
        if dyn[0]: return (RA[0][i], 256 * (ks >> 2))
        return (RA[0][i], slot * XBUF + 256 * (ks >> 2)) if slot < 2 else (RA[1][i], 256 * (ks >> 2))

    def m_reads(s, t, xa=aXA):
        for ks in range(4 * t, 4 * t + 4):
            r, off = ra(s % 3, ks)
            p(f"ds_read_b128 a[{xa+4*ks}:{xa+4*ks+3}], v{r} offset:{off}")
    def m_mfma(s, t, b=0, what="gol", xa=aXA):
        d1, d3 = D1B[b], D3B[b]
        G_, O_, L_ = [], [], []
        for ks in range(4 * t, 4 * t + 4):
            x = f"a[{xa+4*ks}:{xa+4*ks+3}]"
            c1 = "0" if ks == 0 else f"v[{d1}:{d1+3}]"
            c2 = "0" if ks == 0 else f"v[{D2}:{D2+3}]"
            c3 = "0" if ks == 0 else f"v[{d3}:{d3+3}]"
            G_.append(f"v_mfma_f32_16x16x32_bf16 v[{D2}:{D2+3}], {x}, {x}, {c2}")
            O_.append(f"v_mfma_f32_16x16x32_bf16 v[{d3}:{d3+3}], {x}, a[{aONE}:{aONE+3}], {c3}")
            L_.append(f"v_mfma_f32_16x16x32_bf16 v[{d1}:{d1+3}], {x}, a[{aQB+4*ks}:{aQB+4*ks+3}], {c1}")
        if what == "l":
            for x in L_: p(x)
        elif what == "go":
            for g_, o_ in zip(G_, O_): p(g_); p(o_)
        elif t < 2:
            for g_, o_, l_ in zip(G_, O_, L_): p(g_); p(o_); p(l_)
        else:
            for g_, o_ in zip(G_, O_): p(g_); p(o_)
            for l_ in L_: p(l_)
    def stats(b):
        d3, rs = D3B[b], RSB[b]
        p(f"v_cndmask_b32 v{Uu}, 0, v{D2}, s[30:31]")
        for r in range(1, 4):
            p(f"v_cndmask_b32 v{Uu}, v{Uu}, v{D2+r}, s[{30+2*r}:{31+2*r}]")
        p(f"v_cndmask_b32 v{SS}, v{d3}, v{d3+1}, s[38:39]")
        p(f"v_cndmask_b32 v{SS}, v{SS}, v{d3+2}, s[40:41]")
        p(f"v_add_f32_dpp v{Uu}, v{Uu}, v{Uu} row_ror:4 row_mask:0xf bank_mask:0xf")
        p(f"v_cndmask_b32 v{SS}, v{SS}, v{d3+3}, s[42:43]")
        p(f"v_mov_b32 v{TM}, s46")
        p(f"v_add_f32_dpp v{Uu}, v{Uu}, v{Uu} row_ror:8 row_mask:0xf bank_mask:0xf")
        p(f"v_mul_f32 v{SS}, s45, v{SS}")
        p(f"v_fma_f32 v{Uu}, v{Uu}, s45, v{TM}")
        p(f"v_fma_f32 v{Uu}, -v{SS}, v{SS}, v{Uu}")
        p(f"v_max_f32 v{Uu}, s46, v{Uu}")
        p(f"v_rsq_f32 v{rs}, v{Uu}")
    def stage_G(s, b):
        for t in range(3): m_reads(s, t)
        mark('t', 120)
        for t in range(3): m_mfma(s, t, b, "go")
        stats(b)

    def stage_A(s, ld, fuse, thirds=(0, 1, 2)):
        slot = s % 3; k = s & 1
        for t in thirds:
            if (s, t) == qpos: qk_issue()
            f1 = F1R(k, t)
            mark('use', lidx[(s, 'f1', t)])
            cw = opt.get("cw", 0) if s >= 3 else 0
            if cw:
                mark('use', lidx[(s, t, 1)])
                p(f"need v[{F0R(k, t, 1)}:{F0R(k, t, 1)+3}]")
            for j in range(4):
                p(f"v_lshlrev_b32 v{U+2*j}, 16, v{f1+j}")
                p(f"v_and_b32 v{U+2*j+1}, s44, v{f1+j}")
            mark('free', (k, 'f1', t))
            for d in range(4):
                f0 = F0R(k, t, d)
                mark('use', lidx[(s, t, d)])
                if cw and d == 2:
                    mark('use', lidx[(s, t, 3)])
                    p(f"need v[{F0R(k, t, 3)}:{F0R(k, t, 3)+3}]")
                for j in range(4):
                    p(f"v_dot2_f32_bf16 v{TT+2*j}, v{f0+j}, s51, v{U+2*j}")
                    p(f"v_dot2_f32_bf16 v{TT+2*j+1}, v{f0+j}, s3, v{U+2*j+1}")
                for j in range(4):
                    p(f"v_cvt_pk_bf16_f32 v{f0+j}, v{TT+2*j}, v{TT+2*j+1}")
                r, off = wa(slot, d, t)
                p(f"ds_write_b128 v{r}, v[{f0}:{f0+3}] offset:{off}")
                mark('free', (k, t, d))
            if fuse:
                m_reads(s, t)
                mark('t', 120)
                m_mfma(s, t)
        if fuse: stats(0)

    def stage_M(tiles, pre):
        if pre:
            for b, s in enumerate(tiles):
                for t in range(3): m_reads(s, t, XAB[b])
            mark('t', 100)
            for b, s in enumerate(tiles):
                for t in range(3): m_mfma(s, t, b, "l", XAB[b])
        else:
            for b, s in enumerate(tiles):
                if b == 0:
                    for t in range(3): m_reads(s, t, XAB[0])
                    mark('t', 120)
                if b + 1 < len(tiles):
                    for t in range(3): m_reads(tiles[b + 1], t, XAB[b + 1])
                for t in range(3): m_mfma(s, t, b, "gol", XAB[b])
                stats(b)

    qpos = None
    qk_loads = []
    qk_loads.append("s_mul_i32 s48, s20, 6144")
    qk_loads.append(f"s_add_u32 s48, s48, {QKF_OFF}")
    qk_loads.append("s_add_u32 s49, s48, 4096")
    for q in range(6):
        so, off = ("s48", 1024 * q) if q < 4 else ("s49", 1024 * (q - 4))
        qk_loads.append(f"buffer_load_dwordx4 v[{QKR+4*q}:{QKR+4*q+3}], v{VL16}, s[16:19], {so} offen offset:{off} sc1")
    def qk_issue():
        for x in qk_loads: p(x)
    def qb_setup(fused=False):
        QA = [196 + q for q in range(6)]
        for q in range(6):
            p("s_mul_i32 s48, s20, 6")
            p(f"s_add_u32 s48, s48, {q}")
            p("s_lshr_b32 s49, s48, 2")
            p("s_lshl_b32 s49, s49, 11")
            p("s_and_b32 s48, s48, 3")
            p("s_lshl_b32 s48, s48, 8")
            p("s_add_u32 s48, s48, s49")
            p(f"v_add_u32 v{QA[q]}, s48, v{QBA}")
        p(f"v_add_u32 v202, {QBL_OFF}, v{VL16}")
        if fused:
            for t in range(3): m_reads(0, t, 96)
            for t in range(3): m_reads(1, t, 144)
        mark('t', 300)
        stamp("Q0")
        if opt.get("prof") == 1: p(f"s_mov_b32 s{S_SPIN}, 0xffff")
        poll_block(p, name, qk_loads, list(range(QKR, QKR + 24)), VTAG, TM, preissued=True, lock=True)
        stamp("Qok")
        if opt.get("prof") == 1: p(f"s_mov_b32 s86, s{S_SPIN}")
        for q in range(6):
            p(f"v_cvt_pk_bf16_f32 v{QKR+4*q}, v{QKR+4*q}, v{QKR+4*q+1}")
            p(f"v_cvt_pk_bf16_f32 v{QKR+4*q+1}, v{QKR+4*q+2}, v{QKR+4*q+3}")
            p(f"ds_write_b64 v{QA[q]}, v[{QKR+4*q}:{QKR+4*q+1}]")
        p("s_barrier")
        stamp("Sbar")
        for ks in range(12):
            p(f"ds_read_b128 a[{aQB+4*ks}:{aQB+4*ks+3}], v202 offset:{1024*ks}")
        mark('t', 100)
        if not fused:
            for ks in range(12):
                c = "0" if ks == 0 else f"v[{D1}:{D1+3}]"
                p(f"v_mfma_f32_16x16x32_bf16 v[{D1}:{D1+3}], a[{aONE}:{aONE+3}], a[{aQB+4*ks}:{aQB+4*ks+3}], {c}")
            p(f"v_mul_f32 v{SN}, s45, v{D1}")
        else:
            xa = [96, 144, 48]
            for ks in range(12):
                qb = f"a[{aQB+4*ks}:{aQB+4*ks+3}]"
                p(f"v_mfma_f32_16x16x32_bf16 v[{D2}:{D2+3}], a[{aONE}:{aONE+3}], {qb}, {'0' if ks == 0 else f'v[{D2}:{D2+3}]'}")
                for b in range(3):
                    d1 = D1B[b]
                    p(f"v_mfma_f32_16x16x32_bf16 v[{d1}:{d1+3}], a[{xa[b]+4*ks}:{xa[b]+4*ks+3}], {qb}, {'0' if ks == 0 else f'v[{d1}:{d1+3}]'}")
            p(f"v_mul_f32 v{SN}, s45, v{D2}")

    first_bc = [True]
    def set_tr(slot):
        if slot != tr_slot[0]:
            dlt = (slot - tr_slot[0]) * XBUF
            for q in range(6):
                if dlt > 0: p(f"v_add_u32 v{TR[q]}, {dlt}, v{TR[q]}")
                else: p(f"v_subrev_u32 v{TR[q]}, {-dlt}, v{TR[q]}")
            tr_slot[0] = slot
    def tr_list(xt):
        trs = []
        for kst in range(2):
            for q in range(6):
                for h in range(2):
                    j = 2 * kst + h
                    a = xt + 8 * q + 4 * kst + 2 * h
                    trs.append(f"ds_read_b64_tr_b16 a[{a}:{a+1}], v{TR[q]} offset:{j*XT}")
        return trs
    def stage_B(tiles):
        nb = len(tiles)
        set_tr(tiles[0] % 3)
        for b, s in enumerate(tiles):
            d1, d3, rs = D1B[b], D3B[b], RSB[b]
            for r in range(4):
                p(f"v_fma_f32 v{d1+r}, -v{d3+r}, v{SN}, v{d1+r}")
            for r in range(4):
                p(f"v_mul_f32_dpp v{d1+r}, v{rs}, v{d1+r} quad_perm:[{r},{r},{r},{r}] row_mask:0xf bank_mask:0xf")
            if s == SP:
                for r in range(4): p(f"v_add_f32 v{d1+r}, s89, v{d1+r}")
        vals = [D1B[b] + r for b in range(nb) for r in range(4)]
        p(f"v_max3_f32 v{TM}, v{vals[0]}, v{vals[1]}, v{vals[2]}")
        rest = vals[3:]
        while len(rest) >= 2:
            p(f"v_max3_f32 v{TM}, v{TM}, v{rest[0]}, v{rest[1]}"); rest = rest[2:]
        if rest: p(f"v_max_f32 v{TM}, v{TM}, v{rest[0]}")
        xg_reduce(p, "v_max_f32", TM, TM2)
        p(f"ds_write_b32 v{MXW}, v{TM}")
        mark('t', 100)
        p("s_barrier")
        p(f"ds_read_b128 v[{D2}:{D2+3}], v{MXR}")
        mark('t', 80)
        trs = tr_list(XTB[0])
        for x in trs[:12]: p(x)
        p(f"v_max3_f32 v{TM}, v{D2}, v{D2+1}, v{D2+2}")
        p(f"v_max3_f32 v{TM}, v{TM}, v{D2+3}, v{M}")
        p(f"v_and_b32 v{TM}, s87, v{TM}")
        p(f"v_sub_f32 v{AL}, v{M}, v{TM}")
        p(f"v_mov_b32 v{M}, v{TM}")
        p(f"v_exp_f32 v{AL}, v{AL}")
        for v in vals: p(f"v_sub_f32 v{v}, v{v}, v{M}")
        for v in vals: p(f"v_exp_f32 v{v}, v{v}")
        for x in trs[12:]: p(x)
        p(f"v_add_f32 v{TM}, v{vals[0]}, v{vals[1]}")
        p(f"v_add_f32 v{TM2}, v{vals[2]}, v{vals[3]}")
        for i in range(4, len(vals), 2):
            p(f"v_add_f32 v{TM}, v{TM}, v{vals[i]}")
            p(f"v_add_f32 v{TM2}, v{TM2}, v{vals[i+1]}")
        p(f"v_add_f32 v{TM}, v{TM}, v{TM2}")
        p(f"v_fma_f32 v{L}, v{L}, v{AL}, v{TM}")
        for b in range(nb):
            d1, rs, wf = D1B[b], RSB[b], WFB[b]
            for r in range(4):
                p(f"v_mul_f32_dpp v{d1+r}, v{rs}, v{d1+r} quad_perm:[{r},{r},{r},{r}] row_mask:0xf bank_mask:0xf")
            p(f"v_cvt_pk_bf16_f32 v{wf}, v{d1}, v{d1+1}")
            p(f"v_cvt_pk_bf16_f32 v{wf+1}, v{d1+2}, v{d1+3}")
            p(f"ds_write_b64 v{WXW}, v[{wf}:{wf+1}] offset:{2048*b}")
        if nb > 1:
            set_tr(tiles[1] % 3)
            for x in tr_list(XTB[1]): p(x)
        p(f"v_mul_f32 v{Z}, v{Z}, v{AL}")
        for b in range(nb):
            for r in range(4): p(f"v_fma_f32 v{Z}, v{D1B[b]+r}, v{D3B[b]+r}, v{Z}")
        if not first_bc[0]:
            for r in range(24): p(f"v_mul_f32 v{ACC+r}, v{ACC+r}, v{AL}")
        first_bc[0] = False
        p("s_barrier")

    def stage_C(tiles):
        nb = len(tiles)
        WR = [(D1, D2), (212, 216), (D1, D2)]
        for b in range(min(nb, 2)):
            p(f"ds_read_b128 v[{WR[b][0]}:{WR[b][0]+3}], v{WXR} offset:{2048*b}")
            p(f"ds_read_b128 v[{WR[b][1]}:{WR[b][1]+3}], v{WXR} offset:{2048*b + 1024}")
        mark('t', 120)
        for b in range(nb):
            xt = XTB[b & 1]
            for kst in range(2):
                bb = WR[b][kst]
                for q in range(6):
                    a = xt + 8 * q + 4 * kst
                    p(f"v_mfma_f32_16x16x32_bf16 v[{ACC+4*q}:{ACC+4*q+3}], a[{a}:{a+3}], v[{bb}:{bb+3}], v[{ACC+4*q}:{ACC+4*q+3}]")
            if b == 0 and nb == 3:
                set_tr(tiles[2] % 3)
                for x in tr_list(XTB[0]): p(x)
                p(f"ds_read_b128 v[{WR[2][0]}:{WR[2][0]+3}], v{WXR} offset:{2048*2}")
                p(f"ds_read_b128 v[{WR[2][1]}:{WR[2][1]+3}], v{WXR} offset:{2048*2 + 1024}")
        if nb == 3 or True:
            pass


    PR, LSUM, ZSUM, WR2, FLR4 = 212, 216, 217, 224, 232
    FLW, FLR = 250, 251
    FL_OFF = WX_OFF + 8192
    THR = opt.get("thr", 8)
    class Sub:
        def __enter__(self):
            self.keep = p.items; p.items = []; return self
        def __exit__(self, *a):
            self.items = p.items; p.items = self.keep
    def merge(mf, sec, lead, per=2):
        i = 0
        def take(n):
            nonlocal i
            while i < len(sec) and (n > 0 or isinstance(sec[i], tuple)):
                p.items.append(sec[i])
                if not isinstance(sec[i], tuple): n -= 1
                i += 1
        take(lead)
        for m in mf:
            p.items.append(m)
            if not m.startswith("need"): take(per)
        take(10 ** 6)
    def a_third(s, t):
        with Sub() as c: stage_A(s, None, False, (t,))
        return c.items
    def m_list(s, t):
        with Sub() as c: m_mfma(s, t)
        return [f"need a[{aXA+16*t+12}:{aXA+16*t+15}]"] + c.items if opt.get("lw", 1) else c.items
    f2_init = [False]
    pendC = [None]
    def c_list(wr, xt):
        out = []
        for kst in range(2):
            bb = wr + 4 * kst
            for q in range(6):
                a = xt + 8 * q + 4 * kst
                out.append(f"v_mfma_f32_16x16x32_bf16 v[{ACC+4*q}:{ACC+4*q+3}], a[{a}:{a+3}], v[{bb}:{bb+3}], v[{ACC+4*q}:{ACC+4*q+3}]")
        return out
    def flush_C():
        if pendC[0]:
            for x in pendC[0]: p(x)
            pendC[0] = None
    def w_chain(src, exact_dm=None):
        rs, d3, wf = RSB[0], D3B[0], WFB[0]
        for r in range(4): p(f"v_exp_f32 v{PR+r}, v{src+r}")
        p(f"v_add_f32 v{LSUM}, v{PR}, v{PR+1}")
        p(f"v_add_f32 v{ZSUM}, v{PR+2}, v{PR+3}")
        p(f"v_add_f32 v{LSUM}, v{LSUM}, v{ZSUM}")
        for r in range(4):
            p(f"v_mul_f32_dpp v{PR+r}, v{rs}, v{PR+r} quad_perm:[{r},{r},{r},{r}] row_mask:0xf bank_mask:0xf")
        p(f"v_cvt_pk_bf16_f32 v{wf}, v{PR}, v{PR+1}")
        p(f"v_cvt_pk_bf16_f32 v{wf+1}, v{PR+2}, v{PR+3}")
        p(f"ds_write_b64 v{WXW}, v[{wf}:{wf+1}]")
        p(f"v_mul_f32 v{ZSUM}, v{PR}, v{d3}")
        for r in range(1, 4): p(f"v_fma_f32 v{ZSUM}, v{PR+r}, v{d3+r}, v{ZSUM}")
    def m2_publish():
        mark('lock')
        p(f"v_bfi_b32 v{TM}, s{S_MASK}, v{VTAG}, v{M}")
        p(f"v_bfe_u32 v{TM2}, v0, 2, 2")
        p(f"v_lshlrev_b32 v{TM2}, 12, v{TM2}")
        p(f"v_and_b32 v{AL}, 3, v0")
        p(f"v_lshl_add_u32 v{TM2}, v{AL}, 2, v{TM2}")
        p("s_lshl_b32 s48, s2, 4")
        p(f"s_add_u32 s48, s48, {M2_OFF}")
        p("s_cmp_eq_u32 s20, 0")
        p(f"s_cbranch_scc0 {name}_m2skip ;@nodrain")
        p("s_mov_b64 exec, 0xffff")
        p(f"buffer_store_dword v{TM}, v{TM2}, s[16:19], s48 offen sc1")
        p("s_mov_b64 exec, -1")
        p(f"{name}_m2skip:")
        mark('unlock')
    def stage_F2(s, last):
        if not f2_init[0]:
            f2_init[0] = True
            p(f"s_lshl_b32 s48, s20, 2")
            p(f"s_add_u32 s48, s48, {FL_OFF}")
            p(f"v_mov_b32 v{FLW}, s48")
            p(f"v_mov_b32 v{FLR}, {FL_OFF}")
            p(f"s_mov_b32 s88, 0x{f2u(float(THR)):08x}")
        d1, d3, rs = D1B[0], D3B[0], RSB[0]
        if LOOP:
            first = not dyn[0]
            if first:
                assert s % 3 == 0
                set_tr(0)
                p("s_mov_b32 s47, 0")
                p(f"s_mov_b32 s100, {s - 1}")
                p("s_mov_b32 s101, 0")
                dyn[0] = True
            p(f".set ZB{s}, 0")
            mark('zstart')
            mark('lock')
            if not first:
                p("s_add_u32 s47, s47, 1")
                p(f"s_mov_b32 s48, {XBUF}")
                p("s_cmp_eq_u32 s47, 3")
                p(f"s_cselect_b32 s48, {(-2*XBUF) & 0xffffffff}, s48")
                p("s_cselect_b32 s47, 0, s47")
            p("s_add_u32 s100, s100, 1")
            p(f"s_cmp_eq_u32 s100, {SP}")
            p("s_cselect_b32 s22, s89, 0")
            mark('unlock')
            if not first:
                for r in WA[0] + RA[0] + TR: p(f"v_add_u32 v{r}, s48, v{r}")
        def fz(i):
            if opt.get("prof") == 7 and (s & 1): p(f"s_memtime s[{52+2*i}:{53+2*i}]")
        fz(0)
        a0 = a_third(s, 0)
        if pendC[0]:
            merge(pendC[0], a0, lead=16); pendC[0] = None
        else:
            p.items.extend(a0)
        fz(1)
        m_reads(s, 0)
        merge(m_list(s, 0), a_third(s, 1), lead=20)
        fz(2)
        m_reads(s, 1)
        merge(m_list(s, 1), a_third(s, 2), lead=20)
        fz(3)
        m_reads(s, 2)
        if not LOOP: set_tr(s % 3)
        p("s_barrier")
        fz(4)
        trs = tr_list(XTB[0])
        merge(m_list(s, 2), trs, lead=2, per=2)
        fz(5)
        stats(0)
        fz(6)
        for r in range(4):
            p(f"v_fma_f32 v{PR+r}, -v{d3+r}, v{SN}, v{d1+r}")
        if LOOP or s == SP: p(f"v_sub_f32 v{d1}, {'s22' if LOOP else 's89'}, v{M}")
        else: p(f"v_sub_f32 v{d1}, 0, v{M}")
        for r in range(1, 4): p(f"v_mov_b32 v{d1+r}, v{d1}")
        for r in range(4):
            p(f"v_fmac_f32_dpp v{d1+r}, v{rs}, v{PR+r} quad_perm:[{r},{r},{r},{r}] row_mask:0xf bank_mask:0xf")
        p(f"v_max3_f32 v{TM}, v{d1}, v{d1+1}, v{d1+2}")
        p(f"v_max_f32 v{TM}, v{TM}, v{d1+3}")
        p(f"v_cmp_lt_f32 vcc, s88, v{TM}")
        mark('lock')
        fz(7)
        for r in range(4): p(f"v_exp_f32 v{PR+r}, v{d1+r}")
        p("s_cmp_lg_u64 vcc, 0")
        p("s_cselect_b32 s48, 1, 0")
        mark('unlock')
        p(f"v_mov_b32 v{TM2}, s48")
        p(f"v_add_f32 v{LSUM}, v{PR}, v{PR+1}")
        p(f"v_add_f32 v{ZSUM}, v{PR+2}, v{PR+3}")
        p(f"ds_write_b32 v{FLW}, v{TM2}")
        p(f"v_add_f32 v{LSUM}, v{LSUM}, v{ZSUM}")
        wf = WFB[0]
        for r in range(4):
            p(f"v_mul_f32_dpp v{PR+r}, v{rs}, v{PR+r} quad_perm:[{r},{r},{r},{r}] row_mask:0xf bank_mask:0xf")
        p(f"v_cvt_pk_bf16_f32 v{wf}, v{PR}, v{PR+1}")
        p(f"v_cvt_pk_bf16_f32 v{wf+1}, v{PR+2}, v{PR+3}")
        p(f"ds_write_b64 v{WXW}, v[{wf}:{wf+1}]")
        fz(8)
        p("s_barrier")
        fz(9)
        p(f"ds_read_b128 v[{FLR4}:{FLR4+3}], v{FLR}")
        p(f"ds_read_b128 v[{WR2}:{WR2+3}], v{WXR}")
        p(f"ds_read_b128 v[{WR2+4}:{WR2+7}], v{WXR} offset:1024")
        p(f"v_mul_f32 v{ZSUM}, v{PR}, v{d3}")
        for r in range(1, 4): p(f"v_fma_f32 v{ZSUM}, v{PR+r}, v{d3+r}, v{ZSUM}")
        mark('t', 100)
        mark('lock')
        p(f"v_or3_b32 v{TM}, v{FLR4}, v{FLR4+1}, v{FLR4+2}")
        p(f"v_or_b32 v{TM}, v{TM}, v{FLR4+3}")
        p(f"v_cmp_ne_u32 vcc, 0, v{TM}")
        uid[0] += 1
        Lb = f"{name}_lz{uid[0]}"
        p(f"s_cbranch_vccz {Lb}")
        p("s_waitcnt lgkmcnt(0)")
        p(f"v_max3_f32 v{TM}, v{d1}, v{d1+1}, v{d1+2}")
        p(f"v_max_f32 v{TM}, v{TM}, v{d1+3}")
        xg_reduce(p, "v_max_f32", TM, TM2)
        p(f"ds_write_b32 v{MXW}, v{TM}")
        p("s_barrier")
        p(f"ds_read_b128 v[{FLR4}:{FLR4+3}], v{MXR}")
        p(f"v_max3_f32 v{TM}, v{FLR4}, v{FLR4+1}, v{FLR4+2}")
        p(f"v_max3_f32 v{TM}, v{TM}, v{FLR4+3}, 0")
        p(f"v_add_f32 v{TM2}, v{M}, v{TM}")
        p(f"v_and_b32 v{TM2}, s87, v{TM2}")
        p(f"v_sub_f32 v{TM}, v{TM2}, v{M}")
        p(f"v_mov_b32 v{M}, v{TM2}")
        p(f"v_sub_f32 v{AL}, 0, v{TM}")
        p(f"v_exp_f32 v{AL}, v{AL}")
        for r in range(4): p(f"v_sub_f32 v{d1+r}, v{d1+r}, v{TM}")
        for r in range(24): p(f"v_mul_f32 v{ACC+r}, v{ACC+r}, v{AL}")
        p(f"v_mul_f32 v{L}, v{L}, v{AL}")
        p(f"v_mul_f32 v{Z}, v{Z}, v{AL}")
        w_chain(d1)
        p("s_barrier")
        p(f"ds_read_b128 v[{WR2}:{WR2+3}], v{WXR}")
        p(f"ds_read_b128 v[{WR2+4}:{WR2+7}], v{WXR} offset:1024")
        p("s_waitcnt lgkmcnt(0)")
        p("s_nop 7")
        p(f"{Lb}: ;@restore {Lb}")
        mark('unlock')
        if last and not LOOP: m2_publish()
        p(f"v_add_f32 v{L}, v{L}, v{LSUM}")
        p(f"v_add_f32 v{Z}, v{Z}, v{ZSUM}")
        fz(10)
        if LOOP and opt.get("prof") == 6:
            mark('lock')
            p("s_memrealtime s[80:81]")
            p("s_sub_u32 s83, s100, 3")
            p("s_mov_b32 m0, s83")
            p("s_waitcnt lgkmcnt(0)")
            p("v_writelane_b32 v239, s80, m0")
            mark('unlock')
        if LOOP: mark('zend')
        cl = c_list(WR2, XTB[0])
        if last and not LOOP:
            for x in cl: p(x)
        else:
            pendC[0] = cl


    def stage_B2(s):
        assert LOOP and dyn[0] and s % 2 == 0
        PRB = [204, 208]; LS, ZS = 244, 245; WF2 = [74, 246]; WRB = [224, 216]
        p(f".set ZB{s}, 0")
        mark('zstart')
        mark('lock')
        for dreg in (84, 85):
            p("s_add_u32 s47, s47, 1")
            p(f"s_mov_b32 s{dreg}, {XBUF}")
            p("s_cmp_eq_u32 s47, 3")
            p(f"s_cselect_b32 s{dreg}, {(-2*XBUF) & 0xffffffff}, s{dreg}")
            p("s_cselect_b32 s47, 0, s47")
        for breg in (22, 82):
            p("s_add_u32 s100, s100, 1")
            p(f"s_cmp_eq_u32 s100, {SP}")
            p(f"s_cselect_b32 s{breg}, s89, 0")
        mark('unlock')
        for r in WA[0] + RA[0]: p(f"v_add_u32 v{r}, s84, v{r}")
        p("s_waitcnt lgkmcnt(0)")
        def ml(t, b):
            with Sub() as c: m_mfma(s + b, t, b)
            return [f"need a[{aXA+16*t+12}:{aXA+16*t+15}]"] + c.items if opt.get("lw", 1) else c.items
        pc = pendC[0]; pendC[0] = None
        assert len(pc) == 24
        merge(pc[:12], a_third(s, 0), lead=16)
        m_reads(s, 0)
        merge(ml(0, 0), a_third(s, 1), lead=20)
        m_reads(s, 1)
        merge(ml(1, 0), a_third(s, 2), lead=20)
        m_reads(s, 2)
        for r in WA[0] + RA[0]: p(f"v_add_u32 v{r}, s85, v{r}")
        merge(ml(2, 0) + pc[12:], a_third(s + 1, 0), lead=12)
        stats(0)
        m_reads(s + 1, 0)
        merge(ml(0, 1), a_third(s + 1, 1), lead=20)
        m_reads(s + 1, 1)
        merge(ml(1, 1), a_third(s + 1, 2), lead=20)
        m_reads(s + 1, 2)
        for r in TR: p(f"v_add_u32 v{r}, s84, v{r}")
        p("s_barrier")
        merge(ml(2, 1), tr_list(XTB[0]), lead=2, per=2)
        for r in TR: p(f"v_add_u32 v{r}, s85, v{r}")
        with Sub() as c:
            stats(1)
            for b in range(2):
                d1, d3 = D1B[b], D3B[b]
                for r in range(4): p(f"v_fma_f32 v{PRB[b]+r}, -v{d3+r}, v{SN}, v{d1+r}")
            for b in range(2):
                d1 = D1B[b]
                p(f"v_sub_f32 v{d1}, s{22 if b == 0 else 82}, v{M}")
                for r in range(1, 4): p(f"v_mov_b32 v{d1+r}, v{d1}")
        merge(c.items, tr_list(XTB[1]), lead=0, per=1)
        for b in range(2):
            d1, rs = D1B[b], RSB[b]
            for r in range(4):
                p(f"v_fmac_f32_dpp v{d1+r}, v{rs}, v{PRB[b]+r} quad_perm:[{r},{r},{r},{r}] row_mask:0xf bank_mask:0xf")
        dv = [D1B[0] + r for r in range(4)] + [D1B[1] + r for r in range(4)]
        def max8():
            p(f"v_max3_f32 v{TM}, v{dv[0]}, v{dv[1]}, v{dv[2]}")
            p(f"v_max3_f32 v{TM2}, v{dv[3]}, v{dv[4]}, v{dv[5]}")
            p(f"v_max3_f32 v{TM}, v{TM}, v{dv[6]}, v{dv[7]}")
            p(f"v_max_f32 v{TM}, v{TM}, v{TM2}")
        def exps():
            for b in range(2):
                for r in range(4): p(f"v_exp_f32 v{PRB[b]+r}, v{D1B[b]+r}")
        def wpart():
            a, c2 = PRB
            p(f"v_add_f32 v{LS}, v{a}, v{a+1}")
            p(f"v_add_f32 v{ZS}, v{a+2}, v{a+3}")
            p(f"v_add_f32 v{LS}, v{LS}, v{c2}")
            p(f"v_add_f32 v{ZS}, v{ZS}, v{c2+1}")
            p(f"v_add_f32 v{LS}, v{LS}, v{c2+2}")
            p(f"v_add_f32 v{ZS}, v{ZS}, v{c2+3}")
            for b in range(2):
                for r in range(4):
                    p(f"v_mul_f32_dpp v{PRB[b]+r}, v{RSB[b]}, v{PRB[b]+r} quad_perm:[{r},{r},{r},{r}] row_mask:0xf bank_mask:0xf")
                if b == 0: p(f"v_add_f32 v{LS}, v{LS}, v{ZS}")
                p(f"v_cvt_pk_bf16_f32 v{WF2[b]}, v{PRB[b]}, v{PRB[b]+1}")
                p(f"v_cvt_pk_bf16_f32 v{WF2[b]+1}, v{PRB[b]+2}, v{PRB[b]+3}")
                p(f"ds_write_b64 v{WXW}, v[{WF2[b]}:{WF2[b]+1}] offset:{2048*b}")
        def zpart():
            p(f"v_mul_f32 v{ZS}, v{PRB[0]}, v{D3B[0]}")
            for r in range(1, 4): p(f"v_fma_f32 v{ZS}, v{PRB[0]+r}, v{D3B[0]+r}, v{ZS}")
            for r in range(4): p(f"v_fma_f32 v{ZS}, v{PRB[1]+r}, v{D3B[1]+r}, v{ZS}")
        def wx_reads():
            for b in range(2):
                p(f"ds_read_b128 v[{WRB[b]}:{WRB[b]+3}], v{WXR} offset:{2048*b}")
                p(f"ds_read_b128 v[{WRB[b]+4}:{WRB[b]+7}], v{WXR} offset:{2048*b + 1024}")
        max8()
        p(f"v_cmp_lt_f32 vcc, s88, v{TM}")
        mark('lock')
        exps()
        p("s_cmp_lg_u64 vcc, 0")
        p("s_cselect_b32 s48, 1, 0")
        mark('unlock')
        p(f"v_mov_b32 v{TM2}, s48")
        p(f"ds_write_b32 v{FLW}, v{TM2}")
        wpart()
        p("s_barrier")
        p(f"ds_read_b128 v[{FLR4}:{FLR4+3}], v{FLR}")
        wx_reads()
        zpart()
        mark('t', 100)
        mark('lock')
        p(f"v_or3_b32 v{TM}, v{FLR4}, v{FLR4+1}, v{FLR4+2}")
        p(f"v_or_b32 v{TM}, v{TM}, v{FLR4+3}")
        p(f"v_cmp_ne_u32 vcc, 0, v{TM}")
        uid[0] += 1
        Lb = f"{name}_lz{uid[0]}"
        p(f"s_cbranch_vccz {Lb}")
        p("s_waitcnt lgkmcnt(0)")
        max8()
        xg_reduce(p, "v_max_f32", TM, TM2)
        p(f"ds_write_b32 v{MXW}, v{TM}")
        p("s_barrier")
        p(f"ds_read_b128 v[{FLR4}:{FLR4+3}], v{MXR}")
        p(f"v_max3_f32 v{TM}, v{FLR4}, v{FLR4+1}, v{FLR4+2}")
        p(f"v_max3_f32 v{TM}, v{TM}, v{FLR4+3}, 0")
        p(f"v_add_f32 v{TM2}, v{M}, v{TM}")
        p(f"v_and_b32 v{TM2}, s87, v{TM2}")
        p(f"v_sub_f32 v{TM}, v{TM2}, v{M}")
        p(f"v_mov_b32 v{M}, v{TM2}")
        p(f"v_sub_f32 v{AL}, 0, v{TM}")
        p(f"v_exp_f32 v{AL}, v{AL}")
        for v in dv: p(f"v_sub_f32 v{v}, v{v}, v{TM}")
        for r in range(24): p(f"v_mul_f32 v{ACC+r}, v{ACC+r}, v{AL}")
        p(f"v_mul_f32 v{L}, v{L}, v{AL}")
        p(f"v_mul_f32 v{Z}, v{Z}, v{AL}")
        exps()
        wpart()
        zpart()
        p("s_barrier")
        wx_reads()
        p("s_waitcnt lgkmcnt(0)")
        p("s_nop 7")
        p(f"{Lb}: ;@restore {Lb}")
        mark('unlock')
        p(f"v_add_f32 v{L}, v{L}, v{LS}")
        p(f"v_add_f32 v{Z}, v{Z}, v{ZS}")
        if opt.get("prof") == 6:
            mark('lock')
            p("s_memrealtime s[80:81]")
            p("s_sub_u32 s83, s100, 3")
            p("s_mov_b32 m0, s83")
            p("s_waitcnt lgkmcnt(0)")
            p("v_writelane_b32 v239, s80, m0")
            mark('unlock')
        mark('zend')
        pendC[0] = c_list(WRB[0], XTB[0]) + c_list(WRB[1], XTB[1])

    stamp = Prof(p, opt, 52, 80)
    sched = opt.get("sched", "A0 G00 A1 G11 A2 Q G22 D11 P140 D30 T Y D20 Z3 Z4 Z5 Z6 Z7 Z8 Z9")
    stamp("init")
    for tok in sched.replace("_", " ").split():
        if tok == "S":
            mark('log', 'S0'); qb_setup(); stamp("S")
        elif tok == "T":
            mark('log', 'T0'); qb_setup(True); stamp("S")
        elif tok == "Y":
            stage_B([0, 1, 2]); stage_C([0, 1, 2]); stamp("X012")
        elif tok == "Q": qk_issue()
        elif tok[0] == "I":
            mark('force', 15 * int(tok[1]) + int(tok[2:]))
        elif tok[0] == "D":
            mark('dmax', int(tok[1:]))
        elif tok[0] == "P":
            mark('gap', int(tok[1:]))
        elif tok[0] == "W":
            mark('until', int(tok[1:]) * 210)
        elif tok[0] == "B":
            s = int(tok[1])
            if len(pendC[0]) == 12:
                for r in range(216, 224): p(f"v_mov_b32 v{r}, 0")
                pendC[0] = pendC[0] + c_list(216, XTB[1])
            stage_B2(s)
        elif tok[0] == "Z":
            s = int(tok[1]); stage_F2(s, s == NS - 1)
            if not LOOP: stamp(tok)
        elif tok[0] in "AF":
            s = int(tok[1])
            if len(tok) == 3:
                stage_A(s, None, False, (int(tok[2]),))
                if tok[2] == "2" and s < 3: stamp(tok[:2])
            else:
                stage_A(s, None, tok[0] == "F")
                if tok[0] == "F":
                    stage_B([s]); stage_C([s])
                if tok[0] == "F" or s < 3: stamp(tok)
        elif tok[0] == "G":
            stage_G(int(tok[1]), int(tok[2]))
        elif tok[0] in "MX":
            tiles = [int(c) for c in tok[1:]]
            stage_M(tiles, tok[0] == "X"); stage_B(tiles); stage_C(tiles); stamp(tok)
        mark('log', tok)
    if LOOP:
        p(".set ZEND, 0")
        mark('lock')
        p("s_waitcnt vmcnt(0)")
        m2_publish()
        mark('lock')
        flush_C()
        stamp("Z9")
    if opt.get("noload"):
        for L_ in loads[75:]: L_['ins'] = "s_nop 0" if opt["noload"] == 1 else ""
    body = p.items[stream_start:]
    sched_out = schedule_loads(body, loads, pace=opt.get("pace", 300), lat=opt.get("lat", 1500), dmax=opt.get("dmax", 7), verbose=True, policy=opt.get("policy", "dist"))
    p.items[stream_start:] = sched_out

    if opt.get("streamonly"):
        p("s_endpgm")
        return
    p(f"v_lshrrev_b32 v56, 2, v0")
    p(f"v_lshlrev_b32 v56, 14, v56")
    p(f"v_and_b32 v57, 3, v0")
    p(f"v_lshl_add_u32 v56, v57, 4, v56")
    p(f"s_mul_i32 s24, s20, {3*16*16384}")
    p("s_lshl_b32 s25, s2, 6")
    p("s_add_u32 s24, s24, s25")
    p(f"s_add_u32 s24, s24, {PART_OFF}")
    p(f"v_mov_b32 v{TM}, 0x00010001")
    for k in range(3):
        b = ACC + 8 * k
        for j in range(4): p(f"v_cvt_pk_bf16_f32 v{b+j}, v{b+2*j}, v{b+2*j+1}")
        for j in range(4): p(f"v_bfi_b32 v{b+j}, v{TM}, s{4+j}, v{b+j}")
        p(f"buffer_store_dwordx4 v[{b}:{b+3}], v56, s[16:19], s24 offen sc1")
        if k < 2: p(f"s_add_u32 s24, s24, {16*16384}")
    xg_reduce(p, "v_add_f32", L, TM2)
    xg_reduce(p, "v_add_f32", Z, TM2)
    p(f"ds_write_b32 v{MXW}, v{L}")
    p(f"ds_write_b32 v{MXW}, v{Z} offset:{LZ_OFF - MX_OFF}")
    p("s_barrier")
    p("s_cmp_lg_u32 s20, 0")
    p(f"s_cbranch_scc1 {name}_red")
    p(f"ds_read_b128 v[56:59], v{MXR}")
    p(f"ds_read_b128 v[60:63], v{MXR} offset:{LZ_OFF - MX_OFF}")
    p("v_add_f32 v56, v56, v57")
    p("v_add_f32 v58, v58, v59")
    p("v_add_f32 v65, v56, v58")
    p("v_add_f32 v60, v60, v61")
    p("v_add_f32 v62, v62, v63")
    p("v_add_f32 v66, v60, v62")
    p(f"v_mov_b32 v64, v{M}")
    p(f"v_mov_b32 v67, v{VTAG}")
    p("s_lshl_b32 s24, s2, 8")
    p(f"s_add_u32 s24, s24, {ML_OFF}")
    p("s_mov_b64 exec, 0xffff")
    p(f"buffer_store_dwordx4 v[64:67], v{VL16}, s[16:19], s24 offen sc1")
    p("s_mov_b64 exec, -1")
    p(f"{name}_red: ;@restore red")
    stamp("pub")
    p(f"s_cmp_ge_u32 s21, {NRED}")
    p(f"s_cbranch_scc1 {name}_sdone ;@nodrain")
    p("s_lshr_b32 s24, s21, 4")
    p("s_lshr_b32 s25, s21, 2")
    p("s_and_b32 s25, s25, 3")
    p("s_and_b32 s26, s21, 3")
    p("v_and_b32 v56, 3, v0")
    p(f"v_mov_b32 v58, v{VL16}")
    p("v_lshlrev_b32 v59, 2, v0")
    p("s_lshl_b32 s27, s21, 14")
    p("s_lshl_b32 s28, s20, 12")
    p("s_add_u32 s27, s27, s28")
    p(f"s_add_u32 s27, s27, {PART_OFF}")
    p("s_lshl_b32 s29, s20, 10")
    p("s_lshl_b32 s28, s26, 12")
    p("s_add_u32 s29, s29, s28")
    p(f"s_add_u32 s29, s29, {M2_OFF}")
    PM = 76; PP = 108; NP = 4
    RL = f"{name}_rr"
    gate = opt.get("gate", 8)
    p(f"s_mov_b32 s50, {(1 << NP) - 1}")
    p(f"s_mov_b32 s51, {(1 << NP) - 1}")
    p(f"s_mov_b32 s{S_SPIN}, 0")
    def m2_check(i, lbl):
        p(f"s_bitcmp0_b32 s50, {i}")
        p(f"s_cbranch_scc1 {lbl} ;@nodrain")
        p(f"v_xor_b32 v{PM+i}, v{PM+i}, v{VTAG}")
        p(f"v_and_b32 v60, s{S_MASK}, v{PM+i}")
        p("v_cmp_ne_u32 vcc, 0, v60")
        p(f"s_cbranch_vccnz {lbl} ;@nodrain")
        p(f"s_bitset0_b32 s50, {i}")
        p(f"{lbl}:")
    if opt.get("m2early", 1):
        for i in range(NP):
            p(f"buffer_load_dword v{PM+i}, v59, s[16:19], s29 offen offset:{256*i} sc1")
    if opt.get("ackwait", 1): p("s_waitcnt vmcnt(0)")
    if opt.get("m2early", 1):
        for i in range(NP): m2_check(i, f"{RL}_e{i}")
    stamp("ack")
    p(f"{RL}_loop:")
    p("s_andn2_b32 s47, s51, s50")
    p("s_bcnt1_i32_b32 s48, s50")
    p(f"s_cmp_le_u32 s48, {gate}")
    p("s_cselect_b32 s47, s51, s47")
    for i in range(NP):
        p(f"s_bitcmp0_b32 s50, {i}")
        p(f"s_cbranch_scc1 {RL}_a{i} ;@nodrain")
        p(f"buffer_load_dword v{PM+i}, v59, s[16:19], s29 offen offset:{256*i} sc1")
        p(f"{RL}_a{i}:")
        p(f"s_bitcmp0_b32 s47, {i}")
        p(f"s_cbranch_scc1 {RL}_b{i} ;@nodrain")
        p(f"buffer_load_dwordx4 v[{PP+4*i}:{PP+4*i+3}], v58, s[16:19], s27 offen offset:{1024*i} sc1")
        p(f"{RL}_b{i}:")
    p("s_waitcnt vmcnt(0)")
    for i in range(NP):
        p(f"s_bitcmp0_b32 s47, {i}")
        p(f"s_cbranch_scc1 {RL}_c{i} ;@nodrain")
        r = PP + 4 * i
        for j in range(4): p(f"v_xor_b32 v{r+j}, s{4+j}, v{r+j}")
        p(f"v_or3_b32 v60, v{r}, v{r+1}, v{r+2}")
        p(f"v_or_b32 v60, v60, v{r+3}")
        p("v_and_b32 v60, 0x00010001, v60")
        p("v_cmp_ne_u32 vcc, 0, v60")
        p(f"s_cbranch_vccnz {RL}_c{i} ;@nodrain")
        p(f"s_bitset0_b32 s51, {i}")
        p(f"{RL}_c{i}:")
        m2_check(i, f"{RL}_d{i}")
    p("s_or_b32 s48, s50, s51")
    p("s_cmp_eq_u32 s48, 0")
    p(f"s_cbranch_scc1 {RL}_done ;@nodrain")
    p(f"s_add_u32 s{S_SPIN}, s{S_SPIN}, 1")
    p(f"s_cmp_lt_u32 s{S_SPIN}, {SPIN_MAX}")
    p(f"s_cbranch_scc1 {RL}_loop ;@nodrain")
    if DIAG[0]:
        uid[0] += 1
        p("s_mov_b64 vcc, 1")
        diag_store(p, uid[0], "s50")
    p(f"{RL}_done:")
    p("s_nop 7")
    if opt.get("prof") == 1: p(f"s_mov_b32 s86, s{S_SPIN}")
    stamp("redin")
    MV, T = 61, 62
    p(f"v_max3_f32 v{MV}, v{PM}, v{PM+1}, v{PM+2}")
    p(f"v_max_f32 v{MV}, v{MV}, v{PM+3}")
    p("v_mov_b32 v63, 0x8000")
    A8 = 64
    p(f"v_max_f32_dpp v{MV}, v{MV}, v{MV} row_ror:4 row_mask:0xf bank_mask:0xf")
    for j in range(4):
        p(f"v_lshl_or_b32 v{140+2*j}, v{PP+j}, 16, v63")
        p(f"v_and_or_b32 v{141+2*j}, v{PP+j}, s44, v63")
    p(f"v_max_f32_dpp v{MV}, v{MV}, v{MV} row_ror:8 row_mask:0xf bank_mask:0xf")
    xg_reduce(p, "v_max_f32", MV, T)
    for i in range(NP): p(f"v_sub_f32 v{PM+i}, v{PM+i}, v{MV}")
    for i in range(NP): p(f"v_exp_f32 v{PM+i}, v{PM+i}")
    for i in range(NP):
        r = PP + 4 * i
        if i > 0:
            for j in range(4):
                p(f"v_lshl_or_b32 v{140+2*j}, v{r+j}, 16, v63")
                p(f"v_and_or_b32 v{141+2*j}, v{r+j}, s44, v63")
        for j in range(8):
            if i == 0: p(f"v_mul_f32 v{A8+j}, v{PM}, v{140+j}")
            else: p(f"v_fma_f32 v{A8+j}, v{PM+i}, v{140+j}, v{A8+j}")
    for j in range(4): p(f"v_permlane32_swap_b32 v{A8+j}, v{A8+j+4}")
    for j in range(4): p(f"v_add_f32 v{A8+j}, v{A8+j}, v{A8+j+4}")
    for j in range(2): p(f"v_permlane16_swap_b32 v{A8+j}, v{A8+j+2}")
    for j in range(2): p(f"v_add_f32 v{A8+j}, v{A8+j}, v{A8+j+2}")
    for j in range(2): p(f"v_add_f32_dpp v{A8+j}, v{A8+j}, v{A8+j} row_ror:4 row_mask:0xf bank_mask:0xf")
    p("v_lshlrev_b32 v72, 3, v0")
    p("s_lshl_b32 s28, s20, 9")
    p("v_add_u32 v73, s28, v72")
    for j in range(2): p(f"v_add_f32_dpp v{A8+j}, v{A8+j}, v{A8+j} row_ror:8 row_mask:0xf bank_mask:0xf")
    p("v_lshlrev_b32 v74, 2, v0")
    p("s_lshl_b32 s28, s20, 8")
    p("v_add_u32 v75, s28, v74")
    p(f"ds_write_b64 v73, v[{A8}:{A8+1}]")
    p(f"ds_write_b32 v75, v{MV} offset:2048")
    p("s_barrier")
    p("s_cmp_lg_u32 s20, 0")
    p(f"s_cbranch_scc1 {name}_sdone ;@nodrain")
    for v in range(4):
        p(f"ds_read_b32 v{84+v}, v74 offset:{2048 + 256*v}")
        p(f"ds_read_b64 v[{76+2*v}:{77+2*v}], v72 offset:{512*v}")
    p("v_lshrrev_b32 v66, 4, v0")
    p("v_lshlrev_b32 v66, 3, v66")
    p("v_lshl_add_u32 v66, v56, 5, v66")
    p("s_lshl_b32 s24, s21, 7")
    p(f"s_add_u32 s24, s24, {UF_OFF}")
    p("v_max3_f32 v61, v84, v85, v86")
    p("v_max_f32 v61, v61, v87")
    for v in range(4): p(f"v_sub_f32 v{84+v}, v{84+v}, v61")
    for v in range(4): p(f"v_exp_f32 v{84+v}, v{84+v}")
    for r in range(2): p(f"v_mul_f32 v{64+r}, v84, v{76+r}")
    for v in range(1, 4):
        for r in range(2): p(f"v_fma_f32 v{64+r}, v{84+v}, v{76+2*v+r}, v{64+r}")
    tag_regs(p, range(64, 66), VTAG)
    p("s_mov_b32 exec_lo, 0x000f000f")
    p("s_mov_b32 exec_hi, 0x000f000f")
    p("buffer_store_dwordx2 v[64:65], v66, s[16:19], s24 offen sc1")
    stamp("redout")
    p(f"{name}_sdone:")
    if stamp.on:
        p("s_cmp_lg_u32 s20, 0")
        p(f"s_cbranch_scc1 {name}_done ;@nodrain")
        stamp.dump("streamer")
    p("s_endpgm")

def gen_special(p, name, opt):
    if opt.get("streamonly"):
        p("s_endpgm"); return
    stamp = Prof(p, opt, 64, 92)
    VL16, VI, VG, VTAG, VAB = 1, 2, 3, 4, 5
    LA = list(range(216, 228))
    RS = 784
    TILE_LDS = 16 * RS
    p("s_load_dwordx2 s[4:5], s[0:1], 0")
    p("s_load_dwordx4 s[8:11], s[0:1], 24")
    p("s_load_dwordx4 s[12:15], s[0:1], 40")
    p("s_load_dwordx2 s[6:7], s[0:1], 56")
    p(f"v_lshlrev_b32 v{VL16}, 4, v0")
    p(f"v_and_b32 v{VI}, 15, v0")
    p(f"v_lshrrev_b32 v{VG}, 4, v0")
    p(f"v_mul_u32_u24 v{VAB}, {RS}, v{VI}")
    p(f"v_lshl_add_u32 v{VAB}, v{VG}, 4, v{VAB}")
    for a in range(12):
        p(f"v_add_u32 v6, {1024*a}, v{VL16}")
        p("v_lshrrev_b32 v7, 8, v6")
        p("v_mul_u32_u24 v7, 21846, v7")
        p("v_lshrrev_b32 v7, 16, v7")
        p(f"v_lshl_add_u32 v{LA[a]}, v7, 4, v6")
    p("s_waitcnt lgkmcnt(0)")
    p(f"s_load_dword s94, s[22:23], {N_OFF}")
    srd(p, 16, 22, WS_USED)
    srd(p, 24, 8, W_BYTES)
    srd(p, 28, 10, W_BYTES)
    srd(p, 32, 4, Q_BYTES)
    srd(p, 36, 12, W_BYTES)
    srd(p, 40, 14, W_BYTES)
    srd(p, 44, 6, Q_BYTES)
    aONE = 144
    ONES = f"a[{aONE}:{aONE+3}]"
    def consts():
        for r in range(4): mov64(p, 52 + 2 * r, sum(1 << (20 * g + r) for g in range(4)))
        p(f"s_mov_b32 s60, 0x{f2u(1.0 / C):08x}")
        p(f"s_mov_b32 s61, 0x{f2u(1e-5):08x}")
        p("v_mov_b32 v6, 0x3f803f80")
        for r in range(4): p(f"v_accvgpr_write_b32 a{aONE+r}, v6")
        p("s_waitcnt lgkmcnt(0)")
        p("s_add_u32 s94, s94, 1")
        p(f"s_and_b32 s{S_TAG}, s94, 0xff")
        p(f"v_mov_b32 v{VTAG}, s{S_TAG}")
    p("s_cmp_ge_u32 s100, 6")
    p(f"s_cbranch_scc1 {name}_st2")
    WQS = 64
    QS = 16
    LQ = 0
    LWQ = 12544
    p("v_lshrrev_b32 v7, 3, v0")
    p("v_and_b32 v8, 7, v0")
    p("v_mul_u32_u24 v9, 768, v7")
    p("v_lshl_add_u32 v9, v8, 4, v9")
    p("v_mul_u32_u24 v10, 144, v7")
    p("v_lshl_add_u32 v10, v8, 4, v10")
    p("s_mul_i32 s48, s20, 3072")
    for a in range(3):
        p(f"buffer_load_dwordx4 v[{QS+4*a}:{QS+4*a+3}], v{VL16}, s[32:35], s48 offen offset:{1024*a}")
    p("s_lshl_b32 s48, s100, 7")
    p(f"s_mul_i32 s49, s20, {96*768}")
    p("s_add_u32 s48, s48, s49")
    for a in range(12):
        p(f"buffer_load_dwordx4 v[{WQS+4*a}:{WQS+4*a+3}], v9, s[24:27], s48 offen")
        if a < 11: p(f"s_add_u32 s48, s48, {8*768}")
    consts()
    stamp("issued")
    p("s_mul_i32 s48, s20, 3136")
    for a in range(3):
        p(f"v_add_u32 v6, s48, v{LA[a]}")
        p(f"ds_write_b128 v6, v[{QS+4*a}:{QS+4*a+3}] offset:{LQ}")
    p("s_barrier")
    QFR = 16
    for ks in range(12):
        p(f"ds_read_b128 v[{QFR+4*ks}:{QFR+4*ks+3}], v{VAB} offset:{LQ + 64*ks}")
    for ks in range(12):
        q = f"v[{QFR+4*ks}:{QFR+4*ks+3}]"
        p(f"v_mfma_f32_16x16x32_bf16 v[116:119], {q}, {q}, {'0' if ks == 0 else 'v[116:119]'}")
        p(f"v_mfma_f32_16x16x32_bf16 v[112:115], {ONES}, {q}, {'0' if ks == 0 else 'v[112:115]'}")
    p(f"s_mul_i32 s48, s20, {96*144}")
    p("v_add_u32 v10, s48, v10")
    p("v_lshrrev_b32 v11, 2, v0")
    p("v_and_b32 v11, 3, v11")
    p(f"v_lshl_add_u32 v11, v{VG}, 3, v11")
    p("v_mul_u32_u24 v11, 144, v11")
    p("v_and_b32 v13, 3, v0")
    p("v_lshl_add_u32 v11, v13, 3, v11")
    p("s_lshl_b32 s48, s20, 5")
    p("v_add_u32 v11, s48, v11")
    p("v_cndmask_b32 v12, 0, v116, s[52:53]")
    for r in range(1, 4): p(f"v_cndmask_b32 v12, v12, v{116+r}, s[{52+2*r}:{53+2*r}]")
    p("v_mul_f32 v14, s60, v112")
    xg_reduce(p, "v_add_f32", 12, 13)
    p("v_mov_b32 v13, s61")
    p("v_fma_f32 v12, v12, s60, v13")
    p("v_fma_f32 v12, -v14, v14, v12")
    p("v_max_f32 v12, s61, v12")
    p("v_rsq_f32 v15, v12")
    for a in range(12):
        p(f"ds_write_b128 v10, v[{WQS+4*a}:{WQS+4*a+3}] offset:{LWQ + 8*144*a}")
    stamp("s1ld")
    p("s_barrier")
    stamp("s1bar")
    aWT = 0
    for ks in range(12):
        for h in range(2):
            p(f"ds_read_b64_tr_b16 a[{aWT+4*ks+2*h}:{aWT+4*ks+2*h+1}], v11 offset:{LWQ + 32*144*ks + 4*144*h}")
    for ks in range(12):
        a = f"a[{aWT+4*ks}:{aWT+4*ks+3}]"
        q = f"v[{QFR+4*ks}:{QFR+4*ks+3}]"
        p(f"v_mfma_f32_16x16x32_bf16 v[120:123], {a}, {q}, {'0' if ks == 0 else 'v[120:123]'}")
        p(f"v_mfma_f32_16x16x32_bf16 v[124:127], {a}, {ONES}, {'0' if ks == 0 else 'v[124:127]'}")
    stamp("s1mf")
    for r in range(4): p(f"v_fma_f32 v{120+r}, -v14, v{124+r}, v{120+r}")
    for r in range(4): p(f"v_mul_f32 v{120+r}, v{120+r}, v15")
    tag_regs(p, range(120, 124), VTAG)
    p("s_lshl_b32 s48, s100, 2")
    p("s_add_u32 s48, s48, s20")
    p("s_lshl_b32 s48, s48, 10")
    p(f"s_add_u32 s48, s48, {QF_OFF}")
    p(f"buffer_store_dwordx4 v[120:123], v{VL16}, s[16:19], s48 offen sc1")
    stamp("st1")
    p(f"s_branch {name}_sp_w")
    p(f"{name}_st2: ;@restore st2")
    WKS = 64
    p("s_sub_u32 s21, s100, 6")
    p("s_lshl_b32 s21, s21, 2")
    p("s_add_u32 s21, s21, s20")
    p("s_mul_i32 s48, s21, 12288")
    for a in range(12):
        if a % 4 == 0 and a: p("s_add_u32 s48, s48, 4096")
        p(f"buffer_load_dwordx4 v[{WKS+4*a}:{WKS+4*a+3}], v{VL16}, s[28:31], s48 offen offset:{1024*(a%4)}")
    consts()
    stamp("issued")
    LWK = 0
    LQB = 4 * TILE_LDS
    p(f"s_mul_i32 s48, s20, {TILE_LDS}")
    for a in range(12):
        p(f"v_add_u32 v6, s48, v{LA[a]}")
        p(f"ds_write_b128 v6, v[{WKS+4*a}:{WKS+4*a+3}] offset:{LWK}")
    p(f"v_add_u32 v7, s48, v{VAB}")
    aWK = 48
    for ks in range(12):
        p(f"ds_read_b128 a[{aWK+4*ks}:{aWK+4*ks+3}], v7 offset:{LWK + 64*ks}")
    QR = 120
    loads = ["s_mul_i32 s48, s20, 6144", f"s_add_u32 s48, s48, {QF_OFF}", "s_add_u32 s49, s48, 4096"]
    for q in range(6):
        so, off = ("s48", 1024 * q) if q < 4 else ("s49", 1024 * (q - 4))
        loads.append(f"buffer_load_dwordx4 v[{QR+4*q}:{QR+4*q+3}], v{VL16}, s[16:19], {so} offen offset:{off} sc1")
    poll_block(p, name, loads, list(range(QR, QR + 24)), VTAG, 12, sleep=0)
    stamp("qf_in")
    p(f"v_lshrrev_b32 v7, 1, v{VG}")
    p("v_lshlrev_b32 v7, 8, v7")
    p(f"v_lshl_add_u32 v7, v{VI}, 4, v7")
    p(f"v_and_b32 v8, 1, v{VG}")
    p("v_lshl_add_u32 v7, v8, 3, v7")
    p("s_mul_i32 s48, s20, 3072")
    p("v_add_u32 v7, s48, v7")
    for q in range(6):
        p(f"v_cvt_pk_bf16_f32 v{QR+4*q}, v{QR+4*q}, v{QR+4*q+1}")
        p(f"v_cvt_pk_bf16_f32 v{QR+4*q+1}, v{QR+4*q+2}, v{QR+4*q+3}")
        p(f"ds_write_b64 v7, v[{QR+4*q}:{QR+4*q+1}] offset:{LQB + 512*q}")
    p("s_barrier")
    stamp("s2bar")
    for pp in range(12):
        p(f"ds_read_b128 v[{16+4*pp}:{19+4*pp}], v{VL16} offset:{LQB + 1024*pp}")
    for pp in range(12):
        p(f"v_mfma_f32_16x16x32_bf16 v[112:115], a[{aWK+4*pp}:{aWK+4*pp+3}], v[{16+4*pp}:{19+4*pp}], {'0' if pp == 0 else 'v[112:115]'}")
    for r in range(4): p(f"v_mul_f32 v{112+r}, 0x{f2u(SCALE*LOG2E):08x}, v{112+r}")
    tag_regs(p, range(112, 116), VTAG)
    p("s_lshl_b32 s48, s21, 10")
    p(f"s_add_u32 s48, s48, {QKF_OFF}")
    p(f"buffer_store_dwordx4 v[112:115], v{VL16}, s[16:19], s48 offen sc1")
    stamp("st2")
    p(f"{name}_sp_w:")
    p("s_waitcnt lgkmcnt(0)")
    p("s_nop 7")
    p("s_nop 7")
    p("s_barrier")
    tagpat(p, 4)
    for j in range(4): p(f"v_mov_b32 v{12+j}, s{4+j}")
    p("v_lshrrev_b32 v17, 2, v0")
    p("v_lshlrev_b32 v17, 14, v17")
    p("v_and_b32 v18, 3, v0")
    p("v_lshl_add_u32 v17, v18, 4, v17")
    p(f"s_mul_i32 s48, s20, {3*16*16384}")
    p("s_lshl_b32 s49, s2, 6")
    p("s_add_u32 s48, s48, s49")
    p(f"s_add_u32 s48, s48, {PART_OFF}")
    for k in range(3):
        p("buffer_store_dwordx4 v[12:15], v17, s[16:19], s48 offen sc1")
        if k < 2: p(f"s_add_u32 s48, s48, {16*16384}")
    p("v_mov_b32 v16, 0xf149f2ca")
    p("v_mov_b32 v17, 0")
    p("v_mov_b32 v18, 0")
    p(f"v_mov_b32 v19, v{VTAG}")
    p("s_lshl_b32 s48, s2, 8")
    p("s_lshl_b32 s49, s20, 6")
    p("s_add_u32 s48, s48, s49")
    p(f"s_add_u32 s48, s48, {ML_OFF}")
    p("s_mov_b64 exec, 0xf")
    p(f"buffer_store_dwordx4 v[16:19], v{VL16}, s[16:19], s48 offen sc1")
    p(f"v_bfi_b32 v17, s{S_MASK}, v{VTAG}, v16")
    p(f"v_lshrrev_b32 v18, 2, v{VL16}")
    p("s_lshl_b32 s48, s20, 12")
    p("s_lshl_b32 s49, s2, 4")
    p("s_add_u32 s48, s48, s49")
    p(f"s_add_u32 s48, s48, {M2_OFF}")
    p("buffer_store_dword v17, v18, s[16:19], s48 offen sc1")
    p("s_mov_b64 exec, -1")
    NE = 2
    LWO = 4 * 2 * TILE_LDS
    WRS = 80
    p("v_lshrrev_b32 v7, 2, v0")
    p("v_and_b32 v8, 3, v0")
    p("v_mul_u32_u24 v9, 768, v7")
    p("v_lshl_add_u32 v9, v8, 4, v9")
    p(f"v_mul_u32_u24 v10, {WRS}, v7")
    p("v_lshl_add_u32 v10, v8, 4, v10")
    p("s_lshl_b32 s48, s100, 6")
    p(f"s_mul_i32 s49, s20, {96*768}")
    p("s_add_u32 s48, s48, s49")
    for a in range(6):
        p(f"buffer_load_dwordx4 v[{20+4*a}:{23+4*a}], v9, s[40:43], s48 offen")
        if a < 5: p(f"s_add_u32 s48, s48, {16*768}")
    WVS = 64
    def wv_load(tile):
        b = WVS + 48 * (tile & 1)
        p(f"s_mul_i32 s50, s20, {6*12288}")
        p(f"s_add_u32 s50, s50, {tile*12288}")
        for a in range(12):
            if a % 4 == 0 and a: p("s_add_u32 s50, s50, 4096")
            p(f"buffer_load_dwordx4 v[{b+4*a}:{b+4*a+3}], v{VL16}, s[36:39], s50 offen offset:{1024*(a%4)}")
    wv_load(0); wv_load(1)
    p(f"s_mul_i32 s49, s20, {96*WRS}")
    p("v_add_u32 v10, s49, v10")
    p(f"v_add_u32 v10, {LWO}, v10")
    for a in range(6):
        p(f"ds_write_b128 v10, v[{20+4*a}:{23+4*a}] offset:{16*WRS*a}")
    p("s_barrier")
    p("v_lshrrev_b32 v10, 2, v0")
    p("v_and_b32 v10, 3, v10")
    p(f"v_lshl_add_u32 v10, v{VG}, 3, v10")
    p(f"v_mul_u32_u24 v10, {WRS}, v10")
    p("v_and_b32 v11, 3, v0")
    p("v_lshl_add_u32 v10, v11, 3, v10")
    p(f"v_add_u32 v10, {LWO}, v10")
    for e in range(NE):
        for ks in range(12):
            for h in range(2):
                p(f"ds_read_b64_tr_b16 a[{48*e+4*ks+2*h}:{48*e+4*ks+2*h+1}], v10 offset:{32*e + 32*WRS*ks + 4*WRS*h}")
    p(f"s_mul_i32 s63, s20, {TILE_LDS}")
    for a in range(12): p(f"v_add_u32 v{LA[a]}, s63, v{LA[a]}")
    p(f"v_add_u32 v{VAB}, s63, v{VAB}")
    WF = 160
    DW = 20
    aXV = 96
    for tile in range(6):
        b = WVS + 48 * (tile & 1)
        for a in range(12): p(f"ds_write_b128 v{LA[a]}, v[{b+4*a}:{b+4*a+3}]")
        if tile + 2 < 6: wv_load(tile + 2)
        for ks in range(12): p(f"ds_read_b128 a[{aXV+4*ks}:{aXV+4*ks+3}], v{VAB} offset:{64*ks}")
        for ks in range(12):
            for e in range(NE):
                d = DW + 8 * e + 4 * (tile & 1)
                p(f"v_mfma_f32_16x16x32_bf16 v[{d}:{d+3}], a[{aXV+4*ks}:{aXV+4*ks+3}], a[{48*e+4*ks}:{48*e+4*ks+3}], {'0' if ks == 0 else f'v[{d}:{d+3}]'}")
        if tile & 1:
            for e in range(NE):
                w = WF + 12 * e + 4 * (tile >> 1)
                for k in range(4):
                    p(f"v_cvt_pk_bf16_f32 v{w+k}, v{DW+8*e+2*k}, v{DW+8*e+2*k+1}")
    for e in range(NE):
        for pr in range(3):
            w = WF + 12 * e + 4 * pr
            p(f"v_mfma_f32_16x16x32_bf16 v[{44+4*e}:{47+4*e}], v[{w}:{w+3}], {ONES}, {'0' if pr == 0 else f'v[{44+4*e}:{47+4*e}]'}")
    stamp("wvo")
    p(f"v_mul_u32_u24 v7, 768, v{VI}")
    p(f"v_lshl_add_u32 v7, v{VG}, 3, v7")
    p("s_lshl_b32 s62, s100, 1")
    p("s_and_b32 s48, s20, 1")
    p("s_add_u32 s62, s62, s48")
    p("s_lshl_b32 s62, s62, 5")
    p("buffer_load_dwordx2 v[56:57], v7, s[32:35], s62 offen")
    PM = 64
    FL = f"{name}_fm"
    p("s_lshl_b32 s63, s20, 14")
    p(f"s_add_u32 s63, s63, {ML_OFF}")
    p(f"s_mov_b32 s{S_SPIN}, 0")
    p(f"s_add_u32 s48, s63, {1024*15}")
    p(f"{FL}_pre:")
    p(f"buffer_load_dwordx4 v[{PM}:{PM+3}], v{VL16}, s[16:19], s48 offen sc1")
    p("s_waitcnt vmcnt(0)")
    p(f"v_xor_b32 v12, v{PM+3}, v{VTAG}")
    p(f"v_and_b32 v12, s{S_MASK}, v12")
    p("v_cmp_ne_u32 vcc, 0, v12")
    p(f"s_cbranch_vccz {FL}_go ;@nodrain")
    p("s_sleep 6")
    p(f"s_add_u32 s{S_SPIN}, s{S_SPIN}, 1")
    p(f"s_cmp_lt_u32 s{S_SPIN}, {SPIN_MAX}")
    p(f"s_cbranch_scc1 {FL}_pre ;@nodrain")
    p(f"{FL}_go:")
    p("s_mov_b32 s50, 0xffff")
    p(f"s_mov_b32 s{S_SPIN}, 0")
    p(f"{FL}_loop:")
    for i in range(16):
        p(f"s_bitcmp0_b32 s50, {i}")
        p(f"s_cbranch_scc1 {FL}_a{i} ;@nodrain")
        p(f"s_add_u32 s48, s63, {1024*i}")
        p(f"buffer_load_dwordx4 v[{PM+4*i}:{PM+4*i+3}], v{VL16}, s[16:19], s48 offen sc1")
        p(f"{FL}_a{i}:")
    p("s_waitcnt vmcnt(0)")
    for i in range(16):
        p(f"s_bitcmp0_b32 s50, {i}")
        p(f"s_cbranch_scc1 {FL}_c{i} ;@nodrain")
        p(f"v_xor_b32 v12, v{PM+4*i+3}, v{VTAG}")
        p(f"v_and_b32 v12, s{S_MASK}, v12")
        p("v_cmp_ne_u32 vcc, 0, v12")
        p(f"s_cbranch_vccnz {FL}_c{i} ;@nodrain")
        p(f"s_bitset0_b32 s50, {i}")
        p(f"{FL}_c{i}:")
    p("s_cmp_eq_u32 s50, 0")
    p(f"s_cbranch_scc1 {FL}_done ;@nodrain")
    p(f"s_add_u32 s{S_SPIN}, s{S_SPIN}, 1")
    p(f"s_cmp_lt_u32 s{S_SPIN}, {SPIN_MAX}")
    p(f"s_cbranch_scc1 {FL}_loop ;@nodrain")
    p(f"{FL}_done:")
    p("s_nop 7")
    stamp("ml_in")
    MV, T = 8, 9
    p(f"v_max3_f32 v{MV}, v{PM}, v{PM+4}, v{PM+8}")
    for i in range(3, 15, 2): p(f"v_max3_f32 v{MV}, v{MV}, v{PM+4*i}, v{PM+4*i+4}")
    p(f"v_max_f32 v{MV}, v{MV}, v{PM+60}")
    xg_reduce(p, "v_max_f32", MV, T)
    for i in range(16): p(f"v_sub_f32 v{PM+4*i}, v{PM+4*i}, v{MV}")
    for i in range(16): p(f"v_exp_f32 v{PM+4*i}, v{PM+4*i}")
    p(f"v_mul_f32 v13, v{PM}, v{PM+1}")
    p(f"v_mul_f32 v14, v{PM}, v{PM+2}")
    for i in range(1, 16):
        p(f"v_fma_f32 v13, v{PM+4*i}, v{PM+4*i+1}, v13")
        p(f"v_fma_f32 v14, v{PM+4*i}, v{PM+4*i+2}, v14")
    xg_reduce(p, "v_add_f32", 13, T)
    xg_reduce(p, "v_add_f32", 14, T)
    p(f"v_mov_b32 v12, v{MV}")
    p("v_mov_b32 v15, 0")
    LX = 0
    p("s_barrier")
    p(f"v_lshlrev_b32 v9, 6, v{VI}")
    p("s_lshl_b32 s48, s20, 4")
    p("v_add_u32 v8, s48, v9")
    p(f"ds_write_b128 v8, v[12:15] offset:{LX}")
    p("s_barrier")
    for v in range(4): p(f"ds_read_b128 v[{64+4*v}:{67+4*v}], v9 offset:{LX + 16*v}")
    p("v_max3_f32 v8, v64, v68, v72")
    p("v_max_f32 v8, v8, v76")
    for v in range(4): p(f"v_sub_f32 v{64+4*v}, v{64+4*v}, v8")
    for v in range(4): p(f"v_exp_f32 v{64+4*v}, v{64+4*v}")
    p("v_mul_f32 v13, v64, v65")
    p("v_mul_f32 v14, v64, v66")
    for v in range(1, 4):
        p(f"v_fma_f32 v13, v{64+4*v}, v{65+4*v}, v13")
        p(f"v_fma_f32 v14, v{64+4*v}, v{66+4*v}, v14")
    p("v_rcp_f32 v13, v13")
    p("v_mul_f32 v14, s60, v14")
    UR = 64
    p(f"v_lshlrev_b32 v10, 1, v{VL16}")
    loads = ["s_mul_i32 s48, s20, 6144", f"s_add_u32 s48, s48, {UF_OFF}", "s_add_u32 s49, s48, 4096"]
    for pr in range(3):
        for h in range(2):
            so, off = ("s48", 2048 * pr + 16 * h) if pr < 2 else ("s49", 16 * h)
            loads.append(f"buffer_load_dwordx4 v[{UR+8*pr+4*h}:{UR+8*pr+4*h+3}], v10, s[16:19], {so} offen offset:{off} sc1")
    poll_block(p, name, loads, list(range(UR, UR + 24)), VTAG, 12, sleep=0)
    stamp("u_in")
    for pr in range(3):
        for k in range(4):
            p(f"v_cvt_pk_bf16_f32 v{96+4*pr+k}, v{UR+8*pr+2*k}, v{UR+8*pr+2*k+1}")
    for pr in range(3):
        for e in range(NE):
            w = WF + 12 * e + 4 * pr
            d = 20 + 4 * e
            p(f"v_mfma_f32_16x16x32_bf16 v[{d}:{d+3}], v[{w}:{w+3}], v[{96+4*pr}:{99+4*pr}], {'0' if pr == 0 else f'v[{d}:{d+3}]'}")
    for e in range(NE):
        for r in range(4): p(f"v_fma_f32 v{20+4*e+r}, -v14, v{44+4*e+r}, v{20+4*e+r}")
    LF = 4096
    p("s_lshl_b32 s48, s20, 10")
    p(f"v_add_u32 v8, s48, v{VL16}")
    for e in range(NE): p(f"ds_write_b128 v8, v[{20+4*e}:{23+4*e}] offset:{LF + 4096*e}")
    p("s_barrier")
    p(f"s_cmp_ge_u32 s20, {NE}")
    p(f"s_cbranch_scc1 {name}_done ;@nodrain")
    p("s_lshl_b32 s48, s20, 12")
    p(f"v_add_u32 v8, s48, v{VL16}")
    for v in range(4): p(f"ds_read_b128 v[{64+4*v}:{67+4*v}], v8 offset:{LF + 1024*v}")
    p("v_lshlrev_b32 v80, 16, v56")
    p("v_and_b32 v81, 0xffff0000, v56")
    p("v_lshlrev_b32 v82, 16, v57")
    p("v_and_b32 v83, 0xffff0000, v57")
    for r in range(4):
        p(f"v_add_f32 v{64+r}, v{64+r}, v{68+r}")
        p(f"v_add_f32 v{72+r}, v{72+r}, v{76+r}")
        p(f"v_add_f32 v{64+r}, v{64+r}, v{72+r}")
        p(f"v_fma_f32 v{64+r}, v{64+r}, v13, v{80+r}")
    p("v_cvt_pk_bf16_f32 v64, v64, v65")
    p("v_cvt_pk_bf16_f32 v65, v66, v67")
    p("buffer_store_dwordx2 v[64:65], v7, s[44:47], s62 offen")
    p("s_add_u32 s48, s100, s20")
    p("s_cmp_lg_u32 s48, 0")
    p(f"s_cbranch_scc1 {name}_spe ;@nodrain")
    p("v_mov_b32 v8, s94")
    p(f"v_mov_b32 v9, {N_OFF}")
    p("s_mov_b64 exec, 1")
    p("buffer_store_dword v8, v9, s[16:19], 0 offen")
    p(f"{name}_spe:")
    if stamp.on:
        p("s_cmp_lg_u32 s20, 0")
        p(f"s_cbranch_scc1 {name}_done ;@nodrain")
        p("s_waitcnt vmcnt(0)")
        stamp("end")
        stamp.dump("special")

BAL = [1]
def fold_loop(body, name):
    idx = {}
    for i, l in enumerate(body):
        m = re.match(r"\s*\.set (ZB\d|ZEND), 0", l)
        if m: idx[m.group(1)] = i
    if "ZB4" not in idx: return [l for l in body if not l.strip().startswith(".set Z")]
    def seg(a, b):
        out = []
        for l in body[idx[a]:idx[b]]:
            if l.strip().startswith(".set Z"): continue
            out.append(l)
        return out
    def norm(ls): return [re.sub(r"_lz\d+", "_lzN", l) for l in ls]
    s1, s2, s3 = seg("ZB4", "ZB6"), seg("ZB6", "ZB8"), seg("ZB8", "ZEND")
    for a, b, nm in ((s1, s2, "Z6Z7"), (s1, s3, "Z8Z9")):
        na, nb = norm(a), norm(b)
        if na != nb:
            for i, (x, y) in enumerate(zip(na, nb)):
                if x != y:
                    print("loop segments differ at", nm, i, na[max(0, i-3):i+3], nb[max(0, i-3):i+3]); break
            raise Exception("segments not periodic: %d %d" % (len(na), len(nb)))
    pre = [l for l in body[:idx["ZB4"]] if not l.strip().startswith(".set Z")]
    post = [l for l in body[idx["ZEND"]:] if not l.strip().startswith(".set Z")]
    if "ZB5" in idx: h1 = seg("ZB4", "ZB5"); h2 = seg("ZB5", "ZB6")
    else: h1 = seg("ZB4", "ZB6"); h2 = []
    mid = []
    if BAL[0]:
        mid = ["  s_sub_u32 s48, s101, 2", "  s_or_b32 s48, s48, s97", "  s_cmp_eq_u32 s48, 0", f"  s_cbranch_scc1 {name}_zexit"]
    loop = [f"{name}_zloop:"] + h1 + mid + h2 + ["  s_add_u32 s101, s101, 1", "  s_cmp_lt_u32 s101, 3", f"  s_cbranch_scc1 {name}_zloop", f"{name}_zexit:"]
    print("folded loop: body", len(s1), "instructions")
    return pre + loop + post

def kernel_text(name, p):
    body = fold_loop(p.finalize(True), name)
    return [f".globl {name}", ".p2align 8", f".type {name},@function", f"{name}:"] + body

def kd_text(name, info):
    return [".p2align 6", f".amdhsa_kernel {name}", f"  .amdhsa_next_free_vgpr {info['vgpr']}", "  .amdhsa_next_free_sgpr 102",
            f"  .amdhsa_accum_offset {info['accum']}", "  .amdhsa_group_segment_fixed_size 0", "  .amdhsa_kernarg_size 80",
            "  .amdhsa_user_sgpr_count 2", "  .amdhsa_user_sgpr_kernarg_segment_ptr 1", "  .amdhsa_system_sgpr_workgroup_id_x 1",
            "  .amdhsa_float_denorm_mode_32 3", ".end_amdhsa_kernel"]

HEADER = open("standalone__detection_seg_dino__vision.s.ref").read().split("; Override launch")[0]

def build(path, opt):
    DIAG[0] = bool(opt.get("diag"))
    BAL[0] = opt.get("bal", 0) == 1 and opt.get("loop", 1)
    global SPIN_MAX
    SPIN_MAX = opt.get("spin", SPIN_MAX)
    name = "standalone__detection_seg_dino__vision_kernel"
    p, info = gen_kernel(name, opt)
    text = kernel_text(name, p)
    out = (HEADER.rstrip() + "\n" + f"; @launch grid=({info['grid']},1,1) block=({info['block']},1,1) lds={info['lds']}\n"
           + '.amdgcn_target "amdgcn-amd-amdhsa--gfx950"\n.text\n' + "\n".join(text) + '\n.section .rodata,"a"\n' + "\n".join(kd_text(name, info)) + "\n")
    open(path, "w").write(out)

if __name__ == "__main__":
    opt = {}
    path = sys.argv[1] if len(sys.argv) > 1 else "k2.s"
    for a in sys.argv[2:]:
        k, v = a.split("=", 1)
        opt[k] = int(v) if v.lstrip('-').isdigit() else v
    build(path, opt)
    if LABELS:
        import json
        json.dump(LABELS, open(path[:-2] + ".labels.json", "w"))
```

```python
import sys, math, struct, re
from dsl import Prog

C = 384
F0_BYTES = 113246208
F1_BYTES = 28311552
W_BYTES = 294912
Q_BYTES = 12288
N_OFF = 0
QF_OFF = 4096
QKF_OFF = QF_OFF + 24576
UF_OFF = QKF_OFF + 24576
ML_OFF = UF_OFF + 24576
M2_OFF = ML_OFF + 65536
PART_OFF = 262144
WS_USED = PART_OFF + 256 * 12288
NRED = 192
NSPEC = 12
PROF_OFF = 163840
SPIN_MAX = 1048576

def f2u(x): return struct.unpack('<I', struct.pack('<f', x))[0]
LOG2E = 1.4426950408889634
SCALE = C ** -0.5

def srd(p, base_s, ptr_lo, nbytes):
    p(f"s_mov_b32 s{base_s}, s{ptr_lo}")
    p(f"s_and_b32 s{base_s+1}, s{ptr_lo+1}, 0xffff")
    p(f"s_mov_b32 s{base_s+2}, {nbytes}")
    p(f"s_mov_b32 s{base_s+3}, 0x20000")

def mov64(p, s, val):
    p(f"s_mov_b32 s{s}, 0x{val & 0xffffffff:08x}")
    p(f"s_mov_b32 s{s+1}, 0x{(val >> 32) & 0xffffffff:08x}")

def xg_reduce(p, op, a, tmp):
    p(f"v_mov_b32 v{tmp}, v{a}")
    p(f"v_permlane32_swap_b32 v{a}, v{tmp}")
    p(f"{op} v{a}, v{a}, v{tmp}")
    p(f"v_mov_b32 v{tmp}, v{a}")
    p(f"v_permlane16_swap_b32 v{a}, v{tmp}")
    p(f"{op} v{a}, v{a}, v{tmp}")

S_MASK = 93
S_TAG = 95
S_SPIN = 92

def tag_regs(p, regs, vtag):
    for r in regs: p(f"v_bfi_b32 v{r}, s{S_MASK}, v{vtag}, v{r}")

def check_tags(p, regs, vtag, vacc):
    regs = list(regs)
    for r in regs: p(f"v_xor_b32 v{r}, v{r}, v{vtag}")
    p(f"v_or_b32 v{vacc}, v{regs[0]}, v{regs[1]}")
    rest = regs[2:]
    while len(rest) >= 2:
        p(f"v_or3_b32 v{vacc}, v{vacc}, v{rest[0]}, v{rest[1]}"); rest = rest[2:]
    if rest: p(f"v_or_b32 v{vacc}, v{vacc}, v{rest[0]}")
    p(f"v_and_b32 v{vacc}, s{S_MASK}, v{vacc}")
    p(f"v_cmp_ne_u32 vcc, 0, v{vacc}")

from dsl import Ins
def est_cycles(text):
    t = text.split(';')[0].strip()
    if not t or t.endswith(':') or t.startswith('need') or t.startswith('.set'): return 0
    mn = t.split()[0]
    if mn.startswith('v_mfma'): return 16
    if mn.startswith('v_exp') or mn.startswith('v_rsq') or mn.startswith('v_rcp'): return 8
    if mn.startswith('v_'): return 4
    if mn.startswith('ds_write_b128'): return 16
    if mn.startswith('ds_write'): return 8
    if mn.startswith('ds_read'): return 8
    if mn == 's_barrier': return 80
    if mn.startswith('buffer_'): return 8
    return 4

def schedule_loads(items, loads, pace, lat, dmax, t0=0, verbose=False, policy='model', nreal=150):
    out = []; now = t0
    land = []
    issue_t = []
    free = set(); k = 0
    extras = []
    def landed():
        return sum(1 for x in land if x <= now)
    locked = [False]; credit = [0]; dm = [dmax]; consumed = [0]; gap = [0]; pos = [0]; lastpos = [-10**9]
    def try_issue():
        nonlocal k, now
        if locked[0]: return
        while k < len(loads):
            L = loads[k]
            if L['key'] is not None and L['key'] not in free: break
            if policy == 'model':
                if len(land) - landed() >= dm[0]: break
            else:
                if k - consumed[0] >= dm[0]: break
                if pos[0] - lastpos[0] < gap[0]: break
            for x in L['pre']: out.append(x); now += 4
            out.append(L['ins']); now += 8
            lastpos[0] = pos[0]
            if L['key'] is not None: free.discard(L['key'])
            prev = land[-1] if land else 0
            land.append(max(now + lat, prev + pace)); issue_t.append(now)
            k += 1
    for it in items:
        if isinstance(it, tuple):
            if it[0] == 'use':
                j = it[1]
                while k <= j:
                    L = loads[k]
                    assert L['key'] is None or L['key'] in free, ('slot not free', k, L)
                    for x in L['pre']: out.append(x); now += 4
                    out.append(L['ins']); now += 8
                    if L['key'] is not None: free.discard(L['key'])
                    prev = land[-1] if land else 0
                    land.append(max(now + lat, prev + pace)); issue_t.append(now); k += 1
                now = max(now, land[j])
                consumed[0] = max(consumed[0], j + 1)
                try_issue()
            elif it[0] == 'free': free.add(it[1]); try_issue()
            elif it[0] == 't': now += it[1]; try_issue()
            elif it[0] == 'dmax': dm[0] = it[1]; try_issue()
            elif it[0] == 'gap': gap[0] = it[1]
            elif it[0] == 'zstart': lastpos[0] = -10**9
            elif it[0] == 'zend':
                g = gap[0]; gap[0] = 0; try_issue(); gap[0] = g
            elif it[0] == 'until': now = max(now, it[1]); try_issue()
            elif it[0] == 'force':
                while k < it[1]:
                    L = loads[k]
                    assert L['key'] is None or L['key'] in free, ('slot not free', k, L)
                    for x in L['pre']: out.append(x); now += 4
                    out.append(L['ins']); now += 8
                    if L['key'] is not None: free.discard(L['key'])
                    prev = land[-1] if land else 0
                    land.append(max(now + lat, prev + pace)); issue_t.append(now); k += 1
                    if len(land) > 12: now = max(now, land[-13])
            elif it[0] == 'log':
                if verbose: print(f"   model {it[1]:8s} t={now/2100:.2f}us issued={k}")
            elif it[0] == 'lock': locked[0] = True
            elif it[0] == 'unlock': locked[0] = False
            continue
        out.append(it)
        c = est_cycles(it)
        if it.lstrip().startswith('v_mfma'): credit[0] = 2
        elif credit[0] > 0 and c <= 8: c = 0; credit[0] -= 1
        else: credit[0] = 0
        now += c; pos[0] += c
        if '@noload' not in it: try_issue()
    assert k >= nreal, (k, nreal)
    return out

def timeout_diag(p, site, extra="0", vacc=None):
    p("s_load_dwordx2 s[86:87], s[0:1], 64")
    p("s_lshl_b32 s85, s2, 8")
    p("s_or_b32 s85, s85, s20")
    p("s_or_b32 s85, s85, 0x1000000")
    p("s_waitcnt lgkmcnt(0)")
    p("v_mov_b32 v254, s85") if False else None
DIAG = [False]
def diag_store(p, site, val):
    p("s_load_dwordx2 s[86:87], s[0:1], 64")
    p("s_lshl_b32 s85, s2, 8")
    p("s_or_b32 s85, s85, s20")
    p("s_or_b32 s85, s85, 0x1000000")
    p("s_waitcnt lgkmcnt(0)")
    p("s_mov_b64 s[88:89], exec") if False else None
    p("v_mov_b32 v250, s85")
    p(f"v_mov_b32 v251, {val}")
    p(f"v_mov_b32 v249, {8*site}")
    p("s_ff1_i32_b64 s84, vcc")
    p("s_nop 4")
    p("v_readlane_b32 s83, v251, s84")
    p("s_nop 4")
    p("v_mov_b32 v251, s84")
    p("v_lshlrev_b32 v251, 16, v251")
    p("v_or_b32 v251, s83, v251")
    p("global_store_dwordx2 v249, v[250:251], s[86:87]")
    p("s_waitcnt vmcnt(0)")
def tagpat(p, base):
    for j in range(4):
        p(f"s_lshr_b32 s{base+j}, s{S_TAG}, {2*j}")
        p(f"s_and_b32 s48, s{base+j}, 2")
        p(f"s_lshl_b32 s48, s48, 15")
        p(f"s_and_b32 s{base+j}, s{base+j}, 1")
        p(f"s_or_b32 s{base+j}, s{base+j}, s48")

uid = [0]
def poll_block(p, name, loads, regs, vtag, vacc, preissued=False, lock=False, sleep=1):
    if lock: p.items.append(('lock',))
    uid[0] += 1
    L = f"{name}_pl{uid[0]}"
    if not preissued:
        for x in loads: p(x)
    check_tags(p, regs, vtag, vacc)
    p(f"s_cbranch_vccz {L}_ok")
    p(f"s_mov_b32 s{S_SPIN}, 0")
    p(f"{L}_retry:")
    if sleep: p(f"s_sleep {sleep}")
    for x in loads: p(x)
    p("s_waitcnt vmcnt(0)")
    check_tags(p, regs, vtag, vacc)
    p(f"s_cbranch_vccz {L}_fin")
    p(f"s_add_u32 s{S_SPIN}, s{S_SPIN}, 1")
    p(f"s_cmp_lt_u32 s{S_SPIN}, {SPIN_MAX}")
    p(f"s_cbranch_scc1 {L}_retry")
    if DIAG[0]: diag_store(p, uid[0], f"v{vacc}")
    p(f"{L}_fin:")
    p("s_nop 7")
    p("s_nop 7")
    p(f"{L}_ok: ;@restore {L}")
    if lock: p.items.append(('unlock',))

class Prof:
    def __init__(self, p, opt, base, lim=88):
        self.opt = opt; self.lim = lim; self.p = p; self.on = opt.get("prof", 0); self.lbl = []; self.base = base; self.skip = opt.get("skip", "").split(",")
    def __call__(self, lbl, fine=False):
        if self.on == 7:
            if not self.lbl and self.base == 52: self.lbl = ["z%d" % i for i in range(11)]
            return
        if self.on == 6 and lbl not in ("init", "S", "X012", "pub"): return
        if self.on == 5:
            if lbl in ("init", "S", "F9"):
                for ins in ("s_memtime", "s_memrealtime"):
                    i = len(self.lbl); self.lbl.append(lbl + ins[2:])
                    self.p(f"{ins} s[{self.base+2*i}:{self.base+2*i+1}]")
            return
        if self.on == 4:
            if not fine: return
        elif fine: return
        if self.on and lbl not in self.skip and self.base + 2 * len(self.lbl) < self.lim:
            i = len(self.lbl); self.lbl.append(lbl)
            self.p(f"{'s_memtime' if self.on == 4 else 's_memrealtime'} s[{self.base+2*i}:{self.base+2*i+1}]")
    def dump(self, tagname, srdbase=16):
        if not self.on: return
        p = self.p
        wg = self.opt.get("dbg_" + tagname)
        if wg is not None:
            uid[0] += 1
            p("s_waitcnt vmcnt(0) lgkmcnt(0)")
            p(f"s_cmp_lg_u32 s2, {wg}")
            p(f"s_cbranch_scc1 dbgskip{uid[0]} ;@nodrain")
            p("s_load_dwordx2 s[4:5], s[0:1], 64")
            p("s_waitcnt lgkmcnt(0)")
            p("s_mov_b64 exec, 1")
            p("v_mov_b32 v1, 0")
            off = self.opt.get("dbgoff_" + tagname, 0)
            for i in range(len(self.lbl)):
                if self.on == 5: p(f"v_mov_b32 v2, s{self.base+2*i}")
                else:
                    p(f"s_sub_u32 s3, s{self.base+2*i}, s98")
                    p("v_mov_b32 v2, s3")
                p(f"global_store_dword v1, v2, s[4:5] offset:{4*(off+i)}")
            p(f"dbgskip{uid[0]}:")
        p("s_waitcnt vmcnt(0) lgkmcnt(0)")
        p("s_mov_b64 exec, 1")
        p("s_lshl_b32 s3, s2, 7")
        p(f"s_add_u32 s3, s3, {PROF_OFF}")
        p("v_mov_b32 v1, 0")
        p("v_mov_b32 v2, s98")
        p(f"buffer_store_dword v2, v1, s[{srdbase}:{srdbase+3}], s3 offen")
        for i in range(len(self.lbl)):
            p(f"v_mov_b32 v2, s{self.base+2*i}")
            p(f"buffer_store_dword v2, v1, s[{srdbase}:{srdbase+3}], s3 offen offset:{4*(i+1)}")
        if tagname == "streamer" and self.on == 6:
            p("s_mov_b64 exec, 0x7f")
            p("v_lshlrev_b32 v1, 2, v0")
            p(f"buffer_store_dword v239, v1, s[{srdbase}:{srdbase+3}], s3 offen offset:64")
            p("s_mov_b64 exec, 1")
            p("v_mov_b32 v1, 0")
        if tagname == "streamer":
            p("v_mov_b32 v2, s86")
            p(f"buffer_store_dword v2, v1, s[{srdbase}:{srdbase+3}], s3 offen offset:124")
        print(tagname, "stamps:", self.lbl)
        LABELS[tagname] = list(self.lbl)
LABELS = {}

def gen_kernel(name, opt):
    p = Prog()
    prof = opt.get("prof", 0)
    p("s_cmp_ge_u32 s2, 256")
    p(f"s_cbranch_scc1 {name}_done ;@nodrain")
    if prof: p("s_memrealtime s[98:99]")
    p("s_load_dwordx2 s[22:23], s[0:1], 72")
    p("s_load_dwordx4 s[4:7], s[0:1], 8")
    p("v_readfirstlane_b32 s20, v0")
    p("v_and_b32 v0, 63, v0")
    p("s_lshr_b32 s20, s20, 6")
    p(f"s_mov_b32 s{S_MASK}, 0xff")
    p("s_lshr_b32 s100, s2, 3")
    p("s_lshl_b32 s100, s100, 2")
    p("s_and_b32 s21, s2, 7")
    p("s_add_u32 s100, s100, s21")
    p("s_sub_u32 s101, s100, 4")
    p(f"s_sub_u32 s3, s2, {NSPEC}")
    p("s_cmp_lt_u32 s2, 24")
    p("s_cselect_b32 s101, s101, s3")
    p("s_cselect_b32 s3, s21, 7")
    p("s_mov_b32 s21, s101")
    p("s_cmp_lt_u32 s3, 4")
    p(f"s_cbranch_scc1 {name}_special")
    gen_streamer(p, name, opt)
    p(f"{name}_special: ;@restore entry")
    gen_special(p, name, opt)
    p(f"{name}_done:")
    p("s_endpgm")
    return p, dict(vgpr=252 + 196, accum=252, lds=160256, grid=256, block=256)

def gen_streamer(p, name, opt):
    NT = " nt" if opt.get("nt", True) else ""
    prof = opt.get("prof", 0)
    NS = 10
    SP = opt.get("sp", 9 if opt.get("bal", 0) == 1 else 8)
    ST = lambda k: 76 + 60 * k
    F1R = lambda k, t: ST(k) + 4 * t
    F0R = lambda k, t, d: ST(k) + 12 + 16 * t + 4 * d
    VF0, VF1, VL16 = 1, 2, 3
    WA = [[4, 5, 6, 7], [216, 217, 218, 219]]
    RA = [[11, 12, 13, 14], [220, 221, 222, 223]]
    VTAG = 8
    QBA = 9
    TR = [15, 16, 17, 18, 19, 20]
    MXW, MXR, WXW, WXR = 21, 22, 23, 24
    M, L, Z, SN = 25, 26, 27, 28
    ACC = 32
    D1, D2, D3 = 56, 60, 64
    Uu, SS, RS, TM, TM2, AL, WF = 68, 69, 70, 71, 72, 73, 74
    U = 196; TT = 204
    QK = 212 + 12
    QKR = 212
    aQB, aXA, aXT, aONE = 0, 48, 96, 192
    XBUF = 49152; XT = 12288
    MX_OFF = 147456; LZ_OFF = MX_OFF + 256; QBL_OFF = LZ_OFF + 256; WX_OFF = QBL_OFF
    D1B = [56, 212, 216]; D3B = [64, 240, 244]; RSB = [70, 248, 249]; WFB = [74, 220, 222]
    XAB = [48, 96, 144]
    XTB = [96, 144]
    WA[1] = [228, 229, 230, 231]; RA[1] = [232, 233, 234, 235]
    QKR = 204 - 0
    QKR = 212
    WA[1] = [236, 237, 238, 239]; RA[1] = [29, 30, 31, 10]
    QKR = 212

    NSTR = 256 - NSPEC
    base_cnt = 9216 // NSTR; nbig = 9216 - base_cnt * NSTR
    assert base_cnt == 37
    glob = opt.get("glob", 1)
    if not glob:
        p(f"s_mul_i32 s96, s21, {base_cnt}")
        p(f"s_min_u32 s97, s21, {nbig}")
        p("s_add_u32 s96, s96, s97")
        p(f"s_cmp_lt_u32 s21, {nbig}")
        p("s_cselect_b32 s97, 2, 1")
        p("s_add_u32 s90, s96, s20")
        p("s_add_u32 s91, s90, s97")
        p("s_sub_u32 s91, s91, 4")
    else:
        if opt.get("bal", 0) == 2:
            NE3 = opt.get("ne3", 72); KL = 1
            p("s_sub_u32 s91, s2, 24")
            p("s_lshr_b32 s91, s91, 3")
            p("s_lshl_b32 s91, s91, 2")
            p("s_and_b32 s97, s2, 3")
            p("s_add_u32 s91, s91, s97")
            p(f"s_min_u32 s96, s91, {NE3}")
            p(f"s_cmp_lt_u32 s91, {NE3}")
            p("s_cselect_b32 s28, 3, 2")
            p("s_lshl_b32 s91, s91, 1")
            p("s_add_u32 s91, s91, s96")
            p("s_lshr_b32 s96, s2, 3")
            p("s_lshl_b32 s96, s96, 2")
            p("s_add_u32 s96, s96, s97")
            p(f"s_add_u32 s96, s96, {432 - 128}")
            p("s_and_b32 s29, s2, 4")
            p("s_cmp_eq_u32 s29, 0")
            p("s_cselect_b32 s91, s91, s96")
            p("s_cselect_b32 s97, s28, 1")
            p("s_add_u32 s91, s91, s20")
        elif opt.get("bal", 0):
            p("s_sub_u32 s91, s2, 24")
            p("s_lshr_b32 s91, s91, 3")
            p("s_lshl_b32 s91, s91, 2")
            p("s_and_b32 s97, s2, 3")
            p("s_add_u32 s91, s91, s97")
            p("s_min_u32 s96, s91, 84")
            p("s_cmp_lt_u32 s91, 84")
            p("s_cselect_b32 s97, 4, 3")
            p("s_mul_i32 s91, s91, 3")
            p("s_add_u32 s91, s91, s96")
            p("s_add_u32 s91, s91, s20")
            p("s_and_b32 s96, s2, 4")
            p("s_cmp_eq_u32 s96, 0")
            p("s_cselect_b32 s97, s97, 0")
        else:
            p(f"s_min_u32 s97, s21, {nbig}")
            p("s_add_u32 s91, s21, s97")
            p("s_add_u32 s91, s91, s20")
            p(f"s_cmp_lt_u32 s21, {nbig}")
            p("s_cselect_b32 s97, 2, 1")
        p("s_lshl_b32 s90, s21, 2")
        p("s_add_u32 s90, s90, s20")
    FP, J = 56, 57
    p(f"v_lshrrev_b32 v{FP}, 4, v0")
    p(f"v_and_b32 v{J}, 15, v0")
    p(f"v_mul_u32_u24 v{VF0}, 1536, v{FP}")
    p(f"v_lshl_add_u32 v{VF0}, v{J}, 4, v{VF0}")
    p(f"v_mul_u32_u24 v{VF1}, 768, v{FP}")
    p(f"v_lshl_add_u32 v{VF1}, v{J}, 4, v{VF1}")
    p(f"v_lshlrev_b32 v{VL16}, 4, v0")
    if opt.get("linear"):
        for t in range(3):
            p(f"v_add_u32 v58, {64*t}, v0")
            p("v_mul_u32_u24 v59, 1366, v58")
            p("v_lshrrev_b32 v59, 16, v59")
            p("v_mul_u32_u24 v60, 48, v59")
            p("v_sub_u32 v60, v58, v60")
            p(f"v_mul_u32_u24 v{240+t}, 1536, v59")
            p(f"v_lshl_add_u32 v{240+t}, v60, 4, v{240+t}")
    p("s_waitcnt lgkmcnt(0)")
    srd(p, 8, 4, F0_BYTES)
    srd(p, 12, 6, F1_BYTES)
    srd(p, 16, 22, WS_USED)
    p(f"s_load_dword s94, s[22:23], {N_OFF}")

    LOOP = opt.get("loop", 1)
    full = 4 * NSTR; part = NSTR + nbig
    p("s_sub_u32 s91, s91, s90")
    p("s_mov_b32 s96, -1")
    p("s_cmp_lt_u32 s20, s97")
    p("s_cselect_b32 s89, 0, 0xf149f2ca")
    def tile_offsets(s):
        p("s_add_u32 s96, s96, 1")
        p(f"s_mul_i32 s27, s96, {full}")
        p("s_add_u32 s27, s27, s90")
        p(f"s_cmp_gt_u32 s96, {SP}")
        p(f"s_cselect_b32 s28, {(part - full) & 0xffffffff}, 0")
        p("s_add_u32 s27, s27, s28")
        p(f"s_cmp_eq_u32 s96, {SP}")
        p("s_cselect_b32 s28, s91, 0")
        p("s_cselect_b32 s23, s89, 0")
        p("s_add_u32 s27, s27, s28")
        p("s_mul_i32 s24, s27, 3072")
        p(f"s_mul_hi_u32 s28, s27, {(2**32 + 47)//48}")
        p("s_mul_i32 s29, s28, 48")
        p("s_sub_u32 s29, s27, s29")
        p("s_mul_i32 s25, s28, 589824")
        p("s_mul_i32 s29, s29, 6144")
        p("s_add_u32 s25, s25, s29")
        p("s_add_u32 s26, s25, 294912")
        p(f"s_cmp_ge_u32 s96, {NS}")
        p("s_cselect_b32 s23, 1, s23")
        p("s_cmp_eq_u32 s23, 0")
        p(f"s_cselect_b32 s10, {F0_BYTES}, 0")
        p(f"s_cselect_b32 s14, {F1_BYTES}, 0")
    loads = []
    lidx = {}
    class Cap:
        def __init__(self): self.l = []
        def __call__(self, x): self.l.append(x)
    def build_loads():
        nonlocal p
        for s in range(NS + 2):
            keep = p; p = Cap(); tile_offsets(s); pre = p.l; p = keep
            for t in range(3):
                r = F1R(s & 1, t)
                lidx[(s, 'f1', t)] = len(loads)
                loads.append(dict(pre=pre, key=(s & 1, 'f1', t) if s >= 2 else None,
                                  ins=(f"buffer_load_dwordx4 v[{r}:{r+3}], v{VL16}, s[12:15], s24 offen offset:{1024*t}{NT}" if opt.get("linear") else
                                       f"buffer_load_dwordx4 v[{r}:{r+3}], v{VF1}, s[12:15], s24 offen offset:{256*t}{NT}")))
                pre = []
                for d in range(4):
                    r = F0R(s & 1, t, d)
                    so = "s25" if d < 2 else "s26"
                    lidx[(s, t, d)] = len(loads)
                    loads.append(dict(pre=[], key=(s & 1, t, d) if s >= 2 else None,
                                      ins=(f"buffer_load_dwordx4 v[{r}:{r+3}], v{240+t}, s[8:11], {so} offen offset:{768*(d&1)}{NT}" if opt.get("linear") else
                                           f"buffer_load_dwordx4 v[{r}:{r+3}], v{VF0}, s[8:11], {so} offen offset:{256*t + 768*(d&1)}{NT}")))
    build_loads()
    def mark(*a): p.items.append(a)
    stream_start = len(p.items)
    mark('t', 0)

    p("s_waitcnt lgkmcnt(0)")
    p("s_add_u32 s94, s94, 1")
    p(f"s_and_b32 s{S_TAG}, s94, 0xff")
    p(f"v_mov_b32 v{VTAG}, s{S_TAG}")
    tagpat(p, 4)

    p(f"s_mul_i32 s47, s20, {XT}")
    p(f"v_and_b32 v58, 1, v{FP}")
    p(f"v_lshlrev_b32 v58, 3, v58")
    p(f"v_lshrrev_b32 v59, 1, v{FP}")
    p(f"v_add_u32 v58, v58, v59")
    p(f"v_xor_b32 v58, v58, v{J}")
    p(f"v_lshlrev_b32 v58, 4, v58")
    p(f"v_mul_u32_u24 v59, 3072, v{FP}")
    p(f"v_add_u32 v58, v58, v59")
    p(f"v_add_u32 v{WA[0][0]}, s47, v58")
    for d in range(1, 4): p(f"v_xor_b32 v{WA[0][d]}, {32*d}, v{WA[0][0]}")
    for d in range(4): p(f"v_add_u32 v{WA[1][d]}, {2*XBUF}, v{WA[0][d]}")
    I, G, SI = 57, 56, 58
    p(f"v_and_b32 v{SI}, 7, v{I}")
    p(f"v_lshlrev_b32 v{SI}, 1, v{SI}")
    p(f"v_lshrrev_b32 v59, 3, v{I}")
    p(f"v_or_b32 v{SI}, v{SI}, v59")
    p(f"v_lshlrev_b32 v59, 1, v{G}")
    p(f"v_xor_b32 v59, v59, v{SI}")
    p(f"v_mul_u32_u24 v60, 768, v{I}")
    p(f"v_add_u32 v60, s47, v60")
    for b3 in range(2):
        for b0 in range(2):
            r = RA[0][2 * b3 + b0]
            p(f"v_xor_b32 v{r}, {8*b3+b0}, v59")
            p(f"v_lshl_add_u32 v{r}, v{r}, 4, v60")
            p(f"v_add_u32 v{RA[1][2*b3+b0]}, {2*XBUF}, v{r}")
    p(f"v_lshlrev_b32 v{MXR}, 4, v{I}")
    p(f"v_lshrrev_b32 v59, 1, v{G}")
    p(f"v_lshlrev_b32 v59, 10, v59")
    p(f"v_and_b32 v60, 1, v{G}")
    p(f"v_lshl_add_u32 v59, v60, 3, v59")
    p(f"v_add_u32 v59, v59, v{MXR}")
    p(f"v_add_u32 v{QBA}, {QBL_OFF}, v59")
    p(f"v_add_u32 v{MXR}, {MX_OFF}, v{MXR}")
    p("s_lshl_b32 s48, s20, 2")
    p(f"v_add_u32 v{MXW}, s48, v{MXR}")
    p(f"v_add_u32 v{WXR}, {WX_OFF}, v{VL16}")
    p("s_lshr_b32 s48, s20, 1")
    p("s_lshl_b32 s48, s48, 10")
    p("s_and_b32 s49, s20, 1")
    p("s_lshl_b32 s49, s49, 3")
    p("s_add_u32 s48, s48, s49")
    p(f"v_add_u32 v{WXW}, s48, v{WXR}")
    I = 56
    p(f"v_lshrrev_b32 v{I}, 2, v0")
    p(f"v_and_b32 v{SI}, 7, v{I}")
    p(f"v_lshlrev_b32 v{SI}, 1, v{SI}")
    p(f"v_lshrrev_b32 v59, 3, v{I}")
    p(f"v_or_b32 v{SI}, v{SI}, v59")
    p(f"v_and_b32 v59, 3, v0")
    p(f"v_lshrrev_b32 v60, 1, v59")
    p(f"v_xor_b32 v{SI}, v{SI}, v60")
    p(f"v_and_b32 v59, 1, v59")
    p(f"v_lshlrev_b32 v59, 3, v59")
    p(f"v_mul_u32_u24 v60, 768, v{I}")
    p(f"v_add_u32 v60, v60, v59")
    p("s_mul_i32 s48, s20, 6")
    for q in range(6):
        p(f"s_add_u32 s49, s48, {q}")
        p("s_and_b32 s50, s49, 7")
        p("s_lshl_b32 s50, s50, 1")
        p("s_lshr_b32 s49, s49, 3")
        p("s_lshl_b32 s49, s49, 8")
        p(f"v_xor_b32 v{TR[q]}, s50, v{SI}")
        p(f"v_lshl_add_u32 v{TR[q]}, v{TR[q]}, 4, v60")
        p(f"v_add_u32 v{TR[q]}, s49, v{TR[q]}")
    for r in range(4):
        mov64(p, 30 + 2 * r, sum(1 << (20 * g + r) for g in range(4)))
    for r in range(1, 4):
        mov64(p, 38 + 2 * (r - 1), 0x1111111111111111 << r)
    p("s_mov_b32 s44, 0xffff0000")
    p("s_mov_b32 s87, 0xffffff00")
    p(f"s_mov_b32 s45, 0x{f2u(1.0 / C):08x}")
    p(f"s_mov_b32 s46, 0x{f2u(1e-5):08x}")
    p("s_mov_b32 s51, 0x00003f80")
    p("s_mov_b32 s3, 0x3f800000")
    for r in range(24): p(f"v_mov_b32 v{ACC+r}, 0")
    p(f"v_mov_b32 v{M}, 0xf149f2ca")
    p(f"v_mov_b32 v{L}, 0")
    p(f"v_mov_b32 v{Z}, 0")
    p("v_mov_b32 v56, 0x3f803f80")
    for r in range(4): p(f"v_accvgpr_write_b32 a{aONE+r}, v56")

    tr_slot = [0]
    dyn = [False]
    def wa(slot, d, t):
        if dyn[0]: return (WA[0][d], 768 * d + 256 * t)
        return (WA[0][d], slot * XBUF + 768 * d + 256 * t) if slot < 2 else (WA[1][d], 768 * d + 256 * t)
    def ra(slot, ks):
        i = 2 * ((ks >> 1) & 1) + (ks & 1)
        if dyn[0]: return (RA[0][i], 256 * (ks >> 2))
        return (RA[0][i], slot * XBUF + 256 * (ks >> 2)) if slot < 2 else (RA[1][i], 256 * (ks >> 2))

    def m_reads(s, t, xa=aXA):
        for ks in range(4 * t, 4 * t + 4):
            r, off = ra(s % 3, ks)
            p(f"ds_read_b128 a[{xa+4*ks}:{xa+4*ks+3}], v{r} offset:{off}")
    def m_mfma(s, t, b=0, what="gol", xa=aXA):
        d1, d3 = D1B[b], D3B[b]
        G_, O_, L_ = [], [], []
        for ks in range(4 * t, 4 * t + 4):
            x = f"a[{xa+4*ks}:{xa+4*ks+3}]"
            c1 = "0" if ks == 0 else f"v[{d1}:{d1+3}]"
            c2 = "0" if ks == 0 else f"v[{D2}:{D2+3}]"
            c3 = "0" if ks == 0 else f"v[{d3}:{d3+3}]"
            G_.append(f"v_mfma_f32_16x16x32_bf16 v[{D2}:{D2+3}], {x}, {x}, {c2}")
            O_.append(f"v_mfma_f32_16x16x32_bf16 v[{d3}:{d3+3}], {x}, a[{aONE}:{aONE+3}], {c3}")
            L_.append(f"v_mfma_f32_16x16x32_bf16 v[{d1}:{d1+3}], {x}, a[{aQB+4*ks}:{aQB+4*ks+3}], {c1}")
        if what == "l":
            for x in L_: p(x)
        elif what == "go":
            for g_, o_ in zip(G_, O_): p(g_); p(o_)
        elif t < 2:
            for g_, o_, l_ in zip(G_, O_, L_): p(g_); p(o_); p(l_)
        else:
            for g_, o_ in zip(G_, O_): p(g_); p(o_)
            for l_ in L_: p(l_)
    def stats(b):
        d3, rs = D3B[b], RSB[b]
        p(f"v_cndmask_b32 v{Uu}, 0, v{D2}, s[30:31]")
        for r in range(1, 4):
            p(f"v_cndmask_b32 v{Uu}, v{Uu}, v{D2+r}, s[{30+2*r}:{31+2*r}]")
        p(f"v_cndmask_b32 v{SS}, v{d3}, v{d3+1}, s[38:39]")
        p(f"v_cndmask_b32 v{SS}, v{SS}, v{d3+2}, s[40:41]")
        p(f"v_add_f32_dpp v{Uu}, v{Uu}, v{Uu} row_ror:4 row_mask:0xf bank_mask:0xf")
        p(f"v_cndmask_b32 v{SS}, v{SS}, v{d3+3}, s[42:43]")
        p(f"v_mov_b32 v{TM}, s46")
        p(f"v_add_f32_dpp v{Uu}, v{Uu}, v{Uu} row_ror:8 row_mask:0xf bank_mask:0xf")
        p(f"v_mul_f32 v{SS}, s45, v{SS}")
        p(f"v_fma_f32 v{Uu}, v{Uu}, s45, v{TM}")
        p(f"v_fma_f32 v{Uu}, -v{SS}, v{SS}, v{Uu}")
        p(f"v_max_f32 v{Uu}, s46, v{Uu}")
        p(f"v_rsq_f32 v{rs}, v{Uu}")
    def stage_G(s, b):
        for t in range(3): m_reads(s, t)
        mark('t', 120)
        for t in range(3): m_mfma(s, t, b, "go")
        stats(b)

    def stage_A(s, ld, fuse, thirds=(0, 1, 2)):
        slot = s % 3; k = s & 1
        for t in thirds:
            if (s, t) == qpos: qk_issue()
            f1 = F1R(k, t)
            mark('use', lidx[(s, 'f1', t)])
            cw = opt.get("cw", 2) if s >= 3 else 0
            if cw:
                dd = 3 if cw == 3 else 1
                mark('use', lidx[(s, t, dd)])
                p(f"need v[{F0R(k, t, dd)}:{F0R(k, t, dd)+3}]")
            for j in range(4):
                p(f"v_lshlrev_b32 v{U+2*j}, 16, v{f1+j}")
                p(f"v_and_b32 v{U+2*j+1}, s44, v{f1+j}")
            mark('free', (k, 'f1', t))
            for d in range(4):
                f0 = F0R(k, t, d)
                mark('use', lidx[(s, t, d)])
                if cw == 2 and d == 2:
                    mark('use', lidx[(s, t, 3)])
                    p(f"need v[{F0R(k, t, 3)}:{F0R(k, t, 3)+3}]")
                for j in range(4):
                    p(f"v_dot2_f32_bf16 v{TT+2*j}, v{f0+j}, s51, v{U+2*j}")
                    p(f"v_dot2_f32_bf16 v{TT+2*j+1}, v{f0+j}, s3, v{U+2*j+1}")
                for j in range(4):
                    p(f"v_cvt_pk_bf16_f32 v{f0+j}, v{TT+2*j}, v{TT+2*j+1}")
                r, off = wa(slot, d, t)
                p(f"ds_write_b128 v{r}, v[{f0}:{f0+3}] offset:{off}")
                mark('free', (k, t, d))
            if fuse:
                m_reads(s, t)
                mark('t', 120)
                m_mfma(s, t)
        if fuse: stats(0)

    def stage_M(tiles, pre):
        if pre:
            for b, s in enumerate(tiles):
                for t in range(3): m_reads(s, t, XAB[b])
            mark('t', 100)
            for b, s in enumerate(tiles):
                for t in range(3): m_mfma(s, t, b, "l", XAB[b])
        else:
            for b, s in enumerate(tiles):
                if b == 0:
                    for t in range(3): m_reads(s, t, XAB[0])
                    mark('t', 120)
                if b + 1 < len(tiles):
                    for t in range(3): m_reads(tiles[b + 1], t, XAB[b + 1])
                for t in range(3): m_mfma(s, t, b, "gol", XAB[b])
                stats(b)

    qpos = None
    qk_loads = []
    qk_loads.append("s_mul_i32 s48, s20, 6144")
    qk_loads.append(f"s_add_u32 s48, s48, {QKF_OFF}")
    qk_loads.append("s_add_u32 s49, s48, 4096")
    for q in range(6):
        so, off = ("s48", 1024 * q) if q < 4 else ("s49", 1024 * (q - 4))
        qk_loads.append(f"buffer_load_dwordx4 v[{QKR+4*q}:{QKR+4*q+3}], v{VL16}, s[16:19], {so} offen offset:{off} sc1")
    def qk_issue():
        for x in qk_loads: p(x)
    def qb_setup(fused=False):
        QA = [196 + q for q in range(6)]
        for q in range(6):
            p("s_mul_i32 s48, s20, 6")
            p(f"s_add_u32 s48, s48, {q}")
            p("s_lshr_b32 s49, s48, 2")
            p("s_lshl_b32 s49, s49, 11")
            p("s_and_b32 s48, s48, 3")
            p("s_lshl_b32 s48, s48, 8")
            p("s_add_u32 s48, s48, s49")
            p(f"v_add_u32 v{QA[q]}, s48, v{QBA}")
        p(f"v_add_u32 v202, {QBL_OFF}, v{VL16}")
        if fused:
            for t in range(3): m_reads(0, t, 96)
            for t in range(3): m_reads(1, t, 144)
        mark('t', 300)
        stamp("Q0")
        if opt.get("prof") == 1: p(f"s_mov_b32 s{S_SPIN}, 0xffff")
        poll_block(p, name, qk_loads, list(range(QKR, QKR + 24)), VTAG, TM, preissued=True, lock=True)
        stamp("Qok")
        if opt.get("dq"): mark('dmax', opt["dq"])
        if opt.get("prof") == 1: p(f"s_mov_b32 s86, s{S_SPIN}")
        for q in range(6):
            p(f"v_cvt_pk_bf16_f32 v{QKR+4*q}, v{QKR+4*q}, v{QKR+4*q+1}")
            p(f"v_cvt_pk_bf16_f32 v{QKR+4*q+1}, v{QKR+4*q+2}, v{QKR+4*q+3}")
            p(f"ds_write_b64 v{QA[q]}, v[{QKR+4*q}:{QKR+4*q+1}]")
        p("s_barrier")
        stamp("Sbar")
        for ks in range(12):
            p(f"ds_read_b128 a[{aQB+4*ks}:{aQB+4*ks+3}], v202 offset:{1024*ks}")
        mark('t', 100)
        if not fused:
            for ks in range(12):
                c = "0" if ks == 0 else f"v[{D1}:{D1+3}]"
                p(f"v_mfma_f32_16x16x32_bf16 v[{D1}:{D1+3}], a[{aONE}:{aONE+3}], a[{aQB+4*ks}:{aQB+4*ks+3}], {c}")
            p(f"v_mul_f32 v{SN}, s45, v{D1}")
        else:
            xa = [96, 144, 48]
            for ks in range(12):
                qb = f"a[{aQB+4*ks}:{aQB+4*ks+3}]"
                p(f"v_mfma_f32_16x16x32_bf16 v[{D2}:{D2+3}], a[{aONE}:{aONE+3}], {qb}, {'0' if ks == 0 else f'v[{D2}:{D2+3}]'}")
                for b in range(3):
                    d1 = D1B[b]
                    p(f"v_mfma_f32_16x16x32_bf16 v[{d1}:{d1+3}], a[{xa[b]+4*ks}:{xa[b]+4*ks+3}], {qb}, {'0' if ks == 0 else f'v[{d1}:{d1+3}]'}")
            p(f"v_mul_f32 v{SN}, s45, v{D2}")

    first_bc = [True]
    def set_tr(slot):
        if slot != tr_slot[0]:
            dlt = (slot - tr_slot[0]) * XBUF
            for q in range(6):
                if dlt > 0: p(f"v_add_u32 v{TR[q]}, {dlt}, v{TR[q]}")
                else: p(f"v_subrev_u32 v{TR[q]}, {-dlt}, v{TR[q]}")
            tr_slot[0] = slot
    def tr_list(xt):
        trs = []
        for kst in range(2):
            for q in range(6):
                for h in range(2):
                    j = 2 * kst + h
                    a = xt + 8 * q + 4 * kst + 2 * h
                    trs.append(f"ds_read_b64_tr_b16 a[{a}:{a+1}], v{TR[q]} offset:{j*XT}")
        return trs
    def stage_B(tiles):
        nb = len(tiles)
        set_tr(tiles[0] % 3)
        for b, s in enumerate(tiles):
            d1, d3, rs = D1B[b], D3B[b], RSB[b]
            for r in range(4):
                p(f"v_fma_f32 v{d1+r}, -v{d3+r}, v{SN}, v{d1+r}")
            for r in range(4):
                p(f"v_mul_f32_dpp v{d1+r}, v{rs}, v{d1+r} quad_perm:[{r},{r},{r},{r}] row_mask:0xf bank_mask:0xf")
            if s == SP:
                for r in range(4): p(f"v_add_f32 v{d1+r}, s89, v{d1+r}")
        vals = [D1B[b] + r for b in range(nb) for r in range(4)]
        p(f"v_max3_f32 v{TM}, v{vals[0]}, v{vals[1]}, v{vals[2]}")
        rest = vals[3:]
        while len(rest) >= 2:
            p(f"v_max3_f32 v{TM}, v{TM}, v{rest[0]}, v{rest[1]}"); rest = rest[2:]
        if rest: p(f"v_max_f32 v{TM}, v{TM}, v{rest[0]}")
        xg_reduce(p, "v_max_f32", TM, TM2)
        p(f"ds_write_b32 v{MXW}, v{TM}")
        mark('t', 100)
        p("s_barrier")
        p(f"ds_read_b128 v[{D2}:{D2+3}], v{MXR}")
        mark('t', 80)
        trs = tr_list(XTB[0])
        for x in trs[:12]: p(x)
        p(f"v_max3_f32 v{TM}, v{D2}, v{D2+1}, v{D2+2}")
        p(f"v_max3_f32 v{TM}, v{TM}, v{D2+3}, v{M}")
        p(f"v_and_b32 v{TM}, s87, v{TM}")
        p(f"v_sub_f32 v{AL}, v{M}, v{TM}")
        p(f"v_mov_b32 v{M}, v{TM}")
        p(f"v_exp_f32 v{AL}, v{AL}")
        for v in vals: p(f"v_sub_f32 v{v}, v{v}, v{M}")
        for v in vals: p(f"v_exp_f32 v{v}, v{v}")
        for x in trs[12:]: p(x)
        p(f"v_add_f32 v{TM}, v{vals[0]}, v{vals[1]}")
        p(f"v_add_f32 v{TM2}, v{vals[2]}, v{vals[3]}")
        for i in range(4, len(vals), 2):
            p(f"v_add_f32 v{TM}, v{TM}, v{vals[i]}")
            p(f"v_add_f32 v{TM2}, v{TM2}, v{vals[i+1]}")
        p(f"v_add_f32 v{TM}, v{TM}, v{TM2}")
        p(f"v_fma_f32 v{L}, v{L}, v{AL}, v{TM}")
        for b in range(nb):
            d1, rs, wf = D1B[b], RSB[b], WFB[b]
            for r in range(4):
                p(f"v_mul_f32_dpp v{d1+r}, v{rs}, v{d1+r} quad_perm:[{r},{r},{r},{r}] row_mask:0xf bank_mask:0xf")
            p(f"v_cvt_pk_bf16_f32 v{wf}, v{d1}, v{d1+1}")
            p(f"v_cvt_pk_bf16_f32 v{wf+1}, v{d1+2}, v{d1+3}")
            p(f"ds_write_b64 v{WXW}, v[{wf}:{wf+1}] offset:{2048*b}")
        if nb > 1:
            set_tr(tiles[1] % 3)
            for x in tr_list(XTB[1]): p(x)
        p(f"v_mul_f32 v{Z}, v{Z}, v{AL}")
        for b in range(nb):
            for r in range(4): p(f"v_fma_f32 v{Z}, v{D1B[b]+r}, v{D3B[b]+r}, v{Z}")
        if not first_bc[0]:
            for r in range(24): p(f"v_mul_f32 v{ACC+r}, v{ACC+r}, v{AL}")
        first_bc[0] = False
        p("s_barrier")

    def stage_C(tiles):
        nb = len(tiles)
        WR = [(D1, D2), (212, 216), (D1, D2)]
        for b in range(min(nb, 2)):
            p(f"ds_read_b128 v[{WR[b][0]}:{WR[b][0]+3}], v{WXR} offset:{2048*b}")
            p(f"ds_read_b128 v[{WR[b][1]}:{WR[b][1]+3}], v{WXR} offset:{2048*b + 1024}")
        mark('t', 120)
        for b in range(nb):
            xt = XTB[b & 1]
            for kst in range(2):
                bb = WR[b][kst]
                for q in range(6):
                    a = xt + 8 * q + 4 * kst
                    p(f"v_mfma_f32_16x16x32_bf16 v[{ACC+4*q}:{ACC+4*q+3}], a[{a}:{a+3}], v[{bb}:{bb+3}], v[{ACC+4*q}:{ACC+4*q+3}]")
            if b == 0 and nb == 3:
                set_tr(tiles[2] % 3)
                for x in tr_list(XTB[0]): p(x)
                p(f"ds_read_b128 v[{WR[2][0]}:{WR[2][0]+3}], v{WXR} offset:{2048*2}")
                p(f"ds_read_b128 v[{WR[2][1]}:{WR[2][1]+3}], v{WXR} offset:{2048*2 + 1024}")
        if nb == 3 or True:
            pass


    PR, LSUM, ZSUM, WR2, FLR4 = 212, 216, 217, 224, 232
    FLW, FLR = 250, 251
    FL_OFF = WX_OFF + 8192
    THR = opt.get("thr", 8)
    class Sub:
        def __enter__(self):
            self.keep = p.items; p.items = []; return self
        def __exit__(self, *a):
            self.items = p.items; p.items = self.keep
    def merge(mf, sec, lead, per=2):
        i = 0
        def take(n):
            nonlocal i
            while i < len(sec) and (n > 0 or isinstance(sec[i], tuple)):
                p.items.append(sec[i])
                if not isinstance(sec[i], tuple): n -= 1
                i += 1
        take(lead)
        for m in mf:
            p.items.append(m)
            if not m.startswith("need"): take(per)
        take(10 ** 6)
    def a_third(s, t):
        with Sub() as c: stage_A(s, None, False, (t,))
        return c.items
    def m_list(s, t):
        with Sub() as c: m_mfma(s, t)
        return [f"need a[{aXA+16*t+12}:{aXA+16*t+15}]"] + c.items if opt.get("lw", 1) else c.items
    f2_init = [False]
    pendC = [None]
    def c_list(wr, xt):
        out = []
        for kst in range(2):
            bb = wr + 4 * kst
            for q in range(6):
                a = xt + 8 * q + 4 * kst
                out.append(f"v_mfma_f32_16x16x32_bf16 v[{ACC+4*q}:{ACC+4*q+3}], a[{a}:{a+3}], v[{bb}:{bb+3}], v[{ACC+4*q}:{ACC+4*q+3}]")
        return out
    def flush_C():
        if pendC[0]:
            for x in pendC[0]: p(x)
            pendC[0] = None
    def w_chain(src, exact_dm=None):
        rs, d3, wf = RSB[0], D3B[0], WFB[0]
        for r in range(4): p(f"v_exp_f32 v{PR+r}, v{src+r}")
        p(f"v_add_f32 v{LSUM}, v{PR}, v{PR+1}")
        p(f"v_add_f32 v{ZSUM}, v{PR+2}, v{PR+3}")
        p(f"v_add_f32 v{LSUM}, v{LSUM}, v{ZSUM}")
        for r in range(4):
            p(f"v_mul_f32_dpp v{PR+r}, v{rs}, v{PR+r} quad_perm:[{r},{r},{r},{r}] row_mask:0xf bank_mask:0xf")
        p(f"v_cvt_pk_bf16_f32 v{wf}, v{PR}, v{PR+1}")
        p(f"v_cvt_pk_bf16_f32 v{wf+1}, v{PR+2}, v{PR+3}")
        p(f"ds_write_b64 v{WXW}, v[{wf}:{wf+1}]")
        p(f"v_mul_f32 v{ZSUM}, v{PR}, v{d3}")
        for r in range(1, 4): p(f"v_fma_f32 v{ZSUM}, v{PR+r}, v{d3+r}, v{ZSUM}")
    def m2_publish():
        mark('lock')
        p(f"v_bfi_b32 v{TM}, s{S_MASK}, v{VTAG}, v{M}")
        p(f"v_bfe_u32 v{TM2}, v0, 2, 2")
        p(f"v_lshlrev_b32 v{TM2}, 12, v{TM2}")
        p(f"v_and_b32 v{AL}, 3, v0")
        p(f"v_lshl_add_u32 v{TM2}, v{AL}, 2, v{TM2}")
        p("s_lshl_b32 s48, s2, 4")
        p(f"s_add_u32 s48, s48, {M2_OFF}")
        p("s_cmp_eq_u32 s20, 0")
        p(f"s_cbranch_scc0 {name}_m2skip ;@nodrain")
        p("s_mov_b64 exec, 0xffff")
        p(f"buffer_store_dword v{TM}, v{TM2}, s[16:19], s48 offen sc1")
        p("s_mov_b64 exec, -1")
        p(f"{name}_m2skip:")
        mark('unlock')
    def stage_F2(s, last):
        if not f2_init[0]:
            f2_init[0] = True
            p(f"s_lshl_b32 s48, s20, 2")
            p(f"s_add_u32 s48, s48, {FL_OFF}")
            p(f"v_mov_b32 v{FLW}, s48")
            p(f"v_mov_b32 v{FLR}, {FL_OFF}")
            p(f"s_mov_b32 s88, 0x{f2u(float(THR)):08x}")
        d1, d3, rs = D1B[0], D3B[0], RSB[0]
        if LOOP:
            first = not dyn[0]
            if first:
                assert s % 3 == 0
                set_tr(0)
                p("s_mov_b32 s47, 0")
                p(f"s_mov_b32 s100, {s - 1}")
                p("s_mov_b32 s101, 0")
                dyn[0] = True
            p(f".set ZB{s}, 0")
            mark('zstart')
            mark('lock')
            if not first:
                p("s_add_u32 s47, s47, 1")
                p(f"s_mov_b32 s48, {XBUF}")
                p("s_cmp_eq_u32 s47, 3")
                p(f"s_cselect_b32 s48, {(-2*XBUF) & 0xffffffff}, s48")
                p("s_cselect_b32 s47, 0, s47")
            p("s_add_u32 s100, s100, 1")
            p(f"s_cmp_eq_u32 s100, {SP}")
            p("s_cselect_b32 s22, s89, 0")
            mark('unlock')
            if not first:
                for r in WA[0] + RA[0] + TR: p(f"v_add_u32 v{r}, s48, v{r}")
        def fz(i):
            if opt.get("prof") == 7 and (s & 1): p(f"s_memtime s[{52+2*i}:{53+2*i}]")
        fz(0)
        a0 = a_third(s, 0)
        if pendC[0]:
            merge(pendC[0], a0, lead=16); pendC[0] = None
        else:
            p.items.extend(a0)
        fz(1)
        m_reads(s, 0)
        merge(m_list(s, 0), a_third(s, 1), lead=20)
        fz(2)
        m_reads(s, 1)
        merge(m_list(s, 1), a_third(s, 2), lead=20)
        fz(3)
        m_reads(s, 2)
        if not LOOP: set_tr(s % 3)
        p("s_barrier")
        fz(4)
        trs = tr_list(XTB[0])
        merge(m_list(s, 2), trs, lead=2, per=2)
        fz(5)
        stats(0)
        fz(6)
        for r in range(4):
            p(f"v_fma_f32 v{PR+r}, -v{d3+r}, v{SN}, v{d1+r}")
        if LOOP or s == SP: p(f"v_sub_f32 v{d1}, {'s22' if LOOP else 's89'}, v{M}")
        else: p(f"v_sub_f32 v{d1}, 0, v{M}")
        for r in range(1, 4): p(f"v_mov_b32 v{d1+r}, v{d1}")
        for r in range(4):
            p(f"v_fmac_f32_dpp v{d1+r}, v{rs}, v{PR+r} quad_perm:[{r},{r},{r},{r}] row_mask:0xf bank_mask:0xf")
        p(f"v_max3_f32 v{TM}, v{d1}, v{d1+1}, v{d1+2}")
        p(f"v_max_f32 v{TM}, v{TM}, v{d1+3}")
        p(f"v_cmp_lt_f32 vcc, s88, v{TM}")
        mark('lock')
        fz(7)
        for r in range(4): p(f"v_exp_f32 v{PR+r}, v{d1+r}")
        p("s_cmp_lg_u64 vcc, 0")
        p("s_cselect_b32 s48, 1, 0")
        mark('unlock')
        p(f"v_mov_b32 v{TM2}, s48")
        p(f"v_add_f32 v{LSUM}, v{PR}, v{PR+1}")
        p(f"v_add_f32 v{ZSUM}, v{PR+2}, v{PR+3}")
        p(f"ds_write_b32 v{FLW}, v{TM2}")
        p(f"v_add_f32 v{LSUM}, v{LSUM}, v{ZSUM}")
        wf = WFB[0]
        for r in range(4):
            p(f"v_mul_f32_dpp v{PR+r}, v{rs}, v{PR+r} quad_perm:[{r},{r},{r},{r}] row_mask:0xf bank_mask:0xf")
        p(f"v_cvt_pk_bf16_f32 v{wf}, v{PR}, v{PR+1}")
        p(f"v_cvt_pk_bf16_f32 v{wf+1}, v{PR+2}, v{PR+3}")
        p(f"ds_write_b64 v{WXW}, v[{wf}:{wf+1}]")
        fz(8)
        p("s_barrier")
        fz(9)
        p(f"ds_read_b128 v[{FLR4}:{FLR4+3}], v{FLR}")
        p(f"ds_read_b128 v[{WR2}:{WR2+3}], v{WXR}")
        p(f"ds_read_b128 v[{WR2+4}:{WR2+7}], v{WXR} offset:1024")
        p(f"v_mul_f32 v{ZSUM}, v{PR}, v{d3}")
        for r in range(1, 4): p(f"v_fma_f32 v{ZSUM}, v{PR+r}, v{d3+r}, v{ZSUM}")
        mark('t', 100)
        mark('lock')
        p(f"v_or3_b32 v{TM}, v{FLR4}, v{FLR4+1}, v{FLR4+2}")
        p(f"v_or_b32 v{TM}, v{TM}, v{FLR4+3}")
        p(f"v_cmp_ne_u32 vcc, 0, v{TM}")
        uid[0] += 1
        Lb = f"{name}_lz{uid[0]}"
        p(f"s_cbranch_vccz {Lb}")
        p("s_waitcnt lgkmcnt(0)")
        p(f"v_max3_f32 v{TM}, v{d1}, v{d1+1}, v{d1+2}")
        p(f"v_max_f32 v{TM}, v{TM}, v{d1+3}")
        xg_reduce(p, "v_max_f32", TM, TM2)
        p(f"ds_write_b32 v{MXW}, v{TM}")
        p("s_barrier")
        p(f"ds_read_b128 v[{FLR4}:{FLR4+3}], v{MXR}")
        p(f"v_max3_f32 v{TM}, v{FLR4}, v{FLR4+1}, v{FLR4+2}")
        p(f"v_max3_f32 v{TM}, v{TM}, v{FLR4+3}, 0")
        p(f"v_add_f32 v{TM2}, v{M}, v{TM}")
        p(f"v_and_b32 v{TM2}, s87, v{TM2}")
        p(f"v_sub_f32 v{TM}, v{TM2}, v{M}")
        p(f"v_mov_b32 v{M}, v{TM2}")
        p(f"v_sub_f32 v{AL}, 0, v{TM}")
        p(f"v_exp_f32 v{AL}, v{AL}")
        for r in range(4): p(f"v_sub_f32 v{d1+r}, v{d1+r}, v{TM}")
        for r in range(24): p(f"v_mul_f32 v{ACC+r}, v{ACC+r}, v{AL}")
        p(f"v_mul_f32 v{L}, v{L}, v{AL}")
        p(f"v_mul_f32 v{Z}, v{Z}, v{AL}")
        w_chain(d1)
        p("s_barrier")
        p(f"ds_read_b128 v[{WR2}:{WR2+3}], v{WXR}")
        p(f"ds_read_b128 v[{WR2+4}:{WR2+7}], v{WXR} offset:1024")
        p("s_waitcnt lgkmcnt(0)")
        p("s_nop 7")
        p(f"{Lb}: ;@restore {Lb}")
        mark('unlock')
        if last and not LOOP: m2_publish()
        p(f"v_add_f32 v{L}, v{L}, v{LSUM}")
        p(f"v_add_f32 v{Z}, v{Z}, v{ZSUM}")
        fz(10)
        if LOOP and opt.get("prof") == 6:
            mark('lock')
            p("s_memrealtime s[80:81]")
            p("s_sub_u32 s83, s100, 3")
            p("s_mov_b32 m0, s83")
            p("s_waitcnt lgkmcnt(0)")
            p("v_writelane_b32 v239, s80, m0")
            mark('unlock')
        if LOOP: mark('zend')
        cl = c_list(WR2, XTB[0])
        if last and not LOOP:
            for x in cl: p(x)
        else:
            pendC[0] = cl


    def stage_B2(s):
        assert LOOP and dyn[0] and s % 2 == 0
        PRB = [204, 208]; LS, ZS = 244, 245; WF2 = [74, 246]; WRB = [224, 216]
        p(f".set ZB{s}, 0")
        mark('zstart')
        mark('lock')
        for dreg in (84, 85):
            p("s_add_u32 s47, s47, 1")
            p(f"s_mov_b32 s{dreg}, {XBUF}")
            p("s_cmp_eq_u32 s47, 3")
            p(f"s_cselect_b32 s{dreg}, {(-2*XBUF) & 0xffffffff}, s{dreg}")
            p("s_cselect_b32 s47, 0, s47")
        for breg in (22, 82):
            p("s_add_u32 s100, s100, 1")
            p(f"s_cmp_eq_u32 s100, {SP}")
            p(f"s_cselect_b32 s{breg}, s89, 0")
        mark('unlock')
        for r in WA[0] + RA[0]: p(f"v_add_u32 v{r}, s84, v{r}")
        p("s_waitcnt lgkmcnt(0)")
        def ml(t, b):
            with Sub() as c: m_mfma(s + b, t, b)
            return [f"need a[{aXA+16*t+12}:{aXA+16*t+15}]"] + c.items if opt.get("lw", 1) else c.items
        pc = pendC[0]; pendC[0] = None
        assert len(pc) == 24
        merge(pc[:12], a_third(s, 0), lead=16)
        m_reads(s, 0)
        merge(ml(0, 0), a_third(s, 1), lead=20)
        m_reads(s, 1)
        merge(ml(1, 0), a_third(s, 2), lead=20)
        m_reads(s, 2)
        for r in WA[0] + RA[0]: p(f"v_add_u32 v{r}, s85, v{r}")
        merge(ml(2, 0) + pc[12:], a_third(s + 1, 0), lead=12)
        stats(0)
        m_reads(s + 1, 0)
        merge(ml(0, 1), a_third(s + 1, 1), lead=20)
        m_reads(s + 1, 1)
        merge(ml(1, 1), a_third(s + 1, 2), lead=20)
        m_reads(s + 1, 2)
        for r in TR: p(f"v_add_u32 v{r}, s84, v{r}")
        p("s_barrier")
        merge(ml(2, 1), tr_list(XTB[0]), lead=2, per=2)
        for r in TR: p(f"v_add_u32 v{r}, s85, v{r}")
        with Sub() as c:
            stats(1)
            for b in range(2):
                d1, d3 = D1B[b], D3B[b]
                for r in range(4): p(f"v_fma_f32 v{PRB[b]+r}, -v{d3+r}, v{SN}, v{d1+r}")
            for b in range(2):
                d1 = D1B[b]
                p(f"v_sub_f32 v{d1}, s{22 if b == 0 else 82}, v{M}")
                for r in range(1, 4): p(f"v_mov_b32 v{d1+r}, v{d1}")
        merge(c.items, tr_list(XTB[1]), lead=0, per=1)
        for b in range(2):
            d1, rs = D1B[b], RSB[b]
            for r in range(4):
                p(f"v_fmac_f32_dpp v{d1+r}, v{rs}, v{PRB[b]+r} quad_perm:[{r},{r},{r},{r}] row_mask:0xf bank_mask:0xf")
        dv = [D1B[0] + r for r in range(4)] + [D1B[1] + r for r in range(4)]
        def max8():
            p(f"v_max3_f32 v{TM}, v{dv[0]}, v{dv[1]}, v{dv[2]}")
            p(f"v_max3_f32 v{TM2}, v{dv[3]}, v{dv[4]}, v{dv[5]}")
            p(f"v_max3_f32 v{TM}, v{TM}, v{dv[6]}, v{dv[7]}")
            p(f"v_max_f32 v{TM}, v{TM}, v{TM2}")
        def exps():
            for b in range(2):
                for r in range(4): p(f"v_exp_f32 v{PRB[b]+r}, v{D1B[b]+r}")
        def wpart():
            a, c2 = PRB
            p(f"v_add_f32 v{LS}, v{a}, v{a+1}")
            p(f"v_add_f32 v{ZS}, v{a+2}, v{a+3}")
            p(f"v_add_f32 v{LS}, v{LS}, v{c2}")
            p(f"v_add_f32 v{ZS}, v{ZS}, v{c2+1}")
            p(f"v_add_f32 v{LS}, v{LS}, v{c2+2}")
            p(f"v_add_f32 v{ZS}, v{ZS}, v{c2+3}")
            for b in range(2):
                for r in range(4):
                    p(f"v_mul_f32_dpp v{PRB[b]+r}, v{RSB[b]}, v{PRB[b]+r} quad_perm:[{r},{r},{r},{r}] row_mask:0xf bank_mask:0xf")
                if b == 0: p(f"v_add_f32 v{LS}, v{LS}, v{ZS}")
                p(f"v_cvt_pk_bf16_f32 v{WF2[b]}, v{PRB[b]}, v{PRB[b]+1}")
                p(f"v_cvt_pk_bf16_f32 v{WF2[b]+1}, v{PRB[b]+2}, v{PRB[b]+3}")
                p(f"ds_write_b64 v{WXW}, v[{WF2[b]}:{WF2[b]+1}] offset:{2048*b}")
        def zpart():
            p(f"v_mul_f32 v{ZS}, v{PRB[0]}, v{D3B[0]}")
            for r in range(1, 4): p(f"v_fma_f32 v{ZS}, v{PRB[0]+r}, v{D3B[0]+r}, v{ZS}")
            for r in range(4): p(f"v_fma_f32 v{ZS}, v{PRB[1]+r}, v{D3B[1]+r}, v{ZS}")
        def wx_reads():
            for b in range(2):
                p(f"ds_read_b128 v[{WRB[b]}:{WRB[b]+3}], v{WXR} offset:{2048*b}")
                p(f"ds_read_b128 v[{WRB[b]+4}:{WRB[b]+7}], v{WXR} offset:{2048*b + 1024}")
        max8()
        p(f"v_cmp_lt_f32 vcc, s88, v{TM}")
        mark('lock')
        exps()
        p("s_cmp_lg_u64 vcc, 0")
        p("s_cselect_b32 s48, 1, 0")
        mark('unlock')
        p(f"v_mov_b32 v{TM2}, s48")
        p(f"ds_write_b32 v{FLW}, v{TM2}")
        wpart()
        p("s_barrier")
        p(f"ds_read_b128 v[{FLR4}:{FLR4+3}], v{FLR}")
        wx_reads()
        zpart()
        mark('t', 100)
        mark('lock')
        p(f"v_or3_b32 v{TM}, v{FLR4}, v{FLR4+1}, v{FLR4+2}")
        p(f"v_or_b32 v{TM}, v{TM}, v{FLR4+3}")
        p(f"v_cmp_ne_u32 vcc, 0, v{TM}")
        uid[0] += 1
        Lb = f"{name}_lz{uid[0]}"
        p(f"s_cbranch_vccz {Lb}")
        p("s_waitcnt lgkmcnt(0)")
        max8()
        xg_reduce(p, "v_max_f32", TM, TM2)
        p(f"ds_write_b32 v{MXW}, v{TM}")
        p("s_barrier")
        p(f"ds_read_b128 v[{FLR4}:{FLR4+3}], v{MXR}")
        p(f"v_max3_f32 v{TM}, v{FLR4}, v{FLR4+1}, v{FLR4+2}")
        p(f"v_max3_f32 v{TM}, v{TM}, v{FLR4+3}, 0")
        p(f"v_add_f32 v{TM2}, v{M}, v{TM}")
        p(f"v_and_b32 v{TM2}, s87, v{TM2}")
        p(f"v_sub_f32 v{TM}, v{TM2}, v{M}")
        p(f"v_mov_b32 v{M}, v{TM2}")
        p(f"v_sub_f32 v{AL}, 0, v{TM}")
        p(f"v_exp_f32 v{AL}, v{AL}")
        for v in dv: p(f"v_sub_f32 v{v}, v{v}, v{TM}")
        for r in range(24): p(f"v_mul_f32 v{ACC+r}, v{ACC+r}, v{AL}")
        p(f"v_mul_f32 v{L}, v{L}, v{AL}")
        p(f"v_mul_f32 v{Z}, v{Z}, v{AL}")
        exps()
        wpart()
        zpart()
        p("s_barrier")
        wx_reads()
        p("s_waitcnt lgkmcnt(0)")
        p("s_nop 7")
        p(f"{Lb}: ;@restore {Lb}")
        mark('unlock')
        p(f"v_add_f32 v{L}, v{L}, v{LS}")
        p(f"v_add_f32 v{Z}, v{Z}, v{ZS}")
        if opt.get("prof") == 6:
            mark('lock')
            p("s_memrealtime s[80:81]")
            p("s_sub_u32 s83, s100, 3")
            p("s_mov_b32 m0, s83")
            p("s_waitcnt lgkmcnt(0)")
            p("v_writelane_b32 v239, s80, m0")
            mark('unlock')
        mark('zend')
        pendC[0] = c_list(WRB[0], XTB[0]) + c_list(WRB[1], XTB[1])

    stamp = Prof(p, opt, 52, 80)
    sched = opt.get("sched", "A0 G00 A1 G11 A2 Q G22 D11 P140 D30 T Y D20 Z3 Z4 Z5 Z6 Z7 Z8 Z9")
    stamp("init")
    for tok in sched.replace("_", " ").split():
        if tok == "S":
            mark('log', 'S0'); qb_setup(); stamp("S")
        elif tok == "T":
            mark('log', 'T0'); qb_setup(True); stamp("S")
        elif tok == "Y":
            stage_B([0, 1, 2]); stage_C([0, 1, 2]); stamp("X012")
        elif tok == "Q": qk_issue()
        elif tok[0] == "I":
            mark('force', 15 * int(tok[1]) + int(tok[2:]))
        elif tok[0] == "D":
            mark('dmax', int(tok[1:]))
        elif tok[0] == "P":
            mark('gap', int(tok[1:]))
        elif tok[0] == "W":
            mark('until', int(tok[1:]) * 210)
        elif tok[0] == "B":
            s = int(tok[1])
            if len(pendC[0]) == 12:
                for r in range(216, 224): p(f"v_mov_b32 v{r}, 0")
                pendC[0] = pendC[0] + c_list(216, XTB[1])
            stage_B2(s)
        elif tok[0] == "Z":
            s = int(tok[1]); stage_F2(s, s == NS - 1)
            if not LOOP: stamp(tok)
        elif tok[0] in "AF":
            s = int(tok[1])
            if len(tok) == 3:
                stage_A(s, None, False, (int(tok[2]),))
                if tok[2] == "2" and s < 3: stamp(tok[:2])
            else:
                stage_A(s, None, tok[0] == "F")
                if tok[0] == "F":
                    stage_B([s]); stage_C([s])
                if tok[0] == "F" or s < 3: stamp(tok)
        elif tok[0] == "G":
            stage_G(int(tok[1]), int(tok[2]))
        elif tok[0] in "MX":
            tiles = [int(c) for c in tok[1:]]
            stage_M(tiles, tok[0] == "X"); stage_B(tiles); stage_C(tiles); stamp(tok)
        mark('log', tok)
    if LOOP:
        p(".set ZEND, 0")
        mark('lock')
        p("s_waitcnt vmcnt(0)")
        m2_publish()
        mark('lock')
        with Sub() as c_:
            xg_reduce(p, "v_add_f32", Z, TM2)
            p(f"ds_write_b32 v{MXW}, v{Z} offset:{LZ_OFF - MX_OFF}")
            xg_reduce(p, "v_add_f32", L, TM2)
            p(f"ds_write_b32 v{MXW}, v{L}")
            p(f"v_lshrrev_b32 v56, 2, v0")
            p(f"v_lshlrev_b32 v56, 14, v56")
            p(f"v_and_b32 v57, 3, v0")
            p(f"v_lshl_add_u32 v56, v57, 4, v56")
            p(f"s_mul_i32 s24, s20, {3*16*16384}")
            p("s_lshl_b32 s25, s2, 6")
            p("s_add_u32 s24, s24, s25")
            p(f"s_add_u32 s24, s24, {PART_OFF}")
            p(f"v_mov_b32 v{TM}, 0x00010001")
        merge(pendC[0], c_.items, lead=4, per=2); pendC[0] = None
        stamp("Z9")
    if opt.get("noload"):
        for L_ in loads[75:]: L_['ins'] = "s_nop 0" if opt["noload"] == 1 else ""
    body = p.items[stream_start:]
    sched_out = schedule_loads(body, loads, pace=opt.get("pace", 300), lat=opt.get("lat", 1500), dmax=opt.get("dmax", 7), verbose=True, policy=opt.get("policy", "dist"))
    p.items[stream_start:] = sched_out

    if opt.get("streamonly"):
        p("s_endpgm")
        return
    assert LOOP
    p("s_barrier")
    p(f"ds_read_b128 v[60:63], v{MXR} offset:{LZ_OFF - MX_OFF}")
    p(f"ds_read_b128 v[64:67], v{MXR}")
    p("v_add_f32 v60, v60, v61")
    p("v_add_f32 v62, v62, v63")
    p("v_add_f32 v60, v60, v62")
    p("v_mul_f32 v68, s45, v60")
    p("v_sub_f32 v68, 0, v68")
    p("v_mov_b32 v69, v68")
    for k in range(3):
        b = ACC + 8 * k
        for j in range(4): p(f"v_pk_add_f32 v[{b+2*j}:{b+2*j+1}], v[{b+2*j}:{b+2*j+1}], v[68:69]")
        for j in range(4): p(f"v_cvt_pk_bf16_f32 v{b+j}, v{b+2*j}, v{b+2*j+1}")
        for j in range(4): p(f"v_bfi_b32 v{b+j}, v{TM}, s{4+j}, v{b+j}")
        p(f"buffer_store_dwordx4 v[{b}:{b+3}], v56, s[16:19], s24 offen sc1")
        if k < 2: p(f"s_add_u32 s24, s24, {16*16384}")
    p("s_cmp_lg_u32 s20, 0")
    p(f"s_cbranch_scc1 {name}_red")
    p("v_add_f32 v64, v64, v65")
    p("v_add_f32 v66, v66, v67")
    p("v_add_f32 v65, v64, v66")
    p(f"v_mov_b32 v64, v{M}")
    p("v_mov_b32 v66, 0")
    p(f"v_mov_b32 v67, v{VTAG}")
    p("s_lshl_b32 s24, s2, 8")
    p(f"s_add_u32 s24, s24, {ML_OFF}")
    p("s_mov_b64 exec, 0xffff")
    p(f"buffer_store_dwordx4 v[64:67], v{VL16}, s[16:19], s24 offen sc1")
    p("s_mov_b64 exec, -1")
    p(f"{name}_red: ;@restore red")
    stamp("pub")
    p(f"s_cmp_ge_u32 s21, {NRED}")
    p(f"s_cbranch_scc1 {name}_sdone ;@nodrain")
    p("s_lshr_b32 s24, s21, 4")
    p("s_lshr_b32 s25, s21, 2")
    p("s_and_b32 s25, s25, 3")
    p("s_and_b32 s26, s21, 3")
    p("v_and_b32 v56, 3, v0")
    p(f"v_mov_b32 v58, v{VL16}")
    p("v_lshlrev_b32 v59, 2, v0")
    p("s_lshl_b32 s27, s21, 14")
    p("s_lshl_b32 s28, s20, 12")
    p("s_add_u32 s27, s27, s28")
    p(f"s_add_u32 s27, s27, {PART_OFF}")
    p("s_lshl_b32 s29, s20, 10")
    p("s_lshl_b32 s28, s26, 12")
    p("s_add_u32 s29, s29, s28")
    p(f"s_add_u32 s29, s29, {M2_OFF}")
    PM = 76; PP = 108; NP = 4
    RL = f"{name}_rr"
    gate = opt.get("gate", 0)
    p(f"s_mov_b32 s50, {(1 << NP) - 1}")
    p(f"s_mov_b32 s51, {(1 << NP) - 1}")
    p(f"s_mov_b32 s{S_SPIN}, 0")
    def m2_check(i, lbl):
        p(f"s_bitcmp0_b32 s50, {i}")
        p(f"s_cbranch_scc1 {lbl} ;@nodrain")
        p(f"v_xor_b32 v{PM+i}, v{PM+i}, v{VTAG}")
        p(f"v_and_b32 v60, s{S_MASK}, v{PM+i}")
        p("v_cmp_ne_u32 vcc, 0, v60")
        p(f"s_cbranch_vccnz {lbl} ;@nodrain")
        p(f"s_bitset0_b32 s50, {i}")
        p(f"{lbl}:")
    if opt.get("m2early", 1):
        for i in range(NP):
            p(f"buffer_load_dword v{PM+i}, v59, s[16:19], s29 offen offset:{256*i} sc1")
    if opt.get("ackwait", 1): p("s_waitcnt vmcnt(0)")
    if opt.get("m2early", 1):
        for i in range(NP): m2_check(i, f"{RL}_e{i}")
    stamp("ack")
    p(f"{RL}_loop:")
    p("s_andn2_b32 s47, s51, s50")
    p("s_bcnt1_i32_b32 s48, s50")
    p(f"s_cmp_le_u32 s48, {gate}")
    p("s_cselect_b32 s47, s51, s47")
    for i in range(NP):
        p(f"s_bitcmp0_b32 s50, {i}")
        p(f"s_cbranch_scc1 {RL}_a{i} ;@nodrain")
        p(f"buffer_load_dword v{PM+i}, v59, s[16:19], s29 offen offset:{256*i} sc1")
        p(f"{RL}_a{i}:")
        p(f"s_bitcmp0_b32 s47, {i}")
        p(f"s_cbranch_scc1 {RL}_b{i} ;@nodrain")
        p(f"buffer_load_dwordx4 v[{PP+4*i}:{PP+4*i+3}], v58, s[16:19], s27 offen offset:{1024*i} sc1")
        p(f"{RL}_b{i}:")
    p("s_waitcnt vmcnt(0)")
    for i in range(NP):
        p(f"s_bitcmp0_b32 s47, {i}")
        p(f"s_cbranch_scc1 {RL}_c{i} ;@nodrain")
        r = PP + 4 * i
        for j in range(4): p(f"v_xor_b32 v{r+j}, s{4+j}, v{r+j}")
        p(f"v_or3_b32 v60, v{r}, v{r+1}, v{r+2}")
        p(f"v_or_b32 v60, v60, v{r+3}")
        p("v_and_b32 v60, 0x00010001, v60")
        p("v_cmp_ne_u32 vcc, 0, v60")
        p(f"s_cbranch_vccnz {RL}_c{i} ;@nodrain")
        p(f"s_bitset0_b32 s51, {i}")
        p(f"{RL}_c{i}:")
        m2_check(i, f"{RL}_d{i}")
    p("s_or_b32 s48, s50, s51")
    p("s_cmp_eq_u32 s48, 0")
    p(f"s_cbranch_scc1 {RL}_done ;@nodrain")
    p(f"s_add_u32 s{S_SPIN}, s{S_SPIN}, 1")
    p(f"s_cmp_lt_u32 s{S_SPIN}, {SPIN_MAX}")
    p(f"s_cbranch_scc1 {RL}_loop ;@nodrain")
    if DIAG[0]:
        uid[0] += 1
        p("s_mov_b64 vcc, 1")
        diag_store(p, uid[0], "s50")
    p(f"{RL}_done:")
    p("s_nop 7")
    if opt.get("prof") == 1: p(f"s_mov_b32 s86, s{S_SPIN}")
    stamp("redin")
    MV, T = 61, 62
    p(f"v_max3_f32 v{MV}, v{PM}, v{PM+1}, v{PM+2}")
    p(f"v_max_f32 v{MV}, v{MV}, v{PM+3}")
    p("v_mov_b32 v63, 0x8000")
    A8 = 64
    p(f"v_max_f32_dpp v{MV}, v{MV}, v{MV} row_ror:4 row_mask:0xf bank_mask:0xf")
    for j in range(4):
        p(f"v_lshl_or_b32 v{140+2*j}, v{PP+j}, 16, v63")
        p(f"v_and_or_b32 v{141+2*j}, v{PP+j}, s44, v63")
    p(f"v_max_f32_dpp v{MV}, v{MV}, v{MV} row_ror:8 row_mask:0xf bank_mask:0xf")
    xg_reduce(p, "v_max_f32", MV, T)
    for i in range(NP): p(f"v_sub_f32 v{PM+i}, v{PM+i}, v{MV}")
    for i in range(NP): p(f"v_exp_f32 v{PM+i}, v{PM+i}")
    for i in range(NP):
        r = PP + 4 * i
        if i > 0:
            for j in range(4):
                p(f"v_lshl_or_b32 v{140+2*j}, v{r+j}, 16, v63")
                p(f"v_and_or_b32 v{141+2*j}, v{r+j}, s44, v63")
        for j in range(8):
            if i == 0: p(f"v_mul_f32 v{A8+j}, v{PM}, v{140+j}")
            else: p(f"v_fma_f32 v{A8+j}, v{PM+i}, v{140+j}, v{A8+j}")
    for j in range(4): p(f"v_permlane32_swap_b32 v{A8+j}, v{A8+j+4}")
    for j in range(4): p(f"v_add_f32 v{A8+j}, v{A8+j}, v{A8+j+4}")
    for j in range(2): p(f"v_permlane16_swap_b32 v{A8+j}, v{A8+j+2}")
    for j in range(2): p(f"v_add_f32 v{A8+j}, v{A8+j}, v{A8+j+2}")
    for j in range(2): p(f"v_add_f32_dpp v{A8+j}, v{A8+j}, v{A8+j} row_ror:4 row_mask:0xf bank_mask:0xf")
    p("v_lshlrev_b32 v72, 3, v0")
    p("s_lshl_b32 s28, s20, 9")
    p("v_add_u32 v73, s28, v72")
    for j in range(2): p(f"v_add_f32_dpp v{A8+j}, v{A8+j}, v{A8+j} row_ror:8 row_mask:0xf bank_mask:0xf")
    p("v_lshlrev_b32 v74, 2, v0")
    p("s_lshl_b32 s28, s20, 8")
    p("v_add_u32 v75, s28, v74")
    p(f"ds_write_b64 v73, v[{A8}:{A8+1}]")
    p(f"ds_write_b32 v75, v{MV} offset:2048")
    p("s_barrier")
    p("s_cmp_lg_u32 s20, 0")
    p(f"s_cbranch_scc1 {name}_sdone ;@nodrain")
    for v in range(4):
        p(f"ds_read_b32 v{84+v}, v74 offset:{2048 + 256*v}")
        p(f"ds_read_b64 v[{76+2*v}:{77+2*v}], v72 offset:{512*v}")
    p("v_lshrrev_b32 v66, 4, v0")
    p("v_lshlrev_b32 v66, 3, v66")
    p("v_lshl_add_u32 v66, v56, 5, v66")
    p("s_lshl_b32 s24, s21, 7")
    p(f"s_add_u32 s24, s24, {UF_OFF}")
    p("v_max3_f32 v61, v84, v85, v86")
    p("v_max_f32 v61, v61, v87")
    for v in range(4): p(f"v_sub_f32 v{84+v}, v{84+v}, v61")
    for v in range(4): p(f"v_exp_f32 v{84+v}, v{84+v}")
    for r in range(2): p(f"v_mul_f32 v{64+r}, v84, v{76+r}")
    for v in range(1, 4):
        for r in range(2): p(f"v_fma_f32 v{64+r}, v{84+v}, v{76+2*v+r}, v{64+r}")
    tag_regs(p, range(64, 66), VTAG)
    p("s_mov_b32 exec_lo, 0x000f000f")
    p("s_mov_b32 exec_hi, 0x000f000f")
    p("buffer_store_dwordx2 v[64:65], v66, s[16:19], s24 offen sc1")
    stamp("redout")
    p(f"{name}_sdone:")
    if stamp.on:
        p("s_cmp_lg_u32 s20, 0")
        p(f"s_cbranch_scc1 {name}_done ;@nodrain")
        stamp.dump("streamer")
    p("s_endpgm")

def gen_special(p, name, opt):
    if opt.get("streamonly"):
        p("s_endpgm"); return
    stamp = Prof(p, opt, 64, 92)
    VL16, VI, VG, VTAG, VAB = 1, 2, 3, 4, 5
    LA = list(range(216, 228))
    RS = 784
    TILE_LDS = 16 * RS
    p("s_load_dwordx2 s[4:5], s[0:1], 0")
    p("s_load_dwordx4 s[8:11], s[0:1], 24")
    p("s_load_dwordx4 s[12:15], s[0:1], 40")
    p("s_load_dwordx2 s[6:7], s[0:1], 56")
    p(f"v_lshlrev_b32 v{VL16}, 4, v0")
    p(f"v_and_b32 v{VI}, 15, v0")
    p(f"v_lshrrev_b32 v{VG}, 4, v0")
    p(f"v_mul_u32_u24 v{VAB}, {RS}, v{VI}")
    p(f"v_lshl_add_u32 v{VAB}, v{VG}, 4, v{VAB}")
    for a in range(12):
        p(f"v_add_u32 v6, {1024*a}, v{VL16}")
        p("v_lshrrev_b32 v7, 8, v6")
        p("v_mul_u32_u24 v7, 21846, v7")
        p("v_lshrrev_b32 v7, 16, v7")
        p(f"v_lshl_add_u32 v{LA[a]}, v7, 4, v6")
    p("s_waitcnt lgkmcnt(0)")
    p(f"s_load_dword s94, s[22:23], {N_OFF}")
    srd(p, 16, 22, WS_USED)
    srd(p, 24, 8, W_BYTES)
    srd(p, 28, 10, W_BYTES)
    srd(p, 32, 4, Q_BYTES)
    srd(p, 36, 12, W_BYTES)
    srd(p, 40, 14, W_BYTES)
    srd(p, 44, 6, Q_BYTES)
    aONE = 144
    ONES = f"a[{aONE}:{aONE+3}]"
    def consts():
        for r in range(4): mov64(p, 52 + 2 * r, sum(1 << (20 * g + r) for g in range(4)))
        p(f"s_mov_b32 s60, 0x{f2u(1.0 / C):08x}")
        p(f"s_mov_b32 s61, 0x{f2u(1e-5):08x}")
        p("v_mov_b32 v6, 0x3f803f80")
        for r in range(4): p(f"v_accvgpr_write_b32 a{aONE+r}, v6")
        p("s_waitcnt lgkmcnt(0)")
        p("s_add_u32 s94, s94, 1")
        p(f"s_and_b32 s{S_TAG}, s94, 0xff")
        p(f"v_mov_b32 v{VTAG}, s{S_TAG}")
    p("s_cmp_ge_u32 s100, 6")
    p(f"s_cbranch_scc1 {name}_st2")
    WQS = 64
    QS = 16
    LQ = 0
    LWQ = 12544
    p("v_lshrrev_b32 v7, 3, v0")
    p("v_and_b32 v8, 7, v0")
    p("v_mul_u32_u24 v9, 768, v7")
    p("v_lshl_add_u32 v9, v8, 4, v9")
    p("v_mul_u32_u24 v10, 144, v7")
    p("v_lshl_add_u32 v10, v8, 4, v10")
    p("s_mul_i32 s48, s20, 3072")
    for a in range(3):
        p(f"buffer_load_dwordx4 v[{QS+4*a}:{QS+4*a+3}], v{VL16}, s[32:35], s48 offen offset:{1024*a}")
    p("s_lshl_b32 s48, s100, 7")
    p(f"s_mul_i32 s49, s20, {96*768}")
    p("s_add_u32 s48, s48, s49")
    for a in range(12):
        p(f"buffer_load_dwordx4 v[{WQS+4*a}:{WQS+4*a+3}], v9, s[24:27], s48 offen")
        if a < 11: p(f"s_add_u32 s48, s48, {8*768}")
    consts()
    stamp("issued")
    p("s_mul_i32 s48, s20, 3136")
    for a in range(3):
        p(f"v_add_u32 v6, s48, v{LA[a]}")
        p(f"ds_write_b128 v6, v[{QS+4*a}:{QS+4*a+3}] offset:{LQ}")
    p("s_barrier")
    QFR = 16
    for ks in range(12):
        p(f"ds_read_b128 v[{QFR+4*ks}:{QFR+4*ks+3}], v{VAB} offset:{LQ + 64*ks}")
    for ks in range(12):
        q = f"v[{QFR+4*ks}:{QFR+4*ks+3}]"
        p(f"v_mfma_f32_16x16x32_bf16 v[116:119], {q}, {q}, {'0' if ks == 0 else 'v[116:119]'}")
        p(f"v_mfma_f32_16x16x32_bf16 v[112:115], {ONES}, {q}, {'0' if ks == 0 else 'v[112:115]'}")
    p(f"s_mul_i32 s48, s20, {96*144}")
    p("v_add_u32 v10, s48, v10")
    p("v_lshrrev_b32 v11, 2, v0")
    p("v_and_b32 v11, 3, v11")
    p(f"v_lshl_add_u32 v11, v{VG}, 3, v11")
    p("v_mul_u32_u24 v11, 144, v11")
    p("v_and_b32 v13, 3, v0")
    p("v_lshl_add_u32 v11, v13, 3, v11")
    p("s_lshl_b32 s48, s20, 5")
    p("v_add_u32 v11, s48, v11")
    p("v_cndmask_b32 v12, 0, v116, s[52:53]")
    for r in range(1, 4): p(f"v_cndmask_b32 v12, v12, v{116+r}, s[{52+2*r}:{53+2*r}]")
    p("v_mul_f32 v14, s60, v112")
    xg_reduce(p, "v_add_f32", 12, 13)
    p("v_mov_b32 v13, s61")
    p("v_fma_f32 v12, v12, s60, v13")
    p("v_fma_f32 v12, -v14, v14, v12")
    p("v_max_f32 v12, s61, v12")
    p("v_rsq_f32 v15, v12")
    for a in range(12):
        p(f"ds_write_b128 v10, v[{WQS+4*a}:{WQS+4*a+3}] offset:{LWQ + 8*144*a}")
    stamp("s1ld")
    p("s_barrier")
    stamp("s1bar")
    aWT = 0
    for ks in range(12):
        for h in range(2):
            p(f"ds_read_b64_tr_b16 a[{aWT+4*ks+2*h}:{aWT+4*ks+2*h+1}], v11 offset:{LWQ + 32*144*ks + 4*144*h}")
    for ks in range(12):
        a = f"a[{aWT+4*ks}:{aWT+4*ks+3}]"
        q = f"v[{QFR+4*ks}:{QFR+4*ks+3}]"
        p(f"v_mfma_f32_16x16x32_bf16 v[120:123], {a}, {q}, {'0' if ks == 0 else 'v[120:123]'}")
        p(f"v_mfma_f32_16x16x32_bf16 v[124:127], {a}, {ONES}, {'0' if ks == 0 else 'v[124:127]'}")
    stamp("s1mf")
    for r in range(4): p(f"v_fma_f32 v{120+r}, -v14, v{124+r}, v{120+r}")
    for r in range(4): p(f"v_mul_f32 v{120+r}, v{120+r}, v15")
    tag_regs(p, range(120, 124), VTAG)
    p("s_lshl_b32 s48, s100, 2")
    p("s_add_u32 s48, s48, s20")
    p("s_lshl_b32 s48, s48, 10")
    p(f"s_add_u32 s48, s48, {QF_OFF}")
    p(f"buffer_store_dwordx4 v[120:123], v{VL16}, s[16:19], s48 offen sc1")
    stamp("st1")
    p(f"s_branch {name}_sp_w")
    p(f"{name}_st2: ;@restore st2")
    WKS = 64
    p("s_sub_u32 s21, s100, 6")
    p("s_lshl_b32 s21, s21, 2")
    p("s_add_u32 s21, s21, s20")
    p("s_mul_i32 s48, s21, 12288")
    for a in range(12):
        if a % 4 == 0 and a: p("s_add_u32 s48, s48, 4096")
        p(f"buffer_load_dwordx4 v[{WKS+4*a}:{WKS+4*a+3}], v{VL16}, s[28:31], s48 offen offset:{1024*(a%4)}")
    consts()
    stamp("issued")
    LWK = 0
    LQB = 4 * TILE_LDS
    p(f"s_mul_i32 s48, s20, {TILE_LDS}")
    for a in range(12):
        p(f"v_add_u32 v6, s48, v{LA[a]}")
        p(f"ds_write_b128 v6, v[{WKS+4*a}:{WKS+4*a+3}] offset:{LWK}")
    p(f"v_add_u32 v7, s48, v{VAB}")
    aWK = 48
    for ks in range(12):
        p(f"ds_read_b128 a[{aWK+4*ks}:{aWK+4*ks+3}], v7 offset:{LWK + 64*ks}")
    QR = 120
    loads = ["s_mul_i32 s48, s20, 6144", f"s_add_u32 s48, s48, {QF_OFF}", "s_add_u32 s49, s48, 4096"]
    for q in range(6):
        so, off = ("s48", 1024 * q) if q < 4 else ("s49", 1024 * (q - 4))
        loads.append(f"buffer_load_dwordx4 v[{QR+4*q}:{QR+4*q+3}], v{VL16}, s[16:19], {so} offen offset:{off} sc1")
    poll_block(p, name, loads, list(range(QR, QR + 24)), VTAG, 12, sleep=0)
    stamp("qf_in")
    p(f"v_lshrrev_b32 v7, 1, v{VG}")
    p("v_lshlrev_b32 v7, 8, v7")
    p(f"v_lshl_add_u32 v7, v{VI}, 4, v7")
    p(f"v_and_b32 v8, 1, v{VG}")
    p("v_lshl_add_u32 v7, v8, 3, v7")
    p("s_mul_i32 s48, s20, 3072")
    p("v_add_u32 v7, s48, v7")
    for q in range(6):
        p(f"v_cvt_pk_bf16_f32 v{QR+4*q}, v{QR+4*q}, v{QR+4*q+1}")
        p(f"v_cvt_pk_bf16_f32 v{QR+4*q+1}, v{QR+4*q+2}, v{QR+4*q+3}")
        p(f"ds_write_b64 v7, v[{QR+4*q}:{QR+4*q+1}] offset:{LQB + 512*q}")
    p("s_barrier")
    stamp("s2bar")
    for pp in range(12):
        p(f"ds_read_b128 v[{16+4*pp}:{19+4*pp}], v{VL16} offset:{LQB + 1024*pp}")
    for pp in range(12):
        p(f"v_mfma_f32_16x16x32_bf16 v[112:115], a[{aWK+4*pp}:{aWK+4*pp+3}], v[{16+4*pp}:{19+4*pp}], {'0' if pp == 0 else 'v[112:115]'}")
    for r in range(4): p(f"v_mul_f32 v{112+r}, 0x{f2u(SCALE*LOG2E):08x}, v{112+r}")
    tag_regs(p, range(112, 116), VTAG)
    p("s_lshl_b32 s48, s21, 10")
    p(f"s_add_u32 s48, s48, {QKF_OFF}")
    p(f"buffer_store_dwordx4 v[112:115], v{VL16}, s[16:19], s48 offen sc1")
    stamp("st2")
    p(f"{name}_sp_w:")
    p("s_waitcnt lgkmcnt(0)")
    p("s_nop 7")
    p("s_nop 7")
    p("s_barrier")
    tagpat(p, 4)
    for j in range(4): p(f"v_mov_b32 v{12+j}, s{4+j}")
    p("v_lshrrev_b32 v17, 2, v0")
    p("v_lshlrev_b32 v17, 14, v17")
    p("v_and_b32 v18, 3, v0")
    p("v_lshl_add_u32 v17, v18, 4, v17")
    p(f"s_mul_i32 s48, s20, {3*16*16384}")
    p("s_lshl_b32 s49, s2, 6")
    p("s_add_u32 s48, s48, s49")
    p(f"s_add_u32 s48, s48, {PART_OFF}")
    for k in range(3):
        p("buffer_store_dwordx4 v[12:15], v17, s[16:19], s48 offen sc1")
        if k < 2: p(f"s_add_u32 s48, s48, {16*16384}")
    p("v_mov_b32 v16, 0xf149f2ca")
    p("v_mov_b32 v17, 0")
    p("v_mov_b32 v18, 0")
    p(f"v_mov_b32 v19, v{VTAG}")
    p("s_lshl_b32 s48, s2, 8")
    p("s_lshl_b32 s49, s20, 6")
    p("s_add_u32 s48, s48, s49")
    p(f"s_add_u32 s48, s48, {ML_OFF}")
    p("s_mov_b64 exec, 0xf")
    p(f"buffer_store_dwordx4 v[16:19], v{VL16}, s[16:19], s48 offen sc1")
    p(f"v_bfi_b32 v17, s{S_MASK}, v{VTAG}, v16")
    p(f"v_lshrrev_b32 v18, 2, v{VL16}")
    p("s_lshl_b32 s48, s20, 12")
    p("s_lshl_b32 s49, s2, 4")
    p("s_add_u32 s48, s48, s49")
    p(f"s_add_u32 s48, s48, {M2_OFF}")
    p("buffer_store_dword v17, v18, s[16:19], s48 offen sc1")
    p("s_mov_b64 exec, -1")
    NE = 2
    LWO = 4 * 2 * TILE_LDS
    WRS = 80
    p("v_lshrrev_b32 v7, 2, v0")
    p("v_and_b32 v8, 3, v0")
    p("v_mul_u32_u24 v9, 768, v7")
    p("v_lshl_add_u32 v9, v8, 4, v9")
    p(f"v_mul_u32_u24 v10, {WRS}, v7")
    p("v_lshl_add_u32 v10, v8, 4, v10")
    p("s_lshl_b32 s48, s100, 6")
    p(f"s_mul_i32 s49, s20, {96*768}")
    p("s_add_u32 s48, s48, s49")
    for a in range(6):
        p(f"buffer_load_dwordx4 v[{20+4*a}:{23+4*a}], v9, s[40:43], s48 offen")
        if a < 5: p(f"s_add_u32 s48, s48, {16*768}")
    WVS = 64
    def wv_load(tile):
        b = WVS + 48 * (tile & 1)
        p(f"s_mul_i32 s50, s20, {6*12288}")
        p(f"s_add_u32 s50, s50, {tile*12288}")
        for a in range(12):
            if a % 4 == 0 and a: p("s_add_u32 s50, s50, 4096")
            p(f"buffer_load_dwordx4 v[{b+4*a}:{b+4*a+3}], v{VL16}, s[36:39], s50 offen offset:{1024*(a%4)}")
    wv_load(0); wv_load(1)
    p(f"s_mul_i32 s49, s20, {96*WRS}")
    p("v_add_u32 v10, s49, v10")
    p(f"v_add_u32 v10, {LWO}, v10")
    for a in range(6):
        p(f"ds_write_b128 v10, v[{20+4*a}:{23+4*a}] offset:{16*WRS*a}")
    p("s_barrier")
    p("v_lshrrev_b32 v10, 2, v0")
    p("v_and_b32 v10, 3, v10")
    p(f"v_lshl_add_u32 v10, v{VG}, 3, v10")
    p(f"v_mul_u32_u24 v10, {WRS}, v10")
    p("v_and_b32 v11, 3, v0")
    p("v_lshl_add_u32 v10, v11, 3, v10")
    p(f"v_add_u32 v10, {LWO}, v10")
    for e in range(NE):
        for ks in range(12):
            for h in range(2):
                p(f"ds_read_b64_tr_b16 a[{48*e+4*ks+2*h}:{48*e+4*ks+2*h+1}], v10 offset:{32*e + 32*WRS*ks + 4*WRS*h}")
    p(f"s_mul_i32 s63, s20, {TILE_LDS}")
    for a in range(12): p(f"v_add_u32 v{LA[a]}, s63, v{LA[a]}")
    p(f"v_add_u32 v{VAB}, s63, v{VAB}")
    WF = 160
    DW = 20
    aXV = 96
    for tile in range(6):
        b = WVS + 48 * (tile & 1)
        for a in range(12): p(f"ds_write_b128 v{LA[a]}, v[{b+4*a}:{b+4*a+3}]")
        if tile + 2 < 6: wv_load(tile + 2)
        for ks in range(12): p(f"ds_read_b128 a[{aXV+4*ks}:{aXV+4*ks+3}], v{VAB} offset:{64*ks}")
        for ks in range(12):
            for e in range(NE):
                d = DW + 8 * e + 4 * (tile & 1)
                p(f"v_mfma_f32_16x16x32_bf16 v[{d}:{d+3}], a[{aXV+4*ks}:{aXV+4*ks+3}], a[{48*e+4*ks}:{48*e+4*ks+3}], {'0' if ks == 0 else f'v[{d}:{d+3}]'}")
        if tile & 1:
            for e in range(NE):
                w = WF + 12 * e + 4 * (tile >> 1)
                for k in range(4):
                    p(f"v_cvt_pk_bf16_f32 v{w+k}, v{DW+8*e+2*k}, v{DW+8*e+2*k+1}")
    stamp("wvo")
    p(f"v_mul_u32_u24 v7, 768, v{VI}")
    p(f"v_lshl_add_u32 v7, v{VG}, 3, v7")
    p("s_lshl_b32 s62, s100, 1")
    p("s_and_b32 s48, s20, 1")
    p("s_add_u32 s62, s62, s48")
    p("s_lshl_b32 s62, s62, 5")
    p("buffer_load_dwordx2 v[56:57], v7, s[32:35], s62 offen")
    PM = 64
    FL = f"{name}_fm"
    p("s_lshl_b32 s63, s20, 14")
    p(f"s_add_u32 s63, s63, {ML_OFF}")
    p(f"s_mov_b32 s{S_SPIN}, 0")
    p(f"s_add_u32 s48, s63, {1024*15}")
    p(f"{FL}_pre:")
    p(f"buffer_load_dwordx4 v[{PM}:{PM+3}], v{VL16}, s[16:19], s48 offen sc1")
    p("s_waitcnt vmcnt(0)")
    p(f"v_xor_b32 v12, v{PM+3}, v{VTAG}")
    p(f"v_and_b32 v12, s{S_MASK}, v12")
    p("v_cmp_ne_u32 vcc, 0, v12")
    p(f"s_cbranch_vccz {FL}_go ;@nodrain")
    p("s_sleep 6")
    p(f"s_add_u32 s{S_SPIN}, s{S_SPIN}, 1")
    p(f"s_cmp_lt_u32 s{S_SPIN}, {SPIN_MAX}")
    p(f"s_cbranch_scc1 {FL}_pre ;@nodrain")
    p(f"{FL}_go:")
    p("s_mov_b32 s50, 0xffff")
    p(f"s_mov_b32 s{S_SPIN}, 0")
    p(f"{FL}_loop:")
    for i in range(16):
        p(f"s_bitcmp0_b32 s50, {i}")
        p(f"s_cbranch_scc1 {FL}_a{i} ;@nodrain")
        p(f"s_add_u32 s48, s63, {1024*i}")
        p(f"buffer_load_dwordx4 v[{PM+4*i}:{PM+4*i+3}], v{VL16}, s[16:19], s48 offen sc1")
        p(f"{FL}_a{i}:")
    p("s_waitcnt vmcnt(0)")
    for i in range(16):
        p(f"s_bitcmp0_b32 s50, {i}")
        p(f"s_cbranch_scc1 {FL}_c{i} ;@nodrain")
        p(f"v_xor_b32 v12, v{PM+4*i+3}, v{VTAG}")
        p(f"v_and_b32 v12, s{S_MASK}, v12")
        p("v_cmp_ne_u32 vcc, 0, v12")
        p(f"s_cbranch_vccnz {FL}_c{i} ;@nodrain")
        p(f"s_bitset0_b32 s50, {i}")
        p(f"{FL}_c{i}:")
    p("s_cmp_eq_u32 s50, 0")
    p(f"s_cbranch_scc1 {FL}_done ;@nodrain")
    p(f"s_add_u32 s{S_SPIN}, s{S_SPIN}, 1")
    p(f"s_cmp_lt_u32 s{S_SPIN}, {SPIN_MAX}")
    p(f"s_cbranch_scc1 {FL}_loop ;@nodrain")
    p(f"{FL}_done:")
    p("s_nop 7")
    stamp("ml_in")
    MV, T = 8, 9
    p(f"v_max3_f32 v{MV}, v{PM}, v{PM+4}, v{PM+8}")
    for i in range(3, 15, 2): p(f"v_max3_f32 v{MV}, v{MV}, v{PM+4*i}, v{PM+4*i+4}")
    p(f"v_max_f32 v{MV}, v{MV}, v{PM+60}")
    xg_reduce(p, "v_max_f32", MV, T)
    for i in range(16): p(f"v_sub_f32 v{PM+4*i}, v{PM+4*i}, v{MV}")
    for i in range(16): p(f"v_exp_f32 v{PM+4*i}, v{PM+4*i}")
    p(f"v_mul_f32 v13, v{PM}, v{PM+1}")
    for i in range(1, 16):
        p(f"v_fma_f32 v13, v{PM+4*i}, v{PM+4*i+1}, v13")
    xg_reduce(p, "v_add_f32", 13, T)
    p("v_mov_b32 v14, 0")
    p(f"v_mov_b32 v12, v{MV}")
    p("v_mov_b32 v15, 0")
    LX = 0
    p("s_barrier")
    p(f"v_lshlrev_b32 v9, 6, v{VI}")
    p("s_lshl_b32 s48, s20, 4")
    p("v_add_u32 v8, s48, v9")
    p(f"ds_write_b128 v8, v[12:15] offset:{LX}")
    p("s_barrier")
    for v in range(4): p(f"ds_read_b128 v[{64+4*v}:{67+4*v}], v9 offset:{LX + 16*v}")
    p("v_max3_f32 v8, v64, v68, v72")
    p("v_max_f32 v8, v8, v76")
    for v in range(4): p(f"v_sub_f32 v{64+4*v}, v{64+4*v}, v8")
    for v in range(4): p(f"v_exp_f32 v{64+4*v}, v{64+4*v}")
    p("v_mul_f32 v13, v64, v65")
    for v in range(1, 4):
        p(f"v_fma_f32 v13, v{64+4*v}, v{65+4*v}, v13")
    p("v_rcp_f32 v13, v13")
    UR = 64
    p(f"v_lshlrev_b32 v10, 1, v{VL16}")
    loads = ["s_mul_i32 s48, s20, 6144", f"s_add_u32 s48, s48, {UF_OFF}", "s_add_u32 s49, s48, 4096"]
    for pr in range(3):
        for h in range(2):
            so, off = ("s48", 2048 * pr + 16 * h) if pr < 2 else ("s49", 16 * h)
            loads.append(f"buffer_load_dwordx4 v[{UR+8*pr+4*h}:{UR+8*pr+4*h+3}], v10, s[16:19], {so} offen offset:{off} sc1")
    poll_block(p, name, loads, list(range(UR, UR + 24)), VTAG, 12, sleep=0)
    stamp("u_in")
    for pr in range(3):
        for k in range(4):
            p(f"v_cvt_pk_bf16_f32 v{96+4*pr+k}, v{UR+8*pr+2*k}, v{UR+8*pr+2*k+1}")
    for pr in range(3):
        for e in range(NE):
            w = WF + 12 * e + 4 * pr
            d = 20 + 4 * e
            p(f"v_mfma_f32_16x16x32_bf16 v[{d}:{d+3}], v[{w}:{w+3}], v[{96+4*pr}:{99+4*pr}], {'0' if pr == 0 else f'v[{d}:{d+3}]'}")
    LF = 4096
    p("s_lshl_b32 s48, s20, 10")
    p(f"v_add_u32 v8, s48, v{VL16}")
    for e in range(NE): p(f"ds_write_b128 v8, v[{20+4*e}:{23+4*e}] offset:{LF + 4096*e}")
    p("s_barrier")
    p(f"s_cmp_ge_u32 s20, {NE}")
    p(f"s_cbranch_scc1 {name}_done ;@nodrain")
    p("s_lshl_b32 s48, s20, 12")
    p(f"v_add_u32 v8, s48, v{VL16}")
    for v in range(4): p(f"ds_read_b128 v[{64+4*v}:{67+4*v}], v8 offset:{LF + 1024*v}")
    p("v_lshlrev_b32 v80, 16, v56")
    p("v_and_b32 v81, 0xffff0000, v56")
    p("v_lshlrev_b32 v82, 16, v57")
    p("v_and_b32 v83, 0xffff0000, v57")
    for r in range(4):
        p(f"v_add_f32 v{64+r}, v{64+r}, v{68+r}")
        p(f"v_add_f32 v{72+r}, v{72+r}, v{76+r}")
        p(f"v_add_f32 v{64+r}, v{64+r}, v{72+r}")
        p(f"v_fma_f32 v{64+r}, v{64+r}, v13, v{80+r}")
    p("v_cvt_pk_bf16_f32 v64, v64, v65")
    p("v_cvt_pk_bf16_f32 v65, v66, v67")
    p("buffer_store_dwordx2 v[64:65], v7, s[44:47], s62 offen" + (" sc1" if opt.get("wt", 1) else ""))
    p("s_add_u32 s48, s100, s20")
    p("s_cmp_lg_u32 s48, 0")
    p(f"s_cbranch_scc1 {name}_spe ;@nodrain")
    p("v_mov_b32 v8, s94")
    p(f"v_mov_b32 v9, {N_OFF}")
    p("s_mov_b64 exec, 1")
    p("buffer_store_dword v8, v9, s[16:19], 0 offen" + (" sc1" if opt.get("wt", 1) else ""))
    p(f"{name}_spe:")
    if stamp.on:
        p("s_cmp_lg_u32 s20, 0")
        p(f"s_cbranch_scc1 {name}_done ;@nodrain")
        p("s_waitcnt vmcnt(0)")
        stamp("end")
        stamp.dump("special")

BAL = [1]
def fold_loop(body, name):
    idx = {}
    for i, l in enumerate(body):
        m = re.match(r"\s*\.set (ZB\d|ZEND), 0", l)
        if m: idx[m.group(1)] = i
    if "ZB4" not in idx: return [l for l in body if not l.strip().startswith(".set Z")]
    def seg(a, b):
        out = []
        for l in body[idx[a]:idx[b]]:
            if l.strip().startswith(".set Z"): continue
            out.append(l)
        return out
    def norm(ls): return [re.sub(r"_lz\d+", "_lzN", l) for l in ls]
    s1, s2, s3 = seg("ZB4", "ZB6"), seg("ZB6", "ZB8"), seg("ZB8", "ZEND")
    for a, b, nm in ((s1, s2, "Z6Z7"), (s1, s3, "Z8Z9")):
        na, nb = norm(a), norm(b)
        if na != nb:
            for i, (x, y) in enumerate(zip(na, nb)):
                if x != y:
                    print("loop segments differ at", nm, i, na[max(0, i-3):i+3], nb[max(0, i-3):i+3]); break
            raise Exception("segments not periodic: %d %d" % (len(na), len(nb)))
    pre = [l for l in body[:idx["ZB4"]] if not l.strip().startswith(".set Z")]
    post = [l for l in body[idx["ZEND"]:] if not l.strip().startswith(".set Z")]
    if "ZB5" in idx: h1 = seg("ZB4", "ZB5"); h2 = seg("ZB5", "ZB6")
    else: h1 = seg("ZB4", "ZB6"); h2 = []
    mid = []
    if BAL[0]:
        mid = ["  s_sub_u32 s48, s101, 2", "  s_or_b32 s48, s48, s97", "  s_cmp_eq_u32 s48, 0", f"  s_cbranch_scc1 {name}_zexit"]
    loop = [f"{name}_zloop:"] + h1 + mid + h2 + ["  s_add_u32 s101, s101, 1", "  s_cmp_lt_u32 s101, 3", f"  s_cbranch_scc1 {name}_zloop", f"{name}_zexit:"]
    print("folded loop: body", len(s1), "instructions")
    return pre + loop + post

def kernel_text(name, p):
    body = fold_loop(p.finalize(True), name)
    return [f".globl {name}", ".p2align 8", f".type {name},@function", f"{name}:"] + body

def kd_text(name, info):
    return [".p2align 6", f".amdhsa_kernel {name}", f"  .amdhsa_next_free_vgpr {info['vgpr']}", "  .amdhsa_next_free_sgpr 102",
            f"  .amdhsa_accum_offset {info['accum']}", "  .amdhsa_group_segment_fixed_size 0", "  .amdhsa_kernarg_size 80",
            "  .amdhsa_user_sgpr_count 2", "  .amdhsa_user_sgpr_kernarg_segment_ptr 1", "  .amdhsa_system_sgpr_workgroup_id_x 1",
            "  .amdhsa_float_denorm_mode_32 3", ".end_amdhsa_kernel"]

HEADER = open("standalone__detection_seg_dino__vision.s.ref").read().split("; Override launch")[0]

def build(path, opt):
    DIAG[0] = bool(opt.get("diag"))
    BAL[0] = opt.get("bal", 0) == 1 and opt.get("loop", 1)
    global SPIN_MAX
    SPIN_MAX = opt.get("spin", SPIN_MAX)
    name = "standalone__detection_seg_dino__vision_kernel"
    p, info = gen_kernel(name, opt)
    text = kernel_text(name, p)
    desc = """; Generated by my own generator script (gen10.py + dsl.py: straight-line emitter with automatic s_waitcnt / wait-state insertion).
;   Qk = (LN(q) Wq) Wk^T ; logits = rstd * (x.Qk - sum(x) * mean(Qk)) ; U = sum_pixels softmax * rstd * x, centred ; out = q + U (Wv Wo) / L
"""
    out = (HEADER.rstrip() + "\n" + f"; @launch grid=({info['grid']},1,1) block=({info['block']},1,1) lds={info['lds']}\n" + desc
           + '.amdgcn_target "amdgcn-amd-amdhsa--gfx950"\n.text\n' + "\n".join(text) + '\n.section .rodata,"a"\n' + "\n".join(kd_text(name, info)) + "\n")
    open(path, "w").write(out)

if __name__ == "__main__":
    opt = {}
    path = sys.argv[1] if len(sys.argv) > 1 else "k2.s"
    for a in sys.argv[2:]:
        k, v = a.split("=", 1)
        opt[k] = int(v) if v.lstrip('-').isdigit() else v
    build(path, opt)
    if LABELS:
        import json
        json.dump(LABELS, open(path[:-2] + ".labels.json", "w"))
```

```python
import sys, math, struct, re
from dsl import Prog

C = 384
F0_BYTES = 113246208
F1_BYTES = 28311552
W_BYTES = 294912
Q_BYTES = 12288
N_OFF = 0
QF_OFF = 4096
QKF_OFF = QF_OFF + 24576
UF_OFF = QKF_OFF + 24576
ML_OFF = UF_OFF + 24576
M2_OFF = ML_OFF + 65536
PART_OFF = 262144
WS_USED = PART_OFF + 256 * 12288
NRED = 192
NSPEC = 12
PROF_OFF = 163840
SPIN_MAX = 1048576

def f2u(x): return struct.unpack('<I', struct.pack('<f', x))[0]
LOG2E = 1.4426950408889634
SCALE = C ** -0.5

def srd(p, base_s, ptr_lo, nbytes):
    p(f"s_mov_b32 s{base_s}, s{ptr_lo}")
    p(f"s_and_b32 s{base_s+1}, s{ptr_lo+1}, 0xffff")
    p(f"s_mov_b32 s{base_s+2}, {nbytes}")
    p(f"s_mov_b32 s{base_s+3}, 0x20000")

def mov64(p, s, val):
    p(f"s_mov_b32 s{s}, 0x{val & 0xffffffff:08x}")
    p(f"s_mov_b32 s{s+1}, 0x{(val >> 32) & 0xffffffff:08x}")

def xg_reduce(p, op, a, tmp):
    p(f"v_mov_b32 v{tmp}, v{a}")
    p(f"v_permlane32_swap_b32 v{a}, v{tmp}")
    p(f"{op} v{a}, v{a}, v{tmp}")
    p(f"v_mov_b32 v{tmp}, v{a}")
    p(f"v_permlane16_swap_b32 v{a}, v{tmp}")
    p(f"{op} v{a}, v{a}, v{tmp}")

S_MASK = 93
S_TAG = 95
S_SPIN = 92

def tag_regs(p, regs, vtag):
    for r in regs: p(f"v_bfi_b32 v{r}, s{S_MASK}, v{vtag}, v{r}")

def check_tags(p, regs, vtag, vacc):
    regs = list(regs)
    for r in regs: p(f"v_xor_b32 v{r}, v{r}, v{vtag}")
    p(f"v_or_b32 v{vacc}, v{regs[0]}, v{regs[1]}")
    rest = regs[2:]
    while len(rest) >= 2:
        p(f"v_or3_b32 v{vacc}, v{vacc}, v{rest[0]}, v{rest[1]}"); rest = rest[2:]
    if rest: p(f"v_or_b32 v{vacc}, v{vacc}, v{rest[0]}")
    p(f"v_and_b32 v{vacc}, s{S_MASK}, v{vacc}")
    p(f"v_cmp_ne_u32 vcc, 0, v{vacc}")

from dsl import Ins
def est_cycles(text):
    t = text.split(';')[0].strip()
    if not t or t.endswith(':') or t.startswith('need') or t.startswith('.set'): return 0
    mn = t.split()[0]
    if mn.startswith('v_mfma'): return 16
    if mn.startswith('v_exp') or mn.startswith('v_rsq') or mn.startswith('v_rcp'): return 8
    if mn.startswith('v_'): return 4
    if mn.startswith('ds_write_b128'): return 16
    if mn.startswith('ds_write'): return 8
    if mn.startswith('ds_read'): return 8
    if mn == 's_barrier': return 80
    if mn.startswith('buffer_'): return 8
    return 4

def schedule_loads(items, loads, pace, lat, dmax, t0=0, verbose=False, policy='model', nreal=150):
    out = []; now = t0
    land = []
    issue_t = []
    free = set(); k = 0
    extras = []
    def landed():
        return sum(1 for x in land if x <= now)
    locked = [False]; credit = [0]; dm = [dmax]; consumed = [0]; gap = [0]; pos = [0]; lastpos = [-10**9]
    def try_issue():
        nonlocal k, now
        if locked[0]: return
        while k < len(loads):
            L = loads[k]
            if L['key'] is not None and L['key'] not in free: break
            if policy == 'model':
                if len(land) - landed() >= dm[0]: break
            else:
                if k - consumed[0] >= dm[0]: break
                if pos[0] - lastpos[0] < gap[0]: break
            for x in L['pre']: out.append(x); now += 4
            out.append(L['ins']); now += 8
            lastpos[0] = pos[0]
            if L['key'] is not None: free.discard(L['key'])
            prev = land[-1] if land else 0
            land.append(max(now + lat, prev + pace)); issue_t.append(now)
            k += 1
    for it in items:
        if isinstance(it, tuple):
            if it[0] == 'use':
                j = it[1]
                while k <= j:
                    L = loads[k]
                    assert L['key'] is None or L['key'] in free, ('slot not free', k, L)
                    for x in L['pre']: out.append(x); now += 4
                    out.append(L['ins']); now += 8
                    if L['key'] is not None: free.discard(L['key'])
                    prev = land[-1] if land else 0
                    land.append(max(now + lat, prev + pace)); issue_t.append(now); k += 1
                now = max(now, land[j])
                consumed[0] = max(consumed[0], j + 1)
                try_issue()
            elif it[0] == 'free': free.add(it[1]); try_issue()
            elif it[0] == 't': now += it[1]; try_issue()
            elif it[0] == 'dmax': dm[0] = it[1]; try_issue()
            elif it[0] == 'gap': gap[0] = it[1]
            elif it[0] == 'zstart': lastpos[0] = -10**9
            elif it[0] == 'zend':
                g = gap[0]; gap[0] = 0; try_issue(); gap[0] = g
            elif it[0] == 'until': now = max(now, it[1]); try_issue()
            elif it[0] == 'force':
                while k < it[1]:
                    L = loads[k]
                    assert L['key'] is None or L['key'] in free, ('slot not free', k, L)
                    for x in L['pre']: out.append(x); now += 4
                    out.append(L['ins']); now += 8
                    if L['key'] is not None: free.discard(L['key'])
                    prev = land[-1] if land else 0
                    land.append(max(now + lat, prev + pace)); issue_t.append(now); k += 1
                    if len(land) > 12: now = max(now, land[-13])
            elif it[0] == 'log':
                if verbose: print(f"   model {it[1]:8s} t={now/2100:.2f}us issued={k}")
            elif it[0] == 'lock': locked[0] = True
            elif it[0] == 'unlock': locked[0] = False
            continue
        out.append(it)
        c = est_cycles(it)
        if it.lstrip().startswith('v_mfma'): credit[0] = 2
        elif credit[0] > 0 and c <= 8: c = 0; credit[0] -= 1
        else: credit[0] = 0
        now += c; pos[0] += c
        if '@noload' not in it: try_issue()
    assert k >= nreal, (k, nreal)
    return out

def timeout_diag(p, site, extra="0", vacc=None):
    p("s_load_dwordx2 s[86:87], s[0:1], 64")
    p("s_lshl_b32 s85, s2, 8")
    p("s_or_b32 s85, s85, s20")
    p("s_or_b32 s85, s85, 0x1000000")
    p("s_waitcnt lgkmcnt(0)")
    p("v_mov_b32 v254, s85") if False else None
DIAG = [False]
def diag_store(p, site, val):
    p("s_load_dwordx2 s[86:87], s[0:1], 64")
    p("s_lshl_b32 s85, s2, 8")
    p("s_or_b32 s85, s85, s20")
    p("s_or_b32 s85, s85, 0x1000000")
    p("s_waitcnt lgkmcnt(0)")
    p("s_mov_b64 s[88:89], exec") if False else None
    p("v_mov_b32 v250, s85")
    p(f"v_mov_b32 v251, {val}")
    p(f"v_mov_b32 v249, {8*site}")
    p("s_ff1_i32_b64 s84, vcc")
    p("s_nop 4")
    p("v_readlane_b32 s83, v251, s84")
    p("s_nop 4")
    p("v_mov_b32 v251, s84")
    p("v_lshlrev_b32 v251, 16, v251")
    p("v_or_b32 v251, s83, v251")
    p("global_store_dwordx2 v249, v[250:251], s[86:87]")
    p("s_waitcnt vmcnt(0)")
def tagpat(p, base):
    for j in range(4):
        p(f"s_lshr_b32 s{base+j}, s{S_TAG}, {2*j}")
        p(f"s_and_b32 s48, s{base+j}, 2")
        p(f"s_lshl_b32 s48, s48, 15")
        p(f"s_and_b32 s{base+j}, s{base+j}, 1")
        p(f"s_or_b32 s{base+j}, s{base+j}, s48")

uid = [0]
def poll_block(p, name, loads, regs, vtag, vacc, preissued=False, lock=False, sleep=1):
    if lock: p.items.append(('lock',))
    uid[0] += 1
    L = f"{name}_pl{uid[0]}"
    if not preissued:
        for x in loads: p(x)
    check_tags(p, regs, vtag, vacc)
    p(f"s_cbranch_vccz {L}_ok")
    p(f"s_mov_b32 s{S_SPIN}, 0")
    p(f"{L}_retry:")
    if sleep: p(f"s_sleep {sleep}")
    for x in loads: p(x)
    p("s_waitcnt vmcnt(0)")
    check_tags(p, regs, vtag, vacc)
    p(f"s_cbranch_vccz {L}_fin")
    p(f"s_add_u32 s{S_SPIN}, s{S_SPIN}, 1")
    p(f"s_cmp_lt_u32 s{S_SPIN}, {SPIN_MAX}")
    p(f"s_cbranch_scc1 {L}_retry")
    if DIAG[0]: diag_store(p, uid[0], f"v{vacc}")
    p(f"{L}_fin:")
    p("s_nop 7")
    p("s_nop 7")
    p(f"{L}_ok: ;@restore {L}")
    if lock: p.items.append(('unlock',))

class Prof:
    def __init__(self, p, opt, base, lim=88):
        self.opt = opt; self.lim = lim; self.p = p; self.on = opt.get("prof", 0); self.lbl = []; self.base = base; self.skip = opt.get("skip", "").split(",")
    def __call__(self, lbl, fine=False):
        if self.on == 7:
            if not self.lbl and self.base == 52: self.lbl = ["z%d" % i for i in range(11)]
            return
        if self.on == 6 and lbl not in ("init", "S", "X012", "pub"): return
        if self.on == 5:
            if lbl in ("init", "S", "F9"):
                for ins in ("s_memtime", "s_memrealtime"):
                    i = len(self.lbl); self.lbl.append(lbl + ins[2:])
                    self.p(f"{ins} s[{self.base+2*i}:{self.base+2*i+1}]")
            return
        if self.on == 4:
            if not fine: return
        elif fine: return
        if self.on and lbl not in self.skip and self.base + 2 * len(self.lbl) < self.lim:
            i = len(self.lbl); self.lbl.append(lbl)
            self.p(f"{'s_memtime' if self.on == 4 else 's_memrealtime'} s[{self.base+2*i}:{self.base+2*i+1}]")
    def dump(self, tagname, srdbase=16):
        if not self.on: return
        p = self.p
        wg = self.opt.get("dbg_" + tagname)
        if wg is not None:
            uid[0] += 1
            p("s_waitcnt vmcnt(0) lgkmcnt(0)")
            p(f"s_cmp_lg_u32 s2, {wg}")
            p(f"s_cbranch_scc1 dbgskip{uid[0]} ;@nodrain")
            p("s_load_dwordx2 s[4:5], s[0:1], 64")
            p("s_waitcnt lgkmcnt(0)")
            p("s_mov_b64 exec, 1")
            p("v_mov_b32 v1, 0")
            off = self.opt.get("dbgoff_" + tagname, 0)
            for i in range(len(self.lbl)):
                if self.on == 5: p(f"v_mov_b32 v2, s{self.base+2*i}")
                else:
                    p(f"s_sub_u32 s3, s{self.base+2*i}, s98")
                    p("v_mov_b32 v2, s3")
                p(f"global_store_dword v1, v2, s[4:5] offset:{4*(off+i)}")
            p(f"dbgskip{uid[0]}:")
        p("s_waitcnt vmcnt(0) lgkmcnt(0)")
        p("s_mov_b64 exec, 1")
        p("s_lshl_b32 s3, s2, 7")
        p(f"s_add_u32 s3, s3, {PROF_OFF}")
        p("v_mov_b32 v1, 0")
        p("v_mov_b32 v2, s98")
        p(f"buffer_store_dword v2, v1, s[{srdbase}:{srdbase+3}], s3 offen")
        for i in range(len(self.lbl)):
            p(f"v_mov_b32 v2, s{self.base+2*i}")
            p(f"buffer_store_dword v2, v1, s[{srdbase}:{srdbase+3}], s3 offen offset:{4*(i+1)}")
        if tagname == "streamer" and self.on == 6:
            p("s_mov_b64 exec, 0x7f")
            p("v_lshlrev_b32 v1, 2, v0")
            p(f"buffer_store_dword v239, v1, s[{srdbase}:{srdbase+3}], s3 offen offset:64")
            p("s_mov_b64 exec, 1")
            p("v_mov_b32 v1, 0")
        if tagname == "streamer":
            p("v_mov_b32 v2, s86")
            p(f"buffer_store_dword v2, v1, s[{srdbase}:{srdbase+3}], s3 offen offset:124")
        print(tagname, "stamps:", self.lbl)
        LABELS[tagname] = list(self.lbl)
LABELS = {}

def gen_kernel(name, opt):
    p = Prog()
    prof = opt.get("prof", 0)
    p("s_cmp_ge_u32 s2, 256")
    p(f"s_cbranch_scc1 {name}_done ;@nodrain")
    if prof: p("s_memrealtime s[98:99]")
    p("s_load_dwordx2 s[22:23], s[0:1], 72")
    p("s_load_dwordx4 s[4:7], s[0:1], 8")
    p("v_readfirstlane_b32 s20, v0")
    p("v_and_b32 v0, 63, v0")
    p("s_lshr_b32 s20, s20, 6")
    p(f"s_mov_b32 s{S_MASK}, 0xff")
    p("s_lshr_b32 s100, s2, 3")
    p("s_lshl_b32 s100, s100, 2")
    p("s_and_b32 s21, s2, 7")
    p("s_add_u32 s100, s100, s21")
    p("s_sub_u32 s101, s100, 4")
    p(f"s_sub_u32 s3, s2, {NSPEC}")
    p("s_cmp_lt_u32 s2, 24")
    p("s_cselect_b32 s101, s101, s3")
    p("s_cselect_b32 s3, s21, 7")
    p("s_mov_b32 s21, s101")
    p("s_cmp_lt_u32 s3, 4")
    p(f"s_cbranch_scc1 {name}_special")
    gen_streamer(p, name, opt)
    p(f"{name}_special: ;@restore entry")
    gen_special(p, name, opt)
    p(f"{name}_done:")
    p("s_endpgm")
    return p, dict(vgpr=252 + 196, accum=252, lds=160256, grid=256, block=256)

def gen_streamer(p, name, opt):
    NT = " nt" if opt.get("nt", True) else ""
    prof = opt.get("prof", 0)
    NS = 10
    SP = opt.get("sp", 9 if opt.get("bal", 0) == 1 else 8)
    ST = lambda k: 76 + 60 * k
    F1R = lambda k, t: ST(k) + 4 * t
    F0R = lambda k, t, d: ST(k) + 12 + 16 * t + 4 * d
    VF0, VF1, VL16 = 1, 2, 3
    WA = [[4, 5, 6, 7], [216, 217, 218, 219]]
    RA = [[11, 12, 13, 14], [220, 221, 222, 223]]
    VTAG = 8
    QBA = 9
    TR = [15, 16, 17, 18, 19, 20]
    MXW, MXR, WXW, WXR = 21, 22, 23, 24
    M, L, Z, SN = 25, 26, 27, 28
    ACC = 32
    D1, D2, D3 = 56, 60, 64
    Uu, SS, RS, TM, TM2, AL, WF = 68, 69, 70, 71, 72, 73, 74
    U = 196; TT = 204
    QK = 212 + 12
    QKR = 212
    aQB, aXA, aXT, aONE = 0, 48, 96, 192
    XBUF = 49152; XT = 12288
    MX_OFF = 147456; LZ_OFF = MX_OFF + 256; QBL_OFF = LZ_OFF + 256; WX_OFF = QBL_OFF
    D1B = [56, 212, 216]; D3B = [64, 240, 244]; RSB = [70, 248, 249]; WFB = [74, 220, 222]
    XAB = [48, 96, 144]
    XTB = [96, 144]
    WA[1] = [228, 229, 230, 231]; RA[1] = [232, 233, 234, 235]
    QKR = 204 - 0
    QKR = 212
    WA[1] = [236, 237, 238, 239]; RA[1] = [29, 30, 31, 10]
    QKR = 212

    NSTR = 256 - NSPEC
    base_cnt = 9216 // NSTR; nbig = 9216 - base_cnt * NSTR
    assert base_cnt == 37
    glob = opt.get("glob", 1)
    if not glob:
        p(f"s_mul_i32 s96, s21, {base_cnt}")
        p(f"s_min_u32 s97, s21, {nbig}")
        p("s_add_u32 s96, s96, s97")
        p(f"s_cmp_lt_u32 s21, {nbig}")
        p("s_cselect_b32 s97, 2, 1")
        p("s_add_u32 s90, s96, s20")
        p("s_add_u32 s91, s90, s97")
        p("s_sub_u32 s91, s91, 4")
    else:
        if opt.get("bal", 0) == 2:
            NE3 = opt.get("ne3", 72); KL = 1
            p("s_sub_u32 s91, s2, 24")
            p("s_lshr_b32 s91, s91, 3")
            p("s_lshl_b32 s91, s91, 2")
            p("s_and_b32 s97, s2, 3")
            p("s_add_u32 s91, s91, s97")
            p(f"s_min_u32 s96, s91, {NE3}")
            p(f"s_cmp_lt_u32 s91, {NE3}")
            p("s_cselect_b32 s28, 3, 2")
            p("s_lshl_b32 s91, s91, 1")
            p("s_add_u32 s91, s91, s96")
            p("s_lshr_b32 s96, s2, 3")
            p("s_lshl_b32 s96, s96, 2")
            p("s_add_u32 s96, s96, s97")
            p(f"s_add_u32 s96, s96, {432 - 128}")
            p("s_and_b32 s29, s2, 4")
            p("s_cmp_eq_u32 s29, 0")
            p("s_cselect_b32 s91, s91, s96")
            p("s_cselect_b32 s97, s28, 1")
            p("s_add_u32 s91, s91, s20")
        elif opt.get("bal", 0):
            p("s_sub_u32 s91, s2, 24")
            p("s_lshr_b32 s91, s91, 3")
            p("s_lshl_b32 s91, s91, 2")
            p("s_and_b32 s97, s2, 3")
            p("s_add_u32 s91, s91, s97")
            p("s_min_u32 s96, s91, 84")
            p("s_cmp_lt_u32 s91, 84")
            p("s_cselect_b32 s97, 4, 3")
            p("s_mul_i32 s91, s91, 3")
            p("s_add_u32 s91, s91, s96")
            p("s_add_u32 s91, s91, s20")
            p("s_and_b32 s96, s2, 4")
            p("s_cmp_eq_u32 s96, 0")
            p("s_cselect_b32 s97, s97, 0")
        else:
            p(f"s_min_u32 s97, s21, {nbig}")
            p("s_add_u32 s91, s21, s97")
            p("s_add_u32 s91, s91, s20")
            p(f"s_cmp_lt_u32 s21, {nbig}")
            p("s_cselect_b32 s97, 2, 1")
        p("s_lshl_b32 s90, s21, 2")
        p("s_add_u32 s90, s90, s20")
    FP, J = 56, 57
    p(f"v_lshrrev_b32 v{FP}, 4, v0")
    p(f"v_and_b32 v{J}, 15, v0")
    p(f"v_mul_u32_u24 v{VF0}, 1536, v{FP}")
    p(f"v_lshl_add_u32 v{VF0}, v{J}, 4, v{VF0}")
    p(f"v_mul_u32_u24 v{VF1}, 768, v{FP}")
    p(f"v_lshl_add_u32 v{VF1}, v{J}, 4, v{VF1}")
    p(f"v_lshlrev_b32 v{VL16}, 4, v0")
    if opt.get("linear"):
        for t in range(3):
            p(f"v_add_u32 v58, {64*t}, v0")
            p("v_mul_u32_u24 v59, 1366, v58")
            p("v_lshrrev_b32 v59, 16, v59")
            p("v_mul_u32_u24 v60, 48, v59")
            p("v_sub_u32 v60, v58, v60")
            p(f"v_mul_u32_u24 v{240+t}, 1536, v59")
            p(f"v_lshl_add_u32 v{240+t}, v60, 4, v{240+t}")
    p("s_waitcnt lgkmcnt(0)")
    srd(p, 8, 4, F0_BYTES)
    srd(p, 12, 6, F1_BYTES)
    srd(p, 16, 22, WS_USED)
    p(f"s_load_dword s94, s[22:23], {N_OFF}")

    LOOP = opt.get("loop", 1)
    full = 4 * NSTR; part = NSTR + nbig
    p("s_sub_u32 s91, s91, s90")
    p("s_mov_b32 s96, -1")
    p("s_cmp_lt_u32 s20, s97")
    p("s_cselect_b32 s89, 0, 0xf149f2ca")
    def tile_offsets(s):
        p("s_add_u32 s96, s96, 1")
        p(f"s_mul_i32 s27, s96, {full}")
        p("s_add_u32 s27, s27, s90")
        p(f"s_cmp_gt_u32 s96, {SP}")
        p(f"s_cselect_b32 s28, {(part - full) & 0xffffffff}, 0")
        p("s_add_u32 s27, s27, s28")
        p(f"s_cmp_eq_u32 s96, {SP}")
        p("s_cselect_b32 s28, s91, 0")
        p("s_cselect_b32 s23, s89, 0")
        p("s_add_u32 s27, s27, s28")
        p("s_mul_i32 s24, s27, 3072")
        p(f"s_mul_hi_u32 s28, s27, {(2**32 + 47)//48}")
        p("s_mul_i32 s29, s28, 48")
        p("s_sub_u32 s29, s27, s29")
        p("s_mul_i32 s25, s28, 589824")
        p("s_mul_i32 s29, s29, 6144")
        p("s_add_u32 s25, s25, s29")
        p("s_add_u32 s26, s25, 294912")
        p(f"s_cmp_ge_u32 s96, {NS}")
        p("s_cselect_b32 s23, 1, s23")
        p("s_cmp_eq_u32 s23, 0")
        p(f"s_cselect_b32 s10, {F0_BYTES}, 0")
        p(f"s_cselect_b32 s14, {F1_BYTES}, 0")
    loads = []
    lidx = {}
    class Cap:
        def __init__(self): self.l = []
        def __call__(self, x): self.l.append(x)
    def build_loads():
        nonlocal p
        for s in range(NS + 2):
            keep = p; p = Cap(); tile_offsets(s); pre = p.l; p = keep
            for t in range(3):
                r = F1R(s & 1, t)
                lidx[(s, 'f1', t)] = len(loads)
                loads.append(dict(pre=pre, key=(s & 1, 'f1', t) if s >= 2 else None,
                                  ins=(f"buffer_load_dwordx4 v[{r}:{r+3}], v{VL16}, s[12:15], s24 offen offset:{1024*t}{NT}" if opt.get("linear") else
                                       f"buffer_load_dwordx4 v[{r}:{r+3}], v{VF1}, s[12:15], s24 offen offset:{256*t}{NT}")))
                pre = []
                for d in range(4):
                    r = F0R(s & 1, t, d)
                    so = "s25" if d < 2 else "s26"
                    lidx[(s, t, d)] = len(loads)
                    loads.append(dict(pre=[], key=(s & 1, t, d) if s >= 2 else None,
                                      ins=(f"buffer_load_dwordx4 v[{r}:{r+3}], v{240+t}, s[8:11], {so} offen offset:{768*(d&1)}{NT}" if opt.get("linear") else
                                           f"buffer_load_dwordx4 v[{r}:{r+3}], v{VF0}, s[8:11], {so} offen offset:{256*t + 768*(d&1)}{NT}")))
    build_loads()
    def mark(*a): p.items.append(a)
    stream_start = len(p.items)
    mark('t', 0)

    p("s_waitcnt lgkmcnt(0)")
    p("s_add_u32 s94, s94, 1")
    p(f"s_and_b32 s{S_TAG}, s94, 0xff")
    p(f"v_mov_b32 v{VTAG}, s{S_TAG}")
    tagpat(p, 4)

    p(f"s_mul_i32 s47, s20, {XT}")
    p(f"v_and_b32 v58, 1, v{FP}")
    p(f"v_lshlrev_b32 v58, 3, v58")
    p(f"v_lshrrev_b32 v59, 1, v{FP}")
    p(f"v_add_u32 v58, v58, v59")
    p(f"v_xor_b32 v58, v58, v{J}")
    p(f"v_lshlrev_b32 v58, 4, v58")
    p(f"v_mul_u32_u24 v59, 3072, v{FP}")
    p(f"v_add_u32 v58, v58, v59")
    p(f"v_add_u32 v{WA[0][0]}, s47, v58")
    for d in range(1, 4): p(f"v_xor_b32 v{WA[0][d]}, {32*d}, v{WA[0][0]}")
    for d in range(4): p(f"v_add_u32 v{WA[1][d]}, {2*XBUF}, v{WA[0][d]}")
    I, G, SI = 57, 56, 58
    p(f"v_and_b32 v{SI}, 7, v{I}")
    p(f"v_lshlrev_b32 v{SI}, 1, v{SI}")
    p(f"v_lshrrev_b32 v59, 3, v{I}")
    p(f"v_or_b32 v{SI}, v{SI}, v59")
    p(f"v_lshlrev_b32 v59, 1, v{G}")
    p(f"v_xor_b32 v59, v59, v{SI}")
    p(f"v_mul_u32_u24 v60, 768, v{I}")
    p(f"v_add_u32 v60, s47, v60")
    for b3 in range(2):
        for b0 in range(2):
            r = RA[0][2 * b3 + b0]
            p(f"v_xor_b32 v{r}, {8*b3+b0}, v59")
            p(f"v_lshl_add_u32 v{r}, v{r}, 4, v60")
            p(f"v_add_u32 v{RA[1][2*b3+b0]}, {2*XBUF}, v{r}")
    p(f"v_lshlrev_b32 v{MXR}, 4, v{I}")
    p(f"v_lshrrev_b32 v59, 1, v{G}")
    p(f"v_lshlrev_b32 v59, 10, v59")
    p(f"v_and_b32 v60, 1, v{G}")
    p(f"v_lshl_add_u32 v59, v60, 3, v59")
    p(f"v_add_u32 v59, v59, v{MXR}")
    p(f"v_add_u32 v{QBA}, {QBL_OFF}, v59")
    p(f"v_add_u32 v{MXR}, {MX_OFF}, v{MXR}")
    p("s_lshl_b32 s48, s20, 2")
    p(f"v_add_u32 v{MXW}, s48, v{MXR}")
    p(f"v_add_u32 v{WXR}, {WX_OFF}, v{VL16}")
    p("s_lshr_b32 s48, s20, 1")
    p("s_lshl_b32 s48, s48, 10")
    p("s_and_b32 s49, s20, 1")
    p("s_lshl_b32 s49, s49, 3")
    p("s_add_u32 s48, s48, s49")
    p(f"v_add_u32 v{WXW}, s48, v{WXR}")
    I = 56
    p(f"v_lshrrev_b32 v{I}, 2, v0")
    p(f"v_and_b32 v{SI}, 7, v{I}")
    p(f"v_lshlrev_b32 v{SI}, 1, v{SI}")
    p(f"v_lshrrev_b32 v59, 3, v{I}")
    p(f"v_or_b32 v{SI}, v{SI}, v59")
    p(f"v_and_b32 v59, 3, v0")
    p(f"v_lshrrev_b32 v60, 1, v59")
    p(f"v_xor_b32 v{SI}, v{SI}, v60")
    p(f"v_and_b32 v59, 1, v59")
    p(f"v_lshlrev_b32 v59, 3, v59")
    p(f"v_mul_u32_u24 v60, 768, v{I}")
    p(f"v_add_u32 v60, v60, v59")
    p("s_mul_i32 s48, s20, 6")
    for q in range(6):
        p(f"s_add_u32 s49, s48, {q}")
        p("s_and_b32 s50, s49, 7")
        p("s_lshl_b32 s50, s50, 1")
        p("s_lshr_b32 s49, s49, 3")
        p("s_lshl_b32 s49, s49, 8")
        p(f"v_xor_b32 v{TR[q]}, s50, v{SI}")
        p(f"v_lshl_add_u32 v{TR[q]}, v{TR[q]}, 4, v60")
        p(f"v_add_u32 v{TR[q]}, s49, v{TR[q]}")
    for r in range(4):
        mov64(p, 30 + 2 * r, sum(1 << (20 * g + r) for g in range(4)))
    for r in range(1, 4):
        mov64(p, 38 + 2 * (r - 1), 0x1111111111111111 << r)
    p("s_mov_b32 s44, 0xffff0000")
    p("s_mov_b32 s87, 0xffffff00")
    p(f"s_mov_b32 s45, 0x{f2u(1.0 / C):08x}")
    p(f"s_mov_b32 s46, 0x{f2u(1e-5):08x}")
    p("s_mov_b32 s51, 0x00003f80")
    p("s_mov_b32 s3, 0x3f800000")
    for r in range(24): p(f"v_mov_b32 v{ACC+r}, 0")
    p(f"v_mov_b32 v{M}, 0xf149f2ca")
    p(f"v_mov_b32 v{L}, 0")
    p(f"v_mov_b32 v{Z}, 0")
    p("v_mov_b32 v56, 0x3f803f80")
    for r in range(4): p(f"v_accvgpr_write_b32 a{aONE+r}, v56")

    tr_slot = [0]
    dyn = [False]
    def wa(slot, d, t):
        if dyn[0]: return (WA[0][d], 768 * d + 256 * t)
        return (WA[0][d], slot * XBUF + 768 * d + 256 * t) if slot < 2 else (WA[1][d], 768 * d + 256 * t)
    def ra(slot, ks):
        i = 2 * ((ks >> 1) & 1) + (ks & 1)
        if dyn[0]: return (RA[0][i], 256 * (ks >> 2))
        return (RA[0][i], slot * XBUF + 256 * (ks >> 2)) if slot < 2 else (RA[1][i], 256 * (ks >> 2))

    def m_reads(s, t, xa=aXA):
        for ks in range(4 * t, 4 * t + 4):
            r, off = ra(s % 3, ks)
            p(f"ds_read_b128 a[{xa+4*ks}:{xa+4*ks+3}], v{r} offset:{off}")
    def m_mfma(s, t, b=0, what="gol", xa=aXA):
        d1, d3 = D1B[b], D3B[b]
        G_, O_, L_ = [], [], []
        for ks in range(4 * t, 4 * t + 4):
            x = f"a[{xa+4*ks}:{xa+4*ks+3}]"
            c1 = "0" if ks == 0 else f"v[{d1}:{d1+3}]"
            c2 = "0" if ks == 0 else f"v[{D2}:{D2+3}]"
            c3 = "0" if ks == 0 else f"v[{d3}:{d3+3}]"
            G_.append(f"v_mfma_f32_16x16x32_bf16 v[{D2}:{D2+3}], {x}, {x}, {c2}")
            O_.append(f"v_mfma_f32_16x16x32_bf16 v[{d3}:{d3+3}], {x}, a[{aONE}:{aONE+3}], {c3}")
            L_.append(f"v_mfma_f32_16x16x32_bf16 v[{d1}:{d1+3}], {x}, a[{aQB+4*ks}:{aQB+4*ks+3}], {c1}")
        if what == "l":
            for x in L_: p(x)
        elif what == "go":
            for g_, o_ in zip(G_, O_): p(g_); p(o_)
        elif t < 2:
            for g_, o_, l_ in zip(G_, O_, L_): p(g_); p(o_); p(l_)
        else:
            for g_, o_ in zip(G_, O_): p(g_); p(o_)
            for l_ in L_: p(l_)
    def stats(b):
        d3, rs = D3B[b], RSB[b]
        p(f"v_cndmask_b32 v{Uu}, 0, v{D2}, s[30:31]")
        for r in range(1, 4):
            p(f"v_cndmask_b32 v{Uu}, v{Uu}, v{D2+r}, s[{30+2*r}:{31+2*r}]")
        p(f"v_cndmask_b32 v{SS}, v{d3}, v{d3+1}, s[38:39]")
        p(f"v_cndmask_b32 v{SS}, v{SS}, v{d3+2}, s[40:41]")
        p(f"v_add_f32_dpp v{Uu}, v{Uu}, v{Uu} row_ror:4 row_mask:0xf bank_mask:0xf")
        p(f"v_cndmask_b32 v{SS}, v{SS}, v{d3+3}, s[42:43]")
        p(f"v_mov_b32 v{TM}, s46")
        p(f"v_add_f32_dpp v{Uu}, v{Uu}, v{Uu} row_ror:8 row_mask:0xf bank_mask:0xf")
        p(f"v_mul_f32 v{SS}, s45, v{SS}")
        p(f"v_fma_f32 v{Uu}, v{Uu}, s45, v{TM}")
        p(f"v_fma_f32 v{Uu}, -v{SS}, v{SS}, v{Uu}")
        p(f"v_max_f32 v{Uu}, s46, v{Uu}")
        p(f"v_rsq_f32 v{rs}, v{Uu}")
    def stage_G(s, b):
        for t in range(3): m_reads(s, t)
        mark('t', 120)
        for t in range(3): m_mfma(s, t, b, "go")
        stats(b)

    def stage_A(s, ld, fuse, thirds=(0, 1, 2)):
        slot = s % 3; k = s & 1
        for t in thirds:
            if (s, t) == qpos: qk_issue()
            f1 = F1R(k, t)
            mark('use', lidx[(s, 'f1', t)])
            cw = opt.get("cw", 2) if s >= 3 else 0
            if cw:
                dd = 3 if cw == 3 else 1
                mark('use', lidx[(s, t, dd)])
                p(f"need v[{F0R(k, t, dd)}:{F0R(k, t, dd)+3}]")
            for j in range(4):
                p(f"v_lshlrev_b32 v{U+2*j}, 16, v{f1+j}")
                p(f"v_and_b32 v{U+2*j+1}, s44, v{f1+j}")
            mark('free', (k, 'f1', t))
            for d in range(4):
                f0 = F0R(k, t, d)
                mark('use', lidx[(s, t, d)])
                if cw == 2 and d == 2:
                    mark('use', lidx[(s, t, 3)])
                    p(f"need v[{F0R(k, t, 3)}:{F0R(k, t, 3)+3}]")
                for j in range(4):
                    p(f"v_dot2_f32_bf16 v{TT+2*j}, v{f0+j}, s51, v{U+2*j}")
                    p(f"v_dot2_f32_bf16 v{TT+2*j+1}, v{f0+j}, s3, v{U+2*j+1}")
                for j in range(4):
                    p(f"v_cvt_pk_bf16_f32 v{f0+j}, v{TT+2*j}, v{TT+2*j+1}")
                r, off = wa(slot, d, t)
                p(f"ds_write_b128 v{r}, v[{f0}:{f0+3}] offset:{off}")
                mark('free', (k, t, d))
            if fuse:
                m_reads(s, t)
                mark('t', 120)
                m_mfma(s, t)
        if fuse: stats(0)

    def stage_M(tiles, pre):
        if pre:
            for b, s in enumerate(tiles):
                for t in range(3): m_reads(s, t, XAB[b])
            mark('t', 100)
            for b, s in enumerate(tiles):
                for t in range(3): m_mfma(s, t, b, "l", XAB[b])
        else:
            for b, s in enumerate(tiles):
                if b == 0:
                    for t in range(3): m_reads(s, t, XAB[0])
                    mark('t', 120)
                if b + 1 < len(tiles):
                    for t in range(3): m_reads(tiles[b + 1], t, XAB[b + 1])
                for t in range(3): m_mfma(s, t, b, "gol", XAB[b])
                stats(b)

    qpos = None
    qk_loads = []
    qk_loads.append("s_mul_i32 s48, s20, 6144")
    qk_loads.append(f"s_add_u32 s48, s48, {QKF_OFF}")
    qk_loads.append("s_add_u32 s49, s48, 4096")
    for q in range(6):
        so, off = ("s48", 1024 * q) if q < 4 else ("s49", 1024 * (q - 4))
        qk_loads.append(f"buffer_load_dwordx4 v[{QKR+4*q}:{QKR+4*q+3}], v{VL16}, s[16:19], {so} offen offset:{off} sc1")
    def qk_issue():
        for x in qk_loads: p(x)
    def qb_setup(fused=False):
        QA = [196 + q for q in range(6)]
        for q in range(6):
            p("s_mul_i32 s48, s20, 6")
            p(f"s_add_u32 s48, s48, {q}")
            p("s_lshr_b32 s49, s48, 2")
            p("s_lshl_b32 s49, s49, 11")
            p("s_and_b32 s48, s48, 3")
            p("s_lshl_b32 s48, s48, 8")
            p("s_add_u32 s48, s48, s49")
            p(f"v_add_u32 v{QA[q]}, s48, v{QBA}")
        p(f"v_add_u32 v202, {QBL_OFF}, v{VL16}")
        if fused:
            for t in range(3): m_reads(0, t, 96)
            for t in range(3): m_reads(1, t, 144)
        mark('t', 300)
        stamp("Q0")
        if opt.get("prof") == 1: p(f"s_mov_b32 s{S_SPIN}, 0xffff")
        poll_block(p, name, qk_loads, list(range(QKR, QKR + 24)), VTAG, TM, preissued=True, lock=True)
        stamp("Qok")
        if opt.get("dq"): mark('dmax', opt["dq"])
        if opt.get("prof") == 1: p(f"s_mov_b32 s86, s{S_SPIN}")
        for q in range(6):
            p(f"v_cvt_pk_bf16_f32 v{QKR+4*q}, v{QKR+4*q}, v{QKR+4*q+1}")
            p(f"v_cvt_pk_bf16_f32 v{QKR+4*q+1}, v{QKR+4*q+2}, v{QKR+4*q+3}")
            p(f"ds_write_b64 v{QA[q]}, v[{QKR+4*q}:{QKR+4*q+1}]")
        p("s_barrier")
        stamp("Sbar")
        for ks in range(12):
            p(f"ds_read_b128 a[{aQB+4*ks}:{aQB+4*ks+3}], v202 offset:{1024*ks}")
        mark('t', 100)
        if not fused:
            for ks in range(12):
                c = "0" if ks == 0 else f"v[{D1}:{D1+3}]"
                p(f"v_mfma_f32_16x16x32_bf16 v[{D1}:{D1+3}], a[{aONE}:{aONE+3}], a[{aQB+4*ks}:{aQB+4*ks+3}], {c}")
            p(f"v_mul_f32 v{SN}, s45, v{D1}")
        else:
            xa = [96, 144, 48]
            for ks in range(12):
                qb = f"a[{aQB+4*ks}:{aQB+4*ks+3}]"
                p(f"v_mfma_f32_16x16x32_bf16 v[{D2}:{D2+3}], a[{aONE}:{aONE+3}], {qb}, {'0' if ks == 0 else f'v[{D2}:{D2+3}]'}")
                for b in range(3):
                    d1 = D1B[b]
                    p(f"v_mfma_f32_16x16x32_bf16 v[{d1}:{d1+3}], a[{xa[b]+4*ks}:{xa[b]+4*ks+3}], {qb}, {'0' if ks == 0 else f'v[{d1}:{d1+3}]'}")
            p(f"v_mul_f32 v{SN}, s45, v{D2}")

    first_bc = [True]
    def set_tr(slot):
        if slot != tr_slot[0]:
            dlt = (slot - tr_slot[0]) * XBUF
            for q in range(6):
                if dlt > 0: p(f"v_add_u32 v{TR[q]}, {dlt}, v{TR[q]}")
                else: p(f"v_subrev_u32 v{TR[q]}, {-dlt}, v{TR[q]}")
            tr_slot[0] = slot
    def tr_list(xt):
        trs = []
        for kst in range(2):
            for q in range(6):
                for h in range(2):
                    j = 2 * kst + h
                    a = xt + 8 * q + 4 * kst + 2 * h
                    trs.append(f"ds_read_b64_tr_b16 a[{a}:{a+1}], v{TR[q]} offset:{j*XT}")
        return trs
    def stage_B(tiles):
        nb = len(tiles)
        set_tr(tiles[0] % 3)
        for b, s in enumerate(tiles):
            d1, d3, rs = D1B[b], D3B[b], RSB[b]
            for r in range(4):
                p(f"v_fma_f32 v{d1+r}, -v{d3+r}, v{SN}, v{d1+r}")
            for r in range(4):
                p(f"v_mul_f32_dpp v{d1+r}, v{rs}, v{d1+r} quad_perm:[{r},{r},{r},{r}] row_mask:0xf bank_mask:0xf")
            if s == SP:
                for r in range(4): p(f"v_add_f32 v{d1+r}, s89, v{d1+r}")
        vals = [D1B[b] + r for b in range(nb) for r in range(4)]
        p(f"v_max3_f32 v{TM}, v{vals[0]}, v{vals[1]}, v{vals[2]}")
        rest = vals[3:]
        while len(rest) >= 2:
            p(f"v_max3_f32 v{TM}, v{TM}, v{rest[0]}, v{rest[1]}"); rest = rest[2:]
        if rest: p(f"v_max_f32 v{TM}, v{TM}, v{rest[0]}")
        xg_reduce(p, "v_max_f32", TM, TM2)
        p(f"ds_write_b32 v{MXW}, v{TM}")
        mark('t', 100)
        p("s_barrier")
        p(f"ds_read_b128 v[{D2}:{D2+3}], v{MXR}")
        mark('t', 80)
        trs = tr_list(XTB[0])
        for x in trs[:12]: p(x)
        p(f"v_max3_f32 v{TM}, v{D2}, v{D2+1}, v{D2+2}")
        p(f"v_max3_f32 v{TM}, v{TM}, v{D2+3}, v{M}")
        p(f"v_and_b32 v{TM}, s87, v{TM}")
        p(f"v_sub_f32 v{AL}, v{M}, v{TM}")
        p(f"v_mov_b32 v{M}, v{TM}")
        p(f"v_exp_f32 v{AL}, v{AL}")
        for v in vals: p(f"v_sub_f32 v{v}, v{v}, v{M}")
        for v in vals: p(f"v_exp_f32 v{v}, v{v}")
        for x in trs[12:]: p(x)
        p(f"v_add_f32 v{TM}, v{vals[0]}, v{vals[1]}")
        p(f"v_add_f32 v{TM2}, v{vals[2]}, v{vals[3]}")
        for i in range(4, len(vals), 2):
            p(f"v_add_f32 v{TM}, v{TM}, v{vals[i]}")
            p(f"v_add_f32 v{TM2}, v{TM2}, v{vals[i+1]}")
        p(f"v_add_f32 v{TM}, v{TM}, v{TM2}")
        p(f"v_fma_f32 v{L}, v{L}, v{AL}, v{TM}")
        for b in range(nb):
            d1, rs, wf = D1B[b], RSB[b], WFB[b]
            for r in range(4):
                p(f"v_mul_f32_dpp v{d1+r}, v{rs}, v{d1+r} quad_perm:[{r},{r},{r},{r}] row_mask:0xf bank_mask:0xf")
            p(f"v_cvt_pk_bf16_f32 v{wf}, v{d1}, v{d1+1}")
            p(f"v_cvt_pk_bf16_f32 v{wf+1}, v{d1+2}, v{d1+3}")
            p(f"ds_write_b64 v{WXW}, v[{wf}:{wf+1}] offset:{2048*b}")
        if nb > 1:
            set_tr(tiles[1] % 3)
            for x in tr_list(XTB[1]): p(x)
        p(f"v_mul_f32 v{Z}, v{Z}, v{AL}")
        for b in range(nb):
            for r in range(4): p(f"v_fma_f32 v{Z}, v{D1B[b]+r}, v{D3B[b]+r}, v{Z}")
        if not first_bc[0]:
            for r in range(24): p(f"v_mul_f32 v{ACC+r}, v{ACC+r}, v{AL}")
        first_bc[0] = False
        p("s_barrier")

    def stage_C(tiles):
        nb = len(tiles)
        WR = [(D1, D2), (212, 216), (D1, D2)]
        for b in range(min(nb, 2)):
            p(f"ds_read_b128 v[{WR[b][0]}:{WR[b][0]+3}], v{WXR} offset:{2048*b}")
            p(f"ds_read_b128 v[{WR[b][1]}:{WR[b][1]+3}], v{WXR} offset:{2048*b + 1024}")
        mark('t', 120)
        for b in range(nb):
            xt = XTB[b & 1]
            for kst in range(2):
                bb = WR[b][kst]
                for q in range(6):
                    a = xt + 8 * q + 4 * kst
                    p(f"v_mfma_f32_16x16x32_bf16 v[{ACC+4*q}:{ACC+4*q+3}], a[{a}:{a+3}], v[{bb}:{bb+3}], v[{ACC+4*q}:{ACC+4*q+3}]")
            if b == 0 and nb == 3:
                set_tr(tiles[2] % 3)
                for x in tr_list(XTB[0]): p(x)
                p(f"ds_read_b128 v[{WR[2][0]}:{WR[2][0]+3}], v{WXR} offset:{2048*2}")
                p(f"ds_read_b128 v[{WR[2][1]}:{WR[2][1]+3}], v{WXR} offset:{2048*2 + 1024}")
        if nb == 3 or True:
            pass


    PR, LSUM, ZSUM, WR2, FLR4 = 212, 216, 217, 224, 232
    FLW, FLR = 250, 251
    FL_OFF = WX_OFF + 8192
    THR = opt.get("thr", 8)
    class Sub:
        def __enter__(self):
            self.keep = p.items; p.items = []; return self
        def __exit__(self, *a):
            self.items = p.items; p.items = self.keep
    def merge(mf, sec, lead, per=2):
        i = 0
        def take(n):
            nonlocal i
            while i < len(sec) and (n > 0 or isinstance(sec[i], tuple)):
                p.items.append(sec[i])
                if not isinstance(sec[i], tuple): n -= 1
                i += 1
        take(lead)
        for m in mf:
            p.items.append(m)
            if not m.startswith("need"): take(per)
        take(10 ** 6)
    def a_third(s, t):
        with Sub() as c: stage_A(s, None, False, (t,))
        return c.items
    def m_list(s, t):
        with Sub() as c: m_mfma(s, t)
        return [f"need a[{aXA+16*t+12}:{aXA+16*t+15}]"] + c.items if opt.get("lw", 1) else c.items
    f2_init = [False]
    pendC = [None]
    def c_list(wr, xt):
        out = []
        for kst in range(2):
            bb = wr + 4 * kst
            for q in range(6):
                a = xt + 8 * q + 4 * kst
                out.append(f"v_mfma_f32_16x16x32_bf16 v[{ACC+4*q}:{ACC+4*q+3}], a[{a}:{a+3}], v[{bb}:{bb+3}], v[{ACC+4*q}:{ACC+4*q+3}]")
        return out
    def flush_C():
        if pendC[0]:
            for x in pendC[0]: p(x)
            pendC[0] = None
    def w_chain(src, exact_dm=None):
        rs, d3, wf = RSB[0], D3B[0], WFB[0]
        for r in range(4): p(f"v_exp_f32 v{PR+r}, v{src+r}")
        p(f"v_add_f32 v{LSUM}, v{PR}, v{PR+1}")
        p(f"v_add_f32 v{ZSUM}, v{PR+2}, v{PR+3}")
        p(f"v_add_f32 v{LSUM}, v{LSUM}, v{ZSUM}")
        for r in range(4):
            p(f"v_mul_f32_dpp v{PR+r}, v{rs}, v{PR+r} quad_perm:[{r},{r},{r},{r}] row_mask:0xf bank_mask:0xf")
        p(f"v_cvt_pk_bf16_f32 v{wf}, v{PR}, v{PR+1}")
        p(f"v_cvt_pk_bf16_f32 v{wf+1}, v{PR+2}, v{PR+3}")
        p(f"ds_write_b64 v{WXW}, v[{wf}:{wf+1}]")
        p(f"v_mul_f32 v{ZSUM}, v{PR}, v{d3}")
        for r in range(1, 4): p(f"v_fma_f32 v{ZSUM}, v{PR+r}, v{d3+r}, v{ZSUM}")
    def m2_publish():
        mark('lock')
        p(f"v_bfi_b32 v{TM}, s{S_MASK}, v{VTAG}, v{M}")
        p(f"v_bfe_u32 v{TM2}, v0, 2, 2")
        p(f"v_lshlrev_b32 v{TM2}, 12, v{TM2}")
        p(f"v_and_b32 v{AL}, 3, v0")
        p(f"v_lshl_add_u32 v{TM2}, v{AL}, 2, v{TM2}")
        p("s_lshl_b32 s48, s2, 4")
        p(f"s_add_u32 s48, s48, {M2_OFF}")
        p("s_cmp_eq_u32 s20, 0")
        p(f"s_cbranch_scc0 {name}_m2skip ;@nodrain")
        p("s_mov_b64 exec, 0xffff")
        p(f"buffer_store_dword v{TM}, v{TM2}, s[16:19], s48 offen sc1")
        p("s_mov_b64 exec, -1")
        p(f"{name}_m2skip:")
        mark('unlock')
    def stage_F2(s, last):
        if not f2_init[0]:
            f2_init[0] = True
            p(f"s_lshl_b32 s48, s20, 2")
            p(f"s_add_u32 s48, s48, {FL_OFF}")
            p(f"v_mov_b32 v{FLW}, s48")
            p(f"v_mov_b32 v{FLR}, {FL_OFF}")
            p(f"s_mov_b32 s88, 0x{f2u(float(THR)):08x}")
        d1, d3, rs = D1B[0], D3B[0], RSB[0]
        if LOOP:
            first = not dyn[0]
            if first:
                assert s % 3 == 0
                set_tr(0)
                p("s_mov_b32 s47, 0")
                p(f"s_mov_b32 s100, {s - 1}")
                p("s_mov_b32 s101, 0")
                dyn[0] = True
            p(f".set ZB{s}, 0")
            mark('zstart')
            mark('lock')
            if not first:
                p("s_add_u32 s47, s47, 1")
                p(f"s_mov_b32 s48, {XBUF}")
                p("s_cmp_eq_u32 s47, 3")
                p(f"s_cselect_b32 s48, {(-2*XBUF) & 0xffffffff}, s48")
                p("s_cselect_b32 s47, 0, s47")
            p("s_add_u32 s100, s100, 1")
            p(f"s_cmp_eq_u32 s100, {SP}")
            p("s_cselect_b32 s22, s89, 0")
            mark('unlock')
            if not first:
                for r in WA[0] + RA[0] + TR: p(f"v_add_u32 v{r}, s48, v{r}")
        def fz(i):
            if opt.get("prof") == 7 and (s & 1): p(f"s_memtime s[{52+2*i}:{53+2*i}]")
        fz(0)
        a0 = a_third(s, 0)
        if pendC[0]:
            merge(pendC[0], a0, lead=16); pendC[0] = None
        else:
            p.items.extend(a0)
        fz(1)
        m_reads(s, 0)
        merge(m_list(s, 0), a_third(s, 1), lead=20)
        fz(2)
        m_reads(s, 1)
        merge(m_list(s, 1), a_third(s, 2), lead=20)
        fz(3)
        m_reads(s, 2)
        if not LOOP: set_tr(s % 3)
        p("s_barrier")
        fz(4)
        trs = tr_list(XTB[0])
        merge(m_list(s, 2), trs, lead=2, per=2)
        fz(5)
        stats(0)
        fz(6)
        for r in range(4):
            p(f"v_fma_f32 v{PR+r}, -v{d3+r}, v{SN}, v{d1+r}")
        if LOOP or s == SP: p(f"v_sub_f32 v{d1}, {'s22' if LOOP else 's89'}, v{M}")
        else: p(f"v_sub_f32 v{d1}, 0, v{M}")
        for r in range(1, 4): p(f"v_mov_b32 v{d1+r}, v{d1}")
        for r in range(4):
            p(f"v_fmac_f32_dpp v{d1+r}, v{rs}, v{PR+r} quad_perm:[{r},{r},{r},{r}] row_mask:0xf bank_mask:0xf")
        p(f"v_max3_f32 v{TM}, v{d1}, v{d1+1}, v{d1+2}")
        p(f"v_max_f32 v{TM}, v{TM}, v{d1+3}")
        p(f"v_cmp_lt_f32 vcc, s88, v{TM}")
        mark('lock')
        fz(7)
        for r in range(4): p(f"v_exp_f32 v{PR+r}, v{d1+r}")
        p("s_cmp_lg_u64 vcc, 0")
        p("s_cselect_b32 s48, 1, 0")
        mark('unlock')
        p(f"v_mov_b32 v{TM2}, s48")
        p(f"v_add_f32 v{LSUM}, v{PR}, v{PR+1}")
        p(f"v_add_f32 v{ZSUM}, v{PR+2}, v{PR+3}")
        p(f"ds_write_b32 v{FLW}, v{TM2}")
        p(f"v_add_f32 v{LSUM}, v{LSUM}, v{ZSUM}")
        wf = WFB[0]
        for r in range(4):
            p(f"v_mul_f32_dpp v{PR+r}, v{rs}, v{PR+r} quad_perm:[{r},{r},{r},{r}] row_mask:0xf bank_mask:0xf")
        p(f"v_cvt_pk_bf16_f32 v{wf}, v{PR}, v{PR+1}")
        p(f"v_cvt_pk_bf16_f32 v{wf+1}, v{PR+2}, v{PR+3}")
        p(f"ds_write_b64 v{WXW}, v[{wf}:{wf+1}]")
        fz(8)
        p("s_barrier")
        fz(9)
        p(f"ds_read_b128 v[{FLR4}:{FLR4+3}], v{FLR}")
        p(f"ds_read_b128 v[{WR2}:{WR2+3}], v{WXR}")
        p(f"ds_read_b128 v[{WR2+4}:{WR2+7}], v{WXR} offset:1024")
        p(f"v_mul_f32 v{ZSUM}, v{PR}, v{d3}")
        for r in range(1, 4): p(f"v_fma_f32 v{ZSUM}, v{PR+r}, v{d3+r}, v{ZSUM}")
        mark('t', 100)
        mark('lock')
        p(f"v_or3_b32 v{TM}, v{FLR4}, v{FLR4+1}, v{FLR4+2}")
        p(f"v_or_b32 v{TM}, v{TM}, v{FLR4+3}")
        p(f"v_cmp_ne_u32 vcc, 0, v{TM}")
        uid[0] += 1
        Lb = f"{name}_lz{uid[0]}"
        p(f"s_cbranch_vccz {Lb}")
        p("s_waitcnt lgkmcnt(0)")
        p(f"v_max3_f32 v{TM}, v{d1}, v{d1+1}, v{d1+2}")
        p(f"v_max_f32 v{TM}, v{TM}, v{d1+3}")
        xg_reduce(p, "v_max_f32", TM, TM2)
        p(f"ds_write_b32 v{MXW}, v{TM}")
        p("s_barrier")
        p(f"ds_read_b128 v[{FLR4}:{FLR4+3}], v{MXR}")
        p(f"v_max3_f32 v{TM}, v{FLR4}, v{FLR4+1}, v{FLR4+2}")
        p(f"v_max3_f32 v{TM}, v{TM}, v{FLR4+3}, 0")
        p(f"v_add_f32 v{TM2}, v{M}, v{TM}")
        p(f"v_and_b32 v{TM2}, s87, v{TM2}")
        p(f"v_sub_f32 v{TM}, v{TM2}, v{M}")
        p(f"v_mov_b32 v{M}, v{TM2}")
        p(f"v_sub_f32 v{AL}, 0, v{TM}")
        p(f"v_exp_f32 v{AL}, v{AL}")
        for r in range(4): p(f"v_sub_f32 v{d1+r}, v{d1+r}, v{TM}")
        for r in range(24): p(f"v_mul_f32 v{ACC+r}, v{ACC+r}, v{AL}")
        p(f"v_mul_f32 v{L}, v{L}, v{AL}")
        p(f"v_mul_f32 v{Z}, v{Z}, v{AL}")
        w_chain(d1)
        p("s_barrier")
        p(f"ds_read_b128 v[{WR2}:{WR2+3}], v{WXR}")
        p(f"ds_read_b128 v[{WR2+4}:{WR2+7}], v{WXR} offset:1024")
        p("s_waitcnt lgkmcnt(0)")
        p("s_nop 7")
        p(f"{Lb}: ;@restore {Lb}")
        mark('unlock')
        if last and not LOOP: m2_publish()
        p(f"v_add_f32 v{L}, v{L}, v{LSUM}")
        p(f"v_add_f32 v{Z}, v{Z}, v{ZSUM}")
        fz(10)
        if LOOP and opt.get("prof") == 6:
            mark('lock')
            p("s_memrealtime s[80:81]")
            p("s_sub_u32 s83, s100, 3")
            p("s_mov_b32 m0, s83")
            p("s_waitcnt lgkmcnt(0)")
            p("v_writelane_b32 v239, s80, m0")
            mark('unlock')
        if LOOP: mark('zend')
        cl = c_list(WR2, XTB[0])
        if last and not LOOP:
            for x in cl: p(x)
        else:
            pendC[0] = cl


    def stage_B2(s):
        assert LOOP and dyn[0] and s % 2 == 0
        PRB = [204, 208]; LS, ZS = 244, 245; WF2 = [74, 246]; WRB = [224, 216]
        p(f".set ZB{s}, 0")
        mark('zstart')
        mark('lock')
        for dreg in (84, 85):
            p("s_add_u32 s47, s47, 1")
            p(f"s_mov_b32 s{dreg}, {XBUF}")
            p("s_cmp_eq_u32 s47, 3")
            p(f"s_cselect_b32 s{dreg}, {(-2*XBUF) & 0xffffffff}, s{dreg}")
            p("s_cselect_b32 s47, 0, s47")
        for breg in (22, 82):
            p("s_add_u32 s100, s100, 1")
            p(f"s_cmp_eq_u32 s100, {SP}")
            p(f"s_cselect_b32 s{breg}, s89, 0")
        mark('unlock')
        for r in WA[0] + RA[0]: p(f"v_add_u32 v{r}, s84, v{r}")
        p("s_waitcnt lgkmcnt(0)")
        def ml(t, b):
            with Sub() as c: m_mfma(s + b, t, b)
            return [f"need a[{aXA+16*t+12}:{aXA+16*t+15}]"] + c.items if opt.get("lw", 1) else c.items
        pc = pendC[0]; pendC[0] = None
        assert len(pc) == 24
        merge(pc[:12], a_third(s, 0), lead=16)
        m_reads(s, 0)
        merge(ml(0, 0), a_third(s, 1), lead=20)
        m_reads(s, 1)
        merge(ml(1, 0), a_third(s, 2), lead=20)
        m_reads(s, 2)
        for r in WA[0] + RA[0]: p(f"v_add_u32 v{r}, s85, v{r}")
        merge(ml(2, 0) + pc[12:], a_third(s + 1, 0), lead=12)
        stats(0)
        m_reads(s + 1, 0)
        merge(ml(0, 1), a_third(s + 1, 1), lead=20)
        m_reads(s + 1, 1)
        merge(ml(1, 1), a_third(s + 1, 2), lead=20)
        m_reads(s + 1, 2)
        for r in TR: p(f"v_add_u32 v{r}, s84, v{r}")
        p("s_barrier")
        merge(ml(2, 1), tr_list(XTB[0]), lead=2, per=2)
        for r in TR: p(f"v_add_u32 v{r}, s85, v{r}")
        with Sub() as c:
            stats(1)
            for b in range(2):
                d1, d3 = D1B[b], D3B[b]
                for r in range(4): p(f"v_fma_f32 v{PRB[b]+r}, -v{d3+r}, v{SN}, v{d1+r}")
            for b in range(2):
                d1 = D1B[b]
                p(f"v_sub_f32 v{d1}, s{22 if b == 0 else 82}, v{M}")
                for r in range(1, 4): p(f"v_mov_b32 v{d1+r}, v{d1}")
        merge(c.items, tr_list(XTB[1]), lead=0, per=1)
        for b in range(2):
            d1, rs = D1B[b], RSB[b]
            for r in range(4):
                p(f"v_fmac_f32_dpp v{d1+r}, v{rs}, v{PRB[b]+r} quad_perm:[{r},{r},{r},{r}] row_mask:0xf bank_mask:0xf")
        dv = [D1B[0] + r for r in range(4)] + [D1B[1] + r for r in range(4)]
        def max8():
            p(f"v_max3_f32 v{TM}, v{dv[0]}, v{dv[1]}, v{dv[2]}")
            p(f"v_max3_f32 v{TM2}, v{dv[3]}, v{dv[4]}, v{dv[5]}")
            p(f"v_max3_f32 v{TM}, v{TM}, v{dv[6]}, v{dv[7]}")
            p(f"v_max_f32 v{TM}, v{TM}, v{TM2}")
        def exps():
            for b in range(2):
                for r in range(4): p(f"v_exp_f32 v{PRB[b]+r}, v{D1B[b]+r}")
        def wpart():
            a, c2 = PRB
            p(f"v_add_f32 v{LS}, v{a}, v{a+1}")
            p(f"v_add_f32 v{ZS}, v{a+2}, v{a+3}")
            p(f"v_add_f32 v{LS}, v{LS}, v{c2}")
            p(f"v_add_f32 v{ZS}, v{ZS}, v{c2+1}")
            p(f"v_add_f32 v{LS}, v{LS}, v{c2+2}")
            p(f"v_add_f32 v{ZS}, v{ZS}, v{c2+3}")
            for b in range(2):
                for r in range(4):
                    p(f"v_mul_f32_dpp v{PRB[b]+r}, v{RSB[b]}, v{PRB[b]+r} quad_perm:[{r},{r},{r},{r}] row_mask:0xf bank_mask:0xf")
                if b == 0: p(f"v_add_f32 v{LS}, v{LS}, v{ZS}")
                p(f"v_cvt_pk_bf16_f32 v{WF2[b]}, v{PRB[b]}, v{PRB[b]+1}")
                p(f"v_cvt_pk_bf16_f32 v{WF2[b]+1}, v{PRB[b]+2}, v{PRB[b]+3}")
                p(f"ds_write_b64 v{WXW}, v[{WF2[b]}:{WF2[b]+1}] offset:{2048*b}")
        def zpart():
            p(f"v_mul_f32 v{ZS}, v{PRB[0]}, v{D3B[0]}")
            for r in range(1, 4): p(f"v_fma_f32 v{ZS}, v{PRB[0]+r}, v{D3B[0]+r}, v{ZS}")
            for r in range(4): p(f"v_fma_f32 v{ZS}, v{PRB[1]+r}, v{D3B[1]+r}, v{ZS}")
        def wx_reads():
            for b in range(2):
                p(f"ds_read_b128 v[{WRB[b]}:{WRB[b]+3}], v{WXR} offset:{2048*b}")
                p(f"ds_read_b128 v[{WRB[b]+4}:{WRB[b]+7}], v{WXR} offset:{2048*b + 1024}")
        max8()
        p(f"v_cmp_lt_f32 vcc, s88, v{TM}")
        mark('lock')
        exps()
        p("s_cmp_lg_u64 vcc, 0")
        p("s_cselect_b32 s48, 1, 0")
        mark('unlock')
        p(f"v_mov_b32 v{TM2}, s48")
        p(f"ds_write_b32 v{FLW}, v{TM2}")
        wpart()
        p("s_barrier")
        p(f"ds_read_b128 v[{FLR4}:{FLR4+3}], v{FLR}")
        wx_reads()
        zpart()
        mark('t', 100)
        mark('lock')
        p(f"v_or3_b32 v{TM}, v{FLR4}, v{FLR4+1}, v{FLR4+2}")
        p(f"v_or_b32 v{TM}, v{TM}, v{FLR4+3}")
        p(f"v_cmp_ne_u32 vcc, 0, v{TM}")
        uid[0] += 1
        Lb = f"{name}_lz{uid[0]}"
        p(f"s_cbranch_vccz {Lb}")
        p("s_waitcnt lgkmcnt(0)")
        max8()
        xg_reduce(p, "v_max_f32", TM, TM2)
        p(f"ds_write_b32 v{MXW}, v{TM}")
        p("s_barrier")
        p(f"ds_read_b128 v[{FLR4}:{FLR4+3}], v{MXR}")
        p(f"v_max3_f32 v{TM}, v{FLR4}, v{FLR4+1}, v{FLR4+2}")
        p(f"v_max3_f32 v{TM}, v{TM}, v{FLR4+3}, 0")
        p(f"v_add_f32 v{TM2}, v{M}, v{TM}")
        p(f"v_and_b32 v{TM2}, s87, v{TM2}")
        p(f"v_sub_f32 v{TM}, v{TM2}, v{M}")
        p(f"v_mov_b32 v{M}, v{TM2}")
        p(f"v_sub_f32 v{AL}, 0, v{TM}")
        p(f"v_exp_f32 v{AL}, v{AL}")
        for v in dv: p(f"v_sub_f32 v{v}, v{v}, v{TM}")
        for r in range(24): p(f"v_mul_f32 v{ACC+r}, v{ACC+r}, v{AL}")
        p(f"v_mul_f32 v{L}, v{L}, v{AL}")
        p(f"v_mul_f32 v{Z}, v{Z}, v{AL}")
        exps()
        wpart()
        zpart()
        p("s_barrier")
        wx_reads()
        p("s_waitcnt lgkmcnt(0)")
        p("s_nop 7")
        p(f"{Lb}: ;@restore {Lb}")
        mark('unlock')
        p(f"v_add_f32 v{L}, v{L}, v{LS}")
        p(f"v_add_f32 v{Z}, v{Z}, v{ZS}")
        if opt.get("prof") == 6:
            mark('lock')
            p("s_memrealtime s[80:81]")
            p("s_sub_u32 s83, s100, 3")
            p("s_mov_b32 m0, s83")
            p("s_waitcnt lgkmcnt(0)")
            p("v_writelane_b32 v239, s80, m0")
            mark('unlock')
        mark('zend')
        pendC[0] = c_list(WRB[0], XTB[0]) + c_list(WRB[1], XTB[1])

    stamp = Prof(p, opt, 52, 80)
    sched = opt.get("sched", "A0 G00 A1 G11 A2 Q G22 D11 P140 D30 T Y D20 Z3 Z4 Z5 Z6 Z7 Z8 Z9")
    stamp("init")
    for tok in sched.replace("_", " ").split():
        if tok == "S":
            mark('log', 'S0'); qb_setup(); stamp("S")
        elif tok == "T":
            mark('log', 'T0'); qb_setup(True); stamp("S")
        elif tok == "Y":
            stage_B([0, 1, 2]); stage_C([0, 1, 2]); stamp("X012")
        elif tok == "Q": qk_issue()
        elif tok[0] == "I":
            mark('force', 15 * int(tok[1]) + int(tok[2:]))
        elif tok[0] == "D":
            mark('dmax', int(tok[1:]))
        elif tok[0] == "P":
            mark('gap', int(tok[1:]))
        elif tok[0] == "W":
            mark('until', int(tok[1:]) * 210)
        elif tok[0] == "B":
            s = int(tok[1])
            if len(pendC[0]) == 12:
                for r in range(216, 224): p(f"v_mov_b32 v{r}, 0")
                pendC[0] = pendC[0] + c_list(216, XTB[1])
            stage_B2(s)
        elif tok[0] == "Z":
            s = int(tok[1]); stage_F2(s, s == NS - 1)
            if not LOOP: stamp(tok)
        elif tok[0] in "AF":
            s = int(tok[1])
            if len(tok) == 3:
                stage_A(s, None, False, (int(tok[2]),))
                if tok[2] == "2" and s < 3: stamp(tok[:2])
            else:
                stage_A(s, None, tok[0] == "F")
                if tok[0] == "F":
                    stage_B([s]); stage_C([s])
                if tok[0] == "F" or s < 3: stamp(tok)
        elif tok[0] == "G":
            stage_G(int(tok[1]), int(tok[2]))
        elif tok[0] in "MX":
            tiles = [int(c) for c in tok[1:]]
            stage_M(tiles, tok[0] == "X"); stage_B(tiles); stage_C(tiles); stamp(tok)
        mark('log', tok)
    if LOOP:
        p(".set ZEND, 0")
        mark('lock')
        p("s_waitcnt vmcnt(0)")
        m2_publish()
        mark('lock')
        with Sub() as c_:
            xg_reduce(p, "v_add_f32", Z, TM2)
            p(f"ds_write_b32 v{MXW}, v{Z} offset:{LZ_OFF - MX_OFF}")
            xg_reduce(p, "v_add_f32", L, TM2)
            p(f"ds_write_b32 v{MXW}, v{L}")
            p(f"v_lshrrev_b32 v56, 2, v0")
            p(f"v_lshlrev_b32 v56, 14, v56")
            p(f"v_and_b32 v57, 3, v0")
            p(f"v_lshl_add_u32 v56, v57, 4, v56")
            p(f"s_mul_i32 s24, s20, {3*16*16384}")
            p("s_lshl_b32 s25, s2, 6")
            p("s_add_u32 s24, s24, s25")
            p(f"s_add_u32 s24, s24, {PART_OFF}")
            p(f"v_mov_b32 v{TM}, 0x00010001")
        merge(pendC[0], c_.items, lead=4, per=2); pendC[0] = None
        stamp("Z9")
    if opt.get("noload"):
        for L_ in loads[75:]: L_['ins'] = "s_nop 0" if opt["noload"] == 1 else ""
    body = p.items[stream_start:]
    sched_out = schedule_loads(body, loads, pace=opt.get("pace", 300), lat=opt.get("lat", 1500), dmax=opt.get("dmax", 7), verbose=True, policy=opt.get("policy", "dist"))
    p.items[stream_start:] = sched_out

    if opt.get("streamonly"):
        p("s_endpgm")
        return
    assert LOOP
    p("s_barrier")
    p(f"ds_read_b128 v[60:63], v{MXR} offset:{LZ_OFF - MX_OFF}")
    p(f"ds_read_b128 v[64:67], v{MXR}")
    p("v_add_f32 v60, v60, v61")
    p("v_add_f32 v62, v62, v63")
    p("v_add_f32 v60, v60, v62")
    p("v_mul_f32 v68, s45, v60")
    p("v_sub_f32 v68, 0, v68")
    p("v_mov_b32 v69, v68")
    for k in range(3):
        b = ACC + 8 * k
        for j in range(4): p(f"v_pk_add_f32 v[{b+2*j}:{b+2*j+1}], v[{b+2*j}:{b+2*j+1}], v[68:69]")
        for j in range(4): p(f"v_cvt_pk_bf16_f32 v{b+j}, v{b+2*j}, v{b+2*j+1}")
        for j in range(4): p(f"v_bfi_b32 v{b+j}, v{TM}, s{4+j}, v{b+j}")
        p(f"buffer_store_dwordx4 v[{b}:{b+3}], v56, s[16:19], s24 offen sc1")
        if k < 2: p(f"s_add_u32 s24, s24, {16*16384}")
    p("s_cmp_lg_u32 s20, 0")
    p(f"s_cbranch_scc1 {name}_red")
    p("v_add_f32 v64, v64, v65")
    p("v_add_f32 v66, v66, v67")
    p("v_add_f32 v65, v64, v66")
    p(f"v_mov_b32 v64, v{M}")
    p("v_mov_b32 v66, 0")
    p(f"v_mov_b32 v67, v{VTAG}")
    p("s_lshl_b32 s24, s2, 8")
    p(f"s_add_u32 s24, s24, {ML_OFF}")
    p("s_mov_b64 exec, 0xffff")
    p(f"buffer_store_dwordx4 v[64:67], v{VL16}, s[16:19], s24 offen sc1")
    p("s_mov_b64 exec, -1")
    p(f"{name}_red: ;@restore red")
    stamp("pub")
    p(f"s_cmp_ge_u32 s21, {NRED}")
    p(f"s_cbranch_scc1 {name}_sdone ;@nodrain")
    p("s_lshr_b32 s24, s21, 4")
    p("s_lshr_b32 s25, s21, 2")
    p("s_and_b32 s25, s25, 3")
    p("s_and_b32 s26, s21, 3")
    p("v_and_b32 v56, 3, v0")
    p(f"v_mov_b32 v58, v{VL16}")
    p("v_lshlrev_b32 v59, 2, v0")
    p("s_lshl_b32 s27, s21, 14")
    p("s_lshl_b32 s28, s20, 12")
    p("s_add_u32 s27, s27, s28")
    p(f"s_add_u32 s27, s27, {PART_OFF}")
    p("s_lshl_b32 s29, s20, 10")
    p("s_lshl_b32 s28, s26, 12")
    p("s_add_u32 s29, s29, s28")
    p(f"s_add_u32 s29, s29, {M2_OFF}")
    PM = 76; PP = 108; NP = 4
    RL = f"{name}_rr"
    gate = opt.get("gate", 0)
    p(f"s_mov_b32 s50, {(1 << NP) - 1}")
    p(f"s_mov_b32 s51, {(1 << NP) - 1}")
    p(f"s_mov_b32 s{S_SPIN}, 0")
    def m2_check(i, lbl):
        p(f"s_bitcmp0_b32 s50, {i}")
        p(f"s_cbranch_scc1 {lbl} ;@nodrain")
        p(f"v_xor_b32 v{PM+i}, v{PM+i}, v{VTAG}")
        p(f"v_and_b32 v60, s{S_MASK}, v{PM+i}")
        p("v_cmp_ne_u32 vcc, 0, v60")
        p(f"s_cbranch_vccnz {lbl} ;@nodrain")
        p(f"s_bitset0_b32 s50, {i}")
        p(f"{lbl}:")
    if opt.get("m2early", 1):
        for i in range(NP):
            p(f"buffer_load_dword v{PM+i}, v59, s[16:19], s29 offen offset:{256*i} sc1")
    if opt.get("ackwait", 1): p("s_waitcnt vmcnt(0)")
    if opt.get("m2early", 1):
        for i in range(NP): m2_check(i, f"{RL}_e{i}")
    stamp("ack")
    p(f"{RL}_loop:")
    p("s_andn2_b32 s47, s51, s50")
    p("s_bcnt1_i32_b32 s48, s50")
    p(f"s_cmp_le_u32 s48, {gate}")
    p("s_cselect_b32 s47, s51, s47")
    for i in range(NP):
        p(f"s_bitcmp0_b32 s50, {i}")
        p(f"s_cbranch_scc1 {RL}_a{i} ;@nodrain")
        p(f"buffer_load_dword v{PM+i}, v59, s[16:19], s29 offen offset:{256*i} sc1")
        p(f"{RL}_a{i}:")
        p(f"s_bitcmp0_b32 s47, {i}")
        p(f"s_cbranch_scc1 {RL}_b{i} ;@nodrain")
        p(f"buffer_load_dwordx4 v[{PP+4*i}:{PP+4*i+3}], v58, s[16:19], s27 offen offset:{1024*i} sc1")
        p(f"{RL}_b{i}:")
    p("s_waitcnt vmcnt(0)")
    for i in range(NP):
        p(f"s_bitcmp0_b32 s47, {i}")
        p(f"s_cbranch_scc1 {RL}_c{i} ;@nodrain")
        r = PP + 4 * i
        for j in range(4): p(f"v_xor_b32 v{r+j}, s{4+j}, v{r+j}")
        p(f"v_or3_b32 v60, v{r}, v{r+1}, v{r+2}")
        p(f"v_or_b32 v60, v60, v{r+3}")
        p("v_and_b32 v60, 0x00010001, v60")
        p("v_cmp_ne_u32 vcc, 0, v60")
        p(f"s_cbranch_vccnz {RL}_c{i} ;@nodrain")
        p(f"s_bitset0_b32 s51, {i}")
        p(f"{RL}_c{i}:")
        m2_check(i, f"{RL}_d{i}")
    p("s_or_b32 s48, s50, s51")
    p("s_cmp_eq_u32 s48, 0")
    p(f"s_cbranch_scc1 {RL}_done ;@nodrain")
    p(f"s_add_u32 s{S_SPIN}, s{S_SPIN}, 1")
    p(f"s_cmp_lt_u32 s{S_SPIN}, {SPIN_MAX}")
    p(f"s_cbranch_scc1 {RL}_loop ;@nodrain")
    if DIAG[0]:
        uid[0] += 1
        p("s_mov_b64 vcc, 1")
        diag_store(p, uid[0], "s50")
    p(f"{RL}_done:")
    p("s_nop 7")
    if opt.get("prof") == 1: p(f"s_mov_b32 s86, s{S_SPIN}")
    stamp("redin")
    MV, T = 61, 62
    p(f"v_max3_f32 v{MV}, v{PM}, v{PM+1}, v{PM+2}")
    p(f"v_max_f32 v{MV}, v{MV}, v{PM+3}")
    p("v_mov_b32 v63, 0x8000")
    A8 = 64
    p(f"v_max_f32_dpp v{MV}, v{MV}, v{MV} row_ror:4 row_mask:0xf bank_mask:0xf")
    for j in range(4):
        p(f"v_lshl_or_b32 v{140+2*j}, v{PP+j}, 16, v63")
        p(f"v_and_or_b32 v{141+2*j}, v{PP+j}, s44, v63")
    p(f"v_max_f32_dpp v{MV}, v{MV}, v{MV} row_ror:8 row_mask:0xf bank_mask:0xf")
    xg_reduce(p, "v_max_f32", MV, T)
    for i in range(NP): p(f"v_sub_f32 v{PM+i}, v{PM+i}, v{MV}")
    for i in range(NP): p(f"v_exp_f32 v{PM+i}, v{PM+i}")
    for i in range(NP):
        r = PP + 4 * i
        if i > 0:
            for j in range(4):
                p(f"v_lshl_or_b32 v{140+2*j}, v{r+j}, 16, v63")
                p(f"v_and_or_b32 v{141+2*j}, v{r+j}, s44, v63")
        for j in range(8):
            if i == 0: p(f"v_mul_f32 v{A8+j}, v{PM}, v{140+j}")
            else: p(f"v_fma_f32 v{A8+j}, v{PM+i}, v{140+j}, v{A8+j}")
    for j in range(4): p(f"v_permlane32_swap_b32 v{A8+j}, v{A8+j+4}")
    for j in range(4): p(f"v_add_f32 v{A8+j}, v{A8+j}, v{A8+j+4}")
    for j in range(2): p(f"v_permlane16_swap_b32 v{A8+j}, v{A8+j+2}")
    for j in range(2): p(f"v_add_f32 v{A8+j}, v{A8+j}, v{A8+j+2}")
    for j in range(2): p(f"v_add_f32_dpp v{A8+j}, v{A8+j}, v{A8+j} row_ror:4 row_mask:0xf bank_mask:0xf")
    p("v_lshlrev_b32 v72, 3, v0")
    p("s_lshl_b32 s28, s20, 9")
    p("v_add_u32 v73, s28, v72")
    for j in range(2): p(f"v_add_f32_dpp v{A8+j}, v{A8+j}, v{A8+j} row_ror:8 row_mask:0xf bank_mask:0xf")
    p("v_lshlrev_b32 v74, 2, v0")
    p("s_lshl_b32 s28, s20, 8")
    p("v_add_u32 v75, s28, v74")
    p(f"ds_write_b64 v73, v[{A8}:{A8+1}]")
    p(f"ds_write_b32 v75, v{MV} offset:2048")
    p("s_barrier")
    p("s_cmp_lg_u32 s20, 0")
    p(f"s_cbranch_scc1 {name}_sdone ;@nodrain")
    for v in range(4):
        p(f"ds_read_b32 v{84+v}, v74 offset:{2048 + 256*v}")
        p(f"ds_read_b64 v[{76+2*v}:{77+2*v}], v72 offset:{512*v}")
    p("v_lshrrev_b32 v66, 4, v0")
    p("v_lshlrev_b32 v66, 3, v66")
    p("v_lshl_add_u32 v66, v56, 5, v66")
    p("s_lshl_b32 s24, s21, 7")
    p(f"s_add_u32 s24, s24, {UF_OFF}")
    p("v_max3_f32 v61, v84, v85, v86")
    p("v_max_f32 v61, v61, v87")
    for v in range(4): p(f"v_sub_f32 v{84+v}, v{84+v}, v61")
    for v in range(4): p(f"v_exp_f32 v{84+v}, v{84+v}")
    for r in range(2): p(f"v_mul_f32 v{64+r}, v84, v{76+r}")
    for v in range(1, 4):
        for r in range(2): p(f"v_fma_f32 v{64+r}, v{84+v}, v{76+2*v+r}, v{64+r}")
    tag_regs(p, range(64, 66), VTAG)
    p("s_mov_b32 exec_lo, 0x000f000f")
    p("s_mov_b32 exec_hi, 0x000f000f")
    p("buffer_store_dwordx2 v[64:65], v66, s[16:19], s24 offen sc1")
    stamp("redout")
    p(f"{name}_sdone:")
    if stamp.on:
        p("s_cmp_lg_u32 s20, 0")
        p(f"s_cbranch_scc1 {name}_done ;@nodrain")
        stamp.dump("streamer")
    p("s_endpgm")

def gen_special(p, name, opt):
    if opt.get("streamonly"):
        p("s_endpgm"); return
    stamp = Prof(p, opt, 64, 92)
    VL16, VI, VG, VTAG, VAB = 1, 2, 3, 4, 5
    LA = list(range(216, 228))
    RS = 784
    TILE_LDS = 16 * RS
    p("s_load_dwordx2 s[4:5], s[0:1], 0")
    p("s_load_dwordx4 s[8:11], s[0:1], 24")
    p("s_load_dwordx4 s[12:15], s[0:1], 40")
    p("s_load_dwordx2 s[6:7], s[0:1], 56")
    p(f"v_lshlrev_b32 v{VL16}, 4, v0")
    p(f"v_and_b32 v{VI}, 15, v0")
    p(f"v_lshrrev_b32 v{VG}, 4, v0")
    p(f"v_mul_u32_u24 v{VAB}, {RS}, v{VI}")
    p(f"v_lshl_add_u32 v{VAB}, v{VG}, 4, v{VAB}")
    for a in range(12):
        p(f"v_add_u32 v6, {1024*a}, v{VL16}")
        p("v_lshrrev_b32 v7, 8, v6")
        p("v_mul_u32_u24 v7, 21846, v7")
        p("v_lshrrev_b32 v7, 16, v7")
        p(f"v_lshl_add_u32 v{LA[a]}, v7, 4, v6")
    p("s_waitcnt lgkmcnt(0)")
    p(f"s_load_dword s94, s[22:23], {N_OFF}")
    srd(p, 16, 22, WS_USED)
    srd(p, 24, 8, W_BYTES)
    srd(p, 28, 10, W_BYTES)
    srd(p, 32, 4, Q_BYTES)
    srd(p, 36, 12, W_BYTES)
    srd(p, 40, 14, W_BYTES)
    srd(p, 44, 6, Q_BYTES)
    aONE = 144
    ONES = f"a[{aONE}:{aONE+3}]"
    def consts():
        for r in range(4): mov64(p, 52 + 2 * r, sum(1 << (20 * g + r) for g in range(4)))
        p(f"s_mov_b32 s60, 0x{f2u(1.0 / C):08x}")
        p(f"s_mov_b32 s61, 0x{f2u(1e-5):08x}")
        p("v_mov_b32 v6, 0x3f803f80")
        for r in range(4): p(f"v_accvgpr_write_b32 a{aONE+r}, v6")
        p("s_waitcnt lgkmcnt(0)")
        p("s_add_u32 s94, s94, 1")
        p(f"s_and_b32 s{S_TAG}, s94, 0xff")
        p(f"v_mov_b32 v{VTAG}, s{S_TAG}")
    p("s_cmp_ge_u32 s100, 6")
    p(f"s_cbranch_scc1 {name}_st2")
    WQS = 64
    QS = 16
    LQ = 0
    LWQ = 12544
    p("v_lshrrev_b32 v7, 3, v0")
    p("v_and_b32 v8, 7, v0")
    p("v_mul_u32_u24 v9, 768, v7")
    p("v_lshl_add_u32 v9, v8, 4, v9")
    p("v_mul_u32_u24 v10, 144, v7")
    p("v_lshl_add_u32 v10, v8, 4, v10")
    p("s_mul_i32 s48, s20, 3072")
    for a in range(3):
        p(f"buffer_load_dwordx4 v[{QS+4*a}:{QS+4*a+3}], v{VL16}, s[32:35], s48 offen offset:{1024*a}")
    p("s_lshl_b32 s48, s100, 7")
    p(f"s_mul_i32 s49, s20, {96*768}")
    p("s_add_u32 s48, s48, s49")
    for a in range(12):
        p(f"buffer_load_dwordx4 v[{WQS+4*a}:{WQS+4*a+3}], v9, s[24:27], s48 offen")
        if a < 11: p(f"s_add_u32 s48, s48, {8*768}")
    consts()
    stamp("issued")
    p("s_mul_i32 s48, s20, 3136")
    for a in range(3):
        p(f"v_add_u32 v6, s48, v{LA[a]}")
        p(f"ds_write_b128 v6, v[{QS+4*a}:{QS+4*a+3}] offset:{LQ}")
    p("s_barrier")
    QFR = 16
    for ks in range(12):
        p(f"ds_read_b128 v[{QFR+4*ks}:{QFR+4*ks+3}], v{VAB} offset:{LQ + 64*ks}")
    for ks in range(12):
        q = f"v[{QFR+4*ks}:{QFR+4*ks+3}]"
        p(f"v_mfma_f32_16x16x32_bf16 v[116:119], {q}, {q}, {'0' if ks == 0 else 'v[116:119]'}")
        p(f"v_mfma_f32_16x16x32_bf16 v[112:115], {ONES}, {q}, {'0' if ks == 0 else 'v[112:115]'}")
    p(f"s_mul_i32 s48, s20, {96*144}")
    p("v_add_u32 v10, s48, v10")
    p("v_lshrrev_b32 v11, 2, v0")
    p("v_and_b32 v11, 3, v11")
    p(f"v_lshl_add_u32 v11, v{VG}, 3, v11")
    p("v_mul_u32_u24 v11, 144, v11")
    p("v_and_b32 v13, 3, v0")
    p("v_lshl_add_u32 v11, v13, 3, v11")
    p("s_lshl_b32 s48, s20, 5")
    p("v_add_u32 v11, s48, v11")
    p("v_cndmask_b32 v12, 0, v116, s[52:53]")
    for r in range(1, 4): p(f"v_cndmask_b32 v12, v12, v{116+r}, s[{52+2*r}:{53+2*r}]")
    p("v_mul_f32 v14, s60, v112")
    xg_reduce(p, "v_add_f32", 12, 13)
    p("v_mov_b32 v13, s61")
    p("v_fma_f32 v12, v12, s60, v13")
    p("v_fma_f32 v12, -v14, v14, v12")
    p("v_max_f32 v12, s61, v12")
    p("v_rsq_f32 v15, v12")
    for a in range(12):
        p(f"ds_write_b128 v10, v[{WQS+4*a}:{WQS+4*a+3}] offset:{LWQ + 8*144*a}")
    stamp("s1ld")
    p("s_barrier")
    stamp("s1bar")
    aWT = 0
    for ks in range(12):
        for h in range(2):
            p(f"ds_read_b64_tr_b16 a[{aWT+4*ks+2*h}:{aWT+4*ks+2*h+1}], v11 offset:{LWQ + 32*144*ks + 4*144*h}")
    for ks in range(12):
        a = f"a[{aWT+4*ks}:{aWT+4*ks+3}]"
        q = f"v[{QFR+4*ks}:{QFR+4*ks+3}]"
        p(f"v_mfma_f32_16x16x32_bf16 v[120:123], {a}, {q}, {'0' if ks == 0 else 'v[120:123]'}")
        p(f"v_mfma_f32_16x16x32_bf16 v[124:127], {a}, {ONES}, {'0' if ks == 0 else 'v[124:127]'}")
    stamp("s1mf")
    for r in range(4): p(f"v_fma_f32 v{120+r}, -v14, v{124+r}, v{120+r}")
    for r in range(4): p(f"v_mul_f32 v{120+r}, v{120+r}, v15")
    tag_regs(p, range(120, 124), VTAG)
    p("s_lshl_b32 s48, s100, 2")
    p("s_add_u32 s48, s48, s20")
    p("s_lshl_b32 s48, s48, 10")
    p(f"s_add_u32 s48, s48, {QF_OFF}")
    p(f"buffer_store_dwordx4 v[120:123], v{VL16}, s[16:19], s48 offen sc1")
    stamp("st1")
    p(f"s_branch {name}_sp_w")
    p(f"{name}_st2: ;@restore st2")
    WKS = 64
    p("s_sub_u32 s21, s100, 6")
    p("s_lshl_b32 s21, s21, 2")
    p("s_add_u32 s21, s21, s20")
    p("s_mul_i32 s48, s21, 12288")
    for a in range(12):
        if a % 4 == 0 and a: p("s_add_u32 s48, s48, 4096")
        p(f"buffer_load_dwordx4 v[{WKS+4*a}:{WKS+4*a+3}], v{VL16}, s[28:31], s48 offen offset:{1024*(a%4)}")
    consts()
    stamp("issued")
    LWK = 0
    LQB = 4 * TILE_LDS
    p(f"s_mul_i32 s48, s20, {TILE_LDS}")
    for a in range(12):
        p(f"v_add_u32 v6, s48, v{LA[a]}")
        p(f"ds_write_b128 v6, v[{WKS+4*a}:{WKS+4*a+3}] offset:{LWK}")
    p(f"v_add_u32 v7, s48, v{VAB}")
    aWK = 48
    for ks in range(12):
        p(f"ds_read_b128 a[{aWK+4*ks}:{aWK+4*ks+3}], v7 offset:{LWK + 64*ks}")
    QR = 120
    loads = ["s_mul_i32 s48, s20, 6144", f"s_add_u32 s48, s48, {QF_OFF}", "s_add_u32 s49, s48, 4096"]
    for q in range(6):
        so, off = ("s48", 1024 * q) if q < 4 else ("s49", 1024 * (q - 4))
        loads.append(f"buffer_load_dwordx4 v[{QR+4*q}:{QR+4*q+3}], v{VL16}, s[16:19], {so} offen offset:{off} sc1")
    poll_block(p, name, loads, list(range(QR, QR + 24)), VTAG, 12, sleep=0)
    stamp("qf_in")
    p(f"v_lshrrev_b32 v7, 1, v{VG}")
    p("v_lshlrev_b32 v7, 8, v7")
    p(f"v_lshl_add_u32 v7, v{VI}, 4, v7")
    p(f"v_and_b32 v8, 1, v{VG}")
    p("v_lshl_add_u32 v7, v8, 3, v7")
    p("s_mul_i32 s48, s20, 3072")
    p("v_add_u32 v7, s48, v7")
    for q in range(6):
        p(f"v_cvt_pk_bf16_f32 v{QR+4*q}, v{QR+4*q}, v{QR+4*q+1}")
        p(f"v_cvt_pk_bf16_f32 v{QR+4*q+1}, v{QR+4*q+2}, v{QR+4*q+3}")
        p(f"ds_write_b64 v7, v[{QR+4*q}:{QR+4*q+1}] offset:{LQB + 512*q}")
    p("s_barrier")
    stamp("s2bar")
    for pp in range(12):
        p(f"ds_read_b128 v[{16+4*pp}:{19+4*pp}], v{VL16} offset:{LQB + 1024*pp}")
    for pp in range(12):
        p(f"v_mfma_f32_16x16x32_bf16 v[112:115], a[{aWK+4*pp}:{aWK+4*pp+3}], v[{16+4*pp}:{19+4*pp}], {'0' if pp == 0 else 'v[112:115]'}")
    for r in range(4): p(f"v_mul_f32 v{112+r}, 0x{f2u(SCALE*LOG2E):08x}, v{112+r}")
    tag_regs(p, range(112, 116), VTAG)
    p("s_lshl_b32 s48, s21, 10")
    p(f"s_add_u32 s48, s48, {QKF_OFF}")
    p(f"buffer_store_dwordx4 v[112:115], v{VL16}, s[16:19], s48 offen sc1")
    stamp("st2")
    p(f"{name}_sp_w:")
    p("s_waitcnt lgkmcnt(0)")
    p("s_nop 7")
    p("s_nop 7")
    p("s_barrier")
    tagpat(p, 4)
    for j in range(4): p(f"v_mov_b32 v{12+j}, s{4+j}")
    p("v_lshrrev_b32 v17, 2, v0")
    p("v_lshlrev_b32 v17, 14, v17")
    p("v_and_b32 v18, 3, v0")
    p("v_lshl_add_u32 v17, v18, 4, v17")
    p(f"s_mul_i32 s48, s20, {3*16*16384}")
    p("s_lshl_b32 s49, s2, 6")
    p("s_add_u32 s48, s48, s49")
    p(f"s_add_u32 s48, s48, {PART_OFF}")
    for k in range(3):
        p("buffer_store_dwordx4 v[12:15], v17, s[16:19], s48 offen sc1")
        if k < 2: p(f"s_add_u32 s48, s48, {16*16384}")
    p("v_mov_b32 v16, 0xf149f2ca")
    p("v_mov_b32 v17, 0")
    p("v_mov_b32 v18, 0")
    p(f"v_mov_b32 v19, v{VTAG}")
    p("s_lshl_b32 s48, s2, 8")
    p("s_lshl_b32 s49, s20, 6")
    p("s_add_u32 s48, s48, s49")
    p(f"s_add_u32 s48, s48, {ML_OFF}")
    p("s_mov_b64 exec, 0xf")
    p(f"buffer_store_dwordx4 v[16:19], v{VL16}, s[16:19], s48 offen sc1")
    p(f"v_bfi_b32 v17, s{S_MASK}, v{VTAG}, v16")
    p(f"v_lshrrev_b32 v18, 2, v{VL16}")
    p("s_lshl_b32 s48, s20, 12")
    p("s_lshl_b32 s49, s2, 4")
    p("s_add_u32 s48, s48, s49")
    p(f"s_add_u32 s48, s48, {M2_OFF}")
    p("buffer_store_dword v17, v18, s[16:19], s48 offen sc1")
    p("s_mov_b64 exec, -1")
    NE = 2
    LWO = 4 * 2 * TILE_LDS
    WRS = 80
    p("v_lshrrev_b32 v7, 2, v0")
    p("v_and_b32 v8, 3, v0")
    p("v_mul_u32_u24 v9, 768, v7")
    p("v_lshl_add_u32 v9, v8, 4, v9")
    p(f"v_mul_u32_u24 v10, {WRS}, v7")
    p("v_lshl_add_u32 v10, v8, 4, v10")
    p("s_lshl_b32 s48, s100, 6")
    p(f"s_mul_i32 s49, s20, {96*768}")
    p("s_add_u32 s48, s48, s49")
    for a in range(6):
        p(f"buffer_load_dwordx4 v[{20+4*a}:{23+4*a}], v9, s[40:43], s48 offen")
        if a < 5: p(f"s_add_u32 s48, s48, {16*768}")
    WVS = 64
    def wv_load(tile):
        b = WVS + 48 * (tile & 1)
        p(f"s_mul_i32 s50, s20, {6*12288}")
        p(f"s_add_u32 s50, s50, {tile*12288}")
        for a in range(12):
            if a % 4 == 0 and a: p("s_add_u32 s50, s50, 4096")
            p(f"buffer_load_dwordx4 v[{b+4*a}:{b+4*a+3}], v{VL16}, s[36:39], s50 offen offset:{1024*(a%4)}")
    wv_load(0); wv_load(1)
    p(f"s_mul_i32 s49, s20, {96*WRS}")
    p("v_add_u32 v10, s49, v10")
    p(f"v_add_u32 v10, {LWO}, v10")
    for a in range(6):
        p(f"ds_write_b128 v10, v[{20+4*a}:{23+4*a}] offset:{16*WRS*a}")
    p("s_barrier")
    p("v_lshrrev_b32 v10, 2, v0")
    p("v_and_b32 v10, 3, v10")
    p(f"v_lshl_add_u32 v10, v{VG}, 3, v10")
    p(f"v_mul_u32_u24 v10, {WRS}, v10")
    p("v_and_b32 v11, 3, v0")
    p("v_lshl_add_u32 v10, v11, 3, v10")
    p(f"v_add_u32 v10, {LWO}, v10")
    for e in range(NE):
        for ks in range(12):
            for h in range(2):
                p(f"ds_read_b64_tr_b16 a[{48*e+4*ks+2*h}:{48*e+4*ks+2*h+1}], v10 offset:{32*e + 32*WRS*ks + 4*WRS*h}")
    p(f"s_mul_i32 s63, s20, {TILE_LDS}")
    for a in range(12): p(f"v_add_u32 v{LA[a]}, s63, v{LA[a]}")
    p(f"v_add_u32 v{VAB}, s63, v{VAB}")
    WF = 160
    DW = 20
    aXV = 96
    for tile in range(6):
        b = WVS + 48 * (tile & 1)
        for a in range(12): p(f"ds_write_b128 v{LA[a]}, v[{b+4*a}:{b+4*a+3}]")
        if tile + 2 < 6: wv_load(tile + 2)
        for ks in range(12): p(f"ds_read_b128 a[{aXV+4*ks}:{aXV+4*ks+3}], v{VAB} offset:{64*ks}")
        for ks in range(12):
            for e in range(NE):
                d = DW + 8 * e + 4 * (tile & 1)
                p(f"v_mfma_f32_16x16x32_bf16 v[{d}:{d+3}], a[{aXV+4*ks}:{aXV+4*ks+3}], a[{48*e+4*ks}:{48*e+4*ks+3}], {'0' if ks == 0 else f'v[{d}:{d+3}]'}")
        if tile & 1:
            for e in range(NE):
                w = WF + 12 * e + 4 * (tile >> 1)
                for k in range(4):
                    p(f"v_cvt_pk_bf16_f32 v{w+k}, v{DW+8*e+2*k}, v{DW+8*e+2*k+1}")
    stamp("wvo")
    p(f"v_mul_u32_u24 v7, 768, v{VI}")
    p(f"v_lshl_add_u32 v7, v{VG}, 3, v7")
    p("s_lshl_b32 s62, s100, 1")
    p("s_and_b32 s48, s20, 1")
    p("s_add_u32 s62, s62, s48")
    p("s_lshl_b32 s62, s62, 5")
    p("buffer_load_dwordx2 v[56:57], v7, s[32:35], s62 offen")
    PM = 64
    FL = f"{name}_fm"
    p("s_lshl_b32 s63, s20, 14")
    p(f"s_add_u32 s63, s63, {ML_OFF}")
    p(f"s_mov_b32 s{S_SPIN}, 0")
    p(f"s_add_u32 s48, s63, {1024*15}")
    p(f"{FL}_pre:")
    p(f"buffer_load_dwordx4 v[{PM}:{PM+3}], v{VL16}, s[16:19], s48 offen sc1")
    p("s_waitcnt vmcnt(0)")
    p(f"v_xor_b32 v12, v{PM+3}, v{VTAG}")
    p(f"v_and_b32 v12, s{S_MASK}, v12")
    p("v_cmp_ne_u32 vcc, 0, v12")
    p(f"s_cbranch_vccz {FL}_go ;@nodrain")
    p("s_sleep 6")
    p(f"s_add_u32 s{S_SPIN}, s{S_SPIN}, 1")
    p(f"s_cmp_lt_u32 s{S_SPIN}, {SPIN_MAX}")
    p(f"s_cbranch_scc1 {FL}_pre ;@nodrain")
    p(f"{FL}_go:")
    p("s_mov_b32 s50, 0xffff")
    p(f"s_mov_b32 s{S_SPIN}, 0")
    p(f"{FL}_loop:")
    for i in range(16):
        p(f"s_bitcmp0_b32 s50, {i}")
        p(f"s_cbranch_scc1 {FL}_a{i} ;@nodrain")
        p(f"s_add_u32 s48, s63, {1024*i}")
        p(f"buffer_load_dwordx4 v[{PM+4*i}:{PM+4*i+3}], v{VL16}, s[16:19], s48 offen sc1")
        p(f"{FL}_a{i}:")
    p("s_waitcnt vmcnt(0)")
    for i in range(16):
        p(f"s_bitcmp0_b32 s50, {i}")
        p(f"s_cbranch_scc1 {FL}_c{i} ;@nodrain")
        p(f"v_xor_b32 v12, v{PM+4*i+3}, v{VTAG}")
        p(f"v_and_b32 v12, s{S_MASK}, v12")
        p("v_cmp_ne_u32 vcc, 0, v12")
        p(f"s_cbranch_vccnz {FL}_c{i} ;@nodrain")
        p(f"s_bitset0_b32 s50, {i}")
        p(f"{FL}_c{i}:")
    p("s_cmp_eq_u32 s50, 0")
    p(f"s_cbranch_scc1 {FL}_done ;@nodrain")
    p(f"s_add_u32 s{S_SPIN}, s{S_SPIN}, 1")
    p(f"s_cmp_lt_u32 s{S_SPIN}, {SPIN_MAX}")
    p(f"s_cbranch_scc1 {FL}_loop ;@nodrain")
    p(f"{FL}_done:")
    p("s_nop 7")
    stamp("ml_in")
    MV, T = 8, 9
    p(f"v_max3_f32 v{MV}, v{PM}, v{PM+4}, v{PM+8}")
    for i in range(3, 15, 2): p(f"v_max3_f32 v{MV}, v{MV}, v{PM+4*i}, v{PM+4*i+4}")
    p(f"v_max_f32 v{MV}, v{MV}, v{PM+60}")
    xg_reduce(p, "v_max_f32", MV, T)
    for i in range(16): p(f"v_sub_f32 v{PM+4*i}, v{PM+4*i}, v{MV}")
    for i in range(16): p(f"v_exp_f32 v{PM+4*i}, v{PM+4*i}")
    p(f"v_mul_f32 v13, v{PM}, v{PM+1}")
    for i in range(1, 16):
        p(f"v_fma_f32 v13, v{PM+4*i}, v{PM+4*i+1}, v13")
    xg_reduce(p, "v_add_f32", 13, T)
    p("v_mov_b32 v14, 0")
    p(f"v_mov_b32 v12, v{MV}")
    p("v_mov_b32 v15, 0")
    LX = 0
    p("s_barrier")
    p(f"v_lshlrev_b32 v9, 6, v{VI}")
    p("s_lshl_b32 s48, s20, 4")
    p("v_add_u32 v8, s48, v9")
    p(f"ds_write_b128 v8, v[12:15] offset:{LX}")
    p("s_barrier")
    for v in range(4): p(f"ds_read_b128 v[{64+4*v}:{67+4*v}], v9 offset:{LX + 16*v}")
    p("v_max3_f32 v8, v64, v68, v72")
    p("v_max_f32 v8, v8, v76")
    for v in range(4): p(f"v_sub_f32 v{64+4*v}, v{64+4*v}, v8")
    for v in range(4): p(f"v_exp_f32 v{64+4*v}, v{64+4*v}")
    p("v_mul_f32 v13, v64, v65")
    for v in range(1, 4):
        p(f"v_fma_f32 v13, v{64+4*v}, v{65+4*v}, v13")
    p("v_rcp_f32 v13, v13")
    UR = 64
    p(f"v_lshlrev_b32 v10, 1, v{VL16}")
    loads = ["s_mul_i32 s48, s20, 6144", f"s_add_u32 s48, s48, {UF_OFF}", "s_add_u32 s49, s48, 4096"]
    for pr in range(3):
        for h in range(2):
            so, off = ("s48", 2048 * pr + 16 * h) if pr < 2 else ("s49", 16 * h)
            loads.append(f"buffer_load_dwordx4 v[{UR+8*pr+4*h}:{UR+8*pr+4*h+3}], v10, s[16:19], {so} offen offset:{off} sc1")
    poll_block(p, name, loads, list(range(UR, UR + 24)), VTAG, 12, sleep=0)
    stamp("u_in")
    for pr in range(3):
        for k in range(4):
            p(f"v_cvt_pk_bf16_f32 v{96+4*pr+k}, v{UR+8*pr+2*k}, v{UR+8*pr+2*k+1}")
    for pr in range(3):
        for e in range(NE):
            w = WF + 12 * e + 4 * pr
            d = 20 + 4 * e
            p(f"v_mfma_f32_16x16x32_bf16 v[{d}:{d+3}], v[{w}:{w+3}], v[{96+4*pr}:{99+4*pr}], {'0' if pr == 0 else f'v[{d}:{d+3}]'}")
    LF = 4096
    p("s_lshl_b32 s48, s20, 10")
    p(f"v_add_u32 v8, s48, v{VL16}")
    for e in range(NE): p(f"ds_write_b128 v8, v[{20+4*e}:{23+4*e}] offset:{LF + 4096*e}")
    p("s_barrier")
    p(f"s_cmp_ge_u32 s20, {NE}")
    p(f"s_cbranch_scc1 {name}_done ;@nodrain")
    p("s_lshl_b32 s48, s20, 12")
    p(f"v_add_u32 v8, s48, v{VL16}")
    for v in range(4): p(f"ds_read_b128 v[{64+4*v}:{67+4*v}], v8 offset:{LF + 1024*v}")
    p("v_lshlrev_b32 v80, 16, v56")
    p("v_and_b32 v81, 0xffff0000, v56")
    p("v_lshlrev_b32 v82, 16, v57")
    p("v_and_b32 v83, 0xffff0000, v57")
    for r in range(4):
        p(f"v_add_f32 v{64+r}, v{64+r}, v{68+r}")
        p(f"v_add_f32 v{72+r}, v{72+r}, v{76+r}")
        p(f"v_add_f32 v{64+r}, v{64+r}, v{72+r}")
        p(f"v_fma_f32 v{64+r}, v{64+r}, v13, v{80+r}")
    p("v_cvt_pk_bf16_f32 v64, v64, v65")
    p("v_cvt_pk_bf16_f32 v65, v66, v67")
    p("buffer_store_dwordx2 v[64:65], v7, s[44:47], s62 offen" + (" sc1" if opt.get("wt", 1) else ""))
    p("s_add_u32 s48, s100, s20")
    p("s_cmp_lg_u32 s48, 0")
    p(f"s_cbranch_scc1 {name}_spe ;@nodrain")
    p("v_mov_b32 v8, s94")
    p(f"v_mov_b32 v9, {N_OFF}")
    p("s_mov_b64 exec, 1")
    p("buffer_store_dword v8, v9, s[16:19], 0 offen" + (" sc1" if opt.get("wt", 1) else ""))
    p(f"{name}_spe:")
    if stamp.on:
        p("s_cmp_lg_u32 s20, 0")
        p(f"s_cbranch_scc1 {name}_done ;@nodrain")
        p("s_waitcnt vmcnt(0)")
        stamp("end")
        stamp.dump("special")

BAL = [1]
ALIGN = [0]
def fold_loop(body, name):
    idx = {}
    for i, l in enumerate(body):
        m = re.match(r"\s*\.set (ZB\d|ZEND), 0", l)
        if m: idx[m.group(1)] = i
    if "ZB4" not in idx: return [l for l in body if not l.strip().startswith(".set Z")]
    def seg(a, b):
        out = []
        for l in body[idx[a]:idx[b]]:
            if l.strip().startswith(".set Z"): continue
            out.append(l)
        return out
    def norm(ls): return [re.sub(r"_lz\d+", "_lzN", l) for l in ls]
    s1, s2, s3 = seg("ZB4", "ZB6"), seg("ZB6", "ZB8"), seg("ZB8", "ZEND")
    for a, b, nm in ((s1, s2, "Z6Z7"), (s1, s3, "Z8Z9")):
        na, nb = norm(a), norm(b)
        if na != nb:
            for i, (x, y) in enumerate(zip(na, nb)):
                if x != y:
                    print("loop segments differ at", nm, i, na[max(0, i-3):i+3], nb[max(0, i-3):i+3]); break
            raise Exception("segments not periodic: %d %d" % (len(na), len(nb)))
    pre = [l for l in body[:idx["ZB4"]] if not l.strip().startswith(".set Z")]
    post = [l for l in body[idx["ZEND"]:] if not l.strip().startswith(".set Z")]
    if "ZB5" in idx: h1 = seg("ZB4", "ZB5"); h2 = seg("ZB5", "ZB6")
    else: h1 = seg("ZB4", "ZB6"); h2 = []
    mid = []
    if BAL[0]:
        mid = ["  s_sub_u32 s48, s101, 2", "  s_or_b32 s48, s48, s97", "  s_cmp_eq_u32 s48, 0", f"  s_cbranch_scc1 {name}_zexit"]
    al = []
    if ALIGN[0] >= 1: al = ["  .p2align 6"] + ["  s_nop 0"] * (ALIGN[0] - 1)
    loop = al + [f"{name}_zloop:"] + h1 + mid + h2 + ["  s_add_u32 s101, s101, 1", "  s_cmp_lt_u32 s101, 3", f"  s_cbranch_scc1 {name}_zloop", f"{name}_zexit:"]
    print("folded loop: body", len(s1), "instructions")
    return pre + loop + post

def kernel_text(name, p):
    body = fold_loop(p.finalize(True), name)
    return [f".globl {name}", ".p2align 8", f".type {name},@function", f"{name}:"] + body

def kd_text(name, info):
    return [".p2align 6", f".amdhsa_kernel {name}", f"  .amdhsa_next_free_vgpr {info['vgpr']}", "  .amdhsa_next_free_sgpr 102",
            f"  .amdhsa_accum_offset {info['accum']}", "  .amdhsa_group_segment_fixed_size 0", "  .amdhsa_kernarg_size 80",
            "  .amdhsa_user_sgpr_count 2", "  .amdhsa_user_sgpr_kernarg_segment_ptr 1", "  .amdhsa_system_sgpr_workgroup_id_x 1",
            "  .amdhsa_float_denorm_mode_32 3", ".end_amdhsa_kernel"]

HEADER = open("standalone__detection_seg_dino__vision.s.ref").read().split("; Override launch")[0]

def build(path, opt):
    ALIGN[0] = opt.get("align", 0)
    DIAG[0] = bool(opt.get("diag"))
    BAL[0] = opt.get("bal", 0) == 1 and opt.get("loop", 1)
    global SPIN_MAX
    SPIN_MAX = opt.get("spin", SPIN_MAX)
    name = "standalone__detection_seg_dino__vision_kernel"
    p, info = gen_kernel(name, opt)
    text = kernel_text(name, p)
    desc = """; Generated by my own generator script (gen10.py + dsl.py: straight-line emitter with automatic s_waitcnt / wait-state insertion).
;   Qk = (LN(q) Wq) Wk^T ; logits = rstd * (x.Qk - sum(x) * mean(Qk)) ; U = sum_pixels softmax * rstd * x, centred ; out = q + U (Wv Wo) / L
"""
    out = (HEADER.rstrip() + "\n" + f"; @launch grid=({info['grid']},1,1) block=({info['block']},1,1) lds={info['lds']}\n" + desc
           + '.amdgcn_target "amdgcn-amd-amdhsa--gfx950"\n.text\n' + "\n".join(text) + '\n.section .rodata,"a"\n' + "\n".join(kd_text(name, info)) + "\n")
    open(path, "w").write(out)

if __name__ == "__main__":
    opt = {}
    path = sys.argv[1] if len(sys.argv) > 1 else "k2.s"
    for a in sys.argv[2:]:
        k, v = a.split("=", 1)
        opt[k] = int(v) if v.lstrip('-').isdigit() else v
    build(path, opt)
    if LABELS:
        import json
        json.dump(LABELS, open(path[:-2] + ".labels.json", "w"))
```
